```python
import torch

def _softmax(x, axis=-1):
    return torch.softmax(x, dim=axis)
def _gelu(x):
    return torch.nn.functional.gelu(x, approximate="tanh")
def _silu(x):
    return torch.nn.functional.silu(x)
def _sigmoid(x):
    return torch.sigmoid(x)
def _layernorm(x, axis=-1, eps=1e-5):
    m = x.mean(dim=axis, keepdim=True)
    v = x.var(dim=axis, keepdim=True, unbiased=False)
    return (x - m) / torch.sqrt(v + eps)
def _scatter_add(tgt, idx, src, axis=0):
    return tgt.clone().index_add_(axis, idx, src)
def _segment_sum(src, seg, n):
    out = torch.zeros((n,) + src.shape[1:], dtype=src.dtype)
    return out.index_add_(0, seg, src)
def _pad(x, pw):
    flat = tuple(v for pair in reversed(pw) for v in pair)
    return torch.nn.functional.pad(x, flat)

kernel_name = 'concat_heads__mha_block__softmax_full_mha__prompt'

def setup_inputs():

    _w = (lambda a: (lambda t: t.to(torch.bfloat16) if t.is_floating_point() else t)(torch.as_tensor(a)))
    def _A_setup():
        B, S, D, H = 1, 2048, 1024, 32
        return {
            "x": _w((lambda *s: torch.randn(*s, dtype=torch.bfloat16) * 0.2)(B, S, D)),
            "wqkv": _w((lambda *s: torch.randn(*s, dtype=torch.bfloat16) * 0.2)(D, 3 * D)),
            "wo": _w((lambda *s: torch.randn(*s, dtype=torch.bfloat16) * 0.05)(D, D)),
        }
    _A_in = _A_setup()

    def _B_setup():
        B, S, D = 1, 2048, 1024
        return {
            "x": _w((lambda *s: torch.randn(*s, dtype=torch.bfloat16) * 0.2)(B, S, D)),
            "wqkv": _w((lambda *s: torch.randn(*s, dtype=torch.bfloat16) * 0.2)(D, 3 * D)),
            "wo": _w((lambda *s: torch.randn(*s, dtype=torch.bfloat16) * 0.05)(D, D)),
        }
    _B_in = _B_setup()

    return {
        "A_x": _A_in["x"],
        "A_wqkv": _A_in["wqkv"],
        "A_wo": _A_in["wo"],
        "B_x": _B_in["x"],
        "B_wqkv": _B_in["wqkv"],
        "B_wo": _B_in["wo"],
    }

def reference(A_x, A_wqkv, A_wo, B_x, B_wqkv, B_wo):
    def _A_ref(x, wqkv, wo):
        B, S, D = x.shape
        H = 32
        Dh = D // H
        qkv = (lambda x, *d: x.permute(*d))((x @ wqkv).reshape(B, S, 3, H, Dh), 2, 0, 3, 1, 4)
        q, k, v = qkv[0], qkv[1], qkv[2]
        scores = torch.einsum("bhqd,bhkd->bhqk", q, k) * (Dh ** -0.5)
        p = _softmax(scores, axis=-1)
        o = torch.einsum("bhqk,bhkd->bhqd", p, v)
        return (lambda x, *d: x.permute(*d))(o, 0, 2, 1, 3).reshape(B, S, D) @ wo

    def _B_ref(x, wqkv, wo):
        B, S, D = x.shape
        H = 32; Dh = D // H
        qkv = (lambda x, *d: x.permute(*d))((x @ wqkv).reshape(B, S, 3, H, Dh), 2, 0, 3, 1, 4)
        q, k, v = qkv[0], qkv[1], qkv[2]
        scale = Dh ** -0.5
        scores = torch.einsum("bhqd,bhkd->bhqk", q, k) * scale
        p = _softmax(scores, axis=-1)
        o = torch.einsum("bhqk,bhkd->bhqd", p, v)
        return (lambda x, *d: x.permute(*d))(o, 0, 2, 1, 3).reshape(B, S, D) @ wo

    a = _A_ref(A_x, A_wqkv, A_wo)
    b = _B_ref(B_x, B_wqkv, B_wo)
    return torch.concatenate([a, b], axis=-1)
```

```python
import sys, json

def gen_kernel(name, init, body, iters, vgprs=256, agpr=0):
    L = []
    A = L.append
    A(f".globl {name}")
    A(".p2align 8")
    A(f".type {name},@function")
    A(f"{name}:")
    A("  s_load_dwordx2 s[4:5], s[0:1], 0")
    A("  s_waitcnt lgkmcnt(0)")
    A("  s_mov_b32 s8, s4")
    A("  s_mov_b32 s9, s5")
    A("  s_mov_b32 s10, 0x1000000")
    A("  s_mov_b32 s11, 0x00020000")
    A("  v_mov_b32 v127, v0")
    for i in range(1, min(vgprs, 256)):
        if i == 127: continue
        A(f"  v_mov_b32 v{i}, 0x3c003c00" if i % 2 else f"  v_mov_b32 v{i}, 0xbc003c00")
    for l in init:
        A("  " + l)
    A(f"  s_mov_b32 s20, {iters}")
    A("  s_barrier")
    A("  s_memtime s[12:13]")
    A("  s_memrealtime s[24:25]")
    A("  s_waitcnt lgkmcnt(0)")
    A("  .p2align 6")
    A(f"L_{name}:")
    for l in body:
        A("  " + l)
    A("  s_sub_u32 s20, s20, 1")
    A("  s_cmp_lg_u32 s20, 0")
    A(f"  s_cbranch_scc1 L_{name}")
    A("  s_nop 15")
    A("  s_nop 15")
    A("  s_memtime s[14:15]")
    A("  s_memrealtime s[26:27]")
    A("  s_waitcnt lgkmcnt(0)")
    A("  s_sub_u32 s16, s14, s12")
    A("  s_sub_u32 s17, s26, s24")
    A("  v_lshrrev_b32 v1, 6, v127")
    A("  s_lshl_b32 s18, s2, 4")
    A("  v_add_u32 v1, s18, v1")
    A("  v_lshlrev_b32 v1, 3, v1")
    A("  v_mov_b32 v2, s16")
    A("  v_mov_b32 v3, s17")
    A("  v_and_b32 v4, 63, v127")
    A("  v_cmp_eq_u32 vcc, 0, v4")
    A("  s_and_saveexec_b64 s[22:23], vcc")
    A("  buffer_store_dwordx2 v[2:3], v1, s[8:11], 0 offen")
    A("  s_waitcnt vmcnt(0)")
    A("  s_endpgm")
    kd = f""".amdhsa_kernel {name}
  .amdhsa_next_free_vgpr {vgprs+agpr}
  .amdhsa_next_free_sgpr 102
  .amdhsa_accum_offset {vgprs}
  .amdhsa_group_segment_fixed_size 0
  .amdhsa_kernarg_size 8
  .amdhsa_user_sgpr_count 2
  .amdhsa_user_sgpr_kernarg_segment_ptr 1
  .amdhsa_system_sgpr_workgroup_id_x 1
.end_amdhsa_kernel"""
    md = f"""  - .name: {name}
    .symbol: {name}.kd
    .kernarg_segment_size: 8
    .kernarg_segment_align: 8
    .group_segment_fixed_size: 0
    .private_segment_fixed_size: 0
    .wavefront_size: 64
    .sgpr_count: 102
    .vgpr_count: {vgprs+agpr}
    .max_flat_workgroup_size: 1024
    .args:
      - {{.name: kernargs, .size: 8, .offset: 0, .value_kind: by_value}}"""
    return "\n".join(L), kd, md

def build(tests, path):
    text = ['.amdgcn_target "amdgcn-amd-amdhsa--gfx950"', ".text"]
    kds, mds = [], []
    for t in tests:
        c, kd, md = gen_kernel(t["name"], t.get("init", []), t["body"], t["iters"], t.get("vgprs", 256), t.get("agpr", 0))
        text.append(c); kds.append(".p2align 6\n" + kd); mds.append(md)
    text.append('.section .rodata,"a"')
    text += kds
    text.append(".amdgpu_metadata\n---\namdhsa.version: [1, 2]\namdhsa.kernels:")
    text += mds
    text.append("...\n.end_amdgpu_metadata")
    open(path, "w").write("\n".join(text) + "\n")
    json.dump([{k: t[k] for k in t if k in ("name", "iters", "units", "waves", "lds", "grid")} for t in tests], open(path + ".json", "w"))
```

```python
from mbgen import build
T = []
def ex(i): return f"v_exp_f32 v{16+i%32}, v{50+i%32}"
def cv(i): return f"v_cvt_pk_bf16_f32 v{84+i%16}, v{50+i%32}, v{51+i%32}"
def mf32(i): return f"v_mfma_f32_32x32x16_bf16 a[{(i%4)*16}:{(i%4)*16+15}], v[4:7], v[8:11], a[{(i%4)*16}:{(i%4)*16+15}]"
def sm32(i): return f"v_smfmac_f32_32x32x32_bf16 a[{(i%2)*16+64}:{(i%2)*16+15+64}], v[4:7], v[100:107], v12"
def sm32s(i): return f"v_smfmac_f32_32x32x32_bf16 a[64:79], v[4:7], v[100:107], v12"
def sm16(i): return f"v_smfmac_f32_16x16x64_bf16 a[{96+(i%4)*4}:{96+(i%4)*4+3}], v[4:7], v[100:107], v12"
def sm16s(i): return f"v_smfmac_f32_16x16x64_bf16 a[96:99], v[4:7], v[100:107], v12"
def add(name, body, units, waves=[4,8], iters=300):
    T.append(dict(name=name, body=body, iters=iters, units=units, waves=waves, vgprs=128, agpr=128, init=["v_mov_b32 v12, 0xdddddddd"]))
add("sm32_only", [sm32(i) for i in range(64)], 64)
add("sm32s_only", [sm32s(i) for i in range(64)], 64)
add("sm16_only", [sm16(i) for i in range(64)], 64)
add("sm16s_only", [sm16s(i) for i in range(64)], 64)
for k in (2,3,4,5):
    add(f"sm32_exp{k}", [x for i in range(64) for x in [sm32(i)] + [ex(i*k+j) for j in range(k)]], 64)
for k in (1,2,3):
    add(f"sm16_exp{k}", [x for i in range(64) for x in [sm16(i)] + [ex(i*k+j) for j in range(k)]], 64)
def tile(t):
    b = []
    seq = [mf32(2*t), sm32(2*t), sm16(2*t), mf32(2*t+1), sm32(2*t+1), sm16(2*t+1)]
    nex = [3,3,2,3,3,2]
    e = 0
    for m, n in zip(seq, nex):
        b.append(m)
        for j in range(n):
            b.append(ex(t*16+e)); e += 1
    return b
add("tile_sp", [x for t in range(16) for x in tile(t)], 16)
def tileb(t):
    b = []
    seq = [mf32(2*t), mf32(2*t+1), sm32(2*t), sm16(2*t), sm32(2*t+1), sm16(2*t+1)]
    nex = [3,3,3,2,3,2]
    e = 0
    for m, n in zip(seq, nex):
        b.append(m)
        for j in range(n):
            b.append(ex(t*16+e)); e += 1
    return b
add("tile_spb", [x for t in range(16) for x in tileb(t)], 16)
build(T, "mb4.s")
```

```python
import sys, math, os, struct

NAME = "concat_heads__mha_block__softmax_full_mha__prompt"
STAMP = os.environ.get("STAMP", "0") == "1"
def OPT(k, d): return type(d)(os.environ.get(k, d))

class Asm:
    def __init__(self): self.L = []
    def __call__(self, s):
        if isinstance(s, (list, tuple)):
            for x in s: self(x)
            return
        for x in s.strip("\n").split("\n"):
            if x.strip(): self.L.append("  " + x.strip())
    def label(self, s): self.L.append(s + ":")
    def raw(self, s): self.L.append(s)
    def text(self): return "\n".join(self.L)

def vr(b, n=1): return f"v{b}" if n == 1 else f"v[{b}:{b+n-1}]"
def f2u(x): return struct.unpack("<I", struct.pack("<f", x))[0]

KVWS = 0
OWS = 16 << 20
FKV = 24 << 20
FO = FKV + 65536
WS_BYTES = 25 << 20
STAMP_BASE = 64 << 20
CSCALE = math.log2(math.e) / math.sqrt(32.0)
LDS_BYTES = 147456
NONCE_LDS = 131072
SPIN_MAX = 1 << 16

S_W, S_P, S_A, S_B, S_T = 3, 4, 5, 6, 7
S_WR, S_WH, S_IT = 40, 41, 42
NON = 34

def stamp(a, i):
    if STAMP:
        a(f"s_memtime s[{64+4*i}:{65+4*i}]")
        a(f"s_memrealtime s[{66+4*i}:{67+4*i}]")
        a("s_waitcnt lgkmcnt(0)")
def stamp_flush(a, n, vt):
    if not STAMP: return
    a("s_waitcnt vmcnt(0) lgkmcnt(0)")
    stamp(a, n)
    a(f"""
    s_add_u32 s56, s32, {STAMP_BASE}
    s_addc_u32 s57, s33, 0
    s_mov_b32 s58, 0x100000
    s_mov_b32 s59, 0x20000
    s_lshl_b32 s60, s2, 3
    s_add_u32 s60, s60, s{S_W}
    s_lshl_b32 s60, s60, 6
    v_mov_b32 v{vt}, 0
    """)
    for i in range(n + 1):
        a(f"v_mov_b32 v{vt+1}, s{64+4*i}")
        a(f"v_mov_b32 v{vt+2}, s{66+4*i}")
        a(f"buffer_store_dwordx2 v[{vt+1}:{vt+2}], v{vt}, s[56:59], s60 offen offset:{8*i}")
        a("s_nop 1")

def mf32(d, a_, b, c=None):
    cs = vr(d, 16) if c is None else (c if isinstance(c, str) else vr(c, 16))
    return f"v_mfma_f32_32x32x16_bf16 {vr(d,16)}, {vr(a_,4)}, {vr(b,4)}, {cs}"
def mf16(d, a_, b):
    return f"v_mfma_f32_16x16x32_bf16 {vr(d,4)}, {vr(a_,4)}, {vr(b,4)}, {vr(d,4)}"

def weave(main, fills):
    out = []
    for i, m in enumerate(main):
        out.append(m)
        out += fills.get(i, [])
    return out

def poll(a, lab, vdat, voff, soff):
    a(f"s_mov_b32 s{S_T}, {SPIN_MAX}")
    a.label(lab)
    a(f"""
    buffer_load_dwordx2 v[{vdat}:{vdat+1}], v{voff}, s[36:39], s{soff} offen sc1
    s_waitcnt vmcnt(0)
    v_cmp_eq_u64 vcc, s[{NON}:{NON+1}], v[{vdat}:{vdat+1}]
    s_cmp_eq_u64 vcc, exec
    s_cbranch_scc1 {lab}_done
    s_sub_u32 s{S_T}, s{S_T}, 1
    s_cmp_eq_u32 s{S_T}, 0
    s_cbranch_scc1 {lab}_done
    s_sleep 1
    s_branch {lab}
    """)
    a.label(lab + "_done")

def gen(a):
    name = NAME + "_kernel"
    a.raw(f".globl {name}\n.p2align 8\n.type {name},@function\n{name}:")
    stamp(a, 0)
    XA = [2, 3]; WA = [4, 5]; DXE, DXO, DW, PFV, PFD = 6, 7, 8, 9, 10
    VT = 11
    FX = [[16 + 16*buf + 4*rb for rb in range(4)] for buf in range(2)]
    FW = [[48 + 24*buf + 4*cb for cb in range(6)] for buf in range(2)]
    ACC = [[96 + 16*cb + 4*rb for rb in range(4)] for cb in range(6)]
    NONV = 224
    SX, SW = 44, 48
    S_M0X, S_M0W, S_PFO, S_PFI = 51, 56, 57, 58
    W0, W1 = 98304, 122880
    XB = [229, 230]
    S_XF, S_XN = 59, 60
    PF0, PFSTEP = OPT("PF0", 3), OPT("PFSTEP", 4)
    G1X = os.environ.get("G1X", "")
    PFM = os.environ.get("PFM", "xw")
    a(f"""
    s_cmp_ge_u32 s2, 256
    s_cbranch_scc1 L_end
    s_load_dwordx16 s[16:31], s[0:1], 0
    s_load_dwordx2 s[32:33], s[0:1], 64
    s_memrealtime s[{NON}:{NON+1}]
    v_lshrrev_b32 v1, 6, v0
    v_and_b32 v0, 63, v0
    v_readfirstlane_b32 s{S_W}, v1
    s_and_b32 s{S_T}, s2, 7
    s_lshr_b32 s{S_B}, s2, 3
    s_lshr_b32 s{S_P}, s{S_T}, 2
    s_and_b32 s{S_A}, s{S_T}, 3
    s_lshl_b32 s{S_A}, s{S_A}, 2
    s_and_b32 s{S_T}, s{S_B}, 3
    s_or_b32 s{S_A}, s{S_A}, s{S_T}
    s_lshr_b32 s{S_B}, s{S_B}, 2
    s_and_b32 s{S_WR}, s{S_W}, 3
    s_lshr_b32 s{S_WH}, s{S_W}, 2
    v_lshrrev_b32 v{VT}, 3, v0
    s_lshl_b32 s{S_T}, s{S_W}, 5
    v_add_u32 v{VT+4}, s{S_T}, v{VT}
    v_lshlrev_b32 v{VT+4}, 11, v{VT+4}
    v_and_b32 v{VT+1}, 7, v0
    v_lshrrev_b32 v{VT+2}, 4, v0
    v_xor_b32 v{VT+3}, v{VT+1}, v{VT+2}
    v_lshl_add_u32 v{DXE}, v{VT+3}, 4, v{VT+4}
    v_xor_b32 v{DXO}, 64, v{DXE}
    s_lshl_b32 s{S_T}, s{S_W}, 3
    v_add_u32 v{VT}, s{S_T}, v{VT}
    v_mul_u32_u24 v{VT}, 6144, v{VT}
    v_and_b32 v{VT+2}, 1, v{VT+2}
    v_lshlrev_b32 v{VT+2}, 2, v{VT+2}
    v_xor_b32 v{VT+3}, v{VT+1}, v{VT+2}
    s_and_b32 s{S_T}, s{S_W}, 1
    s_lshl_b32 s{S_T}, s{S_T}, 1
    v_xor_b32 v{VT+3}, s{S_T}, v{VT+3}
    v_lshl_add_u32 v{DW}, v{VT+3}, 4, v{VT}
    s_mov_b32 s{SX}, 0
    s_mov_b32 s{SX+1}, 15360
    s_mov_b32 s{SX+2}, 30720
    s_mov_b32 s{SX+3}, 46080
    s_mov_b32 s{SW}, 0
    s_mov_b32 s{SW+1}, 1024
    s_mov_b32 s{SW+2}, 2048
    s_lshl_b32 s{S_M0X}, s{S_W}, 12
    s_mul_i32 s{S_M0W}, s{S_W}, 3072
    s_add_u32 s{S_M0W}, s{S_M0W}, {W0}
    s_mov_b32 s11, 0x20000
    s_mov_b32 s15, 0x20000
    s_waitcnt lgkmcnt(0)
    s_cmp_eq_u32 s{S_P}, 0
    s_cselect_b32 s8, s16, s22
    s_cselect_b32 s9, s17, s23
    s_cselect_b32 s12, s18, s24
    s_cselect_b32 s13, s19, s25
    s_lshl_b32 s{S_T}, s{S_B}, 19
    s_add_u32 s8, s8, s{S_T}
    s_addc_u32 s9, s9, 0
    s_sub_u32 s10, 0x400000, s{S_T}
    s_lshl_b32 s{S_T}, s{S_A}, 7
    s_add_u32 s12, s12, s{S_T}
    s_addc_u32 s13, s13, 0
    s_sub_u32 s14, 0x600000, s{S_T}
    """)
    def dmax(m0):
        return [m0] + [f"buffer_load_dwordx4 v{DXE if j%2==0 else DXO}, s[8:11], s{SX+j} offen offset:{j*1024} lds" for j in range(4)]
    def dmaw(stage):
        return [f"s_add_u32 m0, s{S_M0W}, {stage*(W1-W0)}"] + [f"buffer_load_dwordx4 v{DW}, s[12:15], s{SW+s} offen offset:{s*1024} lds" for s in range(3)]
    def advx(): return [f"s_add_u32 s{SX+j}, s{SX+j}, 128" for j in range(4)]
    def advw(): return [f"s_add_u32 s{SW+s}, s{SW+s}, 393216" for s in range(3)]
    def emit(L):
        for x in L:
            a(x)
            if " m0," in x: a("s_nop 0")
    a(f"""
    s_mov_b32 s36, s30
    s_mov_b32 s37, s31
    s_mov_b32 s38, 256
    s_mov_b32 s39, 0x20000
    v_mov_b32 v{NONV+2}, 0
    s_or_b32 s{S_T}, s2, s{S_W}
    s_cmp_lg_u32 s{S_T}, 0
    s_cbranch_scc1 L_nononce
    s_or_b32 s{NON}, s{NON}, 1
    v_mov_b32 v{NONV}, s{NON}
    v_mov_b32 v{NONV+1}, s{NON+1}
    s_mov_b64 exec, 1
    buffer_store_dwordx2 v[{NONV}:{NONV+1}], v{NONV+2}, s[36:39], 0 offen sc1
    s_mov_b64 exec, -1
    """)
    a.label("L_nononce")
    emit(dmaw(0)); emit(dmax(f"s_mov_b32 m0, s{S_M0X}")); a(advw() + advx())
    emit(dmaw(1)); emit(dmax(f"s_add_u32 m0, s{S_M0X}, 32768")); a(advw() + advx())
    emit(dmax(f"s_add_u32 m0, s{S_M0X}, 65536")); a(advx())
    a(f"""
    s_and_b32 s{S_T}, s{S_A}, 3
    s_lshl_b32 s{S_T}, s{S_T}, 2
    s_add_u32 s{S_T}, s{S_T}, s{S_WR}
    s_lshl_b32 s{S_T}, s{S_T}, 4
    v_and_b32 v{VT}, 15, v0
    v_add_u32 v{VT}, s{S_T}, v{VT}
    v_lshlrev_b32 v{VT}, 11, v{VT}
    v_lshrrev_b32 v{VT+1}, 4, v0
    v_lshl_add_u32 v{VT}, v{VT+1}, 7, v{VT}
    s_lshl_b32 s{S_T}, s{S_B}, 2
    s_add_u32 s{S_T}, s{S_T}, s{S_WR}
    s_lshl_b32 s{S_T}, s{S_T}, 2
    v_and_b32 v{VT+1}, 3, v0
    v_add_u32 v{VT+1}, s{S_T}, v{VT+1}
    v_bfe_u32 v{VT+2}, v0, 4, 1
    v_lshl_add_u32 v{VT+1}, v{VT+2}, 7, v{VT+1}
    v_mul_u32_u24 v{VT+1}, 6144, v{VT+1}
    v_bfe_u32 v{VT+2}, v0, 2, 2
    v_min_u32 v{VT+2}, 2, v{VT+2}
    v_lshl_add_u32 v{VT+1}, v{VT+2}, 11, v{VT+1}
    s_cmp_eq_u32 s{S_WH}, 0
    s_cselect_b64 vcc, -1, 0
    s_cselect_b32 s52, s8, s12
    s_cselect_b32 s53, s9, s13
    s_cselect_b32 s54, {"s10" if "x" in PFM else 0}, {"s14" if "w" in PFM else 0}
    s_mov_b32 s55, 0x20000
    s_mov_b32 s{S_T}, 393216
    s_cselect_b32 s{S_T}, 128, s{S_T}
    v_cndmask_b32 v{PFV}, v{VT+1}, v{VT}, vcc
    s_mul_i32 s{S_PFO}, s{S_T}, {PF0}
    s_mul_i32 s{S_PFI}, s{S_T}, {PFSTEP}
    """)
    pf = [f"buffer_load_dword v{PFD}, v{PFV}, s[52:55], s{S_PFO} offen", f"s_add_u32 s{S_PFO}, s{S_PFO}, s{S_PFI}",
          f"buffer_load_dwordx2 v[{NONV}:{NONV+1}], v{NONV+2}, s[36:39], 0 offen sc1"]
    a(f"""
    v_and_b32 v{VT}, 15, v0
    s_lshl_b32 s{S_T}, s{S_WR}, 6
    v_add_u32 v{VT}, s{S_T}, v{VT}
    v_lshlrev_b32 v{VT}, 7, v{VT}
    v_lshrrev_b32 v{VT+1}, 4, v0
    v_bfe_u32 v{VT+2}, v0, 1, 3
    v_xor_b32 v{VT+2}, v{VT+1}, v{VT+2}
    v_lshl_add_u32 v{XA[0]}, v{VT+2}, 4, v{VT}
    v_xor_b32 v{XA[1]}, 64, v{XA[0]}
    v_mov_b32 v{XB[0]}, v{XA[0]}
    v_mov_b32 v{XB[1]}, v{XA[1]}
    s_mov_b32 s{S_XF}, 0
    s_mov_b32 s{S_XN}, 32768
    ; W: g*3072 + r*128 + ((wh*4 + (c>>1)) ^ 4*(r>>1) ^ 2*(g&1))*16 + (c&1)*8
    v_mul_u32_u24 v{VT}, 3072, v{VT+1}
    v_bfe_u32 v{VT+2}, v0, 2, 2
    v_lshl_add_u32 v{VT}, v{VT+2}, 7, v{VT}
    v_bfe_u32 v{VT+3}, v0, 1, 1
    s_lshl_b32 s{S_T}, s{S_WH}, 2
    v_add_u32 v{VT+3}, s{S_T}, v{VT+3}
    v_bfe_u32 v{VT+4}, v0, 3, 1
    v_lshlrev_b32 v{VT+4}, 2, v{VT+4}
    v_xor_b32 v{VT+3}, v{VT+3}, v{VT+4}
    v_bfe_u32 v{VT+4}, v0, 4, 1
    v_lshlrev_b32 v{VT+4}, 1, v{VT+4}
    v_xor_b32 v{VT+3}, v{VT+3}, v{VT+4}
    v_lshl_add_u32 v{VT}, v{VT+3}, 4, v{VT}
    v_and_b32 v{VT+4}, 1, v0
    v_lshl_add_u32 v{VT}, v{VT+4}, 3, v{VT}
    v_add_u32 v{WA[0]}, {W0}, v{VT}
    v_xor_b32 v{WA[1]}, 32, v{WA[0]}
    """)
    for i in range(96): a(f"v_mov_b32 v{96+i}, 0")
    def reads1(stage, t, buf):
        X = [f"ds_read_b128 {vr(FX[buf][rb],4)}, v{XA[t]} offset:{rb*2048}" for rb in range(4)]
        W = []
        for cb in range(6):
            for u in range(2):
                W.append(f"ds_read_b64_tr_b16 {vr(FW[buf][cb]+2*u,2)}, v{WA[cb%2]} offset:{stage*(W1-W0) + t*12288 + (cb//2)*1024 + u*512}")
        return W[0:2] + X + W[2:]
    def mfmas1(buf):
        L = []
        for cb in range(6):
            for rb in range(4):
                L.append(mf16(ACC[cb][rb], FW[buf][cb], FX[buf][rb]) if cb < 4 else mf16(ACC[cb][rb], FX[buf][rb], FW[buf][cb]))
        return L
    a(f"""
    s_mov_b32 s{S_IT}, 0
    s_waitcnt vmcnt(11)
    s_barrier
    """)
    stamp(a, 1)
    a(reads1(0, 0, 0))
    a.raw(".p2align 6")
    a.label("L_g1")
    a(f"""
    s_cmp_eq_u32 s{S_IT}, 7
    s_cselect_b32 s14, 0, s14
    s_cmp_ge_u32 s{S_IT}, {(16 - PF0 + PFSTEP - 1) // PFSTEP}
    s_cselect_b32 s54, 0, s54
    """)
    g1_start = len(a.L)
    WPOS = [int(x) for x in os.environ.get("WPOS", "1,2,3").split(",")]
    XPOS = [int(x) for x in os.environ.get("XPOS", "6,10,14,18").split(",")]
    for stage in range(2):
        a("s_waitcnt lgkmcnt(0)")
        r = reads1(stage, 1, 1)
        a(weave(mfmas1(0), {i: [r[i]] for i in range(16)}))
        if stage == 1:
            a(f"s_cmp_ge_u32 s{S_IT}, 6\ns_cselect_b32 s10, 0, s10")
        a(f"v_add_u32 v{XA[0]}, s{S_XN}, v{XB[0]}")
        a(f"s_waitcnt vmcnt({4 if stage == 0 else 6}) lgkmcnt(0)")
        a("s_barrier")
        r = reads1(1 - stage, 0, 0)
        dw = dmaw(stage); dx = dmax(f"s_add_u32 m0, s{S_M0X}, s{S_XF}")
        f = {i: [r[i]] for i in range(16)}
        for i in range(16, 24): f[i] = []
        a(dw[0])
        for k_, i in enumerate(WPOS): f[i - 1] = [dw[1 + k_]] + f[i - 1]
        f[WPOS[-1]] = f[WPOS[-1]] + [dx[0]]
        for k_, i in enumerate(XPOS): f[i] = f[i] + [dx[1 + k_]]
        f[20] = f[20] + [f"v_add_u32 v{XA[1]}, s{S_XN}, v{XB[1]}", f"s_mov_b32 s{S_XF}, s{S_XN}", f"s_add_u32 s{S_XN}, s{S_XN}, 32768",
                         f"s_cmp_eq_u32 s{S_XN}, 98304", f"s_cselect_b32 s{S_XN}, 0, s{S_XN}"]
        f[22] = f[22] + (pf if stage == 0 else [])
        f[23] = f[23] + advx() + advw()
        a(weave(mfmas1(1), f))
    body = a.L[g1_start:]
    if "b" in G1X: body = [x for x in body if "s_barrier" not in x]
    if "d" in G1X: body = [x for x in body if " lds" not in x]
    if "r" in G1X: body = [x for x in body if "ds_read" not in x]
    if "w" in G1X: body = [x for x in body if "s_waitcnt" not in x]
    a.L[g1_start:] = body
    a(f"""
    s_add_u32 s{S_IT}, s{S_IT}, 1
    s_cmp_lt_u32 s{S_IT}, 8
    s_cbranch_scc1 L_g1
    """)
    stamp(a, 2)
    VKV, VD = 2, 3
    VT = 4
    IDX = 12
    Q = [16, 24]; KF = [32, 40]; VF = [48, 56]; ONES = 64; LA = [68, 72]
    NM = [76, 92]; O = [108, 124]; S = [140, 156, 172, 188]
    PKK, PKV = 192, 208
    S_BLK, S_SO, S_M0, S_KV, S_FL, S_HB = 43, 44, 46, 47, 49, 50
    a(f"""
    s_waitcnt vmcnt(7)
    s_mov_b32 s{S_BLK}, {SPIN_MAX}
    """)
    a.label("L_nonce")
    a(f"""
    v_readfirstlane_b32 s{NON}, v{NONV}
    v_readfirstlane_b32 s{NON+1}, v{NONV+1}
    s_sub_u32 s{S_BLK}, s{S_BLK}, 1
    s_cbranch_scc1 L_nonce_done
    s_cmp_lg_u32 s{NON}, 0
    s_cbranch_scc1 L_nonce_done
    buffer_load_dwordx2 v[{NONV}:{NONV+1}], v{NONV+2}, s[36:39], 0 offen sc1
    s_waitcnt vmcnt(0)
    s_branch L_nonce
    """)
    a.label("L_nonce_done")
    a(f"""
    s_mov_b32 s36, s32
    s_mov_b32 s37, s33
    s_mov_b32 s38, {WS_BYTES}
    s_lshl_b32 s{S_T}, s{S_P}, 4
    s_add_u32 s{S_T}, s{S_T}, s{S_A}
    s_lshl_b32 s{S_FL}, s{S_T}, 3
    s_lshl_b32 s{S_T}, s{S_T}, 1
    s_add_u32 s{S_T}, s{S_T}, s{S_WH}
    s_lshl_b32 s{S_HB}, s{S_T}, 18
    s_add_u32 s{S_FL}, s{S_FL}, s{S_W}
    s_lshl_b32 s{S_FL}, s{S_FL}, 6
    s_add_u32 s{S_FL}, s{S_FL}, {FKV}
    s_lshl_b32 s{S_T}, s{S_WR}, 13
    s_add_u32 s{S_T}, s{S_T}, s{S_HB}
    s_add_u32 s8, s32, s{S_T}
    s_addc_u32 s9, s33, 0
    s_mov_b32 s10, 0x40000
    s_lshl_b32 s{S_KV}, s{S_B}, 15
    s_add_u32 s{S_KV}, s{S_KV}, s{S_T}
    s_add_u32 s{S_KV+1}, s{S_KV}, 4096
    s_lshl_b32 s{S_M0}, s{S_W}, 13
    v_lshlrev_b32 v{VD}, 4, v0
    v_add_u32 v{VKV}, s{S_M0}, v{VD}
    s_waitcnt vmcnt(0) lgkmcnt(0)
    s_barrier
    """)
    def pack2(dst, t0, t1):
        return [f"v_cvt_pk_bf16_f32 v{dst}, v{t0}, v{t0+1}", f"v_cvt_pk_bf16_f32 v{dst+1}, v{t0+2}, v{t0+3}",
                f"v_cvt_pk_bf16_f32 v{dst+2}, v{t1}, v{t1+1}", f"v_cvt_pk_bf16_f32 v{dst+3}, v{t1+2}, v{t1+3}"]
    def swap2(dst):
        return [f"v_permlane16_swap_b32 v{dst}, v{dst+2}", f"v_permlane16_swap_b32 v{dst+1}, v{dst+3}"]
    frs = []
    for b in range(2):
        for t in range(2):
            frs.append((PKK + 8*b + 4*t, ACC[2+t][2*b], ACC[2+t][2*b+1], b, t*1024))
    for b in range(2):
        for t in range(2):
            frs.append((PKV + 8*b + 4*t, ACC[4][2*b+t], ACC[5][2*b+t], b, 2048 + t*1024))
    prev = None
    for fr in frs + [None]:
        if fr: a(pack2(fr[0], fr[1], fr[2]))
        else: a("s_nop 1")
        if prev:
            a(swap2(prev[0]))
            a(f"buffer_store_dwordx4 {vr(prev[0],4)}, v{VD}, s[36:39], s{S_KV+prev[3]} offen offset:{prev[4]} sc1")
            a(f"ds_write_b128 v{VKV}, {vr(prev[0],4)} offset:{prev[3]*4096+prev[4]}")
        prev = fr
    a(f"s_mov_b32 s{S_T}, {f2u(CSCALE):#x}")
    for i in range(32): a(f"v_mul_f32 v{96+i}, s{S_T}, v{96+i}")
    for b in range(2):
        for t in range(2): a(pack2(Q[b] + 4*t, ACC[t][2*b], ACC[t][2*b+1]))
    a(f"""
    s_lshl_b32 s{S_T}, s{S_WH}, 15
    v_add_u32 v{VKV}, s{S_T}, v{VD}
    v_mov_b32 v{IDX}, 0xdddddddd
    v_bfe_u32 v{VT}, v0, 2, 1
    v_mov_b32 v{VT+1}, 0x3f803f80
    v_cmp_eq_u32 vcc, 0, v{VT}
    v_mov_b32 v{VT+3}, 0
    s_nop 0
    v_cndmask_b32 v{ONES}, v{VT+3}, v{VT+1}, vcc
    v_cndmask_b32 v{ONES+1}, v{VT+3}, v{VT+1}, vcc
    v_cndmask_b32 v{ONES+2}, v{VT+1}, v{VT+3}, vcc
    v_cndmask_b32 v{ONES+3}, v{VT+1}, v{VT+3}, vcc
    """)
    for b in range(2):
        for t in range(2): a(swap2(Q[b] + 4*t))
    a(f"""
    s_add_u32 s{S_BLK}, s{S_B}, 1
    s_and_b32 s{S_BLK}, s{S_BLK}, 7
    s_lshl_b32 s{S_SO}, s{S_BLK}, 15
    s_add_u32 s{S_SO+1}, s{S_SO}, 4096
    s_add_u32 s{S_M0}, s{S_M0}, 65536
    s_mov_b32 s{S_IT}, 0
    s_waitcnt lgkmcnt(0)
    s_barrier
    """)
    def rdK(kt, buf): return [f"ds_read_b128 {vr(KF[buf]+4*t,4)}, v{VKV} offset:{kt*4096+t*1024}" for t in range(2)]
    def rdV(kt, buf): return [f"ds_read_b128 {vr(VF[buf]+4*t,4)}, v{VKV} offset:{kt*4096+2048+t*1024}" for t in range(2)]
    def qk(sbuf, kbuf, qt, c=None):
        return [mf32(S[sbuf], KF[kbuf], Q[qt], NM[qt] if c is None else c), mf32(S[sbuf], KF[kbuf]+4, Q[qt]+4)]
    def pv(sbuf, vbuf, qt, t):
        return f"v_smfmac_f32_32x32x32_bf16 {vr(O[qt],16)}, {vr(VF[vbuf]+4*t,4)}, {vr(S[sbuf]+8*t,8)}, v{IDX}"
    def rs(sbuf, qt, t):
        return f"v_smfmac_f32_16x16x64_bf16 {vr(LA[qt],4)}, {vr(ONES,4)}, {vr(S[sbuf]+8*t,8)}, v{IDX}"
    def max_to_nm(m, qt):
        a(f"v_mov_b32 v{VT+1}, v{m}")
        a("s_nop 1")
        a(f"v_permlane32_swap_b32 v{m}, v{VT+1}")
        a("s_nop 1")
        a(f"v_max_f32 v{m}, v{m}, v{VT+1}")
        a(f"v_sub_f32 v{m}, 0, v{m}")
        for i in range(16): a(f"v_mov_b32 v{NM[qt]+i}, v{m}")
    def zero_acc():
        for qt in range(2):
            for i in range(16): a(f"v_mov_b32 v{O[qt]+i}, 0")
            for i in range(4): a(f"v_mov_b32 v{LA[qt]+i}, 0")
    a(rdK(0, 0))
    a(rdV(0, 0))
    a("s_waitcnt lgkmcnt(2)")
    a(qk(0, 0, 0, "0")); a(qk(1, 0, 1, "0"))
    zero_acc()
    for i in range(8, 16): a(f"v_mov_b32 v{S[3]+i}, 0")
    for i in range(4, 8): a(f"v_mov_b32 v{VF[1]+i}, 0")
    for qt in range(2):
        m, src = VT, S[qt]
        a(f"v_max3_f32 v{m}, v{src}, v{src+1}, v{src+2}")
        for i in range(3, 15, 2): a(f"v_max3_f32 v{m}, v{m}, v{src+i}, v{src+i+1}")
        a(f"v_max_f32 v{m}, v{m}, v{src+15}")
        max_to_nm(m, qt)
    FD, FV = 13, 15
    FDAT, FOFF = 226, 228
    a(f"""
    v_mov_b32 v{FDAT}, s{NON}
    v_mov_b32 v{FDAT+1}, s{NON+1}
    v_and_b32 v{FOFF}, 7, v0
    v_lshlrev_b32 v{FOFF}, 3, v{FOFF}
    s_lshl_b32 s{S_T}, s{S_B}, 3
    v_mov_b32 v{FOFF+1}, s{S_T}
    """)
    a(qk(0, 0, 0))
    a("s_nop 7\ns_nop 3")
    stamp(a, 3)
    def dma2():
        L = [f"s_mov_b32 m0, s{S_M0}"]
        L += [f"buffer_load_dwordx4 v{VD}, s[8:11], s{S_SO} offen offset:{j*1024} sc1 lds" for j in range(4)]
        L += [f"s_add_u32 m0, s{S_M0}, 4096"]
        L += [f"buffer_load_dwordx4 v{VD}, s[8:11], s{S_SO+1} offen offset:{j*1024} sc1 lds" for j in range(4)]
        return L
    def next2():
        return [f"s_add_u32 s{S_BLK}, s{S_BLK}, 1", f"s_and_b32 s{S_BLK}, s{S_BLK}, 7", f"s_lshl_b32 s{S_SO}, s{S_BLK}, 15",
                f"s_add_u32 s{S_SO+1}, s{S_SO}, 4096", f"s_xor_b32 s{S_M0}, s{S_M0}, 65536"]
    N_PUB, N_POLL = OPT("NPUB", 2), OPT("NPOLL", 4)
    d = dma2()
    dsched = {N_POLL: [[d[0]], [d[1]]], N_POLL+1: [[d[2]], [d[3]]], N_POLL+2: [[d[4], d[5]], [d[6]]], N_POLL+3: [[d[7]], [d[8]]], N_POLL+4: [[d[9]], next2()]}
    a.raw(".p2align 6")
    a.label("L_at")
    for kt in range(8):
        for qa in range(2):
            n = 2*kt + qa
            sb, sn, sp = n % 4, (n+1) % 4, (n-1) % 4
            ktn, ktp = kt + qa, kt - 1 + qa
            e = [f"v_exp_f32 v{S[sb]+i}, v{S[sb]+i}" for i in range(16)]
            q2 = qk(sn, ktn % 2, 1-qa)
            m = [q2[0], q2[1], pv(sp, ktp % 2, 1-qa, 1), rs(sp, 1-qa, 1), pv(sb, kt % 2, qa, 0), rs(sb, qa, 0)]
            pre = {i: [] for i in range(6)}
            if n == N_PUB:
                a(f"""
                s_cmp_lg_u32 s{S_IT}, 0
                s_cbranch_scc1 L_nopub
                s_waitcnt vmcnt(0)
                s_mov_b64 exec, 1
                buffer_store_dwordx2 v[{FDAT}:{FDAT+1}], v{FOFF+1}, s[36:39], s{S_FL} offen sc1
                s_mov_b64 exec, -1
                """)
                a.label("L_nopub")
            if n == N_POLL:
                a(f"""
                s_cmp_lg_u32 s{S_IT}, 0
                s_cbranch_scc1 L_pollkv_done
                """)
                poll(a, "L_pollkv", FDAT+4, FOFF, S_FL)
                pre[0] += [f"s_cmp_eq_u32 s{S_IT}, 7", "s_cselect_b32 s10, 0, s10"]
            if qa == 0:
                if kt == 7:
                    pre[0] += ["s_waitcnt vmcnt(0) lgkmcnt(0)", "s_barrier", f"v_xor_b32 v{VKV}, 0x10000, v{VKV}", "s_nop 0"]
                else:
                    pre[0] += ["s_waitcnt lgkmcnt(0)"]
                pre[1] += rdK((kt+1) % 8, (kt+1) % 2)
                pre[4] += rdV((kt+1) % 8, (kt+1) % 2)
            else:
                pre[0] += ["s_waitcnt lgkmcnt(2)"]
            if n in dsched:
                pre[2] += dsched[n][0]; pre[5] += dsched[n][1]
            pat = [3, 3, 3, 2, 3, 2]
            k = 0
            for i in range(6):
                a(pre[i] if pre[i] else ["s_nop 0"])
                a(m[i])
                a(e[k:k+pat[i]]); k += pat[i]
    a(f"""
    s_add_u32 s{S_IT}, s{S_IT}, 1
    s_cmp_lt_u32 s{S_IT}, 8
    s_cbranch_scc1 L_at
    s_nop 0
    """)
    a(pv(3, 1, 1, 1)); a(rs(3, 1, 1))
    stamp(a, 4)
    S_OO, S_FO = 44, 46
    a(f"""
    s_lshl_b32 s{S_T}, s{S_P}, 3
    s_add_u32 s{S_T}, s{S_T}, s{S_B}
    s_lshl_b32 s{S_T}, s{S_T}, 2
    s_add_u32 s{S_T}, s{S_T}, s{S_WR}
    s_lshl_b32 s{S_FO}, s{S_T}, 8
    s_lshl_b32 s{S_OO}, s{S_T}, 17
    s_bfe_u32 s{S_T}, s{S_HB}, 0x50012
    s_lshl_b32 s{S_BLK}, s{S_T}, 3
    s_add_u32 s{S_FO}, s{S_FO}, s{S_BLK}
    s_add_u32 s{S_FO}, s{S_FO}, {FO}
    s_lshl_b32 s{S_T}, s{S_T}, 11
    s_add_u32 s{S_OO}, s{S_OO}, s{S_T}
    s_add_u32 s{S_OO}, s{S_OO}, {OWS}
    s_add_u32 s{S_OO+1}, s{S_OO}, 65536
    v_and_b32 v{VT+6}, 15, v0
    v_lshlrev_b32 v{VT+6}, 4, v{VT+6}
    v_lshrrev_b32 v{VT+7}, 5, v0
    v_lshl_add_u32 v{VT+6}, v{VT+7}, 8, v{VT+6}
    v_bfe_u32 v{VT+7}, v0, 4, 1
    v_lshl_add_u32 v{VT+6}, v{VT+7}, 10, v{VT+6}
    v_mov_b32 v{VT}, 0
    """)
    for qt in range(2):
        for i in range(16): a(f"v_fma_f32 v{VT}, v{O[qt]+i}, 0, v{VT}")
    a(f"""
    v_max_f32 v{VT+1}, v{LA[0]}, v{LA[1]}
    v_fma_f32 v{VT}, v{LA[0]}, 0, v{VT}
    v_fma_f32 v{VT}, v{LA[1]}, 0, v{VT}
    v_add_f32 v{VT}, v{VT}, v{VT+1}
    v_cmp_gt_f32 vcc, 0x5f800000, v{VT}
    s_cmp_eq_u64 vcc, exec
    s_cbranch_scc0 L_fallback
    """)
    a.label("L_fin")
    for qt in range(2): a(f"v_rcp_f32 v{VT+qt}, v{LA[qt]}")
    a("s_nop 0")
    for qt in range(2):
        for i in range(16): a(f"v_mul_f32 v{O[qt]+i}, v{VT+qt}, v{O[qt]+i}")
        for i in range(8): a(f"v_cvt_pk_bf16_f32 v{S[qt]+i}, v{O[qt]+2*i}, v{O[qt]+2*i+1}")
        for t in range(2):
            a(f"buffer_store_dwordx4 {vr(S[qt]+4*t,4)}, v{VT+6}, s[36:39], s{S_OO+qt} offen offset:{t*512} sc1")
    OA = [2, 3]; OB = [4, 5]
    WA3 = [[6, 7, 8, 9], [10, 11, 12, 13]]
    DE, DO = 14, 15
    FO_ = [[16 + 16*buf + 4*i for i in range(4)] for buf in range(2)]
    FW3 = [[48 + 16*buf + 4*nb for nb in range(4)] for buf in range(2)]
    AC3 = [[80 + 16*i + 4*nb for nb in range(4)] for i in range(4)]
    RX = 144
    T3 = 176
    SO3 = 48
    S_INC, S_M3, S_R3, S_C3, S_RB, S_CB, S_F3 = 52, 53, 54, 55, 56, 57, 58
    a(f"""
    s_bfe_u32 s{S_R3}, s{S_W}, 0x10001
    s_and_b32 s{S_C3}, s{S_W}, 1
    s_lshl_b32 s{S_M3}, s{S_W}, 12
    v_lshrrev_b32 v{T3}, 4, v0
    v_lshlrev_b32 v{T3+1}, 1, v{T3}
    v_and_b32 v{T3+2}, 15, v0
    v_xor_b32 v{T3+1}, v{T3+1}, v{T3+2}
    s_lshl_b32 s{S_T}, s{S_WR}, 4
    v_add_u32 v{T3}, s{S_T}, v{T3}
    v_lshlrev_b32 v{T3}, 11, v{T3}
    v_lshl_add_u32 v{T3}, v{T3+1}, 4, v{T3}
    v_xor_b32 v{T3+2}, 128, v{T3}
    v_lshlrev_b32 v{T3+1}, 4, v0
    s_cmp_eq_u32 s{S_WH}, 0
    s_cselect_b64 vcc, -1, 0
    v_cndmask_b32 v{DE}, v{T3}, v{T3+1}, vcc
    v_cndmask_b32 v{DO}, v{T3+2}, v{T3+1}, vcc
    s_lshl_b32 s{S_T}, s{S_P}, 4
    s_add_u32 s{S_T}, s{S_T}, s{S_A}
    s_lshl_b32 s{S_T}, s{S_T}, 2
    s_add_u32 s{S_T}, s{S_T}, s{S_WR}
    s_lshr_b32 s{S_F3}, s{S_T}, 1
    s_lshl_b32 s{S_F3}, s{S_F3}, 8
    s_add_u32 s{S_F3}, s{S_F3}, {FO}
    s_lshl_b32 s{S_T}, s{S_T}, 16
    s_add_u32 s{S_T}, s{S_T}, {OWS}
    s_add_u32 s12, s32, s{S_T}
    s_addc_u32 s13, s33, 0
    s_cmp_eq_u32 s{S_P}, 0
    s_cselect_b32 s14, s20, s26
    s_cselect_b32 s59, s21, s27
    s_lshl_b32 s{S_T}, s{S_B}, 8
    s_add_u32 s14, s14, s{S_T}
    s_addc_u32 s59, s59, 0
    s_sub_u32 s{S_T}, 0x200000, s{S_T}
    s_cmp_eq_u32 s{S_WH}, 0
    s_cselect_b32 s8, s12, s14
    s_cselect_b32 s9, s13, s59
    s_cselect_b32 s10, 0x10000, s{S_T}
    s_mov_b32 s{SO3}, 0
    s_cselect_b32 s{SO3+1}, 0, 7168
    s_cselect_b32 s{SO3+2}, 0, 14336
    s_cselect_b32 s{SO3+3}, 0, 21504
    s_cselect_b32 s{S_INC}, 12, 17
    s_lshl_b32 s{S_INC}, 1, s{S_INC}
    s_lshl_b32 s{S_T}, s{S_R3}, 1
    s_add_u32 s{S_T}, s{S_T}, s{S_WH}
    s_lshl_b32 s{S_T}, s{S_T}, 1
    s_add_u32 s{S_T}, s{S_T}, s{S_WH}
    s_lshl_b32 s{S_T}, s{S_T}, 11
    v_add_u32 v{OA[0]}, s{S_T}, v{T3+1}
    v_xor_b32 v{OB[0]}, 4096, v{OA[0]}
    v_add_u32 v{OA[1]}, 0x10000, v{OA[0]}
    v_add_u32 v{OB[1]}, 0x10000, v{OB[0]}
    v_bfe_u32 v{T3}, v0, 2, 3
    v_lshrrev_b32 v{T3+1}, 5, v0
    v_lshl_add_u32 v{T3+1}, v{T3+1}, 4, v{T3}
    s_lshl_b32 s{S_T}, s{S_WH}, 5
    v_add_u32 v{T3+1}, s{S_T}, v{T3+1}
    v_lshlrev_b32 v{T3+1}, 8, v{T3+1}
    v_bfe_u32 v{T3+2}, v0, 1, 1
    s_lshl_b32 s{S_T}, s{S_C3}, 3
    v_add_u32 v{T3+2}, s{S_T}, v{T3+2}
    v_lshlrev_b32 v{T3}, 1, v{T3}
    v_xor_b32 v{T3+2}, v{T3+2}, v{T3}
    v_lshl_add_u32 v{T3+1}, v{T3+2}, 4, v{T3+1}
    v_and_b32 v{T3+2}, 1, v0
    v_lshl_add_u32 v{T3+1}, v{T3+2}, 3, v{T3+1}
    v_add_u32 v{WA3[0][0]}, 16384, v{T3+1}
    """)
    for nb in range(1, 4): a(f"v_xor_b32 v{WA3[0][nb]}, {32*nb}, v{WA3[0][0]}")
    for nb in range(4): a(f"v_add_u32 v{WA3[1][nb]}, 0x10000, v{WA3[0][nb]}")
    for i in range(64): a(f"v_mov_b32 v{80+i}, 0")
    a(f"""
    v_and_b32 v{FOFF}, 31, v0
    v_lshlrev_b32 v{FOFF}, 3, v{FOFF}
    v_mov_b32 v{FOFF+1}, 0
    s_waitcnt vmcnt(0) lgkmcnt(0)
    s_mov_b64 exec, 1
    buffer_store_dwordx2 v[{FDAT}:{FDAT+1}], v{FOFF+1}, s[36:39], s{S_FO} offen sc1
    s_mov_b64 exec, -1
    s_cmp_lg_u32 s{S_WH}, 0
    s_cbranch_scc1 L_pollo_done
    """)
    poll(a, "L_pollo", FDAT+4, FOFF, S_F3)
    def dma3(stage):
        L = [f"s_add_u32 m0, s{S_M3}, {stage*32768}"]
        L += [f"buffer_load_dwordx4 v{DE if j%2==0 else DO}, s[8:11], s{SO3+j} offen offset:{j*1024} sc1 lds" for j in range(4)]
        return L
    def adv3(): return [f"s_add_u32 s{SO3+j}, s{SO3+j}, s{S_INC}" for j in range(4)]
    for st in range(4):
        emit(dma3(st)); a(adv3())
    def reads3(stage, buf):
        sp, so = stage // 2, (stage % 2) * 32768
        O_ = [f"ds_read_b128 {vr(FO_[buf][i],4)}, v{(OA if i < 2 else OB)[sp]} offset:{so + (i%2)*1024}" for i in range(4)]
        W_ = [f"ds_read_b64_tr_b16 {vr(FW3[buf][nb]+2*u,2)}, v{WA3[sp][nb]} offset:{so + u*2048}" for nb in range(4) for u in range(2)]
        return W_[0:2] + O_ + W_[2:]
    def mfmas3(buf):
        return [mf16(AC3[i][nb], FW3[buf][nb], FO_[buf][i]) for nb in range(4) for i in range(4)]
    a(f"""
    s_mov_b32 s{S_IT}, 0
    s_waitcnt vmcnt(12)
    s_barrier
    """)
    stamp(a, 5)
    a(reads3(0, 0))
    a.raw(".p2align 6")
    a.label("L_g3")
    a(f"""
    s_cmp_eq_u32 s{S_IT}, 3
    s_cselect_b32 s10, 0, s10
    """)
    for stage in range(4):
        a("s_waitcnt vmcnt(8) lgkmcnt(0)")
        a("s_barrier")
        r = reads3((stage + 1) % 4, 1 - stage % 2); d = dma3(stage)
        f = {i: [r[i]] for i in range(12)}
        f[1] = f[1] + [d[0]]
        f[3] = f[3] + [d[1]]; f[7] = f[7] + [d[2]]; f[11] = f[11] + [d[3]]; f[13] = [d[4]]; f[15] = adv3()
        a(weave(mfmas3(stage % 2), f))
    a(f"""
    s_add_u32 s{S_IT}, s{S_IT}, 1
    s_cmp_lt_u32 s{S_IT}, 4
    s_cbranch_scc1 L_g3
    """)
    stamp(a, 6)
    a(f"""
    s_lshl_b32 s{S_T}, s{S_W}, 13
    v_lshlrev_b32 v{T3}, 4, v0
    v_add_u32 v{T3}, s{S_T}, v{T3}
    v_xor_b32 v{T3+1}, 0x8000, v{T3}
    s_mov_b32 s12, s28
    s_mov_b32 s13, s29
    s_mov_b32 s14, 0x800000
    s_lshl_b32 s{S_T}, s{S_A}, 2
    s_lshl_b32 s{SO3}, s{S_R3}, 1
    s_add_u32 s{S_T}, s{S_T}, s{SO3}
    s_add_u32 s{S_T}, s{S_T}, s{S_WH}
    s_lshl_b32 s{S_T}, s{S_T}, 17
    s_lshl_b32 s{SO3}, s{S_P}, 11
    s_add_u32 s{S_T}, s{S_T}, s{SO3}
    s_lshl_b32 s{SO3}, s{S_B}, 8
    s_add_u32 s{S_T}, s{S_T}, s{SO3}
    s_lshl_b32 s{SO3}, s{S_C3}, 7
    s_add_u32 s{SO3}, s{S_T}, s{SO3}
    s_add_u32 s{SO3+1}, s{SO3}, 65536
    v_and_b32 v{T3+2}, 15, v0
    v_lshlrev_b32 v{T3+2}, 12, v{T3+2}
    v_bfe_u32 v{T3+3}, v0, 4, 1
    v_lshl_add_u32 v{T3+2}, v{T3+3}, 5, v{T3+2}
    v_lshrrev_b32 v{T3+3}, 5, v0
    v_lshl_add_u32 v{T3+2}, v{T3+3}, 4, v{T3+2}
    s_waitcnt vmcnt(0) lgkmcnt(0)
    s_barrier
    """)
    for j in range(8): a(f"ds_write_b128 v{T3}, {vr(AC3[2][0]+4*j,4)} offset:{j*1024}")
    a("s_waitcnt lgkmcnt(0)\ns_barrier")
    for j in range(8): a(f"ds_read_b128 {vr(RX+4*j,4)}, v{T3+1} offset:{j*1024}")
    prev = None
    for j in range(5):
        if j < 4:
            qb, np_ = j // 2, j % 2
            t0 = AC3[qb][2*np_]
            a(f"s_waitcnt lgkmcnt({6 - 2*j})")
            for i in range(8): a(f"v_add_f32 v{t0+i}, v{t0+i}, v{RX+8*j+i}")
            cur = (16 + 4*j, qb, np_)
            a(pack2(cur[0], t0, t0 + 4))
        else:
            cur = None; a("s_nop 1")
        if prev:
            a(swap2(prev[0]))
            a(f"buffer_store_dwordx4 {vr(prev[0],4)}, v{T3+2}, s[12:15], s{SO3+prev[1]} offen offset:{prev[2]*64}")
        prev = cur
    stamp_flush(a, 7, 1)
    a.label("L_end")
    a("s_endpgm")
    MX = [VT+2, VT+3]
    a.label("L_fallback")
    a(f"""
    v_mov_b32 v{MX[0]}, 0xff800000
    v_mov_b32 v{MX[1]}, 0xff800000
    s_mov_b32 s{S_IT}, 0
    s_waitcnt vmcnt(0) lgkmcnt(0)
    """)
    a.label("L_fb_max")
    a(f"s_add_u32 s{S_T}, s{S_IT}, s{S_HB}")
    for t in range(2): a(f"buffer_load_dwordx4 {vr(KF[0]+4*t,4)}, v{VD}, s[36:39], s{S_T} offen offset:{t*1024} sc1")
    a("s_waitcnt vmcnt(0)")
    a(qk(0, 0, 0, "0")); a(qk(1, 0, 1, "0"))
    a("s_nop 15")
    for qt in range(2):
        for i in range(0, 16, 2): a(f"v_max3_f32 v{MX[qt]}, v{MX[qt]}, v{S[qt]+i}, v{S[qt]+i+1}")
    a(f"""
    s_add_u32 s{S_IT}, s{S_IT}, 4096
    s_cmp_lt_u32 s{S_IT}, 0x40000
    s_cbranch_scc1 L_fb_max
    """)
    max_to_nm(MX[0], 0); max_to_nm(MX[1], 1)
    zero_acc()
    a(f"s_mov_b32 s{S_IT}, 0")
    a.label("L_fb_main")
    a(f"s_add_u32 s{S_T}, s{S_IT}, s{S_HB}")
    for t in range(2): a(f"buffer_load_dwordx4 {vr(KF[0]+4*t,4)}, v{VD}, s[36:39], s{S_T} offen offset:{t*1024} sc1")
    for t in range(2): a(f"buffer_load_dwordx4 {vr(VF[0]+4*t,4)}, v{VD}, s[36:39], s{S_T} offen offset:{2048+t*1024} sc1")
    a("s_waitcnt vmcnt(0)")
    a(qk(0, 0, 0)); a(qk(1, 0, 1))
    a("s_nop 15")
    for qt in range(2):
        for i in range(16): a(f"v_exp_f32 v{S[qt]+i}, v{S[qt]+i}")
    a("s_nop 1")
    for qt in range(2):
        for t in range(2): a(pv(qt, 0, qt, t)); a(rs(qt, qt, t))
    a(f"""
    s_add_u32 s{S_IT}, s{S_IT}, 4096
    s_cmp_lt_u32 s{S_IT}, 0x40000
    s_cbranch_scc1 L_fb_main
    s_nop 15
    s_branch L_fin
    """)
    NV = 232
    return f""".p2align 6
.amdhsa_kernel {name}
  .amdhsa_next_free_vgpr {NV}
  .amdhsa_next_free_sgpr 100
  .amdhsa_accum_offset {NV}
  .amdhsa_group_segment_fixed_size 0
  .amdhsa_kernarg_size 72
  .amdhsa_user_sgpr_count 2
  .amdhsa_user_sgpr_kernarg_segment_ptr 1
  .amdhsa_system_sgpr_workgroup_id_x 1
.end_amdhsa_kernel"""

def main():
    out = sys.argv[1] if len(sys.argv) > 1 else f"cdna_kernels/{NAME}.s"
    a = Asm()
    k = gen(a)
    hdr = open(f"cdna_kernels/{NAME}.s.ref").read().split("\n")
    hdr = [l for l in hdr if l.startswith(";") and "@launch" not in l]
    hdr.append(f"; @launch grid=(256,1,1) block=(512,1,1) lds={LDS_BYTES}")
    txt = "\n".join(hdr) + '\n.amdgcn_target "amdgcn-amd-amdhsa--gfx950"\n.text\n' + a.text() + '\n.section .rodata,"a"\n' + k + "\n"
    open(out, "w").write(txt)

if __name__ == "__main__":
    main()
```

```python
import sys, math, os, struct
from gen2 import Asm, vr, f2u, mf32, mf16, weave, NAME

STAMP = os.environ.get("STAMP", "0") == "1"
def OPT(k, d): return type(d)(os.environ.get(k, d))

KVWS = 0
OWS = 16 << 20
FKV = 24 << 20
FO = FKV + 65536
WS_BYTES = 25 << 20
STAMP_BASE = 64 << 20
CSCALE = math.log2(math.e) / math.sqrt(32.0)
LDS_BYTES = 163840
SPIN_MAX = 1 << 16

S_W, S_P, S_A, S_B, S_T = 3, 4, 5, 6, 7
S_WR, S_WH, S_IT = 40, 41, 42
NON = 34

def stamp(a, i):
    if STAMP:
        a(f"s_memtime s[{64+4*i}:{65+4*i}]")
        a(f"s_memrealtime s[{66+4*i}:{67+4*i}]")
        a("s_waitcnt lgkmcnt(0)")
def stamp_flush(a, n, vt):
    if not STAMP: return
    a("s_waitcnt vmcnt(0) lgkmcnt(0)")
    stamp(a, n)
    a(f"""
    s_add_u32 s56, s32, {STAMP_BASE}
    s_addc_u32 s57, s33, 0
    s_mov_b32 s58, 0x100000
    s_mov_b32 s59, 0x20000
    s_lshl_b32 s60, s2, 3
    s_add_u32 s60, s60, s{S_W}
    s_lshl_b32 s60, s60, 6
    v_mov_b32 v{vt}, 0
    """)
    for i in range(n + 1):
        a(f"v_mov_b32 v{vt+1}, s{64+4*i}")
        a(f"v_mov_b32 v{vt+2}, s{66+4*i}")
        a(f"buffer_store_dwordx2 v[{vt+1}:{vt+2}], v{vt}, s[56:59], s60 offen offset:{8*i}")
        a("s_nop 1")

def gen(a):
    name = NAME + "_kernel"
    a.raw(f".globl {name}\n.p2align 8\n.type {name},@function\n{name}:")
    stamp(a, 0)
    def emit(L):
        for x in L:
            a(x)
            if " m0," in x: a("s_nop 0")
    Q = [16, 24]; PK = 32; KF = [64, 72]; VF = [80, 88]; NM = [96, 112]; S = [128, 144, 160, 176]
    O = [192, 208]; LA = [224, 228]; ONES = 232; IDX = 236; ZERO = 237
    FDAT, FOFF, PDAT = 238, 240, 242
    XB = [244, 245]; VDE, VDO = 246, 247
    NV = 248
    def poll(lab, soff, mask=None, first_loaded=False):
        ld = f"buffer_load_dwordx2 v[{PDAT}:{PDAT+1}], v{FOFF}, s[36:39], s{soff} offen sc1"
        a(f"s_mov_b32 s{S_T}, {SPIN_MAX}")
        if not first_loaded: a(ld)
        a.label(lab)
        a(f"""
        s_waitcnt vmcnt(0)
        v_cmp_eq_u64 vcc, s[{NON}:{NON+1}], v[{PDAT}:{PDAT+1}]
        """)
        if mask: a(f"s_or_b64 vcc, vcc, {mask}")
        a(f"""
        s_cmp_eq_u64 vcc, exec
        s_cbranch_scc1 {lab}_done
        s_sub_u32 s{S_T}, s{S_T}, 1
        s_cbranch_scc1 {lab}_done
        {ld}
        s_branch {lab}
        """)
        a.label(lab + "_done")
    XA = [2, 3]; WA = [4, 5]; D0, D1, D2, PFV, PFD = 6, 7, 8, 9, 10
    VT = 11
    FX = [[16 + 16*buf + 4*rb for rb in range(4)] for buf in range(2)]
    FW = [[48 + 24*buf + 4*cb for cb in range(6)] for buf in range(2)]
    ACC = [[96 + 16*cb + 4*rb for rb in range(4)] for cb in range(6)]
    S_KX, S_KW, T0, S_M0X, S_M0W, S_XF, S_XN, S_PFO, S_PFI = 43, 44, 45, 47, 48, 49, 50, 56, 57
    W0, W1 = 98304, 122880
    PF0, PFSTEP = OPT("PF0", 3), OPT("PFSTEP", 4)
    a(f"""
    s_cmp_ge_u32 s2, 256
    s_cbranch_scc1 L_end
    s_load_dwordx16 s[16:31], s[0:1], 0
    s_load_dwordx2 s[32:33], s[0:1], 64
    s_memrealtime s[{NON}:{NON+1}]
    v_lshrrev_b32 v1, 6, v0
    v_and_b32 v0, 63, v0
    v_readfirstlane_b32 s{S_W}, v1
    s_and_b32 s{S_T}, s2, 7
    s_lshr_b32 s{S_B}, s2, 3
    s_lshr_b32 s{S_P}, s{S_T}, 2
    s_and_b32 s{S_A}, s{S_T}, 3
    s_lshl_b32 s{S_A}, s{S_A}, 2
    s_and_b32 s{S_T}, s{S_B}, 3
    s_or_b32 s{S_A}, s{S_A}, s{S_T}
    s_lshr_b32 s{S_B}, s{S_B}, 2
    s_and_b32 s{S_WR}, s{S_W}, 3
    s_lshr_b32 s{S_WH}, s{S_W}, 2
    s_mul_i32 s{S_M0X}, s{S_WR}, 7
    s_add_u32 s{S_T}, s{S_WR}, 28
    s_cmp_eq_u32 s{S_WH}, 0
    s_cselect_b32 s{S_M0X}, s{S_T}, s{S_M0X}
    v_lshrrev_b32 v{VT}, 3, v0
    s_lshl_b32 s{S_T}, s{S_M0X}, 3
    v_add_u32 v{VT+4}, s{S_T}, v{VT}
    v_lshlrev_b32 v{VT+4}, 11, v{VT+4}
    v_and_b32 v{VT+1}, 7, v0
    v_lshrrev_b32 v{VT+2}, 4, v0
    v_xor_b32 v{VT+3}, v{VT+1}, v{VT+2}
    s_and_b32 s{S_T}, s{S_WR}, 1
    s_lshl_b32 s{S_T}, s{S_T}, 2
    v_xor_b32 v{VT+3}, s{S_T}, v{VT+3}
    v_lshl_add_u32 v{D2}, v{VT+3}, 4, v{VT+4}
    s_lshl_b32 s{S_M0X}, s{S_M0X}, 10
    s_lshl_b32 s{S_T}, s{S_WR}, 4
    v_add_u32 v{VT}, s{S_T}, v{VT}
    v_mul_u32_u24 v{VT}, 6144, v{VT}
    v_and_b32 v{VT+2}, 1, v{VT+2}
    v_lshlrev_b32 v{VT+2}, 2, v{VT+2}
    v_xor_b32 v{VT+3}, v{VT+1}, v{VT+2}
    v_lshl_add_u32 v{D0}, v{VT+3}, 4, v{VT}
    v_xor_b32 v{D1}, 32, v{D0}
    v_add_u32 v{D1}, 49152, v{D1}
    s_mul_i32 s{S_M0W}, s{S_WR}, 6144
    s_add_u32 s{S_M0W}, s{S_M0W}, {W0}
    s_mov_b32 s{S_KX}, 0
    s_mov_b32 s{S_KW}, 0
    s_mov_b32 s11, 0x20000
    s_mov_b32 s15, 0x20000
    s_mov_b32 s39, 0x20000
    s_mov_b32 s55, 0x20000
    v_mov_b32 v{ZERO}, 0
    s_waitcnt lgkmcnt(0)
    s_cmp_eq_u32 s{S_P}, 0
    s_cselect_b32 s8, s16, s22
    s_cselect_b32 s9, s17, s23
    s_cselect_b32 s12, s18, s24
    s_cselect_b32 s13, s19, s25
    s_lshl_b32 s{S_T}, s{S_B}, 19
    s_add_u32 s8, s8, s{S_T}
    s_addc_u32 s9, s9, 0
    s_sub_u32 s10, 0x400000, s{S_T}
    s_lshl_b32 s{S_T}, s{S_A}, 7
    s_add_u32 s12, s12, s{S_T}
    s_addc_u32 s13, s13, 0
    s_sub_u32 s14, 0x600000, s{S_T}
    s_cmp_lg_u32 s{S_WH}, 0
    s_cbranch_scc1 L_proB
    """)
    def burstW(stage):
        L = []
        for g in range(2):
            L.append(f"s_add_u32 m0, s{S_M0W}, {stage*(W1-W0) + g*3072}")
            for s_ in range(3):
                if s_: L.append(f"s_add_u32 s{T0+s_%2}, s{S_KW}, {s_*1024}")
                else: L.append("s_nop 0")
                L.append(f"buffer_load_dwordx4 v{D0+g}, s[12:15], s{T0+s_%2 if s_ else S_KW} offen offset:{s_*1024} lds")
        L.append(f"s_add_u32 s{S_KW}, s{S_KW}, 393216")
        return L
    def burstXA(slot):
        return [f"s_add_u32 m0, s{S_M0X}, {slot}", "s_nop 0", f"buffer_load_dwordx4 v{D2}, s[8:11], s{S_KX} offen lds", f"s_add_u32 s{S_KX}, s{S_KX}, 128"]
    def burstXB(slot):
        L = [f"s_add_u32 m0, s{S_M0X}, {slot}"]
        for j in range(7):
            if j == 4: L.append("s_add_u32 m0, m0, 4096")
            L.append(f"s_add_u32 s{T0+j%2}, s{S_KX}, {j*16384 - (j%4)*1024}")
            L.append(f"buffer_load_dwordx4 v{D2 if j%2==0 else D1}, s[8:11], s{T0+j%2} offen offset:{(j%4)*1024} lds")
        L.append(f"s_add_u32 s{S_KX}, s{S_KX}, 128")
        return L
    a(burstW(0) + burstXA(0) + burstW(1) + burstXA(32768) + burstXA(65536))
    a(f"""
    s_or_b32 s{S_T}, s2, s{S_W}
    s_cmp_lg_u32 s{S_T}, 0
    s_cbranch_scc1 L_pro2
    s_mov_b32 s52, s30
    s_mov_b32 s53, s31
    s_mov_b32 s54, 256
    s_or_b32 s{NON}, s{NON}, 1
    v_mov_b32 v{FDAT}, s{NON}
    v_mov_b32 v{FDAT+1}, s{NON+1}
    s_mov_b64 exec, 1
    buffer_store_dwordx2 v[{FDAT}:{FDAT+1}], v{ZERO}, s[52:55], 0 offen sc1
    s_mov_b64 exec, -1
    s_branch L_pro2
    """)
    a.label("L_proB")
    a(f"v_xor_b32 v{D1}, 64, v{D2}")
    a(burstXB(0) + burstXB(32768))
    a.label("L_pro2")
    a(f"""
    s_lshl_b32 s{S_T}, s{S_B}, 2
    s_add_u32 s{S_T}, s{S_T}, s{S_WR}
    s_lshl_b32 s{S_T}, s{S_T}, 2
    v_and_b32 v{VT+1}, 3, v0
    v_add_u32 v{VT+1}, s{S_T}, v{VT+1}
    v_bfe_u32 v{VT+2}, v0, 4, 1
    v_lshl_add_u32 v{VT+1}, v{VT+2}, 7, v{VT+1}
    v_mul_u32_u24 v{VT+1}, 6144, v{VT+1}
    v_bfe_u32 v{VT+2}, v0, 2, 2
    v_min_u32 v{VT+2}, 2, v{VT+2}
    v_lshl_add_u32 v{PFV}, v{VT+2}, 11, v{VT+1}
    s_mov_b32 s{S_PFO}, {393216 * PF0}
    v_and_b32 v{VT}, 15, v0
    s_lshl_b32 s{S_T}, s{S_WR}, 6
    v_add_u32 v{VT}, s{S_T}, v{VT}
    v_lshlrev_b32 v{VT}, 7, v{VT}
    v_lshrrev_b32 v{VT+1}, 4, v0
    v_bfe_u32 v{VT+2}, v0, 1, 3
    v_xor_b32 v{VT+2}, v{VT+1}, v{VT+2}
    v_lshl_add_u32 v{XA[0]}, v{VT+2}, 4, v{VT}
    v_xor_b32 v{XA[1]}, 64, v{XA[0]}
    v_mov_b32 v{XB[0]}, v{XA[0]}
    v_mov_b32 v{XB[1]}, v{XA[1]}
    v_mul_u32_u24 v{VT}, 3072, v{VT+1}
    v_bfe_u32 v{VT+2}, v0, 2, 2
    v_lshl_add_u32 v{VT}, v{VT+2}, 7, v{VT}
    v_bfe_u32 v{VT+3}, v0, 1, 1
    s_lshl_b32 s{S_T}, s{S_WH}, 2
    v_add_u32 v{VT+3}, s{S_T}, v{VT+3}
    v_bfe_u32 v{VT+4}, v0, 3, 1
    v_lshlrev_b32 v{VT+4}, 2, v{VT+4}
    v_xor_b32 v{VT+3}, v{VT+3}, v{VT+4}
    v_bfe_u32 v{VT+4}, v0, 4, 1
    v_lshlrev_b32 v{VT+4}, 1, v{VT+4}
    v_xor_b32 v{VT+3}, v{VT+3}, v{VT+4}
    v_lshl_add_u32 v{VT}, v{VT+3}, 4, v{VT}
    v_and_b32 v{VT+4}, 1, v0
    v_lshl_add_u32 v{VT}, v{VT+4}, 3, v{VT}
    v_add_u32 v{WA[0]}, {W0}, v{VT}
    v_xor_b32 v{WA[1]}, 32, v{WA[0]}
    v_mov_b32 v{IDX}, 0xdddddddd
    v_bfe_u32 v{VT}, v0, 2, 1
    v_mov_b32 v{VT+1}, 0x3f803f80
    v_cmp_eq_u32 vcc, 0, v{VT}
    v_lshlrev_b32 v{VDE}, 4, v0
    v_lshlrev_b32 v{VDO}, 4, v0
    v_cndmask_b32 v{ONES}, v{ZERO}, v{VT+1}, vcc
    v_cndmask_b32 v{ONES+1}, v{ZERO}, v{VT+1}, vcc
    v_cndmask_b32 v{ONES+2}, v{VT+1}, v{ZERO}, vcc
    v_cndmask_b32 v{ONES+3}, v{VT+1}, v{ZERO}, vcc
    v_and_b32 v{FOFF}, 7, v0
    v_lshlrev_b32 v{FOFF}, 3, v{FOFF}
    s_lshl_b32 s{S_T}, s{S_B}, 3
    v_mov_b32 v{FOFF+1}, s{S_T}
    s_mov_b32 s{S_IT}, 0
    s_mov_b32 s{S_XN}, 32768
    """)
    for i in range(96, 232, 2): a(f"v_mov_b64 v[{i}:{i+1}], 0")
    def reads1(stage, t, buf):
        X = [f"ds_read_b128 {vr(FX[buf][rb],4)}, v{XA[t]} offset:{rb*2048}" for rb in range(4)]
        W = []
        for cb in range(6):
            for u in range(2):
                W.append(f"ds_read_b64_tr_b16 {vr(FW[buf][cb]+2*u,2)}, v{WA[cb%2]} offset:{stage*(W1-W0) + t*12288 + (cb//2)*1024 + u*512}")
        return W[0:2] + X + W[2:]
    def mfmas1(buf):
        return [mf16(ACC[cb][rb], FW[buf][cb], FX[buf][rb]) if cb < 4 else mf16(ACC[cb][rb], FX[buf][rb], FW[buf][cb])
                for cb in range(6) for rb in range(4)]
    def rot_x():
        return [f"v_add_u32 v{XA[1]}, s{S_XN}, v{XB[1]}", f"s_mov_b32 s{S_XF}, s{S_XN}", f"s_add_u32 s{S_XN}, s{S_XN}, 32768",
                f"s_cmp_eq_u32 s{S_XN}, 98304", f"s_cselect_b32 s{S_XN}, 0, s{S_XN}"]
    BSPR = OPT("BSPR", 0)
    def place(f, burst, pre):
        if BSPR == 0:
            pre += burst; return
        groups, cur = [], []
        for x in burst:
            cur.append(x)
            if " lds" in x or "buffer_load_dword " in x: groups.append(cur); cur = []
        if cur: groups[-1] += cur
        pre += groups[0]
        for k_, g in enumerate(groups[1:]): f[(k_ + 1) * BSPR - 1] = f.get((k_ + 1) * BSPR - 1, []) + g
    a(f"""
    s_cmp_lg_u32 s{S_WH}, 0
    s_cbranch_scc1 L_g1B_pre
    s_mov_b32 s{S_XF}, 0
    s_waitcnt vmcnt(8)
    s_barrier
    """)
    stamp(a, 1)
    a(reads1(0, 0, 0))
    a.raw(".p2align 6")
    a.label("L_g1A")
    a(f"s_cmp_eq_u32 s{S_IT}, 7\ns_cselect_b32 s14, 0, s14")
    for stage in range(2):
        a("s_waitcnt lgkmcnt(0)")
        r = reads1(stage, 1, 1)
        a(weave(mfmas1(0), {i: [r[i]] for i in range(16)}))
        if stage == 1: a(f"s_cmp_ge_u32 s{S_IT}, 6\ns_cselect_b32 s10, 0, s10")
        a(f"v_add_u32 v{XA[0]}, s{S_XN}, v{XB[0]}")
        a("s_waitcnt vmcnt(1) lgkmcnt(0)\ns_barrier")
        r = reads1(1 - stage, 0, 0)
        f = {i: [r[i]] for i in range(16)}
        pre = []
        if stage == 1 :
            a(f"s_cmp_eq_u32 s{S_IT}, 7\ns_cbranch_scc1 L_g1A_last")
        place(f, burstW(stage) + burstXA(f"s{S_XF}"), pre)
        f[20] = f.get(20, []) + rot_x()
        a(pre); a(weave(mfmas1(1), f))
    a(f"""
    s_add_u32 s{S_IT}, s{S_IT}, 1
    s_branch L_g1A
    """)
    a.label("L_g1B_pre")
    a(f"s_mov_b32 s{S_XF}, 65536\ns_waitcnt vmcnt(7)\ns_barrier")
    stamp(a, 1)
    a(reads1(0, 0, 0))
    a.raw(".p2align 6")
    a.label("L_g1B")
    a(f"s_cmp_eq_u32 s{S_IT}, 7\ns_cselect_b32 s10, 0, s10")
    pf = [f"buffer_load_dword v{PFD}, v{PFV}, s[12:15], s{S_PFO} offen", f"s_add_u32 s{S_PFO}, s{S_PFO}, {393216 * PFSTEP}"]
    for stage in range(2):
        r = reads1(stage, 1, 1)
        f = {i: [r[i]] for i in range(16)}
        pre = []
        place(f, burstXB(f"s{S_XF}") + (pf if stage == 0 else []), pre)
        a(pre)
        a("s_waitcnt lgkmcnt(0)")
        a(weave(mfmas1(0), f))
        a(f"v_add_u32 v{XA[0]}, s{S_XN}, v{XB[0]}")
        a(f"s_waitcnt vmcnt({8 if stage == 0 else 7}) lgkmcnt(0)\ns_barrier")
        if stage == 1:
            a(f"s_cmp_eq_u32 s{S_IT}, 7\ns_cbranch_scc1 L_g1A_last")
        r = reads1(1 - stage, 0, 0)
        f = {i: [r[i]] for i in range(16)}
        f[20] = [f"v_add_u32 v{XA[1]}, s{S_XN}, v{XB[1]}", f"s_add_u32 s{S_XF}, s{S_XF}, 32768", f"s_cmp_eq_u32 s{S_XF}, 98304",
                 f"s_cselect_b32 s{S_XF}, 0, s{S_XF}", f"s_add_u32 s{S_XN}, s{S_XN}, 32768",
                 f"s_cmp_eq_u32 s{S_XN}, 98304", f"s_cselect_b32 s{S_XN}, 0, s{S_XN}"]
        a(weave(mfmas1(1), f))
    a(f"""
    s_add_u32 s{S_IT}, s{S_IT}, 1
    s_branch L_g1B
    """)
    VKV, VD = 2, 3
    VT = 4
    S_SO, S_ST1, S_ST2, S_M0, S_KV, S_FL, S_HB, S_GRP, MSK = 43, 44, 45, 46, 47, 49, 50, 51, 56
    NE = 3
    a.label("L_g1A_last")
    setup = f"""
    s_mov_b32 s36, s32
    s_mov_b32 s37, s33
    s_mov_b32 s38, {WS_BYTES}
    s_mov_b32 s52, s30
    s_mov_b32 s53, s31
    s_mov_b32 s54, 256
    buffer_load_dwordx2 v[{FDAT}:{FDAT+1}], v{ZERO}, s[52:55], 0 offen sc1
    s_lshl_b32 s{S_T}, s{S_P}, 4
    s_add_u32 s{S_T}, s{S_T}, s{S_A}
    s_lshl_b32 s{S_FL}, s{S_T}, 3
    s_lshl_b32 s{S_T}, s{S_T}, 1
    s_add_u32 s{S_T}, s{S_T}, s{S_WH}
    s_lshl_b32 s{S_HB}, s{S_T}, 18
    s_add_u32 s{S_FL}, s{S_FL}, s{S_W}
    s_lshl_b32 s{S_FL}, s{S_FL}, 6
    s_add_u32 s{S_FL}, s{S_FL}, {FKV}
    s_lshl_b32 s{S_T}, s{S_WR}, 13
    s_add_u32 s{S_T}, s{S_T}, s{S_HB}
    s_add_u32 s8, s32, s{S_T}
    s_addc_u32 s9, s33, 0
    s_mov_b32 s10, 0x40000
    s_lshl_b32 s{S_KV}, s{S_B}, 15
    s_add_u32 s{S_KV}, s{S_KV}, s{S_T}
    s_add_u32 s{S_KV+1}, s{S_KV}, 4096
    s_lshl_b32 s{S_M0}, s{S_W}, 13
    v_lshlrev_b32 v{VD}, 4, v0
    v_add_u32 v{VKV}, s{S_M0}, v{VD}
    s_cmp_eq_u32 s{S_P}, 0
    s_cselect_b32 s12, s20, s26
    s_cselect_b32 s13, s21, s27
    s_lshl_b32 s{S_T}, s{S_B}, 8
    s_add_u32 s12, s12, s{S_T}
    s_addc_u32 s13, s13, 0
    s_sub_u32 s14, 0x200000, s{S_T}
    s_mov_b32 s{S_ST1}, 0
    s_mov_b32 s{S_ST2}, 4096
    s_mov_b32 s{MSK}, {(0xff << NE & 0xff) * 0x01010101:#x}
    s_mov_b32 s{MSK+1}, s{MSK}
    s_mov_b32 s58, {f2u(CSCALE):#x}
    s_mov_b32 s59, s58
    """.strip().split("\n")
    m = mfmas1(1)
    m = m[8:] + m[:8]
    f = {i: setup[2*i:2*i+2] for i in range(24)}
    a(weave(m, f))
    stamp(a, 2)
    def pack2(dst, t0, t1):
        return [f"v_cvt_pk_bf16_f32 v{dst}, v{t0}, v{t0+1}", f"v_cvt_pk_bf16_f32 v{dst+1}, v{t0+2}, v{t0+3}",
                f"v_cvt_pk_bf16_f32 v{dst+2}, v{t1}, v{t1+1}", f"v_cvt_pk_bf16_f32 v{dst+3}, v{t1+2}, v{t1+3}"]
    def swap2(dst):
        return [f"v_permlane16_swap_b32 v{dst}, v{dst+2}", f"v_permlane16_swap_b32 v{dst+1}, v{dst+3}"]
    frs = []
    for b in range(2):
        for t in range(2): frs.append((PK + 8*b + 4*t, ACC[2+t][2*b], ACC[2+t][2*b+1], b, t*1024))
    for b in range(2):
        for t in range(2): frs.append((PK + 16 + 8*b + 4*t, ACC[4][2*b+t], ACC[5][2*b+t], b, 2048 + t*1024))
    kvstores = [f"buffer_store_dwordx4 {vr(fr[0],4)}, v{VD}, s[60:63], s{S_KV+fr[3]} offen offset:{fr[4]} sc1" for fr in frs]
    prev = None
    for fr in frs:
        a(pack2(fr[0], fr[1], fr[2]))
        if prev:
            a(swap2(prev[0])); a(f"ds_write_b128 v{VKV}, {vr(prev[0],4)} offset:{prev[3]*4096+prev[4]}")
        prev = fr
    for i in range(0, 8, 2): a(f"v_pk_mul_f32 v[{96+i}:{97+i}], v[{96+i}:{97+i}], s[58:59]")
    a(swap2(prev[0])); a(f"ds_write_b128 v{VKV}, {vr(prev[0],4)} offset:{prev[3]*4096+prev[4]}")
    for i in range(8, 32, 2): a(f"v_pk_mul_f32 v[{96+i}:{97+i}], v[{96+i}:{97+i}], s[58:59]")
    for b in range(2):
        for t in range(2): a(pack2(Q[b] + 4*t, ACC[t][2*b], ACC[t][2*b+1]))
    a(f"""
    s_lshl_b32 s{S_T}, s{S_WH}, 15
    v_add_u32 v{VKV}, s{S_T}, v{VD}
    s_add_u32 s{S_M0}, s{S_M0}, 65536
    s_cmp_lt_u32 s{S_B}, {NE}
    s_cselect_b32 s{S_GRP}, 1, 0
    s_mov_b32 s60, s32
    s_mov_b32 s61, s33
    s_cselect_b32 s62, s38, 0
    s_mov_b32 s63, 0x20000
    """)
    for b in range(2):
        for t in range(2): a(swap2(Q[b] + 4*t))
    a("s_waitcnt vmcnt(0) lgkmcnt(0)\ns_barrier")
    def rdK(kt, buf): return [f"ds_read_b128 {vr(KF[buf]+4*t,4)}, v{VKV} offset:{kt*4096+t*1024}" for t in range(2)]
    def rdV(kt, buf): return [f"ds_read_b128 {vr(VF[buf]+4*t,4)}, v{VKV} offset:{kt*4096+2048+t*1024}" for t in range(2)]
    def qk(sbuf, kbuf, qt, c=None):
        return [mf32(S[sbuf], KF[kbuf], Q[qt], NM[qt] if c is None else c), mf32(S[sbuf], KF[kbuf]+4, Q[qt]+4)]
    def pv(sbuf, vbuf, qt, t):
        return f"v_smfmac_f32_32x32x32_bf16 {vr(O[qt],16)}, {vr(VF[vbuf]+4*t,4)}, {vr(S[sbuf]+8*t,8)}, v{IDX}"
    def rs(sbuf, qt, t):
        return f"v_smfmac_f32_16x16x64_bf16 {vr(LA[qt],4)}, {vr(ONES,4)}, {vr(S[sbuf]+8*t,8)}, v{IDX}"
    def max_to_nm(m, qt):
        a(f"v_mov_b32 v{m+1}, v{m}")
        a("s_nop 1")
        a(f"v_permlane32_swap_b32 v{m}, v{m+1}")
        a("s_nop 1")
        a(f"v_max_f32 v{m}, v{m}, v{m+1}")
        a(f"v_sub_f32 v{m}, 0, v{m}")
        a(f"v_mov_b32 v{m+1}, v{m}")
        for i in range(0, 16, 2): a(f"v_mov_b64 v[{NM[qt]+i}:{NM[qt]+i+1}], v[{m}:{m+1}]")
    a(rdK(0, 0)); a(rdV(0, 0))
    NE0 = OPT("NE0", 2)
    a(kvstores[:NE0])
    a(f"s_mov_b32 s{S_T}, {SPIN_MAX}")
    a.label("L_nonce")
    a(f"""
    v_readfirstlane_b32 s{NON}, v{FDAT}
    v_readfirstlane_b32 s{NON+1}, v{FDAT+1}
    s_sub_u32 s{S_T}, s{S_T}, 1
    s_cbranch_scc1 L_nonce_done
    s_cmp_lg_u32 s{NON}, 0
    s_cbranch_scc1 L_nonce_done
    buffer_load_dwordx2 v[{FDAT}:{FDAT+1}], v{ZERO}, s[52:55], 0 offen sc1
    s_waitcnt vmcnt(0)
    s_branch L_nonce
    """)
    a.label("L_nonce_done")
    a("s_waitcnt lgkmcnt(2)")
    a(qk(0, 0, 0, "0")); a(qk(1, 0, 1, "0"))
    a("s_nop 7\ns_nop 1")
    for qt in range(2):
        m_, src = VT + 2*qt, S[qt]
        a(f"v_max3_f32 v{m_}, v{src}, v{src+1}, v{src+2}")
        for i in range(3, 15, 2): a(f"v_max3_f32 v{m_}, v{m_}, v{src+i}, v{src+i+1}")
        a(f"v_max_f32 v{m_}, v{m_}, v{src+15}")
        max_to_nm(m_, qt)
        a("s_nop 1")
        if qt == 0: a(qk(0, 0, 0))
    stamp(a, 3)
    def dma2():
        G = []
        for j in range(8):
            g = []
            if j == 0: g.append(f"s_mov_b32 m0, s{S_M0}"); g.append("s_nop 0")
            g.append(f"buffer_load_dwordx4 v{VDE if j%2==0 else VDO}, s[8:11], s{S_SO} offen offset:{(j%4)*1024} sc1 lds")
            if j == 3: g.append(f"s_add_u32 m0, s{S_M0}, 4096")
            if j < 7: g.append(f"s_add_u32 s{S_SO}, s{S_SO}, s{S_ST2 if j == 3 else S_ST1}")
            else: g.append(f"s_xor_b32 s{S_M0}, s{S_M0}, 65536")
            G.append(g)
        return G
    blk = [f"s_cmp_ge_u32 s{S_IT}, s{S_B}", f"s_addc_u32 s{S_SO}, s{S_IT}, 0", f"s_lshl_b32 s{S_SO}, s{S_SO}, 15"]
    flagst = lambda voff, soff: ["s_mov_b64 exec, 1", f"buffer_store_dwordx2 v[{FDAT}:{FDAT+1}], v{voff}, s[36:39], s{soff} offen sc1", "s_mov_b64 exec, -1"]
    def slots(hooks, pres, first, barwait):
        for kt in range(8):
            for qa in range(2):
                n = 2*kt + qa
                sb, sn, sp = n % 4, (n+1) % 4, (n-1) % 4
                ktn, ktp = kt + qa, kt - 1 + qa
                e = [f"v_exp_f32 v{S[sb]+i}, v{S[sb]+i}" for i in range(16)]
                q2 = qk(sn, ktn % 2, 1-qa)
                m = [q2[0], q2[1], pv(sp, ktp % 2, 1-qa, 1), rs(sp, 1-qa, 1), pv(sb, kt % 2, qa, 0), rs(sb, qa, 0)]
                if first and n == 0: m[2] = m[3] = None
                pre = {i: [] for i in range(6)}
                if n in hooks: hooks[n]()
                if qa == 0:
                    if kt == 7:
                        barwait()
                        pre[0] += [f"v_xor_b32 v{VKV}, 0x10000, v{VKV}", "s_nop 0"]
                    else:
                        pre[0] += ["s_waitcnt lgkmcnt(0)"]
                    pre[1] += rdK((kt+1) % 8, (kt+1) % 2)
                    pre[4] += rdV((kt+1) % 8, (kt+1) % 2)
                else:
                    pre[0] += ["s_waitcnt lgkmcnt(2)"]
                for i, L in pres.get(n, {}).items(): pre[i] += L
                pat = [3, 3, 3, 2, 3, 2]
                k = 0
                for i in range(6):
                    a(pre[i] if pre[i] else ["s_nop 0"])
                    if m[i]: a(m[i])
                    a(e[k:k+pat[i]]); k += pat[i]
    NPUB, NPOLL = OPT("NPUB", 5), OPT("NPOLL", 7)
    ST0 = os.environ.get("ST0", "") == "1"
    def h_pub():
        a("s_waitcnt vmcnt(0)")
        a(["s_mov_b64 exec, 1", f"buffer_store_dwordx2 v[{FDAT}:{FDAT+1}], v{FOFF+1}, s[60:63], s{S_FL} offen sc1", "s_mov_b64 exec, -1",
           f"s_xor_b32 s62, s62, s38"])
        if ST0: stamp(a, 4)
    def h_poll0():
        poll("L_poll0", S_FL, f"s[{MSK}:{MSK+1}]")
        a(f"s_mov_b32 s{S_IT}, 0"); a(blk)
        if ST0: stamp(a, 5)
    def bw0():
        a("s_waitcnt vmcnt(6) lgkmcnt(0)\ns_barrier")
        if ST0: stamp(a, 6)
    G = dma2()
    pres = {NPOLL + i: {2: G[3*i], 3: G[3*i+1], 5: G[3*i+2] if 3*i+2 < 8 else []} for i in range(3)}
    rest = kvstores[NE0:]
    for i in range((len(rest) + 1) // 2):
        pres.setdefault(i, {})[2] = [rest[2*i]]
        if 2*i + 1 < len(rest): pres[i][5] = [rest[2*i+1]]
    for i, n_ in enumerate((11, 12, 13)):
        pres.setdefault(n_, {})[2] = [kvstores[2*i]]; pres[n_][5] = [kvstores[2*i+1]]
    pres.setdefault(14, {})[3] = [kvstores[6]]; pres.setdefault(15, {})[3] = [kvstores[7]]
    slots({NPUB: h_pub, NPOLL: h_poll0}, pres, True, bw0)
    a(f"s_mov_b32 s{S_IT}, 1")
    a.raw(".p2align 6")
    a.label("L_at")
    def h_ld():
        a(f"""
        s_cmp_lg_u32 s{S_IT}, 2
        s_cbranch_scc1 L_nold
        buffer_load_dwordx2 v[{PDAT}:{PDAT+1}], v{FOFF}, s[36:39], s{S_FL} offen sc1
        """)
        a.label("L_nold")
    def h_dma():
        a(f"s_cmp_lg_u32 s{S_IT}, 2\ns_cbranch_scc1 L_poll2_done")
        poll("L_poll2", S_FL, None, True)
        a(blk)
        a(f"""
        s_cmp_lg_u32 s{S_IT}, 7
        s_cbranch_scc1 L_nowo
        s_mov_b32 s8, s12
        s_mov_b32 s9, s13
        s_mov_b32 s10, s14
        s_lshl_b32 s{S_SO}, s{S_W}, 16
        s_mov_b32 s{S_ST1}, 7168
        s_mov_b32 s{S_ST2}, 11264
        v_lshrrev_b32 v{VDE}, 4, v0
        v_lshlrev_b32 v{VDO}, 1, v{VDE}
        v_and_b32 v{VT}, 15, v0
        v_xor_b32 v{VDO}, v{VDO}, v{VT}
        v_lshlrev_b32 v{VDE}, 11, v{VDE}
        v_lshl_add_u32 v{VDE}, v{VDO}, 4, v{VDE}
        v_xor_b32 v{VDO}, 128, v{VDE}
        """)
        a.label("L_nowo")
    def h_pfwo():
        a(f"""
        s_cmp_lg_u32 s{S_IT}, 5
        s_cbranch_scc1 L_nopfwo
        s_and_b32 s{S_T}, s{S_A}, 3
        s_lshl_b32 s{S_T}, s{S_T}, 3
        s_add_u32 s{S_T}, s{S_T}, s{S_W}
        s_lshl_b32 s{S_T}, s{S_T}, 16
        v_lshrrev_b32 v{VT}, 1, v0
        v_lshlrev_b32 v{VT}, 11, v{VT}
        v_and_b32 v{VT+1}, 1, v0
        v_lshl_add_u32 v{VT}, v{VT+1}, 7, v{VT}
        buffer_load_dword v{VT+1}, v{VT}, s[12:15], s{S_T} offen
        """)
        a.label("L_nopfwo")
    def bw1():
        a(f"s_waitcnt vmcnt(0) lgkmcnt(0)\ns_barrier\ns_add_u32 s{S_T}, s{S_IT}, s{S_GRP}\ns_cmp_lg_u32 s{S_T}, 1\ns_cbranch_scc1 L_nopub1")
        a(flagst(FOFF+1, S_FL)); a.label("L_nopub1")
    G = dma2()
    pres = {3 + i: {2: G[2*i], 5: G[2*i+1]} for i in range(4)}
    slots({0: h_ld, 1: h_pfwo, 3: h_dma}, pres, False, bw1)
    a(f"""
    s_add_u32 s{S_IT}, s{S_IT}, 1
    s_cmp_lt_u32 s{S_IT}, 8
    s_cbranch_scc1 L_at
    s_nop 0
    """)
    a(pv(3, 1, 1, 1)); a(rs(3, 1, 1))
    if not ST0: stamp(a, 4)
    S_OO, S_FO = 47, 49
    a(f"""
    s_lshl_b32 s{S_T}, s{S_P}, 3
    s_add_u32 s{S_T}, s{S_T}, s{S_B}
    s_lshl_b32 s{S_T}, s{S_T}, 2
    s_add_u32 s{S_T}, s{S_T}, s{S_WR}
    s_lshl_b32 s{S_FO}, s{S_T}, 8
    s_lshl_b32 s{S_OO}, s{S_T}, 17
    s_bfe_u32 s{S_T}, s{S_HB}, 0x50012
    s_lshl_b32 s{S_GRP}, s{S_T}, 3
    s_add_u32 s{S_FO}, s{S_FO}, s{S_GRP}
    s_add_u32 s{S_FO}, s{S_FO}, {FO}
    s_lshl_b32 s{S_T}, s{S_T}, 11
    s_add_u32 s{S_OO}, s{S_OO}, s{S_T}
    s_add_u32 s{S_OO}, s{S_OO}, {OWS}
    s_add_u32 s{S_OO+1}, s{S_OO}, 65536
    v_and_b32 v{VT+6}, 15, v0
    v_lshlrev_b32 v{VT+6}, 4, v{VT+6}
    v_lshrrev_b32 v{VT+7}, 5, v0
    v_lshl_add_u32 v{VT+6}, v{VT+7}, 8, v{VT+6}
    v_bfe_u32 v{VT+7}, v0, 4, 1
    v_lshl_add_u32 v{VT+6}, v{VT+7}, 10, v{VT+6}
    v_mov_b64 v[{VT}:{VT+1}], 0
    """)
    for qt in range(2):
        for i in range(0, 16, 2): a(f"v_pk_fma_f32 v[{VT}:{VT+1}], v[{O[qt]+i}:{O[qt]+i+1}], 0, v[{VT}:{VT+1}]")
    a(f"""
    v_add_f32 v{VT}, v{VT}, v{VT+1}
    v_add_f32 v{VT}, v{VT}, v{LA[0]}
    v_add_f32 v{VT}, v{VT}, v{LA[1]}
    v_cmp_gt_f32 vcc, 0x5f800000, v{VT}
    s_cmp_eq_u64 vcc, exec
    s_cbranch_scc0 L_fallback
    """)
    a.label("L_fin")
    for qt in range(2): a(f"v_rcp_f32 v{VT+2*qt}, v{LA[qt]}")
    a("s_nop 0")
    for qt in range(2):
        for i in range(0, 16, 2): a(f"v_pk_mul_f32 v[{O[qt]+i}:{O[qt]+i+1}], v[{O[qt]+i}:{O[qt]+i+1}], v[{VT+2*qt}:{VT+2*qt+1}] op_sel_hi:[1,0]")
        for i in range(8): a(f"v_cvt_pk_bf16_f32 v{S[qt]+i}, v{O[qt]+2*i}, v{O[qt]+2*i+1}")
        for t in range(2):
            a(f"buffer_store_dwordx4 {vr(S[qt]+4*t,4)}, v{VT+6}, s[36:39], s{S_OO+qt} offen offset:{t*512} sc1")
    OA, OB = 2, 3
    WA3 = [[4, 5, 6, 7], [8, 9, 10, 11]]
    FO_ = [[16 + 16*buf + 4*i for i in range(4)] for buf in range(2)]
    FW3 = [[48 + 16*buf + 4*nb for nb in range(4)] for buf in range(2)]
    AC3 = [[80 + 16*i + 4*nb for nb in range(4)] for i in range(4)]
    RX = 144
    T3 = 176
    S_INC, S_M3, S_ME, S_MS, S_R3, S_C3, S_F3, S_O3 = 52, 53, 54, 55, 56, 57, 58, 59
    a(f"""
    s_cmp_eq_u32 s{S_WH}, 0
    s_cbranch_scc1 L_now45
    s_add_u32 s{S_T}, s{S_W}, 4
    s_lshl_b32 s{S_SO}, s{S_T}, 16
    s_lshl_b32 s{S_M0}, s{S_T}, 13
    """)
    for g in dma2(): a(g)
    a.label("L_now45")
    a(f"""
    s_bfe_u32 s{S_R3}, s{S_W}, 0x10001
    s_and_b32 s{S_C3}, s{S_W}, 1
    s_lshl_b32 s{S_T}, s{S_P}, 4
    s_add_u32 s{S_T}, s{S_T}, s{S_A}
    s_lshl_b32 s{S_T}, s{S_T}, 2
    s_add_u32 s{S_T}, s{S_T}, s{S_WR}
    s_lshr_b32 s{S_F3}, s{S_T}, 1
    s_lshl_b32 s{S_F3}, s{S_F3}, 8
    s_add_u32 s{S_F3}, s{S_F3}, {FO}
    s_lshl_b32 s{S_T}, s{S_T}, 16
    s_add_u32 s{S_T}, s{S_T}, {OWS}
    s_add_u32 s60, s32, s{S_T}
    s_addc_u32 s61, s33, 0
    s_lshl_b32 s{S_M3}, s{S_WR}, 12
    s_lshl_b32 s{S_O3}, s{S_WR}, 15
    s_add_u32 s{S_O3}, s{S_O3}, {6*131072}
    s_add_u32 s{S_T}, s{S_M3}, 98304
    s_cmp_eq_u32 s{S_WH}, 0
    s_cselect_b64 vcc, -1, 0
    s_cselect_b32 s8, s60, s12
    s_cselect_b32 s9, s61, s13
    s_cselect_b32 s10, 0x10000, s14
    s_cselect_b32 s{S_O3}, 0, s{S_O3}
    s_cselect_b32 s{S_ST1}, 0, 7168
    s_cselect_b32 s{S_M3}, s{S_T}, s{S_M3}
    s_cselect_b32 s{S_MS}, 4, 6
    s_cselect_b32 s{S_INC}, 12, 17
    s_lshl_b32 s{S_INC}, 1, s{S_INC}
    s_lshl_b32 s{S_MS}, s{S_MS}, 14
    s_add_u32 s{S_ME}, s{S_M3}, s{S_MS}
    v_lshlrev_b32 v{T3+1}, 4, v0
    v_cndmask_b32 v{VDE}, v{VDE}, v{T3+1}, vcc
    v_cndmask_b32 v{VDO}, v{VDO}, v{T3+1}, vcc
    s_lshl_b32 s{S_T}, s{S_R3}, 1
    s_add_u32 s{S_T}, s{S_T}, s{S_WH}
    s_lshl_b32 s{S_T}, s{S_T}, 1
    s_add_u32 s{S_T}, s{S_T}, s{S_WH}
    s_lshl_b32 s{S_T}, s{S_T}, 11
    s_add_u32 s{S_T}, s{S_T}, 98304
    v_add_u32 v{OA}, s{S_T}, v{T3+1}
    v_xor_b32 v{OB}, 4096, v{OA}
    v_bfe_u32 v{T3}, v0, 2, 3
    v_lshrrev_b32 v{T3+1}, 5, v0
    v_lshl_add_u32 v{T3+1}, v{T3+1}, 4, v{T3}
    s_lshl_b32 s{S_T}, s{S_WH}, 5
    v_add_u32 v{T3+1}, s{S_T}, v{T3+1}
    v_lshlrev_b32 v{T3+1}, 8, v{T3+1}
    v_bfe_u32 v{T3+2}, v0, 1, 1
    s_lshl_b32 s{S_T}, s{S_C3}, 3
    v_add_u32 v{T3+2}, s{S_T}, v{T3+2}
    v_lshlrev_b32 v{T3}, 1, v{T3}
    v_xor_b32 v{T3+2}, v{T3+2}, v{T3}
    v_lshl_add_u32 v{T3+1}, v{T3+2}, 4, v{T3+1}
    v_and_b32 v{T3+2}, 1, v0
    v_lshl_add_u32 v{WA3[0][0]}, v{T3+2}, 3, v{T3+1}
    """)
    for nb in range(1, 4): a(f"v_xor_b32 v{WA3[0][nb]}, {32*nb}, v{WA3[0][0]}")
    for nb in range(4): a(f"v_add_u32 v{WA3[1][nb]}, 0x10000, v{WA3[0][nb]}")
    for i in range(80, 144, 2): a(f"v_mov_b64 v[{i}:{i+1}], 0")
    a(f"""
    v_and_b32 v{FOFF}, 31, v0
    v_lshlrev_b32 v{FOFF}, 3, v{FOFF}
    s_cmp_lg_u32 s{S_WH}, 0
    s_cbranch_scc1 L_pubW
    s_waitcnt vmcnt(0) lgkmcnt(0)
    """)
    a(flagst(ZERO, S_FO))
    poll("L_pollo", S_F3)
    def dma3():
        G = []
        for j in range(4):
            g = []
            if j == 0: g += [f"s_mov_b32 m0, s{S_M3}", f"s_mov_b32 s{S_SO}, s{S_O3}"]
            g.append(f"buffer_load_dwordx4 v{VDE if j%2==0 else VDO}, s[8:11], s{S_SO} offen offset:{j*1024} sc1 lds")
            if j < 3: g.append(f"s_add_u32 s{S_SO}, s{S_SO}, s{S_ST1}")
            else: g += [f"s_add_u32 s{S_O3}, s{S_O3}, s{S_INC}", f"s_add_u32 s{S_M3}, s{S_M3}, 16384", f"s_cmp_eq_u32 s{S_M3}, s{S_ME}",
                        f"s_cselect_b32 s{S_T}, s{S_MS}, 0", f"s_sub_u32 s{S_M3}, s{S_M3}, s{S_T}"]
            G.append(g)
        return G
    for st in range(4):
        for g in dma3(): a(g)
    a("s_waitcnt vmcnt(12)\ns_branch L_p3go")
    a.label("L_pubW")
    a("s_waitcnt vmcnt(8) lgkmcnt(0)")
    a(flagst(ZERO, S_FO))
    a.label("L_p3go")
    a("s_barrier")
    if not ST0: stamp(a, 5)
    def reads3(s, buf):
        ws_, os_ = s % 6, s % 4
        O_ = [f"ds_read_b128 {vr(FO_[buf][i],4)}, v{OA if i < 2 else OB} offset:{os_*16384 + (i%2)*1024}" for i in range(4)]
        W_ = [f"ds_read_b64_tr_b16 {vr(FW3[buf][nb]+2*u,2)}, v{WA3[ws_//4][nb]} offset:{(ws_%4)*16384 + u*2048}" for nb in range(4) for u in range(2)]
        return W_[0:2] + O_ + W_[2:]
    def mfmas3(buf):
        return [mf16(AC3[i][nb], FW3[buf][nb], FO_[buf][i]) for nb in range(4) for i in range(4)]
    a(reads3(0, 0))
    XCH = 65536
    fin_setup = f"""
    s_lshl_b32 s{S_T}, s{S_W}, 13
    s_add_u32 s{S_T}, s{S_T}, {XCH}
    v_lshlrev_b32 v{T3}, 4, v0
    v_add_u32 v{T3}, s{S_T}, v{T3}
    v_xor_b32 v{T3+1}, 0x8000, v{T3}
    s_mov_b32 s12, s28
    s_mov_b32 s13, s29
    s_mov_b32 s14, 0x800000
    s_lshl_b32 s{S_T}, s{S_A}, 2
    s_lshl_b32 s{S_SO}, s{S_R3}, 1
    s_add_u32 s{S_T}, s{S_T}, s{S_SO}
    s_add_u32 s{S_T}, s{S_T}, s{S_WH}
    s_lshl_b32 s{S_T}, s{S_T}, 17
    s_lshl_b32 s{S_SO}, s{S_P}, 11
    s_add_u32 s{S_T}, s{S_T}, s{S_SO}
    s_lshl_b32 s{S_SO}, s{S_B}, 8
    s_add_u32 s{S_T}, s{S_T}, s{S_SO}
    s_lshl_b32 s{S_SO}, s{S_C3}, 7
    s_add_u32 s{S_SO}, s{S_T}, s{S_SO}
    s_add_u32 s{S_SO+1}, s{S_SO}, 65536
    v_and_b32 v{T3+2}, 15, v0
    v_lshlrev_b32 v{T3+2}, 12, v{T3+2}
    v_bfe_u32 v{T3+3}, v0, 4, 1
    v_lshl_add_u32 v{T3+2}, v{T3+3}, 5, v{T3+2}
    v_lshrrev_b32 v{T3+3}, 5, v0
    v_lshl_add_u32 v{T3+2}, v{T3+3}, 4, v{T3+2}
    """.strip().split("\n")
    for s in range(16):
        if s < 15:
            a(f"s_waitcnt vmcnt({8 if s <= 12 else 4 if s == 13 else 0}) lgkmcnt(0)\ns_barrier")
            r = reads3(s + 1, 1 - s % 2)
            f = {i: [r[i]] for i in range(12)}
            if s <= 11:
                d = dma3()
                for k_, i in enumerate((0, 4, 8, 12)): f[i] = f.get(i, []) + d[k_]
            if s == 14:
                for i in range(13): f[i] = f.get(i, []) + fin_setup[2*i:2*i+2]
            a(weave(mfmas3(s % 2), f))
        else:
            a("s_waitcnt lgkmcnt(0)")
            m = mfmas3(1)
            order = [k_ for k_ in range(16) if k_ % 4 >= 2] + [k_ for k_ in range(16) if k_ % 4 < 2]
            a([m[k_] for k_ in order])
    if not ST0: stamp(a, 6)
    for j in range(8): a(f"ds_write_b128 v{T3}, {vr(AC3[2][0]+4*j,4)} offset:{j*1024}")
    a("s_waitcnt lgkmcnt(0)\ns_barrier")
    for j in range(8): a(f"ds_read_b128 {vr(RX+4*j,4)}, v{T3+1} offset:{j*1024}")
    prev = None
    for j in range(5):
        if j < 4:
            qb, np_ = j // 2, j % 2
            t0 = AC3[qb][2*np_]
            a(f"s_waitcnt lgkmcnt({6 - 2*j})")
            for i in range(0, 8, 2): a(f"v_pk_add_f32 v[{t0+i}:{t0+i+1}], v[{t0+i}:{t0+i+1}], v[{RX+8*j+i}:{RX+8*j+i+1}]")
            cur = (16 + 4*j, qb, np_)
            a(pack2(cur[0], t0, t0 + 4))
        else:
            cur = None; a("s_nop 1")
        if prev:
            a(swap2(prev[0]))
            a(f"buffer_store_dwordx4 {vr(prev[0],4)}, v{T3+2}, s[12:15], s{S_SO+prev[1]} offen offset:{prev[2]*64}")
        prev = cur
    stamp_flush(a, 7, 1)
    a.label("L_end")
    a("s_endpgm")
    MX = [VT, VT+2]
    a.label("L_fallback")
    a(f"""
    v_mov_b32 v{MX[0]}, 0xff800000
    v_mov_b32 v{MX[1]}, 0xff800000
    s_mov_b32 s{S_IT}, 0
    s_waitcnt vmcnt(0) lgkmcnt(0)
    """)
    a.label("L_fb_max")
    a(f"s_add_u32 s{S_T}, s{S_IT}, s{S_HB}")
    for t in range(2): a(f"buffer_load_dwordx4 {vr(KF[0]+4*t,4)}, v{VD}, s[36:39], s{S_T} offen offset:{t*1024} sc1")
    a("s_waitcnt vmcnt(0)")
    a(qk(0, 0, 0, "0")); a(qk(1, 0, 1, "0"))
    a("s_nop 15")
    for qt in range(2):
        for i in range(0, 16, 2): a(f"v_max3_f32 v{MX[qt]}, v{MX[qt]}, v{S[qt]+i}, v{S[qt]+i+1}")
    a(f"""
    s_add_u32 s{S_IT}, s{S_IT}, 4096
    s_cmp_lt_u32 s{S_IT}, 0x40000
    s_cbranch_scc1 L_fb_max
    """)
    max_to_nm(MX[0], 0); max_to_nm(MX[1], 1)
    for i in range(O[0], LA[1] + 4, 2): a(f"v_mov_b64 v[{i}:{i+1}], 0")
    a(f"s_mov_b32 s{S_IT}, 0")
    a.label("L_fb_main")
    a(f"s_add_u32 s{S_T}, s{S_IT}, s{S_HB}")
    for t in range(2): a(f"buffer_load_dwordx4 {vr(KF[0]+4*t,4)}, v{VD}, s[36:39], s{S_T} offen offset:{t*1024} sc1")
    for t in range(2): a(f"buffer_load_dwordx4 {vr(VF[0]+4*t,4)}, v{VD}, s[36:39], s{S_T} offen offset:{2048+t*1024} sc1")
    a("s_waitcnt vmcnt(0)")
    a(qk(0, 0, 0)); a(qk(1, 0, 1))
    a("s_nop 15")
    for qt in range(2):
        for i in range(16): a(f"v_exp_f32 v{S[qt]+i}, v{S[qt]+i}")
    a("s_nop 1")
    for qt in range(2):
        for t in range(2): a(pv(qt, 0, qt, t)); a(rs(qt, qt, t))
    a(f"""
    s_add_u32 s{S_IT}, s{S_IT}, 4096
    s_cmp_lt_u32 s{S_IT}, 0x40000
    s_cbranch_scc1 L_fb_main
    s_nop 15
    s_branch L_fin
    """)
    return f""".p2align 6
.amdhsa_kernel {name}
  .amdhsa_next_free_vgpr {NV}
  .amdhsa_next_free_sgpr 100
  .amdhsa_accum_offset {NV}
  .amdhsa_group_segment_fixed_size 0
  .amdhsa_kernarg_size 72
  .amdhsa_user_sgpr_count 2
  .amdhsa_user_sgpr_kernarg_segment_ptr 1
  .amdhsa_system_sgpr_workgroup_id_x 1
.end_amdhsa_kernel"""

def main():
    out = sys.argv[1] if len(sys.argv) > 1 else f"cdna_kernels/{NAME}.s"
    a = Asm()
    k = gen(a)
    hdr = open(f"cdna_kernels/{NAME}.s.ref").read().split("\n")
    hdr = [l for l in hdr if l.startswith(";") and "@launch" not in l]
    hdr.append(f"; @launch grid=(256,1,1) block=(512,1,1) lds={LDS_BYTES}")
    txt = "\n".join(hdr) + '\n.amdgcn_target "amdgcn-amd-amdhsa--gfx950"\n.text\n' + a.text() + '\n.section .rodata,"a"\n' + k + "\n"
    open(out, "w").write(txt)

if __name__ == "__main__":
    main()
```

```python
import sys, math, os, struct
from gen2 import Asm, vr, f2u, mf32, mf16, weave, NAME

STAMP = os.environ.get("STAMP", "0") == "1"
def OPT(k, d): return type(d)(os.environ.get(k, d))

KVWS = 0
OWS = 16 << 20
FKV = 24 << 20
FO = FKV + 65536
WS_BYTES = 25 << 20
STAMP_BASE = 64 << 20
CSCALE = math.log2(math.e) / math.sqrt(32.0)
LDS_BYTES = 163840
SPIN_MAX = 1 << 16

S_W, S_P, S_A, S_B, S_T = 3, 4, 5, 6, 7
S_WR, S_WH, S_IT = 40, 41, 42
NON = 34

ST3 = os.environ.get("ST3", "") == "1"
STG = os.environ.get("STG", "") == "1"
def stamp_stage(a, lane):
    if STG:
        a(f"s_memtime s[96:97]\ns_memrealtime s[98:99]\ns_lshl_b64 exec, 1, {lane}\ns_waitcnt lgkmcnt(0)\nv_mov_b32 v250, s96\nv_mov_b32 v251, s98\ns_mov_b64 exec, -1")
def stamp(a, i, alt=False):
    if ST3 and i in (1, 2, 3, 4) and not alt: return
    if STAMP and not STG:
        a(f"s_memtime s[{64+4*i}:{65+4*i}]")
        a(f"s_memrealtime s[{66+4*i}:{67+4*i}]")
        a("s_waitcnt lgkmcnt(0)")
def stamp_flush(a, n, vt):
    if not STAMP: return
    a("s_waitcnt vmcnt(0) lgkmcnt(0)")
    stamp(a, n)
    a(f"""
    s_add_u32 s56, s32, {STAMP_BASE}
    s_addc_u32 s57, s33, 0
    s_mov_b32 s58, 0x100000
    s_mov_b32 s59, 0x20000
    s_lshl_b32 s60, s2, 3
    s_add_u32 s60, s60, s{S_W}
    s_lshl_b32 s60, s60, 6
    v_mov_b32 v{vt}, 0
    """)
    if STG:
        a(f"v_lshlrev_b32 v{vt}, 3, v0\ns_mov_b64 exec, 0xff\nbuffer_store_dwordx2 v[250:251], v{vt}, s[56:59], s60 offen")
        return
    for i in range(n + 1):
        a(f"v_mov_b32 v{vt+1}, s{64+4*i}")
        a(f"v_mov_b32 v{vt+2}, s{66+4*i}")
        a(f"buffer_store_dwordx2 v[{vt+1}:{vt+2}], v{vt}, s[56:59], s60 offen offset:{8*i}")
        a("s_nop 1")

def gen(a):
    name = NAME + "_kernel"
    a.raw(f".globl {name}\n.p2align 8\n.type {name},@function\n{name}:")
    stamp(a, 0)
    def emit(L):
        for x in L:
            a(x)
            if " m0," in x: a("s_nop 0")
    Q = [16, 24]; PK = 32; KF = [64, 72]; VF = [80, 88]; NM = [96, 112]; S = [128, 144, 160, 176]
    O = [192, 208]; LA = [224, 228]; ONES = 232; IDX = 236; ZERO = 237
    FDAT, FOFF, PDAT = 238, 240, 242
    XB = [244, 245]; VDE, VDO = 246, 247
    NV = 256 if STG else 248
    def poll(lab, soff, mask=None, first_loaded=False):
        ld = f"buffer_load_dwordx2 v[{PDAT}:{PDAT+1}], v{FOFF}, s[36:39], s{soff} offen sc1"
        a(f"s_mov_b32 s{S_T}, {SPIN_MAX}")
        if not first_loaded: a(ld)
        a.label(lab)
        a(f"""
        s_waitcnt vmcnt(0)
        v_cmp_eq_u64 vcc, s[{NON}:{NON+1}], v[{PDAT}:{PDAT+1}]
        """)
        if mask: a(f"s_or_b64 vcc, vcc, {mask}")
        a(f"""
        s_cmp_eq_u64 vcc, exec
        s_cbranch_scc1 {lab}_done
        s_sub_u32 s{S_T}, s{S_T}, 1
        s_cbranch_scc1 {lab}_done
        {ld}
        s_branch {lab}
        """)
        a.label(lab + "_done")
    XA = [2, 3]; WA = [4, 5]; D0, D1, D2, PFV, PFD = 6, 7, 8, 9, 10
    VT = 11
    FX = [[16 + 16*buf + 4*rb for rb in range(4)] for buf in range(2)]
    FW = [[48 + 24*buf + 4*cb for cb in range(6)] for buf in range(2)]
    ACC = [[96 + 16*cb + 4*rb for rb in range(4)] for cb in range(6)]
    S_KX, S_KW, T0, S_M0X, S_M0W, S_XF, S_XN, S_PFO, S_PFI = 43, 44, 45, 47, 48, 49, 50, 56, 57
    W0, W1 = 98304, 122880
    PF0, PFSTEP = OPT("PF0", 3), OPT("PFSTEP", 4)
    a(f"""
    s_cmp_ge_u32 s2, 256
    s_cbranch_scc1 L_end
    s_load_dwordx16 s[16:31], s[0:1], 0
    s_load_dwordx2 s[32:33], s[0:1], 64
    s_memrealtime s[{NON}:{NON+1}]
    v_lshrrev_b32 v1, 6, v0
    v_and_b32 v0, 63, v0
    v_readfirstlane_b32 s{S_W}, v1
    s_and_b32 s{S_T}, s2, 7
    s_lshr_b32 s{S_B}, s2, 3
    s_lshr_b32 s{S_P}, s{S_T}, 2
    s_and_b32 s{S_A}, s{S_T}, 3
    s_lshl_b32 s{S_A}, s{S_A}, 2
    s_and_b32 s{S_T}, s{S_B}, 3
    s_or_b32 s{S_A}, s{S_A}, s{S_T}
    s_lshr_b32 s{S_B}, s{S_B}, 2
    s_and_b32 s{S_WR}, s{S_W}, 3
    s_lshr_b32 s{S_WH}, s{S_W}, 2
    s_mul_i32 s{S_M0X}, s{S_WR}, 7
    s_add_u32 s{S_T}, s{S_WR}, 28
    s_cmp_eq_u32 s{S_WH}, 0
    s_cselect_b32 s{S_M0X}, s{S_T}, s{S_M0X}
    v_lshrrev_b32 v{VT}, 3, v0
    s_lshl_b32 s{S_T}, s{S_M0X}, 3
    v_add_u32 v{VT+4}, s{S_T}, v{VT}
    v_lshlrev_b32 v{VT+4}, 11, v{VT+4}
    v_and_b32 v{VT+1}, 7, v0
    v_lshrrev_b32 v{VT+2}, 4, v0
    v_xor_b32 v{VT+3}, v{VT+1}, v{VT+2}
    s_and_b32 s{S_T}, s{S_WR}, 1
    s_lshl_b32 s{S_T}, s{S_T}, 2
    v_xor_b32 v{VT+3}, s{S_T}, v{VT+3}
    v_lshl_add_u32 v{D2}, v{VT+3}, 4, v{VT+4}
    s_lshl_b32 s{S_M0X}, s{S_M0X}, 10
    s_lshl_b32 s{S_T}, s{S_WR}, 4
    v_add_u32 v{VT}, s{S_T}, v{VT}
    v_mul_u32_u24 v{VT}, 6144, v{VT}
    v_and_b32 v{VT+2}, 1, v{VT+2}
    v_lshlrev_b32 v{VT+2}, 2, v{VT+2}
    v_xor_b32 v{VT+3}, v{VT+1}, v{VT+2}
    v_lshl_add_u32 v{D0}, v{VT+3}, 4, v{VT}
    v_xor_b32 v{D1}, 32, v{D0}
    v_add_u32 v{D1}, 49152, v{D1}
    s_mul_i32 s{S_M0W}, s{S_WR}, 6144
    s_add_u32 s{S_M0W}, s{S_M0W}, {W0}
    s_mov_b32 s{S_KX}, 0
    s_mov_b32 s{S_KW}, 0
    s_mov_b32 s11, 0x20000
    s_mov_b32 s15, 0x20000
    s_mov_b32 s39, 0x20000
    s_mov_b32 s55, 0x20000
    v_mov_b32 v{ZERO}, 0
    s_waitcnt lgkmcnt(0)
    s_cmp_eq_u32 s{S_P}, 0
    s_cselect_b32 s8, s16, s22
    s_cselect_b32 s9, s17, s23
    s_cselect_b32 s12, s18, s24
    s_cselect_b32 s13, s19, s25
    s_lshl_b32 s{S_T}, s{S_B}, 19
    s_add_u32 s8, s8, s{S_T}
    s_addc_u32 s9, s9, 0
    s_sub_u32 s10, 0x400000, s{S_T}
    s_lshl_b32 s{S_T}, s{S_A}, 7
    s_add_u32 s12, s12, s{S_T}
    s_addc_u32 s13, s13, 0
    s_sub_u32 s14, 0x600000, s{S_T}
    s_cmp_lg_u32 s{S_WH}, 0
    s_cbranch_scc1 L_proB
    """)
    def burstW(stage):
        L = []
        for g in range(2):
            L.append(f"s_add_u32 m0, s{S_M0W}, {stage*(W1-W0) + g*3072}")
            for s_ in range(3):
                if s_: L.append(f"s_add_u32 s{T0+s_%2}, s{S_KW}, {s_*1024}")
                else: L.append("s_nop 0")
                L.append(f"buffer_load_dwordx4 v{D0+g}, s[12:15], s{T0+s_%2 if s_ else S_KW} offen offset:{s_*1024} lds")
        L.append(f"s_add_u32 s{S_KW}, s{S_KW}, 393216")
        return L
    def burstXA(slot):
        return [f"s_add_u32 m0, s{S_M0X}, {slot}", "s_nop 0", f"buffer_load_dwordx4 v{D2}, s[8:11], s{S_KX} offen lds", f"s_add_u32 s{S_KX}, s{S_KX}, 128"]
    def burstXB(slot):
        L = [f"s_add_u32 m0, s{S_M0X}, {slot}"]
        for j in range(7):
            if j == 4: L.append("s_add_u32 m0, m0, 4096")
            L.append(f"s_add_u32 s{T0+j%2}, s{S_KX}, {j*16384 - (j%4)*1024}")
            L.append(f"buffer_load_dwordx4 v{D2 if j%2==0 else D1}, s[8:11], s{T0+j%2} offen offset:{(j%4)*1024} lds")
        L.append(f"s_add_u32 s{S_KX}, s{S_KX}, 128")
        return L
    a(burstW(0) + burstXA(0) + burstW(1) + burstXA(32768) + burstXA(65536))
    a(f"""
    s_or_b32 s{S_T}, s2, s{S_W}
    s_cmp_lg_u32 s{S_T}, 0
    s_cbranch_scc1 L_pro2
    s_mov_b32 s52, s30
    s_mov_b32 s53, s31
    s_mov_b32 s54, 256
    s_or_b32 s{NON}, s{NON}, 1
    v_mov_b32 v{FDAT}, s{NON}
    v_mov_b32 v{FDAT+1}, s{NON+1}
    s_mov_b64 exec, 1
    buffer_store_dwordx2 v[{FDAT}:{FDAT+1}], v{ZERO}, s[52:55], 0 offen sc1
    s_mov_b64 exec, -1
    s_branch L_pro2
    """)
    a.label("L_proB")
    a(f"v_xor_b32 v{D1}, 64, v{D2}")
    a(burstXB(0) + burstXB(32768))
    a.label("L_pro2")
    a(f"""
    s_lshl_b32 s{S_T}, s{S_B}, 2
    s_add_u32 s{S_T}, s{S_T}, s{S_WR}
    s_lshl_b32 s{S_T}, s{S_T}, 2
    v_and_b32 v{VT+1}, 3, v0
    v_add_u32 v{VT+1}, s{S_T}, v{VT+1}
    v_bfe_u32 v{VT+2}, v0, 4, 1
    v_lshl_add_u32 v{VT+1}, v{VT+2}, 7, v{VT+1}
    v_mul_u32_u24 v{VT+1}, 6144, v{VT+1}
    v_bfe_u32 v{VT+2}, v0, 2, 2
    v_min_u32 v{VT+2}, 2, v{VT+2}
    v_lshl_add_u32 v{PFV}, v{VT+2}, 11, v{VT+1}
    s_mov_b32 s{S_PFO}, {393216 * PF0}
    v_and_b32 v{VT}, 15, v0
    s_lshl_b32 s{S_T}, s{S_WR}, 6
    v_add_u32 v{VT}, s{S_T}, v{VT}
    v_lshlrev_b32 v{VT}, 7, v{VT}
    v_lshrrev_b32 v{VT+1}, 4, v0
    v_bfe_u32 v{VT+2}, v0, 1, 3
    v_xor_b32 v{VT+2}, v{VT+1}, v{VT+2}
    v_lshl_add_u32 v{XA[0]}, v{VT+2}, 4, v{VT}
    v_xor_b32 v{XA[1]}, 64, v{XA[0]}
    v_mov_b32 v{XB[0]}, v{XA[0]}
    v_mov_b32 v{XB[1]}, v{XA[1]}
    v_mul_u32_u24 v{VT}, 3072, v{VT+1}
    v_bfe_u32 v{VT+2}, v0, 2, 2
    v_lshl_add_u32 v{VT}, v{VT+2}, 7, v{VT}
    v_bfe_u32 v{VT+3}, v0, 1, 1
    s_lshl_b32 s{S_T}, s{S_WH}, 2
    v_add_u32 v{VT+3}, s{S_T}, v{VT+3}
    v_bfe_u32 v{VT+4}, v0, 3, 1
    v_lshlrev_b32 v{VT+4}, 2, v{VT+4}
    v_xor_b32 v{VT+3}, v{VT+3}, v{VT+4}
    v_bfe_u32 v{VT+4}, v0, 4, 1
    v_lshlrev_b32 v{VT+4}, 1, v{VT+4}
    v_xor_b32 v{VT+3}, v{VT+3}, v{VT+4}
    v_lshl_add_u32 v{VT}, v{VT+3}, 4, v{VT}
    v_and_b32 v{VT+4}, 1, v0
    v_lshl_add_u32 v{VT}, v{VT+4}, 3, v{VT}
    v_add_u32 v{WA[0]}, {W0}, v{VT}
    v_xor_b32 v{WA[1]}, 32, v{WA[0]}
    v_mov_b32 v{IDX}, 0xdddddddd
    v_bfe_u32 v{VT}, v0, 2, 1
    v_mov_b32 v{VT+1}, 0x3f803f80
    v_cmp_eq_u32 vcc, 0, v{VT}
    v_lshlrev_b32 v{VDE}, 4, v0
    v_lshlrev_b32 v{VDO}, 4, v0
    v_cndmask_b32 v{ONES}, v{ZERO}, v{VT+1}, vcc
    v_cndmask_b32 v{ONES+1}, v{ZERO}, v{VT+1}, vcc
    v_cndmask_b32 v{ONES+2}, v{VT+1}, v{ZERO}, vcc
    v_cndmask_b32 v{ONES+3}, v{VT+1}, v{ZERO}, vcc
    v_and_b32 v{FOFF}, 7, v0
    v_lshlrev_b32 v{FOFF}, 3, v{FOFF}
    s_lshl_b32 s{S_T}, s{S_B}, 3
    v_mov_b32 v{FOFF+1}, s{S_T}
    s_mov_b32 s{S_IT}, 0
    s_mov_b32 s{S_XN}, 32768
    """)
    for i in range(96, 232, 2): a(f"v_mov_b64 v[{i}:{i+1}], 0")
    def reads1(stage, t, buf):
        X = [f"ds_read_b128 {vr(FX[buf][rb],4)}, v{XA[t]} offset:{rb*2048}" for rb in range(4)]
        W = []
        for cb in range(6):
            for u in range(2):
                W.append(f"ds_read_b64_tr_b16 {vr(FW[buf][cb]+2*u,2)}, v{WA[cb%2]} offset:{stage*(W1-W0) + t*12288 + (cb//2)*1024 + u*512}")
        return W[0:2] + X + W[2:]
    def mfmas1(buf):
        return [mf16(ACC[cb][rb], FW[buf][cb], FX[buf][rb]) if cb < 4 else mf16(ACC[cb][rb], FX[buf][rb], FW[buf][cb])
                for cb in range(6) for rb in range(4)]
    def rot_x():
        return [f"v_add_u32 v{XA[1]}, s{S_XN}, v{XB[1]}", f"s_mov_b32 s{S_XF}, s{S_XN}", f"s_add_u32 s{S_XN}, s{S_XN}, 32768",
                f"s_cmp_eq_u32 s{S_XN}, 98304", f"s_cselect_b32 s{S_XN}, 0, s{S_XN}"]
    BSPR = OPT("BSPR", 0)
    def place(f, burst, pre):
        if BSPR == 0:
            pre += burst; return
        groups, cur = [], []
        for x in burst:
            cur.append(x)
            if " lds" in x or "buffer_load_dword " in x: groups.append(cur); cur = []
        if cur: groups[-1] += cur
        pre += groups[0]
        for k_, g in enumerate(groups[1:]): f[(k_ + 1) * BSPR - 1] = f.get((k_ + 1) * BSPR - 1, []) + g
    a(f"""
    s_cmp_lg_u32 s{S_WH}, 0
    s_cbranch_scc1 L_g1B_pre
    s_mov_b32 s{S_XF}, 0
    s_waitcnt vmcnt(8)
    s_barrier
    """)
    stamp(a, 1)
    a(reads1(0, 0, 0))
    a.raw(".p2align 6")
    a.label("L_g1A")
    a(f"s_cmp_eq_u32 s{S_IT}, 7\ns_cselect_b32 s14, 0, s14")
    for stage in range(2):
        a("s_waitcnt lgkmcnt(0)")
        r = reads1(stage, 1, 1)
        a(weave(mfmas1(0), {i: [r[i]] for i in range(16)}))
        if stage == 1: a(f"s_cmp_ge_u32 s{S_IT}, 6\ns_cselect_b32 s10, 0, s10")
        a(f"v_add_u32 v{XA[0]}, s{S_XN}, v{XB[0]}")
        a("s_waitcnt vmcnt(1) lgkmcnt(0)\ns_barrier")
        r = reads1(1 - stage, 0, 0)
        f = {i: [r[i]] for i in range(16)}
        pre = []
        if stage == 1 :
            a(f"s_cmp_eq_u32 s{S_IT}, 7\ns_cbranch_scc1 L_g1A_last")
        place(f, burstW(stage) + burstXA(f"s{S_XF}"), pre)
        f[20] = f.get(20, []) + rot_x()
        a(pre); a(weave(mfmas1(1), f))
    a(f"""
    s_add_u32 s{S_IT}, s{S_IT}, 1
    s_branch L_g1A
    """)
    a.label("L_g1B_pre")
    a(f"s_mov_b32 s{S_XF}, 65536\ns_waitcnt vmcnt(7)\ns_barrier")
    stamp(a, 1)
    a(reads1(0, 0, 0))
    a.raw(".p2align 6")
    a.label("L_g1B")
    a(f"s_cmp_eq_u32 s{S_IT}, 7\ns_cselect_b32 s10, 0, s10")
    pf = [f"buffer_load_dword v{PFD}, v{PFV}, s[12:15], s{S_PFO} offen", f"s_add_u32 s{S_PFO}, s{S_PFO}, {393216 * PFSTEP}"]
    for stage in range(2):
        r = reads1(stage, 1, 1)
        f = {i: [r[i]] for i in range(16)}
        pre = []
        place(f, burstXB(f"s{S_XF}") + (pf if stage == 0 else []), pre)
        a(pre)
        a("s_waitcnt lgkmcnt(0)")
        a(weave(mfmas1(0), f))
        a(f"v_add_u32 v{XA[0]}, s{S_XN}, v{XB[0]}")
        a(f"s_waitcnt vmcnt({8 if stage == 0 else 7}) lgkmcnt(0)\ns_barrier")
        if stage == 1:
            a(f"s_cmp_eq_u32 s{S_IT}, 7\ns_cbranch_scc1 L_g1A_last")
        r = reads1(1 - stage, 0, 0)
        f = {i: [r[i]] for i in range(16)}
        f[20] = [f"v_add_u32 v{XA[1]}, s{S_XN}, v{XB[1]}", f"s_add_u32 s{S_XF}, s{S_XF}, 32768", f"s_cmp_eq_u32 s{S_XF}, 98304",
                 f"s_cselect_b32 s{S_XF}, 0, s{S_XF}", f"s_add_u32 s{S_XN}, s{S_XN}, 32768",
                 f"s_cmp_eq_u32 s{S_XN}, 98304", f"s_cselect_b32 s{S_XN}, 0, s{S_XN}"]
        a(weave(mfmas1(1), f))
    a(f"""
    s_add_u32 s{S_IT}, s{S_IT}, 1
    s_branch L_g1B
    """)
    VKV, VD = 2, 3
    VT = 4
    S_SO, S_ST1, S_ST2, S_M0, S_KV, S_FL, S_HB, S_GRP, MSK = 43, 44, 45, 46, 47, 49, 50, 51, 56
    NE = 3
    a.label("L_g1A_last")
    setup = f"""
    s_mov_b32 s36, s32
    s_mov_b32 s37, s33
    s_mov_b32 s38, {WS_BYTES}
    s_mov_b32 s52, s30
    s_mov_b32 s53, s31
    s_mov_b32 s54, 256
    buffer_load_dwordx2 v[{FDAT}:{FDAT+1}], v{ZERO}, s[52:55], 0 offen sc1
    s_lshl_b32 s{S_T}, s{S_P}, 4
    s_add_u32 s{S_T}, s{S_T}, s{S_A}
    s_lshl_b32 s{S_FL}, s{S_T}, 3
    s_lshl_b32 s{S_T}, s{S_T}, 1
    s_add_u32 s{S_T}, s{S_T}, s{S_WH}
    s_lshl_b32 s{S_HB}, s{S_T}, 18
    s_add_u32 s{S_FL}, s{S_FL}, s{S_W}
    s_lshl_b32 s{S_FL}, s{S_FL}, 6
    s_add_u32 s{S_FL}, s{S_FL}, {FKV}
    s_lshl_b32 s{S_T}, s{S_WR}, 13
    s_add_u32 s{S_T}, s{S_T}, s{S_HB}
    s_add_u32 s8, s32, s{S_T}
    s_addc_u32 s9, s33, 0
    s_mov_b32 s10, 0x40000
    s_lshl_b32 s{S_KV}, s{S_B}, 15
    s_add_u32 s{S_KV}, s{S_KV}, s{S_T}
    s_add_u32 s{S_KV+1}, s{S_KV}, 4096
    s_lshl_b32 s{S_M0}, s{S_W}, 13
    v_lshlrev_b32 v{VD}, 4, v0
    v_add_u32 v{VKV}, s{S_M0}, v{VD}
    s_cmp_eq_u32 s{S_P}, 0
    s_cselect_b32 s12, s20, s26
    s_cselect_b32 s13, s21, s27
    s_lshl_b32 s{S_T}, s{S_B}, 8
    s_add_u32 s12, s12, s{S_T}
    s_addc_u32 s13, s13, 0
    s_sub_u32 s14, 0x200000, s{S_T}
    s_mov_b32 s{S_ST1}, 0
    s_mov_b32 s{S_ST2}, 4096
    s_mov_b32 s{MSK}, {(0xff << NE & 0xff) * 0x01010101:#x}
    s_mov_b32 s{MSK+1}, s{MSK}
    s_mov_b32 s58, {f2u(CSCALE):#x}
    s_mov_b32 s59, s58
    """.strip().split("\n")
    m = mfmas1(1)
    m = m[8:] + m[:8]
    f = {i: setup[2*i:2*i+2] for i in range(24)}
    a(weave(m, f))
    stamp(a, 2)
    def pack2(dst, t0, t1):
        return [f"v_cvt_pk_bf16_f32 v{dst}, v{t0}, v{t0+1}", f"v_cvt_pk_bf16_f32 v{dst+1}, v{t0+2}, v{t0+3}",
                f"v_cvt_pk_bf16_f32 v{dst+2}, v{t1}, v{t1+1}", f"v_cvt_pk_bf16_f32 v{dst+3}, v{t1+2}, v{t1+3}"]
    def swap2(dst):
        return [f"v_permlane16_swap_b32 v{dst}, v{dst+2}", f"v_permlane16_swap_b32 v{dst+1}, v{dst+3}"]
    frs = []
    for b in range(2):
        for t in range(2): frs.append((PK + 8*b + 4*t, ACC[2+t][2*b], ACC[2+t][2*b+1], b, t*1024))
    for b in range(2):
        for t in range(2): frs.append((PK + 16 + 8*b + 4*t, ACC[4][2*b+t], ACC[5][2*b+t], b, 2048 + t*1024))
    kvstores = [f"buffer_store_dwordx4 {vr(fr[0],4)}, v{VD}, s[60:63], s{S_KV+fr[3]} offen offset:{fr[4]} sc1" for fr in frs]
    prev = None
    for fr in frs:
        a(pack2(fr[0], fr[1], fr[2]))
        if prev:
            a(swap2(prev[0])); a(f"ds_write_b128 v{VKV}, {vr(prev[0],4)} offset:{prev[3]*4096+prev[4]}")
        prev = fr
    for i in range(0, 8, 2): a(f"v_pk_mul_f32 v[{96+i}:{97+i}], v[{96+i}:{97+i}], s[58:59]")
    a(swap2(prev[0])); a(f"ds_write_b128 v{VKV}, {vr(prev[0],4)} offset:{prev[3]*4096+prev[4]}")
    for i in range(8, 32, 2): a(f"v_pk_mul_f32 v[{96+i}:{97+i}], v[{96+i}:{97+i}], s[58:59]")
    for b in range(2):
        for t in range(2): a(pack2(Q[b] + 4*t, ACC[t][2*b], ACC[t][2*b+1]))
    a(f"""
    s_lshl_b32 s{S_T}, s{S_WH}, 15
    v_add_u32 v{VKV}, s{S_T}, v{VD}
    s_add_u32 s{S_M0}, s{S_M0}, 65536
    s_cmp_lt_u32 s{S_B}, {NE}
    s_cselect_b32 s{S_GRP}, 1, 0
    s_mov_b32 s60, s32
    s_mov_b32 s61, s33
    s_cselect_b32 s62, s38, 0
    s_mov_b32 s63, 0x20000
    """)
    for b in range(2):
        for t in range(2): a(swap2(Q[b] + 4*t))
    a("s_waitcnt vmcnt(0) lgkmcnt(0)\ns_barrier")
    def rdK(kt, buf): return [f"ds_read_b128 {vr(KF[buf]+4*t,4)}, v{VKV} offset:{kt*4096+t*1024}" for t in range(2)]
    def rdV(kt, buf): return [f"ds_read_b128 {vr(VF[buf]+4*t,4)}, v{VKV} offset:{kt*4096+2048+t*1024}" for t in range(2)]
    def qk(sbuf, kbuf, qt, c=None):
        return [mf32(S[sbuf], KF[kbuf], Q[qt], NM[qt] if c is None else c), mf32(S[sbuf], KF[kbuf]+4, Q[qt]+4)]
    def pv(sbuf, vbuf, qt, t):
        return f"v_smfmac_f32_32x32x32_bf16 {vr(O[qt],16)}, {vr(VF[vbuf]+4*t,4)}, {vr(S[sbuf]+8*t,8)}, v{IDX}"
    def rs(sbuf, qt, t):
        return f"v_smfmac_f32_16x16x64_bf16 {vr(LA[qt],4)}, {vr(ONES,4)}, {vr(S[sbuf]+8*t,8)}, v{IDX}"
    def max_to_nm(m, qt):
        a(f"v_mov_b32 v{m+1}, v{m}")
        a("s_nop 1")
        a(f"v_permlane32_swap_b32 v{m}, v{m+1}")
        a("s_nop 1")
        a(f"v_max_f32 v{m}, v{m}, v{m+1}")
        a(f"v_sub_f32 v{m}, 0, v{m}")
        a(f"v_mov_b32 v{m+1}, v{m}")
        for i in range(0, 16, 2): a(f"v_mov_b64 v[{NM[qt]+i}:{NM[qt]+i+1}], v[{m}:{m+1}]")
    a(rdK(0, 0)); a(rdV(0, 0))
    NE0 = OPT("NE0", 2)
    a(kvstores[:NE0])
    a(f"s_mov_b32 s{S_T}, {SPIN_MAX}")
    a.label("L_nonce")
    a(f"""
    v_readfirstlane_b32 s{NON}, v{FDAT}
    v_readfirstlane_b32 s{NON+1}, v{FDAT+1}
    s_sub_u32 s{S_T}, s{S_T}, 1
    s_cbranch_scc1 L_nonce_done
    s_cmp_lg_u32 s{NON}, 0
    s_cbranch_scc1 L_nonce_done
    buffer_load_dwordx2 v[{FDAT}:{FDAT+1}], v{ZERO}, s[52:55], 0 offen sc1
    s_waitcnt vmcnt(0)
    s_branch L_nonce
    """)
    a.label("L_nonce_done")
    a("s_waitcnt lgkmcnt(2)")
    a(qk(0, 0, 0, "0")); a(qk(1, 0, 1, "0"))
    a("s_nop 7\ns_nop 1")
    for qt in range(2):
        m_, src = VT + 2*qt, S[qt]
        a(f"v_max3_f32 v{m_}, v{src}, v{src+1}, v{src+2}")
        for i in range(3, 15, 2): a(f"v_max3_f32 v{m_}, v{m_}, v{src+i}, v{src+i+1}")
        a(f"v_max_f32 v{m_}, v{m_}, v{src+15}")
        max_to_nm(m_, qt)
        a("s_nop 1")
        if qt == 0: a(qk(0, 0, 0))
    stamp(a, 3)
    def dma2():
        G = []
        for j in range(8):
            g = []
            if j == 0: g.append(f"s_mov_b32 m0, s{S_M0}"); g.append("s_nop 0")
            g.append(f"buffer_load_dwordx4 v{VDE if j%2==0 else VDO}, s[8:11], s{S_SO} offen offset:{(j%4)*1024} sc1 lds")
            if j == 3: g.append(f"s_add_u32 m0, s{S_M0}, 4096")
            if j < 7: g.append(f"s_add_u32 s{S_SO}, s{S_SO}, s{S_ST2 if j == 3 else S_ST1}")
            else: g.append(f"s_xor_b32 s{S_M0}, s{S_M0}, 65536")
            G.append(g)
        return G
    blk = [f"s_cmp_ge_u32 s{S_IT}, s{S_B}", f"s_addc_u32 s{S_SO}, s{S_IT}, 0", f"s_lshl_b32 s{S_SO}, s{S_SO}, 15"]
    flagst = lambda voff, soff: ["s_mov_b64 exec, 1", f"buffer_store_dwordx2 v[{FDAT}:{FDAT+1}], v{voff}, s[36:39], s{soff} offen sc1", "s_mov_b64 exec, -1"]
    def slots(hooks, pres, first, barwait):
        for kt in range(8):
            for qa in range(2):
                n = 2*kt + qa
                sb, sn, sp = n % 4, (n+1) % 4, (n-1) % 4
                ktn, ktp = kt + qa, kt - 1 + qa
                e = [f"v_exp_f32 v{S[sb]+i}, v{S[sb]+i}" for i in range(16)]
                q2 = qk(sn, ktn % 2, 1-qa)
                m = [q2[0], q2[1], pv(sp, ktp % 2, 1-qa, 1), rs(sp, 1-qa, 1), pv(sb, kt % 2, qa, 0), rs(sb, qa, 0)]
                if first and n == 0: m[2] = m[3] = None
                pre = {i: [] for i in range(6)}
                if n in hooks: hooks[n]()
                if qa == 0:
                    if kt == 7:
                        barwait()
                        pre[0] += [f"v_xor_b32 v{VKV}, 0x10000, v{VKV}", "s_nop 0"]
                    else:
                        pre[0] += ["s_waitcnt lgkmcnt(0)"]
                    pre[1] += rdK((kt+1) % 8, (kt+1) % 2)
                    pre[4] += rdV((kt+1) % 8, (kt+1) % 2)
                else:
                    pre[0] += ["s_waitcnt lgkmcnt(2)"]
                for i, L in pres.get(n, {}).items(): pre[i] += L
                pat = [3, 3, 3, 2, 3, 2]
                k = 0
                for i in range(6):
                    a(pre[i] if pre[i] else ["s_nop 0"])
                    if m[i]: a(m[i])
                    a(e[k:k+pat[i]]); k += pat[i]
    NPUB, NPOLL = OPT("NPUB", 5), OPT("NPOLL", 7)
    ST0 = os.environ.get("ST0", "") == "1"
    def h_pub():
        a("s_waitcnt vmcnt(0)")
        a(["s_mov_b64 exec, 1", f"buffer_store_dwordx2 v[{FDAT}:{FDAT+1}], v{FOFF+1}, s[60:63], s{S_FL} offen sc1", "s_mov_b64 exec, -1",
           f"s_xor_b32 s62, s62, s38"])
        if ST0: stamp(a, 4)
    def h_poll0():
        poll("L_poll0", S_FL, f"s[{MSK}:{MSK+1}]")
        a(f"s_mov_b32 s{S_IT}, 0"); a(blk)
        if ST0: stamp(a, 5)
    def bw0():
        a("s_waitcnt vmcnt(6) lgkmcnt(0)\ns_barrier")
        stamp_stage(a, "0")
        if ST0: stamp(a, 6)
    G = dma2()
    pres = {NPOLL + i: {2: G[3*i], 3: G[3*i+1], 5: G[3*i+2] if 3*i+2 < 8 else []} for i in range(3)}
    rest = kvstores[NE0:]
    for i in range((len(rest) + 1) // 2):
        pres.setdefault(i, {})[2] = [rest[2*i]]
        if 2*i + 1 < len(rest): pres[i][5] = [rest[2*i+1]]
    for i, n_ in enumerate((11, 12, 13)):
        pres.setdefault(n_, {})[2] = [kvstores[2*i]]; pres[n_][5] = [kvstores[2*i+1]]
    pres.setdefault(14, {})[3] = [kvstores[6]]; pres.setdefault(15, {})[3] = [kvstores[7]]
    slots({NPUB: h_pub, NPOLL: h_poll0}, pres, True, bw0)
    a(f"s_mov_b32 s{S_IT}, 1")
    a.raw(".p2align 6")
    a.label("L_at")
    def h_ld():
        a(f"""
        s_cmp_lg_u32 s{S_IT}, 2
        s_cbranch_scc1 L_nold
        buffer_load_dwordx2 v[{PDAT}:{PDAT+1}], v{FOFF}, s[36:39], s{S_FL} offen sc1
        """)
        a.label("L_nold")
    def h_dma():
        a(f"s_cmp_lg_u32 s{S_IT}, 2\ns_cbranch_scc1 L_poll2_done")
        poll("L_poll2", S_FL, None, True)
        a(blk)
        a(f"""
        s_cmp_lg_u32 s{S_IT}, 7
        s_cbranch_scc1 L_nowo
        s_mov_b32 s8, s12
        s_mov_b32 s9, s13
        s_mov_b32 s10, s14
        s_lshl_b32 s{S_SO}, s{S_W}, 16
        s_mov_b32 s{S_ST1}, 7168
        s_mov_b32 s{S_ST2}, 11264
        v_lshrrev_b32 v{VDE}, 4, v0
        v_lshlrev_b32 v{VDO}, 1, v{VDE}
        v_and_b32 v{VT}, 15, v0
        v_xor_b32 v{VDO}, v{VDO}, v{VT}
        v_lshlrev_b32 v{VDE}, 11, v{VDE}
        v_lshl_add_u32 v{VDE}, v{VDO}, 4, v{VDE}
        v_xor_b32 v{VDO}, 128, v{VDE}
        """)
        a.label("L_nowo")
    def h_pfwo():
        a(f"""
        s_cmp_lg_u32 s{S_IT}, {OPT("PFWIT", 4)}
        s_cbranch_scc1 L_nopfwo
        s_and_b32 s{S_T}, s{S_A}, 3
        s_lshl_b32 s{S_T}, s{S_T}, 3
        s_add_u32 s{S_T}, s{S_T}, s{S_W}
        s_lshl_b32 s{S_T}, s{S_T}, 16
        v_lshrrev_b32 v{VT}, 1, v0
        v_lshlrev_b32 v{VT}, 11, v{VT}
        v_and_b32 v{VT+1}, 1, v0
        v_lshl_add_u32 v{VT}, v{VT+1}, 7, v{VT}
        buffer_load_dword v{VT+1}, v{VT}, s[12:15], s{S_T} offen
        """)
        a.label("L_nopfwo")
    def bw1():
        a(f"s_waitcnt vmcnt(0) lgkmcnt(0)\ns_barrier\ns_add_u32 s{S_T}, s{S_IT}, s{S_GRP}\ns_cmp_lg_u32 s{S_T}, 1\ns_cbranch_scc1 L_nopub1")
        a(flagst(FOFF+1, S_FL)); a.label("L_nopub1")
        stamp_stage(a, f"s{S_IT}")
    G = dma2()
    pres = {3 + i: {2: G[2*i], 5: G[2*i+1]} for i in range(4)}
    slots({0: h_ld, 15: h_pfwo, 3: h_dma}, pres, False, bw1)
    a(f"""
    s_add_u32 s{S_IT}, s{S_IT}, 1
    s_cmp_lt_u32 s{S_IT}, 8
    s_cbranch_scc1 L_at
    s_nop 0
    """)
    a(pv(3, 1, 1, 1)); a(rs(3, 1, 1))
    if not ST0: stamp(a, 4)
    if ST3: stamp(a, 1, True)
    S_OO, S_FO = 47, 49
    a(f"""
    s_lshl_b32 s{S_T}, s{S_P}, 3
    s_add_u32 s{S_T}, s{S_T}, s{S_B}
    s_lshl_b32 s{S_T}, s{S_T}, 2
    s_add_u32 s{S_T}, s{S_T}, s{S_WR}
    s_lshl_b32 s{S_FO}, s{S_T}, 8
    s_lshl_b32 s{S_OO}, s{S_T}, 17
    s_bfe_u32 s{S_T}, s{S_HB}, 0x50012
    s_lshl_b32 s{S_GRP}, s{S_T}, 3
    s_add_u32 s{S_FO}, s{S_FO}, s{S_GRP}
    s_add_u32 s{S_FO}, s{S_FO}, {FO}
    s_lshl_b32 s{S_T}, s{S_T}, 11
    s_add_u32 s{S_OO}, s{S_OO}, s{S_T}
    s_add_u32 s{S_OO}, s{S_OO}, {OWS}
    s_add_u32 s{S_OO+1}, s{S_OO}, 65536
    v_and_b32 v{VT+6}, 15, v0
    v_lshlrev_b32 v{VT+6}, 4, v{VT+6}
    v_lshrrev_b32 v{VT+7}, 5, v0
    v_lshl_add_u32 v{VT+6}, v{VT+7}, 8, v{VT+6}
    v_bfe_u32 v{VT+7}, v0, 4, 1
    v_lshl_add_u32 v{VT+6}, v{VT+7}, 10, v{VT+6}
    v_mov_b64 v[{VT}:{VT+1}], 0
    """)
    for qt in range(2):
        for i in range(0, 16, 2): a(f"v_pk_fma_f32 v[{VT}:{VT+1}], v[{O[qt]+i}:{O[qt]+i+1}], 0, v[{VT}:{VT+1}]")
    a(f"""
    v_add_f32 v{VT}, v{VT}, v{VT+1}
    v_add_f32 v{VT}, v{VT}, v{LA[0]}
    v_add_f32 v{VT}, v{VT}, v{LA[1]}
    v_cmp_gt_f32 vcc, 0x5f800000, v{VT}
    s_cmp_eq_u64 vcc, exec
    s_cbranch_scc0 L_fallback
    """)
    a.label("L_fin")
    for qt in range(2): a(f"v_rcp_f32 v{VT+2*qt}, v{LA[qt]}")
    a("s_nop 0")
    for qt in range(2):
        for i in range(0, 16, 2): a(f"v_pk_mul_f32 v[{O[qt]+i}:{O[qt]+i+1}], v[{O[qt]+i}:{O[qt]+i+1}], v[{VT+2*qt}:{VT+2*qt+1}] op_sel_hi:[1,0]")
        for i in range(8): a(f"v_cvt_pk_bf16_f32 v{S[qt]+i}, v{O[qt]+2*i}, v{O[qt]+2*i+1}")
        for t in range(2):
            a(f"buffer_store_dwordx4 {vr(S[qt]+4*t,4)}, v{VT+6}, s[36:39], s{S_OO+qt} offen offset:{t*512} sc1")
    OA, OB = 2, 3
    WA3 = [[4, 5, 6, 7], [8, 9, 10, 11]]
    FO_ = [[16 + 16*buf + 4*i for i in range(4)] for buf in range(2)]
    FW3 = [[48 + 16*buf + 4*nb for nb in range(4)] for buf in range(2)]
    AC3 = [[80 + 16*i + 4*nb for nb in range(4)] for i in range(4)]
    RX = 144
    T3 = 176
    S_INC, S_M3, S_ME, S_MS, S_R3, S_C3, S_F3, S_O3 = 52, 53, 54, 55, 56, 57, 58, 59
    a(f"""
    s_bfe_u32 s{S_R3}, s{S_W}, 0x10001
    s_and_b32 s{S_C3}, s{S_W}, 1
    s_lshl_b32 s{S_T}, s{S_P}, 4
    s_add_u32 s{S_T}, s{S_T}, s{S_A}
    s_lshl_b32 s{S_T}, s{S_T}, 2
    s_add_u32 s{S_T}, s{S_T}, s{S_WR}
    s_lshr_b32 s{S_F3}, s{S_T}, 1
    s_lshl_b32 s{S_F3}, s{S_F3}, 8
    s_add_u32 s{S_F3}, s{S_F3}, {FO}
    s_lshl_b32 s{S_T}, s{S_T}, 16
    s_add_u32 s{S_T}, s{S_T}, {OWS}
    s_add_u32 s60, s32, s{S_T}
    s_addc_u32 s61, s33, 0
    s_lshl_b32 s{S_M3}, s{S_WR}, 12
    s_lshl_b32 s{S_O3}, s{S_WR}, 15
    s_add_u32 s{S_O3}, s{S_O3}, {6*131072}
    s_add_u32 s{S_T}, s{S_M3}, 98304
    s_cmp_eq_u32 s{S_WH}, 0
    s_cselect_b64 vcc, -1, 0
    s_cselect_b32 s8, s60, s12
    s_cselect_b32 s9, s61, s13
    s_cselect_b32 s10, 0x10000, s14
    s_cselect_b32 s{S_O3}, 0, s{S_O3}
    s_cselect_b32 s{S_ST1}, 0, 7168
    s_cselect_b32 s{S_M3}, s{S_T}, s{S_M3}
    s_cselect_b32 s{S_MS}, 4, 6
    s_cselect_b32 s{S_INC}, 12, 17
    s_lshl_b32 s{S_INC}, 1, s{S_INC}
    s_lshl_b32 s{S_MS}, s{S_MS}, 14
    s_add_u32 s{S_ME}, s{S_M3}, s{S_MS}
    v_lshlrev_b32 v{T3+1}, 4, v0
    v_cndmask_b32 v{VDE}, v{VDE}, v{T3+1}, vcc
    v_cndmask_b32 v{VDO}, v{VDO}, v{T3+1}, vcc
    s_lshl_b32 s{S_T}, s{S_R3}, 1
    s_add_u32 s{S_T}, s{S_T}, s{S_WH}
    s_lshl_b32 s{S_T}, s{S_T}, 1
    s_add_u32 s{S_T}, s{S_T}, s{S_WH}
    s_lshl_b32 s{S_T}, s{S_T}, 11
    s_add_u32 s{S_T}, s{S_T}, 98304
    v_add_u32 v{OA}, s{S_T}, v{T3+1}
    v_xor_b32 v{OB}, 4096, v{OA}
    v_bfe_u32 v{T3}, v0, 2, 3
    v_lshrrev_b32 v{T3+1}, 5, v0
    v_lshl_add_u32 v{T3+1}, v{T3+1}, 4, v{T3}
    s_lshl_b32 s{S_T}, s{S_WH}, 5
    v_add_u32 v{T3+1}, s{S_T}, v{T3+1}
    v_lshlrev_b32 v{T3+1}, 8, v{T3+1}
    v_bfe_u32 v{T3+2}, v0, 1, 1
    s_lshl_b32 s{S_T}, s{S_C3}, 3
    v_add_u32 v{T3+2}, s{S_T}, v{T3+2}
    v_lshlrev_b32 v{T3}, 1, v{T3}
    v_xor_b32 v{T3+2}, v{T3+2}, v{T3}
    v_lshl_add_u32 v{T3+1}, v{T3+2}, 4, v{T3+1}
    v_and_b32 v{T3+2}, 1, v0
    v_lshl_add_u32 v{WA3[0][0]}, v{T3+2}, 3, v{T3+1}
    """)
    for nb in range(1, 4): a(f"v_xor_b32 v{WA3[0][nb]}, {32*nb}, v{WA3[0][0]}")
    for nb in range(4): a(f"v_add_u32 v{WA3[1][nb]}, 0x10000, v{WA3[0][nb]}")
    for i in range(80, 144, 2): a(f"v_mov_b64 v[{i}:{i+1}], 0")
    a(f"""
    v_and_b32 v{FOFF}, 31, v0
    v_lshlrev_b32 v{FOFF}, 3, v{FOFF}
    s_cmp_lg_u32 s{S_WH}, 0
    s_cbranch_scc1 L_pubW
    """)
    if ST3: stamp(a, 2, True)
    a("s_waitcnt vmcnt(0) lgkmcnt(0)")
    if ST3: stamp(a, 3, True)
    a(flagst(ZERO, S_FO))
    poll("L_pollo", S_F3)
    if ST3: stamp(a, 4, True)
    def dma3():
        G = []
        for j in range(4):
            g = []
            if j == 0: g += [f"s_mov_b32 m0, s{S_M3}", f"s_mov_b32 s{S_SO}, s{S_O3}"]
            g.append(f"buffer_load_dwordx4 v{VDE if j%2==0 else VDO}, s[8:11], s{S_SO} offen offset:{j*1024} sc1 lds")
            if j < 3: g.append(f"s_add_u32 s{S_SO}, s{S_SO}, s{S_ST1}")
            else: g += [f"s_add_u32 s{S_O3}, s{S_O3}, s{S_INC}", f"s_add_u32 s{S_M3}, s{S_M3}, 16384", f"s_cmp_eq_u32 s{S_M3}, s{S_ME}",
                        f"s_cselect_b32 s{S_T}, s{S_MS}, 0", f"s_sub_u32 s{S_M3}, s{S_M3}, s{S_T}"]
            G.append(g)
        return G
    for st in range(4):
        for g in dma3(): a(g)
    a("s_waitcnt vmcnt(12)\ns_branch L_p3go")
    a.label("L_pubW")
    if ST3: stamp(a, 2, True)
    a("s_waitcnt vmcnt(0) lgkmcnt(0)")
    if ST3: stamp(a, 3, True); stamp(a, 4, True)
    a(flagst(ZERO, S_FO))
    a(f"""
    s_add_u32 s{S_T}, s{S_W}, 4
    s_lshl_b32 s{S_SO}, s{S_T}, 16
    s_lshl_b32 s{S_M0}, s{S_T}, 13
    """)
    for g in dma2(): a(g)
    a.label("L_p3go")
    a("s_barrier")
    if not ST0: stamp(a, 5)
    def reads3(s, buf):
        ws_, os_ = s % 6, s % 4
        O_ = [f"ds_read_b128 {vr(FO_[buf][i],4)}, v{OA if i < 2 else OB} offset:{os_*16384 + (i%2)*1024}" for i in range(4)]
        W_ = [f"ds_read_b64_tr_b16 {vr(FW3[buf][nb]+2*u,2)}, v{WA3[ws_//4][nb]} offset:{(ws_%4)*16384 + u*2048}" for nb in range(4) for u in range(2)]
        return W_[0:2] + O_ + W_[2:]
    def mfmas3(buf):
        return [mf16(AC3[i][nb], FW3[buf][nb], FO_[buf][i]) for nb in range(4) for i in range(4)]
    a(reads3(0, 0))
    XCH = 65536
    fin_setup = f"""
    s_lshl_b32 s{S_T}, s{S_W}, 13
    s_add_u32 s{S_T}, s{S_T}, {XCH}
    v_lshlrev_b32 v{T3}, 4, v0
    v_add_u32 v{T3}, s{S_T}, v{T3}
    v_xor_b32 v{T3+1}, 0x8000, v{T3}
    s_mov_b32 s12, s28
    s_mov_b32 s13, s29
    s_mov_b32 s14, 0x800000
    s_lshl_b32 s{S_T}, s{S_A}, 2
    s_lshl_b32 s{S_SO}, s{S_R3}, 1
    s_add_u32 s{S_T}, s{S_T}, s{S_SO}
    s_add_u32 s{S_T}, s{S_T}, s{S_WH}
    s_lshl_b32 s{S_T}, s{S_T}, 17
    s_lshl_b32 s{S_SO}, s{S_P}, 11
    s_add_u32 s{S_T}, s{S_T}, s{S_SO}
    s_lshl_b32 s{S_SO}, s{S_B}, 8
    s_add_u32 s{S_T}, s{S_T}, s{S_SO}
    s_lshl_b32 s{S_SO}, s{S_C3}, 7
    s_add_u32 s{S_SO}, s{S_T}, s{S_SO}
    s_add_u32 s{S_SO+1}, s{S_SO}, 65536
    v_and_b32 v{T3+2}, 15, v0
    v_lshlrev_b32 v{T3+2}, 12, v{T3+2}
    v_bfe_u32 v{T3+3}, v0, 4, 1
    v_lshl_add_u32 v{T3+2}, v{T3+3}, 5, v{T3+2}
    v_lshrrev_b32 v{T3+3}, 5, v0
    v_lshl_add_u32 v{T3+2}, v{T3+3}, 4, v{T3+2}
    """.strip().split("\n")
    for s in range(16):
        if s < 15:
            a(f"s_waitcnt vmcnt({8 if s <= 12 else 4 if s == 13 else 0}) lgkmcnt(0)\ns_barrier")
            r = reads3(s + 1, 1 - s % 2)
            f = {i: [r[i]] for i in range(12)}
            if s <= 11:
                d = dma3()
                for k_, i in enumerate((0, 4, 8, 12)): f[i] = f.get(i, []) + d[k_]
            if s == 14:
                for i in range(13): f[i] = f.get(i, []) + fin_setup[2*i:2*i+2]
            a(weave(mfmas3(s % 2), f))
        else:
            a("s_waitcnt lgkmcnt(0)")
            m = mfmas3(1)
            order = [k_ for k_ in range(16) if k_ % 4 >= 2] + [k_ for k_ in range(16) if k_ % 4 < 2]
            a([m[k_] for k_ in order])
    if not ST0: stamp(a, 6)
    for j in range(8): a(f"ds_write_b128 v{T3}, {vr(AC3[2][0]+4*j,4)} offset:{j*1024}")
    a("s_waitcnt lgkmcnt(0)\ns_barrier")
    for j in range(8): a(f"ds_read_b128 {vr(RX+4*j,4)}, v{T3+1} offset:{j*1024}")
    prev = None
    for j in range(5):
        if j < 4:
            qb, np_ = j // 2, j % 2
            t0 = AC3[qb][2*np_]
            a(f"s_waitcnt lgkmcnt({6 - 2*j})")
            for i in range(0, 8, 2): a(f"v_pk_add_f32 v[{t0+i}:{t0+i+1}], v[{t0+i}:{t0+i+1}], v[{RX+8*j+i}:{RX+8*j+i+1}]")
            cur = (16 + 4*j, qb, np_)
            a(pack2(cur[0], t0, t0 + 4))
        else:
            cur = None; a("s_nop 1")
        if prev:
            a(swap2(prev[0]))
            a(f"buffer_store_dwordx4 {vr(prev[0],4)}, v{T3+2}, s[12:15], s{S_SO+prev[1]} offen offset:{prev[2]*64} {os.environ.get('OUTPOL', '')}")
        prev = cur
    stamp_flush(a, 7, 1)
    a.label("L_end")
    a("s_endpgm")
    MX = [VT, VT+2]
    a.label("L_fallback")
    a(f"""
    v_mov_b32 v{MX[0]}, 0xff800000
    v_mov_b32 v{MX[1]}, 0xff800000
    s_mov_b32 s{S_IT}, 0
    s_waitcnt vmcnt(0) lgkmcnt(0)
    """)
    a.label("L_fb_max")
    a(f"s_add_u32 s{S_T}, s{S_IT}, s{S_HB}")
    for t in range(2): a(f"buffer_load_dwordx4 {vr(KF[0]+4*t,4)}, v{VD}, s[36:39], s{S_T} offen offset:{t*1024} sc1")
    a("s_waitcnt vmcnt(0)")
    a(qk(0, 0, 0, "0")); a(qk(1, 0, 1, "0"))
    a("s_nop 15")
    for qt in range(2):
        for i in range(0, 16, 2): a(f"v_max3_f32 v{MX[qt]}, v{MX[qt]}, v{S[qt]+i}, v{S[qt]+i+1}")
    a(f"""
    s_add_u32 s{S_IT}, s{S_IT}, 4096
    s_cmp_lt_u32 s{S_IT}, 0x40000
    s_cbranch_scc1 L_fb_max
    """)
    max_to_nm(MX[0], 0); max_to_nm(MX[1], 1)
    for i in range(O[0], LA[1] + 4, 2): a(f"v_mov_b64 v[{i}:{i+1}], 0")
    a(f"s_mov_b32 s{S_IT}, 0")
    a.label("L_fb_main")
    a(f"s_add_u32 s{S_T}, s{S_IT}, s{S_HB}")
    for t in range(2): a(f"buffer_load_dwordx4 {vr(KF[0]+4*t,4)}, v{VD}, s[36:39], s{S_T} offen offset:{t*1024} sc1")
    for t in range(2): a(f"buffer_load_dwordx4 {vr(VF[0]+4*t,4)}, v{VD}, s[36:39], s{S_T} offen offset:{2048+t*1024} sc1")
    a("s_waitcnt vmcnt(0)")
    a(qk(0, 0, 0)); a(qk(1, 0, 1))
    a("s_nop 15")
    for qt in range(2):
        for i in range(16): a(f"v_exp_f32 v{S[qt]+i}, v{S[qt]+i}")
    a("s_nop 1")
    for qt in range(2):
        for t in range(2): a(pv(qt, 0, qt, t)); a(rs(qt, qt, t))
    a(f"""
    s_add_u32 s{S_IT}, s{S_IT}, 4096
    s_cmp_lt_u32 s{S_IT}, 0x40000
    s_cbranch_scc1 L_fb_main
    s_nop 15
    s_branch L_fin
    """)
    return f""".p2align 6
.amdhsa_kernel {name}
  .amdhsa_next_free_vgpr {NV}
  .amdhsa_next_free_sgpr 102
  .amdhsa_accum_offset {NV}
  .amdhsa_group_segment_fixed_size 0
  .amdhsa_kernarg_size 72
  .amdhsa_user_sgpr_count 2
  .amdhsa_user_sgpr_kernarg_segment_ptr 1
  .amdhsa_system_sgpr_workgroup_id_x 1
.end_amdhsa_kernel"""

def main():
    out = sys.argv[1] if len(sys.argv) > 1 else f"cdna_kernels/{NAME}.s"
    a = Asm()
    k = gen(a)
    hdr = open(f"cdna_kernels/{NAME}.s.ref").read().split("\n")
    hdr = [l for l in hdr if l.startswith(";") and "@launch" not in l]
    hdr.append(f"; @launch grid=(256,1,1) block=(512,1,1) lds={LDS_BYTES}")
    txt = "\n".join(hdr) + '\n.amdgcn_target "amdgcn-amd-amdhsa--gfx950"\n.text\n' + a.text() + '\n.section .rodata,"a"\n' + k + "\n"
    open(out, "w").write(txt)

if __name__ == "__main__":
    main()
```

```python
import sys, math, os, struct
from gen2 import Asm, vr, f2u, mf32, mf16, weave, NAME

STAMP = os.environ.get("STAMP", "0") == "1"
def OPT(k, d): return type(d)(os.environ.get(k, d))

KVWS = 0
OWS = 16 << 20
FKV = 24 << 20
FO = FKV + 65536
WS_BYTES = 25 << 20
STAMP_BASE = 64 << 20
CSCALE = math.log2(math.e) / math.sqrt(32.0)
LDS_BYTES = 163840
SPIN_MAX = 1 << 16

S_W, S_P, S_A, S_B, S_T = 3, 4, 5, 6, 7
S_WR, S_WH, S_IT = 40, 41, 42
NON = 34

ST3 = os.environ.get("ST3", "") == "1"
STG = os.environ.get("STG", "") == "1"
def stamp_stage(a, lane):
    if STG:
        a(f"s_memtime s[96:97]\ns_memrealtime s[98:99]\ns_lshl_b64 exec, 1, {lane}\ns_waitcnt lgkmcnt(0)\nv_mov_b32 v250, s96\nv_mov_b32 v251, s98\ns_mov_b64 exec, -1")
def stamp(a, i, alt=False):
    if ST3 and i in (1, 2, 3, 4) and not alt: return
    if STAMP and not STG:
        a(f"s_memtime s[{64+4*i}:{65+4*i}]")
        a(f"s_memrealtime s[{66+4*i}:{67+4*i}]")
        a("s_waitcnt lgkmcnt(0)")
def stamp_flush(a, n, vt):
    if not STAMP: return
    a("s_waitcnt vmcnt(0) lgkmcnt(0)")
    stamp(a, n)
    a(f"""
    s_add_u32 s56, s32, {STAMP_BASE}
    s_addc_u32 s57, s33, 0
    s_mov_b32 s58, 0x100000
    s_mov_b32 s59, 0x20000
    s_lshl_b32 s60, s2, 3
    s_add_u32 s60, s60, s{S_W}
    s_lshl_b32 s60, s60, 6
    v_mov_b32 v{vt}, 0
    """)
    if STG:
        a(f"v_lshlrev_b32 v{vt}, 3, v0\ns_mov_b64 exec, 0xff\nbuffer_store_dwordx2 v[250:251], v{vt}, s[56:59], s60 offen")
        return
    for i in range(n + 1):
        a(f"v_mov_b32 v{vt+1}, s{64+4*i}")
        a(f"v_mov_b32 v{vt+2}, s{66+4*i}")
        a(f"buffer_store_dwordx2 v[{vt+1}:{vt+2}], v{vt}, s[56:59], s60 offen offset:{8*i}")
        a("s_nop 1")

DENSE = "d" in os.environ.get("ATX", "")
def gen(a):
    name = NAME + "_kernel"
    a.raw(f".globl {name}\n.p2align 8\n.type {name},@function\n{name}:")
    stamp(a, 0)
    def emit(L):
        for x in L:
            a(x)
            if " m0," in x: a("s_nop 0")
    Q = [16, 24]; PK = 32; KF = [64, 72]; VF = [80, 88]; NM = [96, 112]; S = [128, 144, 160, 176]
    O = [192, 208]; LA = [224, 228]; ONES = 232; IDX = 236; ZERO = 237
    FDAT, FOFF, PDAT = 238, 240, 242
    XB = [244, 245]; VDE, VDO = 246, 247
    NV = 256 if STG else 248
    def poll(lab, soff, mask=None, first_loaded=False):
        ld = f"buffer_load_dwordx2 v[{PDAT}:{PDAT+1}], v{FOFF}, s[36:39], s{soff} offen sc1"
        a(f"s_mov_b32 s{S_T}, {SPIN_MAX}")
        if not first_loaded: a(ld)
        a.label(lab)
        a(f"""
        s_waitcnt vmcnt(0)
        v_cmp_eq_u64 vcc, s[{NON}:{NON+1}], v[{PDAT}:{PDAT+1}]
        """)
        if mask: a(f"s_or_b64 vcc, vcc, {mask}")
        a(f"""
        s_cmp_eq_u64 vcc, exec
        s_cbranch_scc1 {lab}_done
        s_sub_u32 s{S_T}, s{S_T}, 1
        s_cbranch_scc1 {lab}_done
        s_sleep {OPT("PSLEEP", 4)}
        {ld}
        s_branch {lab}
        """)
        a.label(lab + "_done")
    XA = [2, 3]; WA = [4, 5]; D0, D1, D2, PFV, PFD = 6, 7, 8, 9, 10
    VT = 11
    FX = [[16 + 16*buf + 4*rb for rb in range(4)] for buf in range(2)]
    FW = [[48 + 24*buf + 4*cb for cb in range(6)] for buf in range(2)]
    ACC = [[96 + 16*cb + 4*rb for rb in range(4)] for cb in range(6)]
    S_KX, S_KW, T0, S_M0X, S_M0W, S_XF, S_XN, S_PFO, S_PFI = 43, 44, 45, 47, 48, 49, 50, 56, 57
    W0, W1 = 98304, 122880
    PF0, PFSTEP = OPT("PF0", 3), OPT("PFSTEP", 4)
    a(f"""
    s_cmp_ge_u32 s2, 256
    s_cbranch_scc1 L_end
    s_load_dwordx16 s[16:31], s[0:1], 0
    s_load_dwordx2 s[32:33], s[0:1], 64
    s_memrealtime s[{NON}:{NON+1}]
    v_lshrrev_b32 v1, 6, v0
    v_and_b32 v0, 63, v0
    v_readfirstlane_b32 s{S_W}, v1
    s_and_b32 s{S_T}, s2, 7
    s_lshr_b32 s{S_B}, s2, 3
    s_lshr_b32 s{S_P}, s{S_T}, 2
    s_and_b32 s{S_A}, s{S_T}, 3
    s_lshl_b32 s{S_A}, s{S_A}, 2
    s_and_b32 s{S_T}, s{S_B}, 3
    s_or_b32 s{S_A}, s{S_A}, s{S_T}
    s_lshr_b32 s{S_B}, s{S_B}, 2
    s_and_b32 s{S_WR}, s{S_W}, 3
    s_lshr_b32 s{S_WH}, s{S_W}, 2
    s_mul_i32 s{S_M0X}, s{S_WR}, 7
    s_add_u32 s{S_T}, s{S_WR}, 28
    s_cmp_eq_u32 s{S_WH}, 0
    s_cselect_b32 s{S_M0X}, s{S_T}, s{S_M0X}
    v_lshrrev_b32 v{VT}, 3, v0
    s_lshl_b32 s{S_T}, s{S_M0X}, 3
    v_add_u32 v{VT+4}, s{S_T}, v{VT}
    v_lshlrev_b32 v{VT+4}, 11, v{VT+4}
    v_and_b32 v{VT+1}, 7, v0
    v_lshrrev_b32 v{VT+2}, 4, v0
    v_xor_b32 v{VT+3}, v{VT+1}, v{VT+2}
    s_and_b32 s{S_T}, s{S_WR}, 1
    s_lshl_b32 s{S_T}, s{S_T}, 2
    v_xor_b32 v{VT+3}, s{S_T}, v{VT+3}
    v_lshl_add_u32 v{D2}, v{VT+3}, 4, v{VT+4}
    s_lshl_b32 s{S_M0X}, s{S_M0X}, 10
    s_lshl_b32 s{S_T}, s{S_WR}, 4
    v_add_u32 v{VT}, s{S_T}, v{VT}
    v_mul_u32_u24 v{VT}, 6144, v{VT}
    v_and_b32 v{VT+2}, 1, v{VT+2}
    v_lshlrev_b32 v{VT+2}, 2, v{VT+2}
    v_xor_b32 v{VT+3}, v{VT+1}, v{VT+2}
    v_lshl_add_u32 v{D0}, v{VT+3}, 4, v{VT}
    v_xor_b32 v{D1}, 32, v{D0}
    v_add_u32 v{D1}, 49152, v{D1}
    s_mul_i32 s{S_M0W}, s{S_WR}, 6144
    s_add_u32 s{S_M0W}, s{S_M0W}, {W0}
    s_mov_b32 s{S_KX}, 0
    s_mov_b32 s{S_KW}, 0
    s_mov_b32 s11, 0x20000
    s_mov_b32 s15, 0x20000
    s_mov_b32 s39, 0x20000
    s_mov_b32 s55, 0x20000
    v_mov_b32 v{ZERO}, 0
    s_waitcnt lgkmcnt(0)
    s_cmp_eq_u32 s{S_P}, 0
    s_cselect_b32 s8, s16, s22
    s_cselect_b32 s9, s17, s23
    s_cselect_b32 s12, s18, s24
    s_cselect_b32 s13, s19, s25
    s_lshl_b32 s{S_T}, s{S_B}, 19
    s_add_u32 s8, s8, s{S_T}
    s_addc_u32 s9, s9, 0
    s_sub_u32 s10, 0x400000, s{S_T}
    s_lshl_b32 s{S_T}, s{S_A}, 7
    s_add_u32 s12, s12, s{S_T}
    s_addc_u32 s13, s13, 0
    s_sub_u32 s14, 0x600000, s{S_T}
    s_cmp_lg_u32 s{S_WH}, 0
    s_cbranch_scc1 L_proB
    """)
    def burstW(stage):
        L = []
        for g in range(2):
            L.append(f"s_add_u32 m0, s{S_M0W}, {stage*(W1-W0) + g*3072}")
            for s_ in range(3):
                if s_: L.append(f"s_add_u32 s{T0+s_%2}, s{S_KW}, {s_*1024}")
                else: L.append("s_nop 0")
                L.append(f"buffer_load_dwordx4 v{D0+g}, s[12:15], s{T0+s_%2 if s_ else S_KW} offen offset:{s_*1024} lds")
        L.append(f"s_add_u32 s{S_KW}, s{S_KW}, 393216")
        return L
    def burstXA(slot):
        return [f"s_add_u32 m0, s{S_M0X}, {slot}", "s_nop 0", f"buffer_load_dwordx4 v{D2}, s[8:11], s{S_KX} offen lds", f"s_add_u32 s{S_KX}, s{S_KX}, 128"]
    def burstXB(slot):
        L = [f"s_add_u32 m0, s{S_M0X}, {slot}"]
        for j in range(7):
            if j == 4: L.append("s_add_u32 m0, m0, 4096")
            L.append(f"s_add_u32 s{T0+j%2}, s{S_KX}, {j*16384 - (j%4)*1024}")
            L.append(f"buffer_load_dwordx4 v{D2 if j%2==0 else D1}, s[8:11], s{T0+j%2} offen offset:{(j%4)*1024} lds")
        L.append(f"s_add_u32 s{S_KX}, s{S_KX}, 128")
        return L
    a(burstW(0) + burstXA(0) + burstW(1) + burstXA(32768) + burstXA(65536))
    a(f"""
    s_or_b32 s{S_T}, s2, s{S_W}
    s_cmp_lg_u32 s{S_T}, 0
    s_cbranch_scc1 L_pro2
    s_mov_b32 s52, s30
    s_mov_b32 s53, s31
    s_mov_b32 s54, 256
    s_or_b32 s{NON}, s{NON}, 1
    v_mov_b32 v{FDAT}, s{NON}
    v_mov_b32 v{FDAT+1}, s{NON+1}
    s_mov_b64 exec, 1
    buffer_store_dwordx2 v[{FDAT}:{FDAT+1}], v{ZERO}, s[52:55], 0 offen sc1
    s_mov_b64 exec, -1
    s_branch L_pro2
    """)
    a.label("L_proB")
    a(f"v_xor_b32 v{D1}, 64, v{D2}")
    a(burstXB(0) + burstXB(32768))
    a.label("L_pro2")
    a(f"""
    s_lshl_b32 s{S_T}, s{S_B}, 2
    s_add_u32 s{S_T}, s{S_T}, s{S_WR}
    s_lshl_b32 s{S_T}, s{S_T}, 2
    v_and_b32 v{VT+1}, 3, v0
    v_add_u32 v{VT+1}, s{S_T}, v{VT+1}
    v_bfe_u32 v{VT+2}, v0, 4, 1
    v_lshl_add_u32 v{VT+1}, v{VT+2}, 7, v{VT+1}
    v_mul_u32_u24 v{VT+1}, 6144, v{VT+1}
    v_bfe_u32 v{VT+2}, v0, 2, 2
    v_min_u32 v{VT+2}, 2, v{VT+2}
    v_lshl_add_u32 v{PFV}, v{VT+2}, 11, v{VT+1}
    s_mov_b32 s{S_PFO}, {393216 * PF0}
    v_and_b32 v{VT}, 15, v0
    s_lshl_b32 s{S_T}, s{S_WR}, 6
    v_add_u32 v{VT}, s{S_T}, v{VT}
    v_lshlrev_b32 v{VT}, 7, v{VT}
    v_lshrrev_b32 v{VT+1}, 4, v0
    v_bfe_u32 v{VT+2}, v0, 1, 3
    v_xor_b32 v{VT+2}, v{VT+1}, v{VT+2}
    v_lshl_add_u32 v{XA[0]}, v{VT+2}, 4, v{VT}
    v_xor_b32 v{XA[1]}, 64, v{XA[0]}
    v_mov_b32 v{XB[0]}, v{XA[0]}
    v_mov_b32 v{XB[1]}, v{XA[1]}
    v_mul_u32_u24 v{VT}, 3072, v{VT+1}
    v_bfe_u32 v{VT+2}, v0, 2, 2
    v_lshl_add_u32 v{VT}, v{VT+2}, 7, v{VT}
    v_bfe_u32 v{VT+3}, v0, 1, 1
    s_lshl_b32 s{S_T}, s{S_WH}, 2
    v_add_u32 v{VT+3}, s{S_T}, v{VT+3}
    v_bfe_u32 v{VT+4}, v0, 3, 1
    v_lshlrev_b32 v{VT+4}, 2, v{VT+4}
    v_xor_b32 v{VT+3}, v{VT+3}, v{VT+4}
    v_bfe_u32 v{VT+4}, v0, 4, 1
    v_lshlrev_b32 v{VT+4}, 1, v{VT+4}
    v_xor_b32 v{VT+3}, v{VT+3}, v{VT+4}
    v_lshl_add_u32 v{VT}, v{VT+3}, 4, v{VT}
    v_and_b32 v{VT+4}, 1, v0
    v_lshl_add_u32 v{VT}, v{VT+4}, 3, v{VT}
    v_add_u32 v{WA[0]}, {W0}, v{VT}
    v_xor_b32 v{WA[1]}, 32, v{WA[0]}
    v_mov_b32 v{IDX}, {"0x44444444" if DENSE else "0xdddddddd"}
    {f"v_and_b32 v{VT}, 1, v0" if DENSE else ""}
    {f"v_mul_u32_u24 v{VT}, 0xaaaa, v{VT}" if DENSE else ""}
    {f"v_add_u32 v{IDX}, v{IDX}, v{VT}" if DENSE else ""}
    v_bfe_u32 v{VT}, v0, 2, 1
    v_mov_b32 v{VT+1}, 0x3f803f80
    v_cmp_eq_u32 vcc, 0, v{VT}
    v_lshlrev_b32 v{VDE}, 4, v0
    v_lshlrev_b32 v{VDO}, 4, v0
    v_cndmask_b32 v{ONES}, v{ZERO}, v{VT+1}, vcc
    v_cndmask_b32 v{ONES+1}, v{ZERO}, v{VT+1}, vcc
    v_cndmask_b32 v{ONES+2}, v{VT+1}, v{ZERO}, vcc
    v_cndmask_b32 v{ONES+3}, v{VT+1}, v{ZERO}, vcc
    v_and_b32 v{FOFF}, 15, v0
    v_lshlrev_b32 v{FOFF}, 3, v{FOFF}
    s_lshl_b32 s{S_T}, s{S_B}, 3
    v_mov_b32 v{FOFF+1}, s{S_T}
    s_mov_b32 s{S_IT}, 0
    s_mov_b32 s{S_XN}, 32768
    """)
    for i in range(96, 232, 2): a(f"v_mov_b64 v[{i}:{i+1}], 0")
    def reads1(stage, t, buf):
        X = [f"ds_read_b128 {vr(FX[buf][rb],4)}, v{XA[t]} offset:{rb*2048}" for rb in range(4)]
        W = []
        for cb in range(6):
            for u in range(2):
                W.append(f"ds_read_b64_tr_b16 {vr(FW[buf][cb]+2*u,2)}, v{WA[cb%2]} offset:{stage*(W1-W0) + t*12288 + (cb//2)*1024 + u*512}")
        return W[0:2] + X + W[2:]
    def mfmas1(buf):
        return [mf16(ACC[cb][rb], FW[buf][cb], FX[buf][rb]) if cb < 4 else mf16(ACC[cb][rb], FX[buf][rb], FW[buf][cb])
                for cb in range(6) for rb in range(4)]
    def rot_x():
        return [f"v_add_u32 v{XA[1]}, s{S_XN}, v{XB[1]}", f"s_mov_b32 s{S_XF}, s{S_XN}", f"s_add_u32 s{S_XN}, s{S_XN}, 32768",
                f"s_cmp_eq_u32 s{S_XN}, 98304", f"s_cselect_b32 s{S_XN}, 0, s{S_XN}"]
    BSPR = OPT("BSPR", 0)
    def place(f, burst, pre):
        if BSPR == 0:
            pre += burst; return
        groups, cur = [], []
        for x in burst:
            cur.append(x)
            if " lds" in x or "buffer_load_dword " in x: groups.append(cur); cur = []
        if cur: groups[-1] += cur
        pre += groups[0]
        for k_, g in enumerate(groups[1:]): f[(k_ + 1) * BSPR - 1] = f.get((k_ + 1) * BSPR - 1, []) + g
    a(f"""
    s_cmp_lg_u32 s{S_WH}, 0
    s_cbranch_scc1 L_g1B_pre
    s_mov_b32 s{S_XF}, 0
    s_waitcnt vmcnt(8)
    s_barrier
    """)
    stamp(a, 1)
    a(reads1(0, 0, 0))
    a.raw(".p2align 6")
    a.label("L_g1A")
    a(f"s_cmp_eq_u32 s{S_IT}, 7\ns_cselect_b32 s14, 0, s14")
    for stage in range(2):
        a("s_waitcnt lgkmcnt(0)")
        r = reads1(stage, 1, 1)
        a(weave(mfmas1(0), {i: [r[i]] for i in range(16)}))
        if stage == 1: a(f"s_cmp_ge_u32 s{S_IT}, 6\ns_cselect_b32 s10, 0, s10")
        a(f"v_add_u32 v{XA[0]}, s{S_XN}, v{XB[0]}")
        a("s_waitcnt vmcnt(1) lgkmcnt(0)\ns_barrier")
        r = reads1(1 - stage, 0, 0)
        f = {i: [r[i]] for i in range(16)}
        pre = []
        if stage == 1 :
            a(f"s_cmp_eq_u32 s{S_IT}, 7\ns_cbranch_scc1 L_g1A_last")
        place(f, burstW(stage) + burstXA(f"s{S_XF}"), pre)
        f[20] = f.get(20, []) + rot_x()
        a(pre); a(weave(mfmas1(1), f))
    a(f"""
    s_add_u32 s{S_IT}, s{S_IT}, 1
    s_branch L_g1A
    """)
    a.label("L_g1B_pre")
    a(f"s_mov_b32 s{S_XF}, 65536\ns_waitcnt vmcnt(7)\ns_barrier")
    stamp(a, 1)
    a(reads1(0, 0, 0))
    a.raw(".p2align 6")
    a.label("L_g1B")
    a(f"s_cmp_eq_u32 s{S_IT}, 7\ns_cselect_b32 s10, 0, s10")
    pf = [f"buffer_load_dword v{PFD}, v{PFV}, s[12:15], s{S_PFO} offen", f"s_add_u32 s{S_PFO}, s{S_PFO}, {393216 * PFSTEP}"]
    for stage in range(2):
        r = reads1(stage, 1, 1)
        f = {i: [r[i]] for i in range(16)}
        pre = []
        place(f, burstXB(f"s{S_XF}") + (pf if stage == 0 else []), pre)
        a(pre)
        a("s_waitcnt lgkmcnt(0)")
        a(weave(mfmas1(0), f))
        a(f"v_add_u32 v{XA[0]}, s{S_XN}, v{XB[0]}")
        a(f"s_waitcnt vmcnt({8 if stage == 0 else 7}) lgkmcnt(0)\ns_barrier")
        if stage == 1:
            a(f"s_cmp_eq_u32 s{S_IT}, 7\ns_cbranch_scc1 L_g1A_last")
        r = reads1(1 - stage, 0, 0)
        f = {i: [r[i]] for i in range(16)}
        f[20] = [f"v_add_u32 v{XA[1]}, s{S_XN}, v{XB[1]}", f"s_add_u32 s{S_XF}, s{S_XF}, 32768", f"s_cmp_eq_u32 s{S_XF}, 98304",
                 f"s_cselect_b32 s{S_XF}, 0, s{S_XF}", f"s_add_u32 s{S_XN}, s{S_XN}, 32768",
                 f"s_cmp_eq_u32 s{S_XN}, 98304", f"s_cselect_b32 s{S_XN}, 0, s{S_XN}"]
        a(weave(mfmas1(1), f))
    a(f"""
    s_add_u32 s{S_IT}, s{S_IT}, 1
    s_branch L_g1B
    """)
    VKV, VD = 2, 3
    VT = 4
    S_SO, S_ST1, S_ST2, S_M0, S_KV, S_FL, S_HB, S_GRP, MSK = 43, 44, 45, 46, 47, 49, 50, 51, 56
    a.label("L_g1A_last")
    setup = f"""
    s_mov_b32 s36, s32
    s_mov_b32 s37, s33
    s_mov_b32 s38, {WS_BYTES}
    s_mov_b32 s52, s30
    s_mov_b32 s53, s31
    s_mov_b32 s54, 256
    buffer_load_dwordx2 v[{FDAT}:{FDAT+1}], v{ZERO}, s[52:55], 0 offen sc1
    s_lshl_b32 s{S_T}, s{S_P}, 4
    s_add_u32 s{S_T}, s{S_T}, s{S_A}
    s_lshl_b32 s{S_FL}, s{S_T}, 3
    s_lshl_b32 s{S_T}, s{S_T}, 1
    s_add_u32 s{S_T}, s{S_T}, s{S_WH}
    s_lshl_b32 s{S_HB}, s{S_T}, 18
    s_add_u32 s{S_FL}, s{S_FL}, s{S_W}
    s_lshl_b32 s{S_FL}, s{S_FL}, 7
    s_add_u32 s{S_FL}, s{S_FL}, {FKV}
    s_lshl_b32 s{S_T}, s{S_WR}, 13
    s_add_u32 s{S_T}, s{S_T}, s{S_HB}
    s_add_u32 s8, s32, s{S_T}
    s_addc_u32 s9, s33, 0
    s_mov_b32 s10, 0x40000
    s_lshl_b32 s{S_KV}, s{S_B}, 15
    s_add_u32 s{S_KV}, s{S_KV}, s{S_T}
    s_add_u32 s{S_KV+1}, s{S_KV}, 4096
    s_lshl_b32 s{S_M0}, s{S_W}, 13
    v_lshlrev_b32 v{VD}, 4, v0
    v_add_u32 v{VKV}, s{S_M0}, v{VD}
    s_cmp_eq_u32 s{S_P}, 0
    s_cselect_b32 s12, s20, s26
    s_cselect_b32 s13, s21, s27
    s_lshl_b32 s{S_T}, s{S_B}, 8
    s_add_u32 s12, s12, s{S_T}
    s_addc_u32 s13, s13, 0
    s_sub_u32 s14, 0x200000, s{S_T}
    s_mov_b32 s{S_ST1}, 0
    s_mov_b32 s{MSK}, 0xfff8fff8
    s_mov_b32 s{MSK+1}, s{MSK}
    s_mov_b32 s58, {f2u(CSCALE):#x}
    s_mov_b32 s59, s58
    """.strip().split("\n")
    m = mfmas1(1)
    m = m[8:] + m[:8]
    f = {i: setup[2*i:2*i+2] for i in range(24)}
    a(weave(m, f))
    stamp(a, 2)
    def pack2(dst, t0, t1):
        return [f"v_cvt_pk_bf16_f32 v{dst}, v{t0}, v{t0+1}", f"v_cvt_pk_bf16_f32 v{dst+1}, v{t0+2}, v{t0+3}",
                f"v_cvt_pk_bf16_f32 v{dst+2}, v{t1}, v{t1+1}", f"v_cvt_pk_bf16_f32 v{dst+3}, v{t1+2}, v{t1+3}"]
    def swap2(dst):
        return [f"v_permlane16_swap_b32 v{dst}, v{dst+2}", f"v_permlane16_swap_b32 v{dst+1}, v{dst+3}"]
    def swap32(dst):
        return [f"v_permlane32_swap_b32 v{dst}, v{dst+2}", f"v_permlane32_swap_b32 v{dst+1}, v{dst+3}"]
    frs = []
    for b in range(2):
        for t in range(2): frs.append((PK + 16*b + 4*t, ACC[2+t][2*b], ACC[2+t][2*b+1], b, t*1024))
        for t in range(2): frs.append((PK + 16*b + 8 + 4*t, ACC[4][2*b+t], ACC[5][2*b+t], b, 2048 + t*1024))
    kvstores = [f"buffer_store_dwordx4 {vr(fr[0],4)}, v{VD}, s[36:39], s{S_KV+fr[3]} offen offset:{fr[4]} sc1" for fr in frs]
    NE0 = OPT("NE0", 4)
    prev = None
    for k_, fr in enumerate(frs):
        a(pack2(fr[0], fr[1], fr[2]))
        if prev:
            a(swap2(prev[0]))
            if DENSE and prev[4] >= 2048: a(["s_nop 1"] + swap32(prev[0]))
            if k_ - 1 < NE0: a(kvstores[k_ - 1])
            a(f"ds_write_b128 v{VKV}, {vr(prev[0],4)} offset:{prev[3]*4096+prev[4]}")
        prev = fr
    for i in range(0, 8, 2): a(f"v_pk_mul_f32 v[{96+i}:{97+i}], v[{96+i}:{97+i}], s[58:59]")
    a(swap2(prev[0]))
    if DENSE: a(["s_nop 1"] + swap32(prev[0]))
    a(f"ds_write_b128 v{VKV}, {vr(prev[0],4)} offset:{prev[3]*4096+prev[4]}")
    for i in range(8, 32, 2): a(f"v_pk_mul_f32 v[{96+i}:{97+i}], v[{96+i}:{97+i}], s[58:59]")
    for b in range(2):
        for t in range(2): a(pack2(Q[b] + 4*t, ACC[t][2*b], ACC[t][2*b+1]))
    a(f"""
    s_lshl_b32 s{S_T}, s{S_WH}, 15
    v_add_u32 v{VKV}, s{S_T}, v{VD}
    s_add_u32 s{S_M0}, s{S_M0}, 65536
    """)
    for b in range(2):
        for t in range(2): a(swap2(Q[b] + 4*t))
    a(f"s_waitcnt vmcnt({NE0}) lgkmcnt(0)\ns_barrier")
    def rdK(kt, buf): return [f"ds_read_b128 {vr(KF[buf]+4*t,4)}, v{VKV} offset:{kt*4096+t*1024}" for t in range(2)]
    def rdV(kt, buf): return [f"ds_read_b128 {vr(VF[buf]+4*t,4)}, v{VKV} offset:{kt*4096+2048+t*1024}" for t in range(2)]
    def qk(sbuf, kbuf, qt, c=None):
        return [mf32(S[sbuf], KF[kbuf], Q[qt], NM[qt] if c is None else c), mf32(S[sbuf], KF[kbuf]+4, Q[qt]+4)]
    def pv(sbuf, vbuf, qt, t):
        if DENSE: return mf32(O[qt], VF[vbuf] + 4*t, S[sbuf] + 4*t)
        return f"v_smfmac_f32_32x32x32_bf16 {vr(O[qt],16)}, {vr(VF[vbuf]+4*t,4)}, {vr(S[sbuf]+8*t,8)}, v{IDX}"
    def rs(sbuf, qt, t):
        if DENSE: return None if t == 0 else f"v_smfmac_f32_16x16x64_bf16 {vr(LA[qt],4)}, {vr(ONES,4)}, {vr(S[sbuf],8)}, v{IDX}"
        return f"v_smfmac_f32_16x16x64_bf16 {vr(LA[qt],4)}, {vr(ONES,4)}, {vr(S[sbuf]+8*t,8)}, v{IDX}"
    def max_to_nm(m, qt):
        a(f"v_mov_b32 v{m+1}, v{m}")
        a("s_nop 1")
        a(f"v_permlane32_swap_b32 v{m}, v{m+1}")
        a("s_nop 1")
        a(f"v_max_f32 v{m}, v{m}, v{m+1}")
        a(f"v_sub_f32 v{m}, 0, v{m}")
        a(f"v_mov_b32 v{m+1}, v{m}")
        for i in range(0, 16, 2): a(f"v_mov_b64 v[{NM[qt]+i}:{NM[qt]+i+1}], v[{m}:{m+1}]")
    a(rdK(0, 0)); a(rdV(0, 0))
    a(kvstores[NE0:4])
    a(f"s_mov_b32 s{S_T}, {SPIN_MAX}")
    a.label("L_nonce")
    a(f"""
    v_readfirstlane_b32 s{NON}, v{FDAT}
    v_readfirstlane_b32 s{NON+1}, v{FDAT+1}
    s_sub_u32 s{S_T}, s{S_T}, 1
    s_cbranch_scc1 L_nonce_done
    s_cmp_lg_u32 s{NON}, 0
    s_cbranch_scc1 L_nonce_done
    buffer_load_dwordx2 v[{FDAT}:{FDAT+1}], v{ZERO}, s[52:55], 0 offen sc1
    s_waitcnt vmcnt(0)
    s_branch L_nonce
    """)
    a.label("L_nonce_done")
    a("s_waitcnt lgkmcnt(2)")
    a(qk(0, 0, 0, "0")); a(qk(1, 0, 1, "0"))
    a("s_nop 7\ns_nop 1")
    for qt in range(2):
        m_, src = VT + 2*qt, S[qt]
        a(f"v_max3_f32 v{m_}, v{src}, v{src+1}, v{src+2}")
        for i in range(3, 15, 2): a(f"v_max3_f32 v{m_}, v{m_}, v{src+i}, v{src+i+1}")
        a(f"v_max_f32 v{m_}, v{m_}, v{src+15}")
        max_to_nm(m_, qt)
        a("s_nop 1")
        if qt == 0: a(qk(0, 0, 0))
    if os.environ.get("PRIO", "1"): a(f"s_cmp_eq_u32 s{S_WH}, {os.environ.get('PRIO', '1')[0]}\ns_cbranch_scc0 L_noprio\ns_setprio 1"); a.label("L_noprio")
    stamp(a, 3)
    S_SO2 = S_ST2
    def dma2():
        G = []
        for j in range(8):
            g = []
            if j == 0: g.append(f"s_mov_b32 m0, s{S_M0}"); g.append("s_nop 0")
            g.append(f"buffer_load_dwordx4 v{VDE if j%2==0 else VDO}, s[8:11], s{S_SO} offen offset:{(j%4)*1024} sc1 lds")
            if j == 3: g += [f"s_add_u32 m0, s{S_M0}, 4096", f"s_mov_b32 s{S_SO}, s{S_SO2}"]
            elif j < 7: g.append(f"s_add_u32 s{S_SO}, s{S_SO}, s{S_ST1}")
            else: g.append(f"s_xor_b32 s{S_M0}, s{S_M0}, 65536")
            G.append(g)
        return G
    def blk():
        L = []
        for g, dst in ((0, S_SO), (1, S_SO2)):
            L += [f"s_lshl_b32 s{dst}, s{S_IT}, 1"]
            if g: L += [f"s_add_u32 s{dst}, s{dst}, 1"]
            L += [f"s_cmp_ge_u32 s{dst}, 7", f"s_cselect_b32 s{S_T}, 7, 0", f"s_cselect_b32 s{S_GRP}, 4096, 0", f"s_sub_u32 s{dst}, s{dst}, s{S_T}",
                  f"s_cmp_ge_u32 s{dst}, s{S_B}", f"s_addc_u32 s{dst}, s{dst}, 0", f"s_lshl_b32 s{dst}, s{dst}, 15", f"s_add_u32 s{dst}, s{dst}, s{S_GRP}"]
        return L
    def flagst(voff, soff, imm=0):
        return ["s_mov_b64 exec, 1", f"buffer_store_dwordx2 v[{FDAT}:{FDAT+1}], v{voff}, s[36:39], s{soff} offen offset:{imm} sc1", "s_mov_b64 exec, -1"]
    ATX = os.environ.get("ATX", "")
    PAT = [int(c) for c in os.environ.get('PAT', '333232')]
    def slot(sb, qa, nxt, prv, vb, pre, extra=()):
        e = [f"v_exp_f32 v{S[sb]+i}, v{S[sb]+i}" for i in range(16)]
        m = (qk((sb+1) % 4, nxt[0], nxt[1]) if nxt else [None, None]) + \
            ([pv((sb-1) % 4, prv[0], prv[1], 1), rs((sb-1) % 4, prv[1], 1)] if prv else [None, None]) + [pv(sb, vb, qa, 0), rs(sb, qa, 0)]
        extra = list(extra)
        if "p" in ATX:
            if prv: m[3] = [f"v_pk_add_f32 v[{LA[prv[1]]+2*(j%2)}:{LA[prv[1]]+2*(j%2)+1}], v[{LA[prv[1]]+2*(j%2)}:{LA[prv[1]]+2*(j%2)+1}], v[{S[(sb-1)%4]+8+2*j}:{S[(sb-1)%4]+9+2*j}]" for j in range(4)]
            m[5] = [f"v_pk_add_f32 v[{LA[qa]+2*(j%2)}:{LA[qa]+2*(j%2)+1}], v[{LA[qa]+2*(j%2)}:{LA[qa]+2*(j%2)+1}], v[{S[sb]+2*j}:{S[sb]+1+2*j}]" for j in range(4)]
        if DENSE:
            c = [f"v_cvt_pk_bf16_f32 v{S[sb]+i}, v{S[sb]+2*i}, v{S[sb]+2*i+1}" for i in range(8)]
            grp, ie, ic, last = [], 0, 0, ""
            for g_ in os.environ.get("DG", "eee|eceec|eecec|eec|eece|eecc").split("|"):
                cur = []
                for ch in g_:
                    if ch == "e": cur.append(e[ie]); ie += 1
                    elif ch == "n": cur.append("s_nop 0")
                    else:
                        assert ie >= 2*ic + 2 and not (last == "e" and ie == 2*ic + 2), "cvt too early"
                        cur.append(c[ic]); ic += 1
                    last = ch
                last = "m"
                grp.append(cur)
                if len(grp) == 4: assert ic >= 4
            assert ie == 16 and ic == 8 and len(grp) == 6
            for i in range(6):
                if i < 5: a(pre[i] if pre.get(i) else ([] if "n" in ATX else ["s_nop 0"]))
                else: a(pre.get(i, []))
                if m[i]: a(m[i])
                a(grp[i])
                ne = (len(extra) + 5 - i) // (6 - i)
                a(extra[:ne]); extra = extra[ne:]
            return
        k = 0
        order = [int(c) for c in os.environ.get("MORD", "012345")]
        for i in range(6):
            mi = order[i]
            nop = [] if (isinstance(m[mi], list)) else ["s_nop 0"]
            a(pre[i] if pre.get(i) else nop)
            if m[mi]: a(m[mi])
            a(e[k:k+PAT[i]]); k += PAT[i]
            ne = (len(extra) + 5 - i) // (6 - i)
            a(extra[:ne]); extra = extra[ne:]
    def stage(hooks, pres, first, barwait):
        for kt in range(8):
            for qa in range(2):
                n = 2*kt + qa
                pre = {i: [] for i in range(6)}
                if n in hooks: hooks[n]()
                if qa == 0:
                    if kt == 7:
                        barwait()
                        pre[0] += [f"v_xor_b32 v{VKV}, 0x10000, v{VKV}", "s_nop 0"]
                    else:
                        pre[0] += ["s_waitcnt lgkmcnt(0)"]
                    pre[1] += rdK((kt+1) % 8, (kt+1) % 2)
                    pre[4] += rdV((kt+1) % 8, (kt+1) % 2)
                else:
                    pre[0] += ["s_waitcnt lgkmcnt(2)"]
                for i, L in pres.get(n, {}).items(): pre[i] += L
                slot(n % 4, qa, ((kt + qa) % 2, 1 - qa), None if first and n == 0 else ((kt - 1 + qa) % 2, 1 - qa), kt % 2, pre)
    NPUB, NPOLL = OPT("NPUB", 3), OPT("NPOLL", 6)
    ST0 = os.environ.get("ST0", "") == "1"
    def h_pub():
        a("s_waitcnt vmcnt(0)"); a(flagst(FOFF+1, S_FL))
        if ST0: stamp(a, 4)
    def h_poll0():
        poll("L_poll0", S_FL, f"s[{MSK}:{MSK+1}]")
        a(f"s_mov_b32 s{S_IT}, 0\ns_mov_b32 s{MSK}, 0xff00ff00\ns_mov_b32 s{MSK+1}, s{MSK}"); a(blk())
        if ST0: stamp(a, 5)
    def bw0():
        a("s_waitcnt vmcnt(3) lgkmcnt(0)\ns_barrier")
        stamp_stage(a, "0")
        if ST0: stamp(a, 6)
    G = dma2()
    pres = {NPOLL + i: {2: G[3*i], 3: G[3*i+1], 5: G[3*i+2] if 3*i+2 < 8 else []} for i in range(3)}
    for i, n_ in enumerate((11, 12, 13, 15)): pres.setdefault(n_, {})[3] = [kvstores[4 + i]]
    stage({NPUB: h_pub, NPOLL: h_poll0}, pres, True, bw0)
    a(f"s_mov_b32 s{S_IT}, 1")
    a.raw(".p2align 6")
    a.label("L_at")
    def h_ld():
        a(f"""
        s_andn2_b32 s{S_T}, s{S_IT}, 2
        s_cmp_lg_u32 s{S_T}, 1
        s_cbranch_scc1 L_nold
        buffer_load_dwordx2 v[{PDAT}:{PDAT+1}], v{FOFF}, s[36:39], s{S_FL} offen sc1
        """)
        a.label("L_nold")
    def h_dma():
        a(f"s_andn2_b32 s{S_T}, s{S_IT}, 2\ns_cmp_lg_u32 s{S_T}, 1\ns_cbranch_scc1 L_nopoll")
        poll("L_poll2", S_FL, f"s[{MSK}:{MSK+1}]", True)
        a(f"s_mov_b64 s[{MSK}:{MSK+1}], 0")
        a.label("L_nopoll")
        a(blk())
    def h_pfwo():
        a(f"""
        s_cmp_lg_u32 s{S_IT}, {OPT("PFWIT", 4)}
        s_cbranch_scc1 L_nopfwo
        s_and_b32 s{S_T}, s{S_A}, 3
        s_lshl_b32 s{S_T}, s{S_T}, 3
        s_add_u32 s{S_T}, s{S_T}, s{S_W}
        s_lshl_b32 s{S_T}, s{S_T}, 16
        v_lshrrev_b32 v{VT}, 1, v0
        v_lshlrev_b32 v{VT}, 11, v{VT}
        v_and_b32 v{VT+1}, 1, v0
        v_lshl_add_u32 v{VT}, v{VT+1}, 7, v{VT}
        buffer_load_dword v{VT+1}, v{VT}, s[12:15], s{S_T} offen
        """)
        a.label("L_nopfwo")
    def bw1():
        a(f"s_waitcnt vmcnt(0) lgkmcnt(0)\ns_barrier\ns_cmp_lg_u32 s{S_IT}, 1\ns_cbranch_scc1 L_nopub1")
        a(flagst(FOFF+1, S_FL, 64)); a.label("L_nopub1")
        stamp_stage(a, f"s{S_IT}")
    G = dma2()
    pres = {3 + i: {2: G[2*i], 5: G[2*i+1]} for i in range(4)}
    stage({0: h_ld, 15: h_pfwo, 3: h_dma}, pres, False, bw1)
    a(f"""
    s_add_u32 s{S_IT}, s{S_IT}, 1
    s_cmp_lt_u32 s{S_IT}, 7
    s_cbranch_scc1 L_at
    """)
    S_OO, S_FO, S_BAD = 47, 49, 60
    VOA = VT + 6
    setup7 = f"""
    s_mov_b32 s8, s12
    s_mov_b32 s9, s13
    s_mov_b32 s10, s14
    s_lshl_b32 s{S_SO}, s{S_W}, 16
    s_add_u32 s{S_SO2}, s{S_SO}, 32768
    s_mov_b32 s{S_ST1}, 7168
    v_lshrrev_b32 v{VDE}, 4, v0
    v_lshlrev_b32 v{VDO}, 1, v{VDE}
    v_and_b32 v{VT}, 15, v0
    v_xor_b32 v{VDO}, v{VDO}, v{VT}
    v_lshlrev_b32 v{VDE}, 11, v{VDE}
    v_lshl_add_u32 v{VDE}, v{VDO}, 4, v{VDE}
    v_xor_b32 v{VDO}, 128, v{VDE}
    s_lshl_b32 s{S_T}, s{S_P}, 3
    s_add_u32 s{S_T}, s{S_T}, s{S_B}
    s_lshl_b32 s{S_T}, s{S_T}, 2
    s_add_u32 s{S_T}, s{S_T}, s{S_WR}
    s_lshl_b32 s{S_FO}, s{S_T}, 8
    s_lshl_b32 s{S_OO}, s{S_T}, 17
    s_bfe_u32 s{S_T}, s{S_HB}, 0x50012
    s_lshl_b32 s{S_GRP}, s{S_T}, 3
    s_add_u32 s{S_FO}, s{S_FO}, s{S_GRP}
    s_add_u32 s{S_FO}, s{S_FO}, {FO}
    s_lshl_b32 s{S_T}, s{S_T}, 11
    s_add_u32 s{S_OO}, s{S_OO}, s{S_T}
    s_add_u32 s{S_OO}, s{S_OO}, {OWS}
    s_add_u32 s{S_OO+1}, s{S_OO}, 65536
    v_and_b32 v{VOA}, 15, v0
    v_lshlrev_b32 v{VOA}, 4, v{VOA}
    v_lshrrev_b32 v{VOA+1}, 5, v0
    v_lshl_add_u32 v{VOA}, v{VOA+1}, 8, v{VOA}
    v_bfe_u32 v{VOA+1}, v0, 4, 1
    v_lshl_add_u32 v{VOA}, v{VOA+1}, 10, v{VOA}
    """.strip().split("\n")
    OPK = [PK, PK + 8]
    def check(qt):
        t = VT + 2*qt
        o = O[qt]
        return (([f"v_add_f32 v{LA[qt]}, v{LA[qt]}, v{LA[qt]+1}"] if DENSE else []) + [f"v_pk_mul_f32 v[{t}:{t+1}], v[{o}:{o+1}], 0"] +
                [f"v_pk_fma_f32 v[{t}:{t+1}], v[{o+i}:{o+i+1}], 0, v[{t}:{t+1}]" for i in range(2, 16, 2)] +
                [f"v_add_f32 v{t}, v{t}, v{t+1}", f"v_add_f32 v{t}, v{t}, v{LA[qt]}", f"v_cmp_gt_f32 s[{S_BAD+2*qt}:{S_BAD+2*qt+1}], s59, v{t}"])
    def finish(qt):
        t = VT + 2*qt
        o = O[qt]
        return ([f"v_rcp_f32 v{t}, v{LA[qt]}", "s_nop 0"] +
                [f"v_pk_mul_f32 v[{o+i}:{o+i+1}], v[{o+i}:{o+i+1}], v[{t}:{t+1}] op_sel_hi:[1,0]" for i in range(0, 16, 2)] +
                [f"v_cvt_pk_bf16_f32 v{OPK[qt]+i}, v{o+2*i}, v{o+2*i+1}" for i in range(8)] +
                [f"buffer_store_dwordx4 {vr(OPK[qt]+4*t_,4)}, v{VOA}, s[36:39], s{S_OO+qt} offen offset:{t_*512} sc1" for t_ in range(2)])
    seq = [(0, 0), (0, 1)] + [(k_, 0) for k_ in range(1, 8)] + [(k_, 1) for k_ in range(1, 8)]
    KB, VB = [0], [0]
    for m_ in range(1, 16):
        flip = seq[m_][0] != seq[m_-1][0]
        KB.append(KB[-1] ^ flip); VB.append(VB[-1] ^ flip)
    G = dma2()
    for m_ in range(16):
        stamp_stage(a, "7") if m_ == 14 else None
        pre = {i: [] for i in range(6)}
        pre[0] += ["s_waitcnt lgkmcnt(0)"]
        if m_ + 2 < 16 and seq[m_+2][0] != seq[m_+1][0]: pre[1] += rdK(seq[m_+2][0], KB[m_+2])
        if m_ + 1 < 16 and seq[m_+1][0] != seq[m_][0]: pre[4] += rdV(seq[m_+1][0], VB[m_+1])
        extra = []
        if m_ == 0: extra = setup7[:13] + ["s_mov_b32 s59, 0x5f800000"]
        if m_ == 1: extra = setup7[13:]
        if 2 <= m_ <= 5: pre[2] += G[2*(m_-2)]; pre[5] += G[2*(m_-2)+1]
        if m_ == 6:
            pre[2] += [f"s_lshl_b32 s{S_T}, s{S_W}, 12", f"s_add_u32 m0, s{S_T}, 131072", f"s_lshl_b32 s{S_SO}, s{S_W}, 15", f"s_add_u32 s{S_SO}, s{S_SO}, {4*131072}"]
        if m_ in (6, 7):
            for i_, j_ in ((3, 2*(m_-6)), (5, 2*(m_-6)+1)):
                pre[i_] += [f"buffer_load_dwordx4 v{VDE if j_%2==0 else VDO}, s[8:11], s{S_SO} offen offset:{j_*1024} lds", f"s_add_u32 s{S_SO}, s{S_SO}, s{S_ST1}"]
        if m_ == 10: extra = check(0)
        if m_ == 11: extra = finish(0)
        slot(m_ % 4, seq[m_][1], (KB[m_+1], seq[m_+1][1]) if m_ < 15 else None,
             (VB[m_-1], seq[m_-1][1]) if m_ else (1, 1), VB[m_], pre, extra)
    a("s_nop 1")
    a(pv(3, VB[15], 1, 1)); a(rs(3, 1, 1))
    if not ST0: stamp(a, 4)
    if ST3: stamp(a, 1, True)
    a("s_nop 7\ns_nop 3")
    a(check(1))
    a(f"""
    s_and_b64 vcc, s[{S_BAD}:{S_BAD+1}], s[{S_BAD+2}:{S_BAD+3}]
    s_cmp_eq_u64 vcc, exec
    s_cbranch_scc0 L_fallback
    """)
    a.label("L_fin")
    a(finish(1))
    OA, OB = 2, 3
    WA3 = [[4, 5, 6, 7], [8, 9, 10, 11]]
    FO_ = [[16 + 16*buf + 4*i for i in range(4)] for buf in range(2)]
    FW3 = [[48 + 16*buf + 4*nb for nb in range(4)] for buf in range(2)]
    AC3 = [[80 + 16*i + 4*nb for nb in range(4)] for i in range(4)]
    RX = 144
    T3 = 176
    S_INC, S_M3, S_ME, S_MS, S_R3, S_C3, S_F3, S_O3 = 52, 53, 54, 55, 56, 57, 58, 59
    a(f"""
    s_bfe_u32 s{S_R3}, s{S_W}, 0x10001
    s_and_b32 s{S_C3}, s{S_W}, 1
    s_lshl_b32 s{S_T}, s{S_P}, 4
    s_add_u32 s{S_T}, s{S_T}, s{S_A}
    s_lshl_b32 s{S_T}, s{S_T}, 2
    s_add_u32 s{S_T}, s{S_T}, s{S_WR}
    s_lshr_b32 s{S_F3}, s{S_T}, 1
    s_lshl_b32 s{S_F3}, s{S_F3}, 8
    s_add_u32 s{S_F3}, s{S_F3}, {FO}
    s_lshl_b32 s{S_T}, s{S_T}, 16
    s_add_u32 s{S_T}, s{S_T}, {OWS}
    s_add_u32 s60, s32, s{S_T}
    s_addc_u32 s61, s33, 0
    s_lshl_b32 s{S_M3}, s{S_WR}, 12
    s_lshl_b32 s{S_O3}, s{S_WR}, 15
    s_add_u32 s{S_O3}, s{S_O3}, {6*131072}
    s_cmp_eq_u32 s{S_WH}, 0
    s_cselect_b64 vcc, -1, 0
    s_cselect_b32 s8, s60, s12
    s_cselect_b32 s9, s61, s13
    s_cselect_b32 s10, 0x10000, s14
    s_cselect_b32 s{S_O3}, 0, s{S_O3}
    s_cselect_b32 s{S_ST1}, 0, 7168
    s_cselect_b32 s{S_INC}, 12, 17
    s_lshl_b32 s{S_INC}, 1, s{S_INC}
    v_lshlrev_b32 v{T3+1}, 4, v0
    v_cndmask_b32 v{VDE}, v{VDE}, v{T3+1}, vcc
    v_cndmask_b32 v{VDO}, v{VDO}, v{T3+1}, vcc
    s_lshl_b32 s{S_T}, s{S_R3}, 1
    s_add_u32 s{S_T}, s{S_T}, s{S_WH}
    s_lshl_b32 s{S_T}, s{S_T}, 1
    s_add_u32 s{S_T}, s{S_T}, s{S_WH}
    s_lshl_b32 s{S_T}, s{S_T}, 11
    s_add_u32 s{S_T}, s{S_T}, 65536
    v_add_u32 v{OA}, s{S_T}, v{T3+1}
    v_xor_b32 v{OB}, 4096, v{OA}
    v_bfe_u32 v{T3}, v0, 2, 3
    v_lshrrev_b32 v{T3+1}, 5, v0
    v_lshl_add_u32 v{T3+1}, v{T3+1}, 4, v{T3}
    s_lshl_b32 s{S_T}, s{S_WH}, 5
    v_add_u32 v{T3+1}, s{S_T}, v{T3+1}
    v_lshlrev_b32 v{T3+1}, 8, v{T3+1}
    v_bfe_u32 v{T3+2}, v0, 1, 1
    s_lshl_b32 s{S_T}, s{S_C3}, 3
    v_add_u32 v{T3+2}, s{S_T}, v{T3+2}
    v_lshlrev_b32 v{T3}, 1, v{T3}
    v_xor_b32 v{T3+2}, v{T3+2}, v{T3}
    v_lshl_add_u32 v{T3+1}, v{T3+2}, 4, v{T3+1}
    v_and_b32 v{T3+2}, 1, v0
    v_lshl_add_u32 v{WA3[0][0]}, v{T3+2}, 3, v{T3+1}
    """)
    for nb in range(1, 4): a(f"v_xor_b32 v{WA3[0][nb]}, {32*nb}, v{WA3[0][0]}")
    for nb in range(4): a(f"v_add_u32 v{WA3[1][nb]}, 0x20000, v{WA3[0][nb]}")
    for i in range(80, 144, 2): a(f"v_mov_b64 v[{i}:{i+1}], 0")
    def wslot(i): return i*16384 if i < 4 else 131072 + (i-4)*16384
    def dma3(mo, mw):
        G = []
        for j in range(4):
            g = []
            if j == 0:
                if mw is None: g += [f"s_add_u32 m0, s{S_M3}, {mo}"]
                else: g += [f"s_cmp_eq_u32 s{S_WH}, 0", f"s_mov_b32 s{S_T}, {mw}", f"s_cmov_b32 s{S_T}, {mo}", f"s_add_u32 m0, s{S_M3}, s{S_T}"]
                g += [f"s_mov_b32 s{S_SO}, s{S_O3}"]
            g.append(f"buffer_load_dwordx4 v{VDE if j%2==0 else VDO}, s[8:11], s{S_SO} offen offset:{j*1024} sc1 lds")
            g.append(f"s_add_u32 s{S_SO}, s{S_SO}, s{S_ST1}" if j < 3 else f"s_add_u32 s{S_O3}, s{S_O3}, s{S_INC}")
            G.append(g)
        return G
    a(f"""
    v_and_b32 v{FOFF}, 31, v0
    v_lshlrev_b32 v{FOFF}, 3, v{FOFF}
    s_barrier
    """)
    if ST3: stamp(a, 2, True)
    a("s_waitcnt vmcnt(0)")
    if ST3: stamp(a, 3, True)
    a(flagst(ZERO, S_FO))
    a(f"s_cmp_lg_u32 s{S_WH}, 0\ns_cbranch_scc1 L_p3go")
    if OPT("POLL2", 0):
        P2 = T3 + 4
        ld = lambda r: f"buffer_load_dwordx2 v[{r}:{r+1}], v{FOFF}, s[36:39], s{S_F3} offen sc1"
        a(f"s_mov_b32 s{S_T}, {SPIN_MAX}")
        a(ld(PDAT)); a(f"s_sleep {OPT('PSL2', 3)}")
        a.label("L_pollo")
        for r0, r1 in ((PDAT, P2), (P2, PDAT)):
            a(ld(r1))
            a(f"""
            s_waitcnt vmcnt(1)
            v_cmp_eq_u64 vcc, s[{NON}:{NON+1}], v[{r0}:{r0+1}]
            s_cmp_eq_u64 vcc, exec
            s_cbranch_scc1 L_pollo_done
            """)
        a(f"s_sub_u32 s{S_T}, s{S_T}, 1\ns_cbranch_scc0 L_pollo")
        a.label("L_pollo_done")
    else:
        poll("L_pollo", S_F3)
    if ST3: stamp(a, 4, True)
    for st in range(4):
        for g in dma3(65536 + st*16384, None): a(g)
    a("s_waitcnt vmcnt(12)")
    a.label("L_p3go")
    if ST3: a(f"s_cmp_eq_u32 s{S_WH}, 0\ns_cbranch_scc1 L_st3x"); stamp(a, 4, True); a.label("L_st3x")
    a("s_barrier")
    if not ST0: stamp(a, 5)
    def reads3(s, buf):
        ws_, os_ = s % 6, s % 4
        O_ = [f"ds_read_b128 {vr(FO_[buf][i],4)}, v{OA if i < 2 else OB} offset:{os_*16384 + (i%2)*1024}" for i in range(4)]
        W_ = [f"ds_read_b64_tr_b16 {vr(FW3[buf][nb]+2*u,2)}, v{WA3[ws_//4][nb]} offset:{(ws_%4)*16384 + u*2048}" for nb in range(4) for u in range(2)]
        return W_[0:2] + O_ + W_[2:]
    def mfmas3(buf):
        return [mf16(AC3[i][nb], FW3[buf][nb], FO_[buf][i]) for nb in range(4) for i in range(4)]
    a(reads3(0, 0))
    fin_setup = f"""
    s_lshl_b32 s{S_T}, s{S_WH}, 3
    s_add_u32 s{S_T}, s{S_T}, s{S_WR}
    s_lshl_b32 s{S_T}, s{S_T}, 13
    v_lshlrev_b32 v{T3}, 4, v0
    v_add_u32 v{T3}, s{S_T}, v{T3}
    v_xor_b32 v{T3+1}, 0x10000, v{T3}
    s_mov_b32 s12, s28
    s_mov_b32 s13, s29
    s_mov_b32 s14, 0x800000
    s_lshl_b32 s{S_T}, s{S_A}, 2
    s_lshl_b32 s{S_SO}, s{S_R3}, 1
    s_add_u32 s{S_T}, s{S_T}, s{S_SO}
    s_add_u32 s{S_T}, s{S_T}, s{S_WH}
    s_lshl_b32 s{S_T}, s{S_T}, 17
    s_lshl_b32 s{S_SO}, s{S_P}, 11
    s_add_u32 s{S_T}, s{S_T}, s{S_SO}
    s_lshl_b32 s{S_SO}, s{S_B}, 8
    s_add_u32 s{S_T}, s{S_T}, s{S_SO}
    s_lshl_b32 s{S_SO}, s{S_C3}, 7
    s_add_u32 s{S_SO}, s{S_T}, s{S_SO}
    s_add_u32 s{S_SO+1}, s{S_SO}, 65536
    v_and_b32 v{T3+2}, 15, v0
    v_lshlrev_b32 v{T3+2}, 12, v{T3+2}
    v_bfe_u32 v{T3+3}, v0, 4, 1
    v_lshl_add_u32 v{T3+2}, v{T3+3}, 5, v{T3+2}
    v_lshrrev_b32 v{T3+3}, 5, v0
    v_lshl_add_u32 v{T3+2}, v{T3+3}, 4, v{T3+2}
    """.strip().split("\n")
    for s in range(16):
        if s < 15:
            a(f"s_waitcnt vmcnt({8 if s <= 12 else 4 if s == 13 else 0}) lgkmcnt(0)\ns_barrier")
            r = reads3(s + 1, 1 - s % 2)
            f = {i: [r[i]] for i in range(12)}
            if s <= 11:
                d = dma3(65536 + (s % 4)*16384, wslot(s % 6))
                for k_, i in enumerate((0, 4, 8, 12)): f[i] = f.get(i, []) + d[k_]
            if s == 14:
                for i in range(14): f[i] = f.get(i, []) + fin_setup[2*i:2*i+2]
            a(weave(mfmas3(s % 2), f))
        else:
            a("s_waitcnt lgkmcnt(0)")
            m = mfmas3(1)
            order = [k_ for k_ in range(16) if k_ % 4 >= 2] + [k_ for k_ in range(16) if k_ % 4 < 2]
            a([m[k_] for k_ in order])
    if not ST0: stamp(a, 6)
    for j in range(8): a(f"ds_write_b128 v{T3}, {vr(AC3[2][0]+4*j,4)} offset:{j*1024}")
    a("s_waitcnt lgkmcnt(0)\ns_barrier")
    for j in range(8): a(f"ds_read_b128 {vr(RX+4*j,4)}, v{T3+1} offset:{j*1024}")
    prev = None
    for j in range(5):
        if j < 4:
            qb, np_ = j // 2, j % 2
            t0 = AC3[qb][2*np_]
            a(f"s_waitcnt lgkmcnt({6 - 2*j})")
            for i in range(0, 8, 2): a(f"v_pk_add_f32 v[{t0+i}:{t0+i+1}], v[{t0+i}:{t0+i+1}], v[{RX+8*j+i}:{RX+8*j+i+1}]")
            cur = (16 + 4*j, qb, np_)
            a(pack2(cur[0], t0, t0 + 4))
        else:
            cur = None; a("s_nop 1")
        if prev:
            a(swap2(prev[0]))
            a(f"buffer_store_dwordx4 {vr(prev[0],4)}, v{T3+2}, s[12:15], s{S_SO+prev[1]} offen offset:{prev[2]*64} {os.environ.get('OUTPOL', 'sc0 sc1')}")
        prev = cur
    stamp_flush(a, 7, 1)
    a.label("L_end")
    a("s_endpgm")
    MX = [VT, VT+2]
    a.label("L_fallback")
    a(f"""
    v_mov_b32 v{MX[0]}, 0xff800000
    v_mov_b32 v{MX[1]}, 0xff800000
    s_mov_b32 s{S_IT}, 0
    s_waitcnt vmcnt(0) lgkmcnt(0)
    """)
    a.label("L_fb_max")
    a(f"s_add_u32 s{S_T}, s{S_IT}, s{S_HB}")
    for t in range(2): a(f"buffer_load_dwordx4 {vr(KF[0]+4*t,4)}, v{VD}, s[36:39], s{S_T} offen offset:{t*1024} sc1")
    a("s_waitcnt vmcnt(0)")
    a(qk(0, 0, 0, "0")); a(qk(1, 0, 1, "0"))
    a("s_nop 15")
    for qt in range(2):
        for i in range(0, 16, 2): a(f"v_max3_f32 v{MX[qt]}, v{MX[qt]}, v{S[qt]+i}, v{S[qt]+i+1}")
    a(f"""
    s_add_u32 s{S_IT}, s{S_IT}, 4096
    s_cmp_lt_u32 s{S_IT}, 0x40000
    s_cbranch_scc1 L_fb_max
    """)
    max_to_nm(MX[0], 0); max_to_nm(MX[1], 1)
    for i in range(O[0], LA[1] + 4, 2): a(f"v_mov_b64 v[{i}:{i+1}], 0")
    a(f"s_mov_b32 s{S_IT}, 0")
    a.label("L_fb_main")
    a(f"s_add_u32 s{S_T}, s{S_IT}, s{S_HB}")
    for t in range(2): a(f"buffer_load_dwordx4 {vr(KF[0]+4*t,4)}, v{VD}, s[36:39], s{S_T} offen offset:{t*1024} sc1")
    for t in range(2): a(f"buffer_load_dwordx4 {vr(VF[0]+4*t,4)}, v{VD}, s[36:39], s{S_T} offen offset:{2048+t*1024} sc1")
    a("s_waitcnt vmcnt(0)")
    a(qk(0, 0, 0)); a(qk(1, 0, 1))
    a("s_nop 15")
    for qt in range(2):
        for i in range(16): a(f"v_exp_f32 v{S[qt]+i}, v{S[qt]+i}")
    a("s_nop 1")
    if DENSE:
        for qt in range(2):
            for i in range(8): a(f"v_cvt_pk_bf16_f32 v{S[qt]+i}, v{S[qt]+2*i}, v{S[qt]+2*i+1}")
        a("s_nop 1")
    for qt in range(2):
        for t in range(2):
            a(pv(qt, 0, qt, t))
            if rs(qt, qt, t): a(rs(qt, qt, t))
    a(f"""
    s_add_u32 s{S_IT}, s{S_IT}, 4096
    s_cmp_lt_u32 s{S_IT}, 0x40000
    s_cbranch_scc1 L_fb_main
    s_nop 15
    """)
    if DENSE: a([f"v_add_f32 v{LA[qt]}, v{LA[qt]}, v{LA[qt]+1}" for qt in range(2)])
    a(finish(0))
    a("s_branch L_fin")
    return f""".p2align 6
.amdhsa_kernel {name}
  .amdhsa_next_free_vgpr {NV}
  .amdhsa_next_free_sgpr 102
  .amdhsa_accum_offset {NV}
  .amdhsa_group_segment_fixed_size 0
  .amdhsa_kernarg_size 72
  .amdhsa_user_sgpr_count 2
  .amdhsa_user_sgpr_kernarg_segment_ptr 1
  .amdhsa_system_sgpr_workgroup_id_x 1
.end_amdhsa_kernel"""

def main():
    out = sys.argv[1] if len(sys.argv) > 1 else f"cdna_kernels/{NAME}.s"
    a = Asm()
    k = gen(a)
    hdr = open(f"cdna_kernels/{NAME}.s.ref").read().split("\n")
    hdr = [l for l in hdr if l.startswith(";") and "@launch" not in l]
    hdr.append(f"; @launch grid=(256,1,1) block=(512,1,1) lds={LDS_BYTES}")
    txt = "\n".join(hdr) + '\n.amdgcn_target "amdgcn-amd-amdhsa--gfx950"\n.text\n' + a.text() + '\n.section .rodata,"a"\n' + k + "\n"
    open(out, "w").write(txt)

if __name__ == "__main__":
    main()
```

```python
import sys, math, os, struct
from gen2 import Asm, vr, f2u, mf32, mf16, weave, NAME

STAMP = os.environ.get("STAMP", "0") == "1"
def OPT(k, d): return type(d)(os.environ.get(k, d))

KVWS = 0
OWS = 16 << 20
FKV = 24 << 20
FO = FKV + 65536
WS_BYTES = 25 << 20
STAMP_BASE = 64 << 20
CSCALE = math.log2(math.e) / math.sqrt(32.0)
LDS_BYTES = 163840
SPIN_MAX = 1 << 16

S_W, S_P, S_A, S_B, S_T = 3, 4, 5, 6, 7
S_WR, S_WH, S_IT = 40, 41, 42
NON = 34

ST3 = os.environ.get("ST3", "") == "1"
STG = os.environ.get("STG", "") == "1"
def stamp_stage(a, lane):
    if STG:
        a(f"s_memtime s[96:97]\ns_memrealtime s[98:99]\ns_lshl_b64 exec, 1, {lane}\ns_waitcnt lgkmcnt(0)\nv_mov_b32 v14, s96\nv_mov_b32 v15, s98\ns_mov_b64 exec, -1")
def stamp(a, i, alt=False):
    if ST3 and i in (1, 2, 3, 4) and not alt: return
    if STAMP and not STG:
        a(f"s_memtime s[{64+4*i}:{65+4*i}]")
        a(f"s_memrealtime s[{66+4*i}:{67+4*i}]")
        a("s_waitcnt lgkmcnt(0)")
def stamp_flush(a, n, vt):
    if not STAMP: return
    a("s_waitcnt vmcnt(0) lgkmcnt(0)")
    stamp(a, n)
    a(f"""
    s_add_u32 s56, s32, {STAMP_BASE}
    s_addc_u32 s57, s33, 0
    s_mov_b32 s58, 0x100000
    s_mov_b32 s59, 0x20000
    s_lshl_b32 s60, s2, 3
    s_add_u32 s60, s60, s{S_W}
    s_lshl_b32 s60, s60, 6
    v_mov_b32 v{vt}, 0
    """)
    if STG:
        a(f"v_lshlrev_b32 v{vt}, 3, v0\ns_mov_b64 exec, 0xff\nbuffer_store_dwordx2 v[14:15], v{vt}, s[56:59], s60 offen")
        return
    for i in range(n + 1):
        a(f"v_mov_b32 v{vt+1}, s{64+4*i}")
        a(f"v_mov_b32 v{vt+2}, s{66+4*i}")
        a(f"buffer_store_dwordx2 v[{vt+1}:{vt+2}], v{vt}, s[56:59], s60 offen offset:{8*i}")
        a("s_nop 1")

DENSE = "d" in os.environ.get("ATX", "")
def gen(a):
    name = NAME + "_kernel"
    a.raw(f".globl {name}\n.p2align 8\n.type {name},@function\n{name}:")
    stamp(a, 0)
    RARE = []
    def emit(L):
        for x in L:
            a(x)
            if " m0," in x: a("s_nop 0")
    PKB = [48, 32]; Q = [16, 24]; PK = 32; KF = [64, 72]; VF = [80, 88]; NM = [96, 112]; S = [128, 144, 160, 176]
    O = [192, 208]; LA = [224, 228]; ONES = 232; IDX = 236; ZERO = 237
    FDAT, FOFF, PDAT = 238, 240, 242
    XB = [244, 245]; VDE, VDO = 246, 247
    NV = 256
    def poll(lab, soff, mask=None, first_loaded=False):
        ld = f"buffer_load_dwordx2 v[{PDAT}:{PDAT+1}], v{FOFF}, s[36:39], s{soff} offen sc1"
        a(f"s_mov_b32 s{S_T}, {SPIN_MAX}")
        if not first_loaded: a(ld)
        a.label(lab)
        a(f"""
        s_waitcnt vmcnt(0)
        v_cmp_eq_u64 vcc, s[{NON}:{NON+1}], v[{PDAT}:{PDAT+1}]
        """)
        if mask: a(f"s_or_b64 vcc, vcc, {mask}")
        a(f"""
        s_cmp_eq_u64 vcc, exec
        s_cbranch_scc1 {lab}_done
        s_sub_u32 s{S_T}, s{S_T}, 1
        s_cbranch_scc1 {lab}_done
        s_sleep {OPT("PSLEEP", 8)}
        {ld}
        s_branch {lab}
        """)
        a.label(lab + "_done")
    XA = [2, 3]; WA = [4, 5]; D0, D1, D2, PFV, PFD = 6, 7, 8, 9, 10
    VT = 11
    FX = [[16 + 16*buf + 4*rb for rb in range(4)] for buf in range(2)]
    FW = [[48 + 24*buf + 4*cb for cb in range(6)] for buf in range(2)]
    ACC = [[96 + 16*cb + 4*rb for rb in range(4)] for cb in range(6)]
    S_KX, S_KW, T0, S_M0X, S_M0W, S_XF, S_XN, S_PFO, S_PFI = 43, 44, 45, 47, 48, 49, 50, 56, 57
    W0, W1 = 98304, 122880
    PF0, PFSTEP = OPT("PF0", 3), OPT("PFSTEP", 4)
    a(f"""
    s_cmp_ge_u32 s2, 256
    s_cbranch_scc1 L_end
    s_load_dwordx16 s[16:31], s[0:1], 0
    s_load_dwordx2 s[32:33], s[0:1], 64
    s_memrealtime s[{NON}:{NON+1}]
    v_lshrrev_b32 v1, 6, v0
    v_and_b32 v0, 63, v0
    v_readfirstlane_b32 s{S_W}, v1
    s_and_b32 s{S_T}, s2, 7
    s_lshr_b32 s{S_B}, s2, 3
    s_lshr_b32 s{S_P}, s{S_T}, 2
    s_and_b32 s{S_A}, s{S_T}, 3
    s_lshl_b32 s{S_A}, s{S_A}, 2
    s_and_b32 s{S_T}, s{S_B}, 3
    s_or_b32 s{S_A}, s{S_A}, s{S_T}
    s_lshr_b32 s{S_B}, s{S_B}, 2
    s_and_b32 s{S_WR}, s{S_W}, 3
    s_lshr_b32 s{S_WH}, s{S_W}, 2
    s_mul_i32 s{S_M0X}, s{S_WR}, 7
    s_add_u32 s{S_T}, s{S_WR}, 28
    s_cmp_eq_u32 s{S_WH}, 0
    s_cselect_b32 s{S_M0X}, s{S_T}, s{S_M0X}
    v_lshrrev_b32 v{VT}, 3, v0
    s_lshl_b32 s{S_T}, s{S_M0X}, 3
    v_add_u32 v{VT+4}, s{S_T}, v{VT}
    v_lshlrev_b32 v{VT+4}, 11, v{VT+4}
    v_and_b32 v{VT+1}, 7, v0
    v_lshrrev_b32 v{VT+2}, 4, v0
    v_xor_b32 v{VT+3}, v{VT+1}, v{VT+2}
    s_and_b32 s{S_T}, s{S_WR}, 1
    s_lshl_b32 s{S_T}, s{S_T}, 2
    v_xor_b32 v{VT+3}, s{S_T}, v{VT+3}
    v_lshl_add_u32 v{D2}, v{VT+3}, 4, v{VT+4}
    s_lshl_b32 s{S_M0X}, s{S_M0X}, 10
    s_lshl_b32 s{S_T}, s{S_WR}, 4
    v_add_u32 v{VT}, s{S_T}, v{VT}
    v_mul_u32_u24 v{VT}, 6144, v{VT}
    v_and_b32 v{VT+2}, 1, v{VT+2}
    v_lshlrev_b32 v{VT+2}, 2, v{VT+2}
    v_xor_b32 v{VT+3}, v{VT+1}, v{VT+2}
    v_lshl_add_u32 v{D0}, v{VT+3}, 4, v{VT}
    v_xor_b32 v{D1}, 32, v{D0}
    v_add_u32 v{D1}, 49152, v{D1}
    s_mul_i32 s{S_M0W}, s{S_WR}, 6144
    s_add_u32 s{S_M0W}, s{S_M0W}, {W0}
    s_mov_b32 s{S_KX}, 0
    s_mov_b32 s{S_KW}, 0
    s_mov_b32 s11, 0x20000
    s_mov_b32 s15, 0x20000
    s_mov_b32 s39, 0x20000
    s_mov_b32 s55, 0x20000
    v_mov_b32 v{ZERO}, 0
    s_waitcnt lgkmcnt(0)
    s_cmp_eq_u32 s{S_P}, 0
    s_cselect_b32 s8, s16, s22
    s_cselect_b32 s9, s17, s23
    s_cselect_b32 s12, s18, s24
    s_cselect_b32 s13, s19, s25
    s_lshl_b32 s{S_T}, s{S_B}, 19
    s_add_u32 s8, s8, s{S_T}
    s_addc_u32 s9, s9, 0
    s_sub_u32 s10, 0x400000, s{S_T}
    s_lshl_b32 s{S_T}, s{S_A}, 7
    s_add_u32 s12, s12, s{S_T}
    s_addc_u32 s13, s13, 0
    s_sub_u32 s14, 0x600000, s{S_T}
    s_cmp_lg_u32 s{S_WH}, 0
    s_cbranch_scc1 L_proB
    """)
    def burstW(stage):
        L = []
        for g in range(2):
            L.append(f"s_add_u32 m0, s{S_M0W}, {stage*(W1-W0) + g*3072}")
            for s_ in range(3):
                if s_: L.append(f"s_add_u32 s{T0+s_%2}, s{S_KW}, {s_*1024}")
                else: L.append("s_nop 0")
                L.append(f"buffer_load_dwordx4 v{D0+g}, s[12:15], s{T0+s_%2 if s_ else S_KW} offen offset:{s_*1024} lds")
        L.append(f"s_add_u32 s{S_KW}, s{S_KW}, 393216")
        return L
    def burstXA(slot):
        return [f"s_add_u32 m0, s{S_M0X}, {slot}", "s_nop 0", f"buffer_load_dwordx4 v{D2}, s[8:11], s{S_KX} offen lds", f"s_add_u32 s{S_KX}, s{S_KX}, 128"]
    def burstXB(slot):
        L = [f"s_add_u32 m0, s{S_M0X}, {slot}"]
        for j in range(7):
            if j == 4: L.append("s_add_u32 m0, m0, 4096")
            L.append(f"s_add_u32 s{T0+j%2}, s{S_KX}, {j*16384 - (j%4)*1024}")
            L.append(f"buffer_load_dwordx4 v{D2 if j%2==0 else D1}, s[8:11], s{T0+j%2} offen offset:{(j%4)*1024} lds")
        L.append(f"s_add_u32 s{S_KX}, s{S_KX}, 128")
        return L
    a(burstW(0) + burstXA(0) + burstW(1) + burstXA(32768) + burstXA(65536))
    a(f"""
    s_or_b32 s{S_T}, s2, s{S_W}
    s_cmp_lg_u32 s{S_T}, 0
    s_cbranch_scc1 L_pro2
    s_mov_b32 s52, s30
    s_mov_b32 s53, s31
    s_mov_b32 s54, 256
    s_or_b32 s{NON}, s{NON}, 1
    v_mov_b32 v{FDAT}, s{NON}
    v_mov_b32 v{FDAT+1}, s{NON+1}
    s_mov_b64 exec, 1
    buffer_store_dwordx2 v[{FDAT}:{FDAT+1}], v{ZERO}, s[52:55], 0 offen sc1
    s_mov_b64 exec, -1
    s_branch L_pro2
    """)
    a.label("L_proB")
    a(f"v_xor_b32 v{D1}, 64, v{D2}")
    a(burstXB(0) + burstXB(32768))
    a.label("L_pro2")
    a(f"""
    s_lshl_b32 s{S_T}, s{S_B}, 2
    s_add_u32 s{S_T}, s{S_T}, s{S_WR}
    s_lshl_b32 s{S_T}, s{S_T}, 2
    v_and_b32 v{VT+1}, 3, v0
    v_add_u32 v{VT+1}, s{S_T}, v{VT+1}
    v_bfe_u32 v{VT+2}, v0, 4, 1
    v_lshl_add_u32 v{VT+1}, v{VT+2}, 7, v{VT+1}
    v_mul_u32_u24 v{VT+1}, 6144, v{VT+1}
    v_bfe_u32 v{VT+2}, v0, 2, 2
    v_min_u32 v{VT+2}, 2, v{VT+2}
    v_lshl_add_u32 v{PFV}, v{VT+2}, 11, v{VT+1}
    s_mov_b32 s{S_PFO}, {393216 * PF0}
    s_and_b32 s{S_T}, s{S_A}, 3
    s_lshl_b32 s{S_T}, s{S_T}, 2
    s_add_u32 s{S_T}, s{S_T}, s{S_WR}
    s_lshl_b32 s{S_T}, s{S_T}, 4
    v_and_b32 v{VT}, 15, v0
    v_add_u32 v{VT}, s{S_T}, v{VT}
    v_lshlrev_b32 v{VT}, 11, v{VT}
    v_lshrrev_b32 v{VT+1}, 4, v0
    v_lshl_add_u32 v{VT}, v{VT+1}, 7, v{VT}
    s_cmp_eq_u32 s{S_WH}, 0
    s_cselect_b64 vcc, -1, 0
    s_cselect_b32 s{S_PFO}, {128 * OPT("PFX0", 4)}, s{S_PFO}
    v_cndmask_b32 v{PFV}, v{PFV}, v{VT}, vcc
    v_and_b32 v{VT}, 15, v0
    s_lshl_b32 s{S_T}, s{S_WR}, 6
    v_add_u32 v{VT}, s{S_T}, v{VT}
    v_lshlrev_b32 v{VT}, 7, v{VT}
    v_lshrrev_b32 v{VT+1}, 4, v0
    v_bfe_u32 v{VT+2}, v0, 1, 3
    v_xor_b32 v{VT+2}, v{VT+1}, v{VT+2}
    v_lshl_add_u32 v{XA[0]}, v{VT+2}, 4, v{VT}
    v_xor_b32 v{XA[1]}, 64, v{XA[0]}
    v_mov_b32 v{XB[0]}, v{XA[0]}
    v_mov_b32 v{XB[1]}, v{XA[1]}
    v_mul_u32_u24 v{VT}, 3072, v{VT+1}
    v_bfe_u32 v{VT+2}, v0, 2, 2
    v_lshl_add_u32 v{VT}, v{VT+2}, 7, v{VT}
    v_bfe_u32 v{VT+3}, v0, 1, 1
    s_lshl_b32 s{S_T}, s{S_WH}, 2
    v_add_u32 v{VT+3}, s{S_T}, v{VT+3}
    v_bfe_u32 v{VT+4}, v0, 3, 1
    v_lshlrev_b32 v{VT+4}, 2, v{VT+4}
    v_xor_b32 v{VT+3}, v{VT+3}, v{VT+4}
    v_bfe_u32 v{VT+4}, v0, 4, 1
    v_lshlrev_b32 v{VT+4}, 1, v{VT+4}
    v_xor_b32 v{VT+3}, v{VT+3}, v{VT+4}
    v_lshl_add_u32 v{VT}, v{VT+3}, 4, v{VT}
    v_and_b32 v{VT+4}, 1, v0
    v_lshl_add_u32 v{VT}, v{VT+4}, 3, v{VT}
    v_add_u32 v{WA[0]}, {W0}, v{VT}
    v_xor_b32 v{WA[1]}, 32, v{WA[0]}
    v_mov_b32 v{IDX}, {"0x44444444" if DENSE else "0xdddddddd"}
    {f"v_and_b32 v{VT}, 1, v0" if DENSE else ""}
    {f"v_mul_u32_u24 v{VT}, 0xaaaa, v{VT}" if DENSE else ""}
    {f"v_add_u32 v{IDX}, v{IDX}, v{VT}" if DENSE else ""}
    v_bfe_u32 v{VT}, v0, 2, 1
    v_mov_b32 v{VT+1}, 0x3f803f80
    v_cmp_eq_u32 vcc, 0, v{VT}
    v_lshlrev_b32 v{VDE}, 4, v0
    v_lshlrev_b32 v{VDO}, 4, v0
    v_cndmask_b32 v{ONES}, v{ZERO}, v{VT+1}, vcc
    v_cndmask_b32 v{ONES+1}, v{ZERO}, v{VT+1}, vcc
    v_cndmask_b32 v{ONES+2}, v{VT+1}, v{ZERO}, vcc
    v_cndmask_b32 v{ONES+3}, v{VT+1}, v{ZERO}, vcc
    v_and_b32 v{FOFF}, 15, v0
    v_lshlrev_b32 v{FOFF}, 3, v{FOFF}
    s_lshl_b32 s{S_T}, s{S_B}, 3
    v_mov_b32 v{FOFF+1}, s{S_T}
    s_mov_b32 s{S_IT}, 0
    s_mov_b32 s{S_XN}, 32768
    """)
    for i in range(96, 232, 2): a(f"v_mov_b64 v[{i}:{i+1}], 0")
    def reads1(stage, t, buf):
        X = [f"ds_read_b128 {vr(FX[buf][rb],4)}, v{XA[t]} offset:{rb*2048}" for rb in range(4)]
        W = []
        for cb in range(6):
            for u in range(2):
                W.append(f"ds_read_b64_tr_b16 {vr(FW[buf][cb]+2*u,2)}, v{WA[cb%2]} offset:{stage*(W1-W0) + t*12288 + (cb//2)*1024 + u*512}")
        return W[0:2] + X + W[2:]
    def mfmas1(buf):
        return [mf16(ACC[cb][rb], FW[buf][cb], FX[buf][rb]) if cb < 4 else mf16(ACC[cb][rb], FX[buf][rb], FW[buf][cb])
                for cb in range(6) for rb in range(4)]
    def spread(r, key):
        sp, off = float(os.environ.get(key, "1.4" if key in ("SA1", "SB1") else "1")), int(os.environ.get(key + "O", "0"))
        f = {}
        for k_, x in enumerate(r): f.setdefault(min(23, off + int(k_ * sp)), []).append(x)
        return f
    def rot_x():
        return [f"v_add_u32 v{XA[1]}, s{S_XN}, v{XB[1]}", f"s_mov_b32 s{S_XF}, s{S_XN}", f"s_add_u32 s{S_XN}, s{S_XN}, 32768",
                f"s_cmp_eq_u32 s{S_XN}, 98304", f"s_cselect_b32 s{S_XN}, 0, s{S_XN}"]
    BSPR = OPT("BSPR", 0)
    def place(f, burst, pre):
        if BSPR == 0:
            pre += burst; return
        groups, cur = [], []
        for x in burst:
            cur.append(x)
            if " lds" in x or "buffer_load_dword " in x: groups.append(cur); cur = []
        if cur: groups[-1] += cur
        pre += groups[0]
        for k_, g in enumerate(groups[1:]): f[(k_ + 1) * BSPR - 1] = f.get((k_ + 1) * BSPR - 1, []) + g
    a(f"""
    s_cmp_lg_u32 s{S_WH}, 0
    s_cbranch_scc1 L_g1B_pre
    s_mov_b32 s{S_XF}, 0
    {"s_setprio 1" if OPT("G1PRIO", "") == "A" else ""}
    s_waitcnt vmcnt(8)
    s_barrier
    """)
    stamp(a, 1)
    a(reads1(0, 0, 0))
    a.raw(".p2align 6")
    a.label("L_g1A")
    a(f"s_cmp_eq_u32 s{S_IT}, 7\ns_cselect_b32 s14, 0, s14")
    for stage in range(2):
        a("s_waitcnt lgkmcnt(0)")
        r = reads1(stage, 1, 1)
        a(weave(mfmas1(0), spread(r, "SA0")))
        if stage == 1: a(f"s_cmp_ge_u32 s{S_IT}, 6\ns_cselect_b32 s10, 0, s10")
        a(f"v_add_u32 v{XA[0]}, s{S_XN}, v{XB[0]}")
        PFX = OPT("PFX", 0)
        a(f"s_waitcnt vmcnt({2 if PFX and stage == 1 else 1}) lgkmcnt(0)\ns_barrier")
        r = reads1(1 - stage, 0, 0)
        RA1 = OPT("RA1", 1)
        f = spread(r, "SA1")
        pre = []
        if stage == 1 :
            a(f"s_cmp_eq_u32 s{S_IT}, 7\ns_cbranch_scc1 L_g1A_last")
        if OPT("ARD", 0): pre += [x for i in sorted(f) for x in f[i]]; f = {}
        pfx = [f"s_cmp_lt_u32 s{S_PFO}, 2048", f"s_cselect_b32 s{T0}, s{S_PFO}, 0x7fff0000", f"buffer_load_dword v{PFD}, v{PFV}, s[8:11], s{T0} offen", f"s_add_u32 s{S_PFO}, s{S_PFO}, 512"]
        place(f, burstW(stage) + burstXA(f"s{S_XF}") + (pfx if PFX and stage == 0 else []), pre)
        f[20] = f.get(20, []) + rot_x()
        a(pre); a(weave(mfmas1(1), f))
    a(f"""
    s_add_u32 s{S_IT}, s{S_IT}, 1
    s_branch L_g1A
    """)
    a.label("L_g1B_pre")
    if OPT("G1PRIO", "") == "B": a("s_setprio 1")
    a(f"s_mov_b32 s{S_XF}, 65536\ns_waitcnt vmcnt(7)\ns_barrier")
    stamp(a, 1)
    a(reads1(0, 0, 0))
    a.raw(".p2align 6")
    a.label("L_g1B")
    a(f"s_cmp_eq_u32 s{S_IT}, 7\ns_cselect_b32 s10, 0, s10")
    pf = [f"buffer_load_dword v{PFD}, v{PFV}, s[12:15], s{S_PFO} offen", f"s_add_u32 s{S_PFO}, s{S_PFO}, {393216 * PFSTEP}"]
    for stage in range(2):
        r = reads1(stage, 1, 1)
        RB, BPOS = OPT("RB", 1), OPT("BPOS", -1)
        f = spread(r, "SB0")
        bx = burstXB(f"s{S_XF}") + (pf if stage == 0 else [])
        if BPOS < 0: a(bx)
        else: f[BPOS] = f.get(BPOS, []) + bx
        a("s_waitcnt lgkmcnt(0)")
        a(weave(mfmas1(0), f))
        a(f"v_add_u32 v{XA[0]}, s{S_XN}, v{XB[0]}")
        a(f"s_waitcnt vmcnt({8 if stage == 0 else 7}) lgkmcnt(0)\ns_barrier")
        if stage == 1:
            a(f"s_cmp_eq_u32 s{S_IT}, 7\ns_cbranch_scc1 L_g1A_last")
        r = reads1(1 - stage, 0, 0)
        RB1 = OPT("RB1", 1)
        f = spread(r, "SB1")
        f[20] = f.get(20, []) + [f"v_add_u32 v{XA[1]}, s{S_XN}, v{XB[1]}", f"s_add_u32 s{S_XF}, s{S_XF}, 32768", f"s_cmp_eq_u32 s{S_XF}, 98304",
                 f"s_cselect_b32 s{S_XF}, 0, s{S_XF}", f"s_add_u32 s{S_XN}, s{S_XN}, 32768",
                 f"s_cmp_eq_u32 s{S_XN}, 98304", f"s_cselect_b32 s{S_XN}, 0, s{S_XN}"]
        a(weave(mfmas1(1), f))
    a(f"""
    s_add_u32 s{S_IT}, s{S_IT}, 1
    s_branch L_g1B
    """)
    VKV, VD = 2, 3
    VT = 4
    S_SO, S_ST1, S_ST2, S_M0, S_KV, S_FL, S_HB, S_GRP, MSK = 43, 44, 45, 46, 47, 49, 50, 51, 56
    a.label("L_g1A_last")
    setup = f"""
    s_mov_b32 s36, s32
    s_mov_b32 s37, s33
    s_mov_b32 s38, {WS_BYTES}
    s_mov_b32 s52, s30
    s_mov_b32 s53, s31
    s_mov_b32 s54, 256
    buffer_load_dwordx2 v[{FDAT}:{FDAT+1}], v{ZERO}, s[52:55], 0 offen sc1
    s_lshl_b32 s{S_T}, s{S_P}, 4
    s_add_u32 s{S_T}, s{S_T}, s{S_A}
    s_lshl_b32 s{S_FL}, s{S_T}, 3
    s_lshl_b32 s{S_T}, s{S_T}, 1
    s_add_u32 s{S_T}, s{S_T}, s{S_WH}
    s_lshl_b32 s{S_HB}, s{S_T}, 18
    s_add_u32 s{S_FL}, s{S_FL}, s{S_W}
    s_lshl_b32 s{S_FL}, s{S_FL}, 7
    s_add_u32 s{S_FL}, s{S_FL}, {FKV}
    s_lshl_b32 s{S_T}, s{S_WR}, 13
    s_add_u32 s{S_T}, s{S_T}, s{S_HB}
    s_add_u32 s8, s32, s{S_T}
    s_addc_u32 s9, s33, 0
    s_mov_b32 s10, 0x40000
    s_lshl_b32 s{S_KV}, s{S_B}, 15
    s_add_u32 s{S_KV}, s{S_KV}, s{S_T}
    s_add_u32 s{S_KV+1}, s{S_KV}, 4096
    s_lshl_b32 s{S_M0}, s{S_W}, 13
    v_lshlrev_b32 v{VD}, 4, v0
    v_add_u32 v{VKV}, s{S_M0}, v{VD}
    s_cmp_eq_u32 s{S_P}, 0
    s_cselect_b32 s12, s20, s26
    s_cselect_b32 s13, s21, s27
    s_lshl_b32 s{S_T}, s{S_B}, 8
    s_add_u32 s12, s12, s{S_T}
    s_addc_u32 s13, s13, 0
    s_sub_u32 s14, 0x200000, s{S_T}
    s_mov_b32 s{S_ST1}, 0
    s_mov_b32 s{MSK}, 0xfff8fff8
    s_mov_b32 s{MSK+1}, s{MSK}
    s_mov_b32 s58, {f2u(CSCALE):#x}
    s_mov_b32 s59, s58
    """.strip().split("\n")
    m = mfmas1(1)
    EARLY = OPT("EARLY", 1)
    if EARLY: m = [m[4*cb + rb] for rb2 in (0, 2) for cb in range(2, 6) for rb in (rb2, rb2 + 1)] + m[:8]
    else: m = m[8:] + m[:8]
    LASTM = m
    def pack2(dst, t0, t1):
        return [f"v_cvt_pk_bf16_f32 v{dst}, v{t0}, v{t0+1}", f"v_cvt_pk_bf16_f32 v{dst+1}, v{t0+2}, v{t0+3}",
                f"v_cvt_pk_bf16_f32 v{dst+2}, v{t1}, v{t1+1}", f"v_cvt_pk_bf16_f32 v{dst+3}, v{t1+2}, v{t1+3}"]
    def swap2(dst):
        return [f"v_permlane16_swap_b32 v{dst}, v{dst+2}", f"v_permlane16_swap_b32 v{dst+1}, v{dst+3}"]
    def swap32(dst):
        return [f"v_permlane32_swap_b32 v{dst}, v{dst+2}", f"v_permlane32_swap_b32 v{dst+1}, v{dst+3}"]
    frs = []
    for b in range(2):
        for t in range(2): frs.append((PKB[b] + 4*t, ACC[2+t][2*b], ACC[2+t][2*b+1], b, t*1024))
        for t in range(2): frs.append((PKB[b] + 8 + 4*t, ACC[4][2*b+t], ACC[5][2*b+t], b, 2048 + t*1024))
    kvstores = [f"buffer_store_dwordx4 {vr(fr[0],4)}, v{VD}, s[36:39], s{S_KV+fr[3]} offen offset:{fr[4]} sc1" for fr in frs]
    NE0 = OPT("NE0", 4)
    packs = []
    prev = None
    for k_, fr in enumerate(frs):
        L = pack2(fr[0], fr[1], fr[2])
        if prev:
            L += swap2(prev[0])
            if DENSE and prev[4] >= 2048: L += ["s_nop 1"] + swap32(prev[0])
            if k_ - 1 < NE0: L.append(kvstores[k_ - 1])
            L.append(f"ds_write_b128 v{VKV}, {vr(prev[0],4)} offset:{prev[3]*4096+prev[4]}")
        packs.append(L)
        prev = fr
    if EARLY:
        f = {i: setup[3*i:3*i+3] for i in range(14)}
        for i in range(4): f[16 + 2*i] = packs[i]
        a(weave(LASTM, f)); stamp(a, 2)
        for L in packs[4:]: a(L)
    else:
        a(weave(LASTM, {i: setup[2*i:2*i+2] for i in range(24)})); stamp(a, 2)
        for L in packs: a(L)
    for i in range(0, 8, 2): a(f"v_pk_mul_f32 v[{96+i}:{97+i}], v[{96+i}:{97+i}], s[58:59]")
    a(swap2(prev[0]))
    if DENSE: a(["s_nop 1"] + swap32(prev[0]))
    a(f"ds_write_b128 v{VKV}, {vr(prev[0],4)} offset:{prev[3]*4096+prev[4]}")
    for i in range(8, 32, 2): a(f"v_pk_mul_f32 v[{96+i}:{97+i}], v[{96+i}:{97+i}], s[58:59]")
    for b in range(2):
        for t in range(2): a(pack2(Q[b] + 4*t, ACC[t][2*b], ACC[t][2*b+1]))
    a(f"""
    s_lshl_b32 s{S_T}, s{S_WH}, 15
    v_add_u32 v{VKV}, s{S_T}, v{VD}
    s_add_u32 s{S_M0}, s{S_M0}, 65536
    """)
    for k_ in range(1, 4):
        a(f"s_add_u32 s{S_T}, s{S_WR}, {k_}\ns_and_b32 s{S_T}, s{S_T}, 3\ns_lshl_b32 s{S_T}, s{S_T}, 13\nv_add_u32 v{VT+1+k_}, s{S_T}, v{VKV}")
    for b in range(2):
        for t in range(2): a(swap2(Q[b] + 4*t))
    def rdK(kt, buf): return [f"ds_read_b128 {vr(KF[buf]+4*t,4)}, v{VKV} offset:{kt*4096+t*1024}" for t in range(2)]
    def rdV(kt, buf): return [f"ds_read_b128 {vr(VF[buf]+4*t,4)}, v{VKV} offset:{kt*4096+2048+t*1024}" for t in range(2)]
    def qk(sbuf, kbuf, qt, c=None):
        return [mf32(S[sbuf], KF[kbuf], Q[qt], NM[qt] if c is None else c), mf32(S[sbuf], KF[kbuf]+4, Q[qt]+4)]
    def pv(sbuf, vbuf, qt, t):
        if DENSE: return mf32(O[qt], VF[vbuf] + 4*t, S[sbuf] + 4*t)
        return f"v_smfmac_f32_32x32x32_bf16 {vr(O[qt],16)}, {vr(VF[vbuf]+4*t,4)}, {vr(S[sbuf]+8*t,8)}, v{IDX}"
    def rs(sbuf, qt, t):
        if DENSE: return None if t == 0 else f"v_smfmac_f32_16x16x64_bf16 {vr(LA[qt],4)}, {vr(ONES,4)}, {vr(S[sbuf],8)}, v{IDX}"
        return f"v_smfmac_f32_16x16x64_bf16 {vr(LA[qt],4)}, {vr(ONES,4)}, {vr(S[sbuf]+8*t,8)}, v{IDX}"
    def max_to_nm(m, qt):
        a(f"v_mov_b32 v{m+1}, v{m}")
        a("s_nop 1")
        a(f"v_permlane32_swap_b32 v{m}, v{m+1}")
        a("s_nop 1")
        a(f"v_max_f32 v{m}, v{m}, v{m+1}")
        a(f"v_sub_f32 v{m}, 0, v{m}")
        a(f"v_mov_b32 v{m+1}, v{m}")
        for i in range(0, 16, 2): a(f"v_mov_b64 v[{NM[qt]+i}:{NM[qt]+i+1}], v[{m}:{m+1}]")
    assert NE0 == 4
    a("s_nop 0")
    a([mf32(S[qt], PKB[0] + 4*t, Q[qt] + 4*t, "0" if t == 0 else None) for qt in range(2) for t in range(2)])
    a(f"s_waitcnt vmcnt(4)\ns_mov_b32 s{S_T}, {SPIN_MAX}")
    a.label("L_nonce")
    a(f"""
    v_readfirstlane_b32 s{NON}, v{FDAT}
    v_readfirstlane_b32 s{NON+1}, v{FDAT+1}
    s_sub_u32 s{S_T}, s{S_T}, 1
    s_cbranch_scc1 L_nonce_done
    s_cmp_eq_u32 s{NON}, 0
    s_cbranch_scc1 L_nonce_retry
    """)
    a.label("L_nonce_done")
    RARE.append(("L_nonce_retry", [f"buffer_load_dwordx2 v[{FDAT}:{FDAT+1}], v{ZERO}, s[52:55], 0 offen sc1", "s_waitcnt vmcnt(0)"], "L_nonce"))
    a("s_nop 3")
    for qt in range(2):
        m_, src = VT + 6*qt, S[qt]
        a(f"v_max3_f32 v{m_}, v{src}, v{src+1}, v{src+2}")
        for i in range(3, 15, 2): a(f"v_max3_f32 v{m_}, v{m_}, v{src+i}, v{src+i+1}")
        a(f"v_max_f32 v{m_}, v{m_}, v{src+15}")
        max_to_nm(m_, qt)
        a("s_nop 1")
        if qt == 0: a([mf32(S[0], PKB[0], Q[0], NM[0]), mf32(S[0], PKB[0] + 4, Q[0] + 4)])
    if OPT("G1PRIO", "") == "A": a("s_setprio 0")
    if os.environ.get("PRIO", "1"): a(f"s_cmp_eq_u32 s{S_WH}, {os.environ.get('PRIO', '1')[0]}\ns_cbranch_scc0 L_noprio\ns_setprio 1"); a.label("L_noprio")
    stamp(a, 3)
    S_SO2 = S_ST2
    def dma2():
        G = []
        for j in range(8):
            g = []
            if j == 0: g.append(f"s_mov_b32 m0, s{S_M0}"); g.append("s_nop 0")
            g.append(f"buffer_load_dwordx4 v{VDE if j%2==0 else VDO}, s[8:11], s{S_SO} offen offset:{(j%4)*1024} sc1 lds")
            if j == 3: g += [f"s_add_u32 m0, s{S_M0}, 4096", f"s_mov_b32 s{S_SO}, s{S_SO2}"]
            elif j < 7: g.append(f"s_add_u32 s{S_SO}, s{S_SO}, s{S_ST1}")
            else: g.append(f"s_xor_b32 s{S_M0}, s{S_M0}, 65536")
            G.append(g)
        return G
    def blk():
        L = []
        for g, dst in ((0, S_SO), (1, S_SO2)):
            L += [f"s_lshl_b32 s{dst}, s{S_IT}, 1"]
            if g: L += [f"s_add_u32 s{dst}, s{dst}, 1"]
            L += [f"s_cmp_ge_u32 s{dst}, 7", f"s_cselect_b32 s{S_T}, 7, 0", f"s_cselect_b32 s{S_GRP}, 4096, 0", f"s_sub_u32 s{dst}, s{dst}, s{S_T}",
                  f"s_cmp_ge_u32 s{dst}, s{S_B}", f"s_addc_u32 s{dst}, s{dst}, 0", f"s_lshl_b32 s{dst}, s{dst}, 15", f"s_add_u32 s{dst}, s{dst}, s{S_GRP}"]
        return L
    def flagst(voff, soff, imm=0):
        return ["s_mov_b64 exec, 1", f"buffer_store_dwordx2 v[{FDAT}:{FDAT+1}], v{voff}, s[36:39], s{soff} offen offset:{imm} sc1", "s_mov_b64 exec, -1"]
    ATX = os.environ.get("ATX", "")
    PAT = [int(c) for c in os.environ.get('PAT', '333232')]
    def qk_r(sbuf, kreg, qt, c=None):
        return [mf32(S[sbuf], kreg, Q[qt], NM[qt] if c is None else c), mf32(S[sbuf], kreg+4, Q[qt]+4)]
    def pv_r(sbuf, vreg, qt, t):
        if DENSE: return mf32(O[qt], vreg + 4*t, S[sbuf] + 4*t)
        return f"v_smfmac_f32_32x32x32_bf16 {vr(O[qt],16)}, {vr(vreg+4*t,4)}, {vr(S[sbuf]+8*t,8)}, v{IDX}"
    FILL = []
    def slot(sb, qa, nxt, prv, vreg, pre, extra=()):
        e = [f"v_exp_f32 v{S[sb]+i}, v{S[sb]+i}" for i in range(16)]
        m = (qk_r((sb+1) % 4, nxt[0], nxt[1]) if nxt else [None, None]) + \
            ([pv_r((sb-1) % 4, prv[0], prv[1], 1), rs((sb-1) % 4, prv[1], 1)] if prv else [None, None]) + [pv_r(sb, vreg, qa, 0), rs(sb, qa, 0)]
        extra = list(extra)
        if DENSE:
            c = [f"v_cvt_pk_bf16_f32 v{S[sb]+i}, v{S[sb]+2*i}, v{S[sb]+2*i+1}" for i in range(8)]
            grp, ie, ic, last = [], 0, 0, ""
            for g_ in os.environ.get("DG", "eee|eceec|eecec|eec|eece|eecc").split("|"):
                cur = []
                for ch in g_:
                    if ch == "e": cur.append(e[ie]); ie += 1
                    else:
                        assert ie >= 2*ic + 2 and not (last == "e" and ie == 2*ic + 2), "cvt too early"
                        cur.append(c[ic]); ic += 1
                    last = ch
                if len(grp) < 4: last = "m"
                grp.append(cur)
                if len(grp) == 4: assert ic >= 4 and (ic > 4 or cur[-1].startswith("v_exp") and cur[-2].startswith("v_exp"))
            assert ie == 16 and ic == 8 and len(grp) == 6
        else:
            grp, k = [], 0
            for i in range(6): grp.append(e[k:k+PAT[i]]); k += PAT[i]
        for i in range(6):
            if pre.get(i): a(pre[i])
            elif m[i]:
                if FILL: a(FILL.pop(0))
                elif "n" not in ATX: a("s_nop 0")
            if m[i]: a(m[i])
            a(grp[i])
            ne = (len(extra) + 5 - i) // (6 - i)
            a(extra[:ne]); extra = extra[ne:]
    def stage(hooks, pres, first, barwait):
        KA = [None, VT+2, VT+3, VT+4]
        for kt in range(8):
            for qa in range(2):
                n = 2*kt + qa
                pre = {i: [] for i in range(6)}
                if n in hooks: hooks[n]()
                kr = lambda t: PKB[t] if first and t < 2 else KF[t % 2]
                vr_ = lambda t: PKB[t] + 8 if first and 0 <= t < 2 else VF[t % 2]
                if qa == 0:
                    if kt == 7:
                        barwait()
                        pre[0] += [f"v_xor_b32 v{VKV}, 0x10000, v{VKV}", "s_nop 0"]
                    elif not (first and kt < 2):
                        pre[0] += ["s_waitcnt lgkmcnt(0)"]
                    if first and kt < 7:
                        if kt >= 1:
                            t_ = kt + 1
                            pre[1] += [x.replace(f"v{VKV} ", f"v{KA[t_//2]} ") for x in rdK(t_ % 2, t_ % 2)]
                            pre[4] += [x.replace(f"v{VKV} ", f"v{KA[t_//2]} ") for x in rdV(t_ % 2, t_ % 2)]
                    else:
                        pre[1] += rdK((kt+1) % 8, (kt+1) % 2)
                        pre[4] += rdV((kt+1) % 8, (kt+1) % 2)
                elif not (first and kt == 0):
                    pre[0] += ["s_waitcnt lgkmcnt(2)"]
                for i, L in pres.get(n, {}).items(): pre[i] += L
                slot(n % 4, qa, (kr(kt + qa) if kt + qa < 8 else KF[0], 1 - qa), None if first and n == 0 else (vr_(kt - 1 + qa), 1 - qa), vr_(kt), pre)
        assert not FILL
    NPUB, NPOLL = OPT("NPUB", 4), OPT("NPOLL", 8)
    ST0 = os.environ.get("ST0", "") == "1"
    def h_pub():
        a("s_waitcnt vmcnt(0)"); a(flagst(FOFF+1, S_FL))
        if ST0: stamp(a, 4)
    def h_poll0():
        poll("L_poll0", S_FL, f"s[{MSK}:{MSK+1}]")
        a(f"s_mov_b32 s{S_IT}, 0\ns_mov_b32 s{MSK}, 0xff00ff00\ns_mov_b32 s{MSK+1}, s{MSK}"); a(blk())
        if ST0: stamp(a, 5)
    def bw0():
        a("s_waitcnt vmcnt(3) lgkmcnt(0)\ns_barrier")
        stamp_stage(a, "0")
        if ST0: stamp(a, 6)
    G = dma2()
    pres = {NPOLL + i: {2: G[3*i], 3: G[3*i+1], 5: G[3*i+2] if 3*i+2 < 8 else []} for i in range(3)}
    for i, n_ in enumerate((11, 12, 13, 15)): pres.setdefault(n_, {})[3] = [kvstores[4 + i]]
    stage({2: lambda: a("s_waitcnt lgkmcnt(0)\ns_barrier"), NPUB: h_pub, NPOLL: h_poll0}, pres, True, bw0)
    a(f"s_mov_b32 s{S_IT}, 1")
    a.raw(".p2align 6")
    a.label("L_at")
    def rare(lab, cond, body):
        if OPT("OOL", 0):
            a(cond); a(f"s_cbranch_scc1 {lab}"); a.label(lab + "_ret"); RARE.append((lab, body, lab + "_ret"))
        else:
            a(cond); a(f"s_cbranch_scc0 {lab}_skip")
            body() if callable(body) else a(body)
            a.label(lab + "_skip")
    it13 = [f"s_andn2_b32 s{S_T}, s{S_IT}, 2", f"s_cmp_eq_u32 s{S_T}, 1"]
    def h_ld():
        rare("L_r_ld", it13, [f"buffer_load_dwordx2 v[{PDAT}:{PDAT+1}], v{FOFF}, s[36:39], s{S_FL} offen sc1"])
        b = blk()
        FILL.extend([b[i:i+2] for i in range(0, len(b), 2)])
    def h_dma():
        def body():
            poll("L_poll2", S_FL, f"s[{MSK}:{MSK+1}]", True)
            a(f"s_mov_b64 s[{MSK}:{MSK+1}], 0")
        rare("L_r_poll", it13, body)
    def h_pfwo():
        rare("L_r_pfwo", [f"s_cmp_eq_u32 s{S_IT}, {OPT('PFWIT', 4)}"], f"""
        s_and_b32 s{S_T}, s{S_A}, 3
        s_lshl_b32 s{S_T}, s{S_T}, 3
        s_add_u32 s{S_T}, s{S_T}, s{S_W}
        s_lshl_b32 s{S_T}, s{S_T}, 16
        v_lshrrev_b32 v{VT}, 1, v0
        v_lshlrev_b32 v{VT}, 11, v{VT}
        v_and_b32 v{VT+1}, 1, v0
        v_lshl_add_u32 v{VT}, v{VT+1}, 7, v{VT}
        buffer_load_dword v{VT+1}, v{VT}, s[12:15], s{S_T} offen
        """)
    def bw1():
        a("s_waitcnt vmcnt(0) lgkmcnt(0)\ns_barrier")
        rare("L_r_pub1", [f"s_cmp_eq_u32 s{S_IT}, 1"], flagst(FOFF+1, S_FL, 64))
        stamp_stage(a, f"s{S_IT}")
    G = dma2()
    pres = {3 + i: {2: G[2*i], 5: G[2*i+1]} for i in range(4)}
    stage({0: h_ld, 15: h_pfwo, 3: h_dma}, pres, False, bw1)
    a(f"""
    s_add_u32 s{S_IT}, s{S_IT}, 1
    s_cmp_lt_u32 s{S_IT}, 7
    s_cbranch_scc1 L_at
    """)
    S_OO, S_FO, S_BAD = 47, 49, 60
    VOA = VT + 6
    setup7 = f"""
    s_mov_b32 s8, s12
    s_mov_b32 s9, s13
    s_mov_b32 s10, s14
    s_lshl_b32 s{S_SO}, s{S_W}, 16
    s_add_u32 s{S_SO2}, s{S_SO}, 32768
    s_mov_b32 s{S_ST1}, 7168
    v_lshrrev_b32 v{VDE}, 4, v0
    v_lshlrev_b32 v{VDO}, 1, v{VDE}
    v_and_b32 v{VT}, 15, v0
    v_xor_b32 v{VDO}, v{VDO}, v{VT}
    v_lshlrev_b32 v{VDE}, 11, v{VDE}
    v_lshl_add_u32 v{VDE}, v{VDO}, 4, v{VDE}
    v_xor_b32 v{VDO}, 128, v{VDE}
    s_lshl_b32 s{S_T}, s{S_P}, 3
    s_add_u32 s{S_T}, s{S_T}, s{S_B}
    s_lshl_b32 s{S_T}, s{S_T}, 2
    s_add_u32 s{S_T}, s{S_T}, s{S_WR}
    s_lshl_b32 s{S_FO}, s{S_T}, 8
    s_lshl_b32 s{S_OO}, s{S_T}, 17
    s_bfe_u32 s{S_T}, s{S_HB}, 0x50012
    s_lshl_b32 s{S_GRP}, s{S_T}, 3
    s_add_u32 s{S_FO}, s{S_FO}, s{S_GRP}
    s_add_u32 s{S_FO}, s{S_FO}, {FO}
    s_lshl_b32 s{S_T}, s{S_T}, 11
    s_add_u32 s{S_OO}, s{S_OO}, s{S_T}
    s_add_u32 s{S_OO}, s{S_OO}, {OWS}
    s_add_u32 s{S_OO+1}, s{S_OO}, 65536
    v_and_b32 v{VOA}, 15, v0
    v_lshlrev_b32 v{VOA}, 4, v{VOA}
    v_lshrrev_b32 v{VOA+1}, 5, v0
    v_lshl_add_u32 v{VOA}, v{VOA+1}, 8, v{VOA}
    v_bfe_u32 v{VOA+1}, v0, 4, 1
    v_lshl_add_u32 v{VOA}, v{VOA+1}, 10, v{VOA}
    """.strip().split("\n")
    OPK = [PK, PK + 8]
    def check(qt):
        t = VT + 2*qt
        o = O[qt]
        return (([f"v_add_f32 v{LA[qt]}, v{LA[qt]}, v{LA[qt]+1}"] if DENSE else []) + [f"v_pk_mul_f32 v[{t}:{t+1}], v[{o}:{o+1}], 0"] +
                [f"v_pk_fma_f32 v[{t}:{t+1}], v[{o+i}:{o+i+1}], 0, v[{t}:{t+1}]" for i in range(2, 16, 2)] +
                [f"v_add_f32 v{t}, v{t}, v{t+1}", f"v_add_f32 v{t}, v{t}, v{LA[qt]}", f"v_cmp_gt_f32 s[{S_BAD+2*qt}:{S_BAD+2*qt+1}], s58, v{t}"])
    def finish(qt):
        t = VT + 2*qt
        o = O[qt]
        return ([f"v_rcp_f32 v{t}, v{LA[qt]}", "s_nop 0"] +
                [f"v_pk_mul_f32 v[{o+i}:{o+i+1}], v[{o+i}:{o+i+1}], v[{t}:{t+1}] op_sel_hi:[1,0]" for i in range(0, 16, 2)] +
                [f"v_cvt_pk_bf16_f32 v{OPK[qt]+i}, v{o+2*i}, v{o+2*i+1}" for i in range(8)] +
                [f"buffer_store_dwordx4 {vr(OPK[qt]+4*t_,4)}, v{VOA}, s[36:39], s{S_OO+qt} offen offset:{t_*512} sc1" for t_ in range(2)])
    OA, OB = 244, 245
    WA3 = [[248, 249, 250, 251], [252, 253, 254, 255]]
    FO_ = [[16 + 16*buf + 4*i for i in range(4)] for buf in range(2)]
    FW3 = [[48 + 16*buf + 4*nb for nb in range(4)] for buf in range(2)]
    AC3 = [[80 + 16*i + 4*nb for nb in range(4)] for i in range(4)]
    RX = 144
    T3 = 176
    S_INC, S_M3, S_ME, S_MS, S_R3, S_C3, S_F3, S_O3 = 52, 53, 54, 55, 56, 57, 100, 59
    setup3 = f"""
    s_bfe_u32 s{S_R3}, s{S_W}, 0x10001
    s_and_b32 s{S_C3}, s{S_W}, 1
    s_lshl_b32 s{S_T}, s{S_P}, 4
    s_add_u32 s{S_T}, s{S_T}, s{S_A}
    s_lshl_b32 s{S_T}, s{S_T}, 2
    s_add_u32 s{S_T}, s{S_T}, s{S_WR}
    s_lshr_b32 s{S_F3}, s{S_T}, 1
    s_lshl_b32 s{S_F3}, s{S_F3}, 8
    s_add_u32 s{S_F3}, s{S_F3}, {FO}
    s_lshl_b32 s{S_T}, s{S_T}, 16
    s_add_u32 s{S_T}, s{S_T}, {OWS}
    s_add_u32 s60, s32, s{S_T}
    s_addc_u32 s61, s33, 0
    s_lshl_b32 s{S_M3}, s{S_WR}, 12
    s_lshl_b32 s{S_O3}, s{S_WR}, 15
    s_add_u32 s{S_O3}, s{S_O3}, {6*131072}
    s_cmp_eq_u32 s{S_WH}, 0
    s_cselect_b64 vcc, -1, 0
    s_cselect_b32 s8, s60, s12
    s_cselect_b32 s9, s61, s13
    s_cselect_b32 s10, 0x10000, s14
    s_cselect_b32 s{S_O3}, 0, s{S_O3}
    s_cselect_b32 s{S_ST1}, 0, 7168
    s_cselect_b32 s{S_INC}, 12, 17
    s_lshl_b32 s{S_INC}, 1, s{S_INC}
    v_lshlrev_b32 v{T3+1}, 4, v0
    v_cndmask_b32 v{VDE}, v{VDE}, v{T3+1}, vcc
    v_cndmask_b32 v{VDO}, v{VDO}, v{T3+1}, vcc
    s_lshl_b32 s{S_T}, s{S_R3}, 1
    s_add_u32 s{S_T}, s{S_T}, s{S_WH}
    s_lshl_b32 s{S_T}, s{S_T}, 1
    s_add_u32 s{S_T}, s{S_T}, s{S_WH}
    s_lshl_b32 s{S_T}, s{S_T}, 11
    s_add_u32 s{S_T}, s{S_T}, 65536
    v_add_u32 v{OA}, s{S_T}, v{T3+1}
    v_xor_b32 v{OB}, 4096, v{OA}
    v_bfe_u32 v{T3}, v0, 2, 3
    v_lshrrev_b32 v{T3+1}, 5, v0
    v_lshl_add_u32 v{T3+1}, v{T3+1}, 4, v{T3}
    s_lshl_b32 s{S_T}, s{S_WH}, 5
    v_add_u32 v{T3+1}, s{S_T}, v{T3+1}
    v_lshlrev_b32 v{T3+1}, 8, v{T3+1}
    v_bfe_u32 v{T3+2}, v0, 1, 1
    s_lshl_b32 s{S_T}, s{S_C3}, 3
    v_add_u32 v{T3+2}, s{S_T}, v{T3+2}
    v_lshlrev_b32 v{T3}, 1, v{T3}
    v_xor_b32 v{T3+2}, v{T3+2}, v{T3}
    v_lshl_add_u32 v{T3+1}, v{T3+2}, 4, v{T3+1}
    v_and_b32 v{T3+2}, 1, v0
    v_lshl_add_u32 v{WA3[0][0]}, v{T3+2}, 3, v{T3+1}
    v_and_b32 v{FOFF}, 31, v0
    v_lshlrev_b32 v{FOFF}, 3, v{FOFF}
    """.replace(f"v{T3+2}", f"v{VT+5}").replace(f"v{T3+1}", f"v{VT+4}").replace(f"v{T3}", f"v{VT+3}").strip().split("\n")
    setup3 += [f"v_xor_b32 v{WA3[0][nb]}, {32*nb}, v{WA3[0][0]}" for nb in range(1, 4)]
    setup3 += [f"v_add_u32 v{WA3[1][nb]}, 0x20000, v{WA3[0][nb]}" for nb in range(4)]
    NS3 = next(i for i, x in enumerate(setup3) if 'v_bfe_u32' in x)
    seq = [(0, 0), (0, 1)] + [(k_, 0) for k_ in range(1, 8)] + [(k_, 1) for k_ in range(1, 8)]
    KB, VB = [0], [0]
    for m_ in range(1, 16):
        flip = seq[m_][0] != seq[m_-1][0]
        KB.append(KB[-1] ^ flip); VB.append(VB[-1] ^ flip)
    G = dma2()
    for m_ in range(16):
        stamp_stage(a, "7") if m_ == 14 else None
        pre = {i: [] for i in range(6)}
        pre[0] += ["s_waitcnt lgkmcnt(0)"]
        if m_ + 2 < 16 and seq[m_+2][0] != seq[m_+1][0]: pre[1] += rdK(seq[m_+2][0], KB[m_+2])
        if m_ + 1 < 16 and seq[m_+1][0] != seq[m_][0]: pre[4] += rdV(seq[m_+1][0], VB[m_+1])
        extra = []
        if m_ == 0: extra = setup7[:13] + ["s_mov_b32 s58, 0x5f800000"]
        if m_ == 1: extra = setup7[13:]
        if 2 <= m_ <= 5: pre[2] += G[2*(m_-2)]; pre[5] += G[2*(m_-2)+1]
        if m_ == 6:
            pre[2] += [f"s_lshl_b32 s{S_T}, s{S_W}, 12", f"s_add_u32 m0, s{S_T}, 131072", f"s_lshl_b32 s{S_SO}, s{S_W}, 15", f"s_add_u32 s{S_SO}, s{S_SO}, {4*131072}"]
        if m_ in (6, 7):
            for i_, j_ in ((3, 2*(m_-6)), (5, 2*(m_-6)+1)):
                pre[i_] += [f"buffer_load_dwordx4 v{VDE if j_%2==0 else VDO}, s[8:11], s{S_SO} offen offset:{j_*1024} lds", f"s_add_u32 s{S_SO}, s{S_SO}, s{S_ST1}"]
        if m_ == 8: extra = setup3[:NS3 // 2]
        if m_ == 9: extra = setup3[NS3 // 2:NS3]
        if m_ == 12: extra = setup3[NS3:]
        if m_ == 10: extra = check(0)
        if m_ == 11: extra = finish(0)
        slot(m_ % 4, seq[m_][1], (KF[KB[m_+1]], seq[m_+1][1]) if m_ < 15 else None,
             (VF[VB[m_-1]], seq[m_-1][1]) if m_ else (VF[1], 1), VF[VB[m_]], pre, extra)
    a("s_nop 1")
    a(pv(3, VB[15], 1, 1)); a(rs(3, 1, 1))
    if not ST0: stamp(a, 4)
    if ST3: stamp(a, 1, True)
    a("s_nop 7\ns_nop 3")
    a(check(1))
    a(f"""
    s_and_b64 vcc, s[{S_BAD}:{S_BAD+1}], s[{S_BAD+2}:{S_BAD+3}]
    s_cmp_eq_u64 vcc, exec
    s_cbranch_scc0 L_fallback
    """)
    a.label("L_fin")
    a(finish(1))
    def wslot(i): return i*16384 if i < 4 else 131072 + (i-4)*16384
    def dma3(mo, mw):
        G = []
        for j in range(4):
            g = []
            if j == 0:
                if mw is None: g += [f"s_add_u32 m0, s{S_M3}, {mo}"]
                else: g += [f"s_cmp_eq_u32 s{S_WH}, 0", f"s_mov_b32 s{S_T}, {mw}", f"s_cmov_b32 s{S_T}, {mo}", f"s_add_u32 m0, s{S_M3}, s{S_T}"]
                g += [f"s_mov_b32 s{S_SO}, s{S_O3}"]
            g.append(f"buffer_load_dwordx4 v{VDE if j%2==0 else VDO}, s[8:11], s{S_SO} offen offset:{j*1024} sc1 lds")
            g.append(f"s_add_u32 s{S_SO}, s{S_SO}, s{S_ST1}" if j < 3 else f"s_add_u32 s{S_O3}, s{S_O3}, s{S_INC}")
            G.append(g)
        return G
    a("s_barrier")
    if ST3: stamp(a, 2, True)
    a("s_waitcnt vmcnt(0)")
    if ST3: stamp(a, 3, True)
    a(flagst(ZERO, S_FO))
    a(f"s_cmp_lg_u32 s{S_WH}, 0\ns_cbranch_scc1 L_p3go")
    if OPT("POLL2", 0):
        P2 = T3 + 4
        ld = lambda r: f"buffer_load_dwordx2 v[{r}:{r+1}], v{FOFF}, s[36:39], s{S_F3} offen sc1"
        a(f"s_mov_b32 s{S_T}, {SPIN_MAX}")
        a(ld(PDAT)); a(f"s_sleep {OPT('PSL2', 3)}")
        a.label("L_pollo")
        for r0, r1 in ((PDAT, P2), (P2, PDAT)):
            a(ld(r1))
            a(f"""
            s_waitcnt vmcnt(1)
            v_cmp_eq_u64 vcc, s[{NON}:{NON+1}], v[{r0}:{r0+1}]
            s_cmp_eq_u64 vcc, exec
            s_cbranch_scc1 L_pollo_done
            """)
        a(f"s_sub_u32 s{S_T}, s{S_T}, 1\ns_cbranch_scc0 L_pollo")
        a.label("L_pollo_done")
    else:
        poll("L_pollo", S_F3)
    if ST3: stamp(a, 4, True)
    PFO_ = OPT("PFO", 0)
    for st in range(4):
        if PFO_ and st == PFO_ - 1:
            a(f"s_lshl_b32 s{S_T}, s{S_B}, 13\nv_lshlrev_b32 v{PDAT}, 7, v0\nbuffer_load_dword v{PDAT+1}, v{PDAT}, s[8:11], s{S_T} offen sc1")
        for g in dma3(65536 + st*16384, None): a(g)
    a(f"s_waitcnt vmcnt({13 if PFO_ > 1 else 12})")
    a.label("L_p3go")
    if ST3: a(f"s_cmp_eq_u32 s{S_WH}, 0\ns_cbranch_scc1 L_st3x"); stamp(a, 4, True); a.label("L_st3x")
    a("s_barrier")
    if OPT("G3PRIO", "") == "0": a("s_setprio 0")
    if not ST0: stamp(a, 5)
    def reads3(s, buf):
        ws_, os_ = s % 6, s % 4
        O_ = [f"ds_read_b128 {vr(FO_[buf][i],4)}, v{OA if i < 2 else OB} offset:{os_*16384 + (i%2)*1024}" for i in range(4)]
        W_ = [f"ds_read_b64_tr_b16 {vr(FW3[buf][nb]+2*u,2)}, v{WA3[ws_//4][nb]} offset:{(ws_%4)*16384 + u*2048}" for nb in range(4) for u in range(2)]
        return W_[0:2] + O_ + W_[2:]
    def mfmas3(buf, first=False):
        L = [mf16(AC3[i][nb], FW3[buf][nb], FO_[buf][i]) for nb in range(4) for i in range(4)]
        return [x[:x.rindex(",")] + ", 0" for x in L] if first else L
    a(reads3(0, 0))
    fin_setup = f"""
    s_lshl_b32 s{S_T}, s{S_WH}, 3
    s_add_u32 s{S_T}, s{S_T}, s{S_WR}
    s_lshl_b32 s{S_T}, s{S_T}, 13
    v_lshlrev_b32 v{T3}, 4, v0
    v_add_u32 v{T3}, s{S_T}, v{T3}
    v_xor_b32 v{T3+1}, 0x10000, v{T3}
    s_mov_b32 s12, s28
    s_mov_b32 s13, s29
    s_mov_b32 s14, 0x800000
    s_lshl_b32 s{S_T}, s{S_A}, 2
    s_lshl_b32 s{S_SO}, s{S_R3}, 1
    s_add_u32 s{S_T}, s{S_T}, s{S_SO}
    s_add_u32 s{S_T}, s{S_T}, s{S_WH}
    s_lshl_b32 s{S_T}, s{S_T}, 17
    s_lshl_b32 s{S_SO}, s{S_P}, 11
    s_add_u32 s{S_T}, s{S_T}, s{S_SO}
    s_lshl_b32 s{S_SO}, s{S_B}, 8
    s_add_u32 s{S_T}, s{S_T}, s{S_SO}
    s_lshl_b32 s{S_SO}, s{S_C3}, 7
    s_add_u32 s{S_SO}, s{S_T}, s{S_SO}
    s_add_u32 s{S_SO+1}, s{S_SO}, 65536
    v_and_b32 v{T3+2}, 15, v0
    v_lshlrev_b32 v{T3+2}, 12, v{T3+2}
    v_bfe_u32 v{T3+3}, v0, 4, 1
    v_lshl_add_u32 v{T3+2}, v{T3+3}, 5, v{T3+2}
    v_lshrrev_b32 v{T3+3}, 5, v0
    v_lshl_add_u32 v{T3+2}, v{T3+3}, 4, v{T3+2}
    """.strip().split("\n")
    for s in range(16):
        if s < 15:
            a(f"s_waitcnt vmcnt({8 if s <= 12 else 4 if s == 13 else 0}) lgkmcnt(0)\ns_barrier")
            r = reads3(s + 1, 1 - s % 2)
            f = {}
            for k_, x in enumerate(r): f.setdefault(min(15, int(k_ * OPT("S3", 1.0))), []).append(x)
            if s <= 11:
                d = dma3(65536 + (s % 4)*16384, wslot(s % 6))
                for k_, i in enumerate([int(x) for x in os.environ.get("D3POS", "0,4,8,12").split(",")]): f[i] = f.get(i, []) + d[k_]
            if s == 14:
                for i in range(14): f[i] = f.get(i, []) + fin_setup[2*i:2*i+2]
            a(weave(mfmas3(s % 2, s == 0), f))
        else:
            a("s_waitcnt lgkmcnt(0)")
            m = mfmas3(1)
            order = [k_ for k_ in range(16) if k_ % 4 >= 2] + [k_ for k_ in range(16) if k_ % 4 < 2]
            mm = [m[k_] for k_ in order]
            a(mm[:8])
            wr_ = {2*(j % 4) + j//4: f"ds_write_b128 v{T3}, {vr(AC3[2][0]+4*j,4)} offset:{j*1024}" for j in range(8)}
            for k_ in range(8): a(mm[8 + k_]); a(wr_[k_])
    if not ST0: stamp(a, 6)
    a("s_waitcnt lgkmcnt(0)\ns_barrier")
    for j in range(8): a(f"ds_read_b128 {vr(RX+4*j,4)}, v{T3+1} offset:{j*1024}")
    prev = None
    for j in range(5):
        if j < 4:
            qb, np_ = j // 2, j % 2
            t0 = AC3[qb][2*np_]
            a(f"s_waitcnt lgkmcnt({6 - 2*j})")
            for i in range(0, 8, 2): a(f"v_pk_add_f32 v[{t0+i}:{t0+i+1}], v[{t0+i}:{t0+i+1}], v[{RX+8*j+i}:{RX+8*j+i+1}]")
            cur = (16 + 4*j, qb, np_)
            a(pack2(cur[0], t0, t0 + 4))
        else:
            cur = None; a("s_nop 1")
        if prev:
            a(swap2(prev[0]))
            a(f"buffer_store_dwordx4 {vr(prev[0],4)}, v{T3+2}, s[12:15], s{S_SO+prev[1]} offen offset:{prev[2]*64} {os.environ.get('OUTPOL', 'sc0 sc1')}")
        prev = cur
    stamp_flush(a, 7, 1)
    a.label("L_end")
    a("s_endpgm")
    for lab, body, ret in RARE:
        a.label(lab)
        body() if callable(body) else a(body)
        a(f"s_branch {ret}")
    MX = [VT, VT+2]
    a.label("L_fallback")
    a(f"""
    v_mov_b32 v{MX[0]}, 0xff800000
    v_mov_b32 v{MX[1]}, 0xff800000
    s_mov_b32 s{S_IT}, 0
    s_waitcnt vmcnt(0) lgkmcnt(0)
    """)
    a.label("L_fb_max")
    a(f"s_add_u32 s{S_T}, s{S_IT}, s{S_HB}")
    for t in range(2): a(f"buffer_load_dwordx4 {vr(KF[0]+4*t,4)}, v{VD}, s[36:39], s{S_T} offen offset:{t*1024} sc1")
    a("s_waitcnt vmcnt(0)")
    a(qk(0, 0, 0, "0")); a(qk(1, 0, 1, "0"))
    a("s_nop 15")
    for qt in range(2):
        for i in range(0, 16, 2): a(f"v_max3_f32 v{MX[qt]}, v{MX[qt]}, v{S[qt]+i}, v{S[qt]+i+1}")
    a(f"""
    s_add_u32 s{S_IT}, s{S_IT}, 4096
    s_cmp_lt_u32 s{S_IT}, 0x40000
    s_cbranch_scc1 L_fb_max
    """)
    max_to_nm(MX[0], 0); max_to_nm(MX[1], 1)
    for i in range(O[0], LA[1] + 4, 2): a(f"v_mov_b64 v[{i}:{i+1}], 0")
    a(f"s_mov_b32 s{S_IT}, 0")
    a.label("L_fb_main")
    a(f"s_add_u32 s{S_T}, s{S_IT}, s{S_HB}")
    for t in range(2): a(f"buffer_load_dwordx4 {vr(KF[0]+4*t,4)}, v{VD}, s[36:39], s{S_T} offen offset:{t*1024} sc1")
    for t in range(2): a(f"buffer_load_dwordx4 {vr(VF[0]+4*t,4)}, v{VD}, s[36:39], s{S_T} offen offset:{2048+t*1024} sc1")
    a("s_waitcnt vmcnt(0)")
    a(qk(0, 0, 0)); a(qk(1, 0, 1))
    a("s_nop 15")
    for qt in range(2):
        for i in range(16): a(f"v_exp_f32 v{S[qt]+i}, v{S[qt]+i}")
    a("s_nop 1")
    if DENSE:
        for qt in range(2):
            for i in range(8): a(f"v_cvt_pk_bf16_f32 v{S[qt]+i}, v{S[qt]+2*i}, v{S[qt]+2*i+1}")
        a("s_nop 1")
    for qt in range(2):
        for t in range(2):
            a(pv(qt, 0, qt, t))
            if rs(qt, qt, t): a(rs(qt, qt, t))
    a(f"""
    s_add_u32 s{S_IT}, s{S_IT}, 4096
    s_cmp_lt_u32 s{S_IT}, 0x40000
    s_cbranch_scc1 L_fb_main
    s_nop 15
    """)
    if DENSE: a([f"v_add_f32 v{LA[qt]}, v{LA[qt]}, v{LA[qt]+1}" for qt in range(2)])
    a(finish(0))
    a("s_branch L_fin")
    return f""".p2align 6
.amdhsa_kernel {name}
  .amdhsa_next_free_vgpr {NV}
  .amdhsa_next_free_sgpr 102
  .amdhsa_accum_offset {NV}
  .amdhsa_group_segment_fixed_size 0
  .amdhsa_kernarg_size 72
  .amdhsa_user_sgpr_count 2
  .amdhsa_user_sgpr_kernarg_segment_ptr 1
  .amdhsa_system_sgpr_workgroup_id_x 1
.end_amdhsa_kernel"""

def main():
    out = sys.argv[1] if len(sys.argv) > 1 else f"cdna_kernels/{NAME}.s"
    a = Asm()
    k = gen(a)
    hdr = open(f"cdna_kernels/{NAME}.s.ref").read().split("\n")
    hdr = [l for l in hdr if l.startswith(";") and "@launch" not in l]
    hdr.append(f"; @launch grid=(256,1,1) block=(512,1,1) lds={LDS_BYTES}")
    txt = "\n".join(hdr) + '\n.amdgcn_target "amdgcn-amd-amdhsa--gfx950"\n.text\n' + a.text() + '\n.section .rodata,"a"\n' + k + "\n"
    open(out, "w").write(txt)

if __name__ == "__main__":
    main()
```

```python
import sys, math, os, struct
from gen2 import Asm, vr, f2u, mf32, mf16, weave, NAME

STAMP = os.environ.get("STAMP", "0") == "1"
def OPT(k, d): return type(d)(os.environ.get(k, d))

KVWS = 0
OWS = 16 << 20
FKV = 24 << 20
FO = FKV + 65536
WS_BYTES = 25 << 20
STAMP_BASE = 64 << 20
CSCALE = math.log2(math.e) / math.sqrt(32.0)
LDS_BYTES = 163840
SPIN_MAX = 1 << 16

S_W, S_P, S_A, S_B, S_T = 3, 4, 5, 6, 7
S_WR, S_WH, S_IT = 40, 41, 42
NON = 34

ST3 = os.environ.get("ST3", "") == "1"
STG = os.environ.get("STG", "") == "1"
STG1 = os.environ.get("STG1", "") == "1"
def stamp_stage(a, lane, g1=False):
    if STG and g1 == STG1:
        a(f"s_memtime s[96:97]\ns_memrealtime s[98:99]\ns_lshl_b64 exec, 1, {lane}\ns_waitcnt lgkmcnt(0)\nv_mov_b32 v14, s96\nv_mov_b32 v15, s98\ns_mov_b64 exec, -1")
def stamp(a, i, alt=False):
    if ST3 and i in (1, 2, 3, 4) and not alt: return
    if STAMP and not STG:
        a(f"s_memtime s[{64+4*i}:{65+4*i}]")
        a(f"s_memrealtime s[{66+4*i}:{67+4*i}]")
        a("s_waitcnt lgkmcnt(0)")
def stamp_flush(a, n, vt):
    if not STAMP: return
    a("s_waitcnt vmcnt(0) lgkmcnt(0)")
    stamp(a, n)
    a(f"""
    s_add_u32 s56, s32, {STAMP_BASE}
    s_addc_u32 s57, s33, 0
    s_mov_b32 s58, 0x100000
    s_mov_b32 s59, 0x20000
    s_lshl_b32 s60, s2, 3
    s_add_u32 s60, s60, s{S_W}
    s_lshl_b32 s60, s60, 6
    v_mov_b32 v{vt}, 0
    """)
    if STG:
        a(f"v_lshlrev_b32 v{vt}, 3, v0\ns_mov_b64 exec, 0xff\nbuffer_store_dwordx2 v[14:15], v{vt}, s[56:59], s60 offen")
        return
    for i in range(n + 1):
        a(f"v_mov_b32 v{vt+1}, s{64+4*i}")
        a(f"v_mov_b32 v{vt+2}, s{66+4*i}")
        a(f"buffer_store_dwordx2 v[{vt+1}:{vt+2}], v{vt}, s[56:59], s60 offen offset:{8*i}")
        a("s_nop 1")

DENSE = "d" in os.environ.get("ATX", "")
def gen(a):
    name = NAME + "_kernel"
    a.raw(f".globl {name}\n.p2align 8\n.type {name},@function\n{name}:")
    stamp(a, 0)
    RARE = []
    def emit(L):
        for x in L:
            a(x)
            if " m0," in x: a("s_nop 0")
    PKB = [48, 32]; Q = [16, 24]; PK = 32; KF = [64, 72]; VF = [80, 88]; NM = [96, 112]; S = [128, 144, 160, 176]
    O = [192, 208]; LA = [224, 228]; ONES = 232; IDX = 236; ZERO = 237
    FDAT, FOFF, PDAT = 238, 240, 242
    XB = [244, 245]; VDE, VDO = 246, 247
    NV = 256
    def poll(lab, soff, mask=None, first_loaded=False):
        ld = f"buffer_load_dwordx2 v[{PDAT}:{PDAT+1}], v{FOFF}, s[36:39], s{soff} offen sc1"
        a(f"s_mov_b32 s{S_T}, {SPIN_MAX}")
        if not first_loaded: a(ld)
        a.label(lab)
        a(f"""
        s_waitcnt vmcnt(0)
        v_cmp_eq_u64 vcc, s[{NON}:{NON+1}], v[{PDAT}:{PDAT+1}]
        """)
        if mask: a(f"s_or_b64 vcc, vcc, {mask}")
        a(f"""
        s_cmp_eq_u64 vcc, exec
        s_cbranch_scc1 {lab}_done
        s_sub_u32 s{S_T}, s{S_T}, 1
        s_cbranch_scc1 {lab}_done
        s_sleep {OPT("PSLEEP", 8)}
        {ld}
        s_branch {lab}
        """)
        a.label(lab + "_done")
    XA = [2, 3]; WA = [4, 5]; D0, D1, D2, PFV, PFD = 6, 7, 8, 9, 10
    VT = 11
    FX = [[16 + 16*buf + 4*rb for rb in range(4)] for buf in range(2)]
    FW = [[48 + 24*buf + 4*cb for cb in range(6)] for buf in range(2)]
    ACC = [[96 + 16*cb + 4*rb for rb in range(4)] for cb in range(6)]
    S_KX, S_KW, T0, S_M0X, S_M0W, S_XF, S_XN, S_PFO, S_PFI = 43, 44, 45, 47, 48, 49, 50, 56, 57
    W0, W1 = 98304, 122880
    NTW, NTX, NTP = os.environ.get("NTW", ""), os.environ.get("NTX", ""), os.environ.get("NTP", "")
    PF0, PFSTEP = OPT("PF0", 3), OPT("PFSTEP", 4)
    a(f"""
    s_cmp_ge_u32 s2, 256
    s_cbranch_scc1 L_end
    s_load_dwordx16 s[16:31], s[0:1], 0
    s_load_dwordx2 s[32:33], s[0:1], 64
    s_memrealtime s[{NON}:{NON+1}]
    v_lshrrev_b32 v1, 6, v0
    v_and_b32 v0, 63, v0
    v_readfirstlane_b32 s{S_W}, v1
    s_and_b32 s{S_T}, s2, 7
    s_lshr_b32 s{S_B}, s2, 3
    s_lshr_b32 s{S_P}, s{S_T}, 2
    s_and_b32 s{S_A}, s{S_T}, 3
    s_lshl_b32 s{S_A}, s{S_A}, 2
    s_and_b32 s{S_T}, s{S_B}, 3
    s_or_b32 s{S_A}, s{S_A}, s{S_T}
    s_lshr_b32 s{S_B}, s{S_B}, 2
    s_and_b32 s{S_WR}, s{S_W}, 3
    s_lshr_b32 s{S_WH}, s{S_W}, 2
    s_mul_i32 s{S_M0X}, s{S_WR}, 7
    s_add_u32 s{S_T}, s{S_WR}, 28
    s_cmp_eq_u32 s{S_WH}, 0
    s_cselect_b32 s{S_M0X}, s{S_T}, s{S_M0X}
    v_lshrrev_b32 v{VT}, 3, v0
    s_lshl_b32 s{S_T}, s{S_M0X}, 3
    v_add_u32 v{VT+4}, s{S_T}, v{VT}
    v_lshlrev_b32 v{VT+4}, 11, v{VT+4}
    v_and_b32 v{VT+1}, 7, v0
    v_lshrrev_b32 v{VT+2}, 4, v0
    v_xor_b32 v{VT+3}, v{VT+1}, v{VT+2}
    s_and_b32 s{S_T}, s{S_WR}, 1
    s_lshl_b32 s{S_T}, s{S_T}, 2
    v_xor_b32 v{VT+3}, s{S_T}, v{VT+3}
    v_lshl_add_u32 v{D2}, v{VT+3}, 4, v{VT+4}
    s_lshl_b32 s{S_M0X}, s{S_M0X}, 10
    s_lshl_b32 s{S_T}, s{S_WR}, 4
    v_add_u32 v{VT}, s{S_T}, v{VT}
    v_mul_u32_u24 v{VT}, 6144, v{VT}
    v_and_b32 v{VT+2}, 1, v{VT+2}
    v_lshlrev_b32 v{VT+2}, 2, v{VT+2}
    v_xor_b32 v{VT+3}, v{VT+1}, v{VT+2}
    v_lshl_add_u32 v{D0}, v{VT+3}, 4, v{VT}
    v_xor_b32 v{D1}, 32, v{D0}
    v_add_u32 v{D1}, 49152, v{D1}
    s_mul_i32 s{S_M0W}, s{S_WR}, 6144
    s_add_u32 s{S_M0W}, s{S_M0W}, {W0}
    s_mov_b32 s{S_KX}, 0
    s_mov_b32 s{S_KW}, 0
    s_mov_b32 s11, 0x20000
    s_mov_b32 s15, 0x20000
    s_mov_b32 s39, 0x20000
    s_mov_b32 s55, 0x20000
    v_mov_b32 v{ZERO}, 0
    s_waitcnt lgkmcnt(0)
    s_cmp_eq_u32 s{S_P}, 0
    s_cselect_b32 s8, s16, s22
    s_cselect_b32 s9, s17, s23
    s_cselect_b32 s12, s18, s24
    s_cselect_b32 s13, s19, s25
    s_lshl_b32 s{S_T}, s{S_B}, 19
    s_add_u32 s8, s8, s{S_T}
    s_addc_u32 s9, s9, 0
    s_sub_u32 s10, 0x400000, s{S_T}
    s_lshl_b32 s{S_T}, s{S_A}, 7
    s_add_u32 s12, s12, s{S_T}
    s_addc_u32 s13, s13, 0
    s_sub_u32 s14, 0x600000, s{S_T}
    s_cmp_lg_u32 s{S_WH}, 0
    s_cbranch_scc1 L_proB
    """)
    def burstW(stage):
        L = []
        for g in range(2):
            L.append(f"s_add_u32 m0, s{S_M0W}, {stage*(W1-W0) + g*3072}")
            for s_ in range(3):
                if s_: L.append(f"s_add_u32 s{T0+s_%2}, s{S_KW}, {s_*1024}")
                else: L.append("s_nop 0")
                L.append(f"buffer_load_dwordx4 v{D0+g}, s[12:15], s{T0+s_%2 if s_ else S_KW} offen offset:{s_*1024} {NTW} lds")
        L.append(f"s_add_u32 s{S_KW}, s{S_KW}, 393216")
        return L
    def burstXA(slot):
        return [f"s_add_u32 m0, s{S_M0X}, {slot}", "s_nop 0", f"buffer_load_dwordx4 v{D2}, s[8:11], s{S_KX} offen {NTX} lds", f"s_add_u32 s{S_KX}, s{S_KX}, 128"]
    def burstXB(slot):
        L = [f"s_add_u32 m0, s{S_M0X}, {slot}"]
        for j in range(7):
            if j == 4: L.append("s_add_u32 m0, m0, 4096")
            L.append(f"s_add_u32 s{T0+j%2}, s{S_KX}, {j*16384 - (j%4)*1024}")
            L.append(f"buffer_load_dwordx4 v{D2 if j%2==0 else D1}, s[8:11], s{T0+j%2} offen offset:{(j%4)*1024} {NTX} lds")
        L.append(f"s_add_u32 s{S_KX}, s{S_KX}, 128")
        return L
    a(burstW(0) + burstXA(0) + burstW(1) + burstXA(32768) + burstXA(65536))
    a(f"""
    s_or_b32 s{S_T}, s2, s{S_W}
    s_cmp_lg_u32 s{S_T}, 0
    s_cbranch_scc1 L_pro2
    s_mov_b32 s52, s30
    s_mov_b32 s53, s31
    s_mov_b32 s54, 256
    s_or_b32 s{NON}, s{NON}, 1
    v_mov_b32 v{FDAT}, s{NON}
    v_mov_b32 v{FDAT+1}, s{NON+1}
    s_mov_b64 exec, 1
    buffer_store_dwordx2 v[{FDAT}:{FDAT+1}], v{ZERO}, s[52:55], 0 offen sc1
    s_mov_b64 exec, -1
    s_branch L_pro2
    """)
    a.label("L_proB")
    a(f"v_xor_b32 v{D1}, 64, v{D2}")
    a(burstXB(0) + burstXB(32768))
    a.label("L_pro2")
    a(f"""
    s_lshl_b32 s{S_T}, s{S_B}, 2
    s_add_u32 s{S_T}, s{S_T}, s{S_WR}
    s_lshl_b32 s{S_T}, s{S_T}, 2
    v_and_b32 v{VT+1}, 3, v0
    v_add_u32 v{VT+1}, s{S_T}, v{VT+1}
    v_bfe_u32 v{VT+2}, v0, 4, 1
    v_lshl_add_u32 v{VT+1}, v{VT+2}, 7, v{VT+1}
    v_mul_u32_u24 v{VT+1}, 6144, v{VT+1}
    v_bfe_u32 v{VT+2}, v0, 2, 2
    v_min_u32 v{VT+2}, 2, v{VT+2}
    v_lshl_add_u32 v{PFV}, v{VT+2}, 11, v{VT+1}
    s_mov_b32 s{S_PFO}, {393216 * PF0}
    s_and_b32 s{S_T}, s{S_A}, 3
    s_lshl_b32 s{S_T}, s{S_T}, 2
    s_add_u32 s{S_T}, s{S_T}, s{S_WR}
    s_lshl_b32 s{S_T}, s{S_T}, 4
    v_and_b32 v{VT}, 15, v0
    v_add_u32 v{VT}, s{S_T}, v{VT}
    v_lshlrev_b32 v{VT}, 11, v{VT}
    v_lshrrev_b32 v{VT+1}, 4, v0
    v_lshl_add_u32 v{VT}, v{VT+1}, 7, v{VT}
    s_cmp_eq_u32 s{S_WH}, 0
    s_cselect_b64 vcc, -1, 0
    s_cselect_b32 s{S_PFO}, {128 * OPT("PFX0", 4)}, s{S_PFO}
    v_cndmask_b32 v{PFV}, v{PFV}, v{VT}, vcc
    v_and_b32 v{VT}, 15, v0
    s_lshl_b32 s{S_T}, s{S_WR}, 6
    v_add_u32 v{VT}, s{S_T}, v{VT}
    v_lshlrev_b32 v{VT}, 7, v{VT}
    v_lshrrev_b32 v{VT+1}, 4, v0
    v_bfe_u32 v{VT+2}, v0, 1, 3
    v_xor_b32 v{VT+2}, v{VT+1}, v{VT+2}
    v_lshl_add_u32 v{XA[0]}, v{VT+2}, 4, v{VT}
    v_xor_b32 v{XA[1]}, 64, v{XA[0]}
    v_mov_b32 v{XB[0]}, v{XA[0]}
    v_mov_b32 v{XB[1]}, v{XA[1]}
    v_mul_u32_u24 v{VT}, 3072, v{VT+1}
    v_bfe_u32 v{VT+2}, v0, 2, 2
    v_lshl_add_u32 v{VT}, v{VT+2}, 7, v{VT}
    v_bfe_u32 v{VT+3}, v0, 1, 1
    s_lshl_b32 s{S_T}, s{S_WH}, 2
    v_add_u32 v{VT+3}, s{S_T}, v{VT+3}
    v_bfe_u32 v{VT+4}, v0, 3, 1
    v_lshlrev_b32 v{VT+4}, 2, v{VT+4}
    v_xor_b32 v{VT+3}, v{VT+3}, v{VT+4}
    v_bfe_u32 v{VT+4}, v0, 4, 1
    v_lshlrev_b32 v{VT+4}, 1, v{VT+4}
    v_xor_b32 v{VT+3}, v{VT+3}, v{VT+4}
    v_lshl_add_u32 v{VT}, v{VT+3}, 4, v{VT}
    v_and_b32 v{VT+4}, 1, v0
    v_lshl_add_u32 v{VT}, v{VT+4}, 3, v{VT}
    v_add_u32 v{WA[0]}, {W0}, v{VT}
    v_xor_b32 v{WA[1]}, 32, v{WA[0]}
    v_mov_b32 v{IDX}, {"0x44444444" if DENSE else "0xdddddddd"}
    {f"v_and_b32 v{VT}, 1, v0" if DENSE else ""}
    {f"v_mul_u32_u24 v{VT}, 0xaaaa, v{VT}" if DENSE else ""}
    {f"v_add_u32 v{IDX}, v{IDX}, v{VT}" if DENSE else ""}
    v_bfe_u32 v{VT}, v0, 2, 1
    v_mov_b32 v{VT+1}, 0x3f803f80
    v_cmp_eq_u32 vcc, 0, v{VT}
    v_lshlrev_b32 v{VDE}, 4, v0
    v_lshlrev_b32 v{VDO}, 4, v0
    v_cndmask_b32 v{ONES}, v{ZERO}, v{VT+1}, vcc
    v_cndmask_b32 v{ONES+1}, v{ZERO}, v{VT+1}, vcc
    v_cndmask_b32 v{ONES+2}, v{VT+1}, v{ZERO}, vcc
    v_cndmask_b32 v{ONES+3}, v{VT+1}, v{ZERO}, vcc
    v_and_b32 v{FOFF}, 15, v0
    v_lshlrev_b32 v{FOFF}, 3, v{FOFF}
    s_lshl_b32 s{S_T}, s{S_B}, 3
    v_mov_b32 v{FOFF+1}, s{S_T}
    s_mov_b32 s{S_IT}, 0
    s_mov_b32 s{S_XN}, 32768
    """)
    for i in range(96, 232, 2): a(f"v_mov_b64 v[{i}:{i+1}], 0")
    BULK = OPT("BULK", 0)
    if BULK:
        a(f"""
        s_lshl_b32 s{S_T}, s{S_A}, 7
        s_sub_u32 s52, s12, s{S_T}
        s_subb_u32 s53, s13, 0
        s_mov_b32 s54, 0x600000
        s_lshl_b32 s{S_T}, s{S_A}, 3
        s_add_u32 s{S_T}, s{S_T}, s{S_B}
        s_lshl_b32 s{S_T}, s{S_T}, 3
        s_add_u32 s{S_T}, s{S_T}, s{S_W}
        s_mul_i32 s{S_T}, s{S_T}, 6144
        v_min_u32 v{VT}, 47, v0
        v_lshlrev_b32 v{VT}, 7, v{VT}
        {"s_sleep " + str(OPT("BSLEEP", 0)) if OPT("BSLEEP", 0) else ""}
        buffer_load_dword v{PFD}, v{VT}, s[52:55], s{S_T} offen
        s_cmp_lg_u32 s{S_WH}, 0
        s_cbranch_scc1 L_nobx
        s_lshl_b32 s{S_T}, s{S_A}, 2
        s_add_u32 s{S_T}, s{S_T}, s{S_WR}
        s_lshl_b32 s{S_T}, s{S_T}, 13
        v_lshlrev_b32 v{VT+1}, 7, v0
        buffer_load_dword v{PFD}, v{VT+1}, s[8:11], s{S_T} offen
        """)
        a.label("L_nobx")
    def reads1(stage, t, buf):
        X = [f"ds_read_b128 {vr(FX[buf][rb],4)}, v{XA[t]} offset:{rb*2048}" for rb in range(4)]
        W = []
        for cb in range(6):
            for u in range(2):
                W.append(f"ds_read_b64_tr_b16 {vr(FW[buf][cb]+2*u,2)}, v{WA[cb%2]} offset:{stage*(W1-W0) + t*12288 + (cb//2)*1024 + u*512}")
        return W[0:2] + X + W[2:]
    def mfmas1(buf):
        return [mf16(ACC[cb][rb], FW[buf][cb], FX[buf][rb]) if cb < 4 else mf16(ACC[cb][rb], FX[buf][rb], FW[buf][cb])
                for cb in range(6) for rb in range(4)]
    def spread(r, key):
        sp, off = float(os.environ.get(key, "1.4" if key in ("SA1", "SB1") else "1")), int(os.environ.get(key + "O", "0"))
        f = {}
        for k_, x in enumerate(r): f.setdefault(min(23, off + int(k_ * sp)), []).append(x)
        return f
    def rot_x():
        return [f"v_add_u32 v{XA[1]}, s{S_XN}, v{XB[1]}", f"s_mov_b32 s{S_XF}, s{S_XN}", f"s_add_u32 s{S_XN}, s{S_XN}, 32768",
                f"s_cmp_eq_u32 s{S_XN}, 98304", f"s_cselect_b32 s{S_XN}, 0, s{S_XN}"]
    BSPR = OPT("BSPR", 0)
    def place(f, burst, pre):
        if BSPR == 0:
            pre += burst; return
        groups, cur = [], []
        for x in burst:
            cur.append(x)
            if " lds" in x or "buffer_load_dword " in x: groups.append(cur); cur = []
        if cur: groups[-1] += cur
        pre += groups[0]
        for k_, g in enumerate(groups[1:]): f[(k_ + 1) * BSPR - 1] = f.get((k_ + 1) * BSPR - 1, []) + g
    a(f"""
    s_cmp_lg_u32 s{S_WH}, 0
    s_cbranch_scc1 L_g1B_pre
    s_mov_b32 s{S_XF}, 0
    {"s_setprio 1" if OPT("G1PRIO", "") == "A" else ""}
    {f"buffer_load_dword v{PFD}, v{PFV}, s[8:11], s{S_PFO} offen {os.environ.get('NTXP', '')}" if OPT("XPFE", 0) else ""}
    s_waitcnt vmcnt({8 + 2*BULK + OPT("XPFE", 0)})
    s_barrier
    """)
    stamp(a, 1)
    a(reads1(0, 0, 0))
    a.raw(".p2align 6")
    a.label("L_g1A")
    stamp_stage(a, f"s{S_IT}", True)
    a(f"s_cmp_eq_u32 s{S_IT}, 7\ns_cselect_b32 s14, 0, s14")
    for stage in range(2):
        a("s_waitcnt lgkmcnt(0)")
        r = reads1(stage, 1, 1)
        a(weave(mfmas1(0), spread(r, "SA0")))
        if stage == 1: a(f"s_cmp_ge_u32 s{S_IT}, 6\ns_cselect_b32 s10, 0, s10")
        a(f"v_add_u32 v{XA[0]}, s{S_XN}, v{XB[0]}")
        PFX = OPT("PFX", 0)
        a(f"s_waitcnt vmcnt({2 if PFX and stage == 1 else 1}) lgkmcnt(0)\ns_barrier")
        r = reads1(1 - stage, 0, 0)
        RA1 = OPT("RA1", 1)
        f = spread(r, "SA1")
        pre = []
        if stage == 1 :
            a(f"s_cmp_eq_u32 s{S_IT}, 7\ns_cbranch_scc1 L_g1A_last")
        if OPT("ARD", 0): pre += [x for i in sorted(f) for x in f[i]]; f = {}
        pfx = [f"s_cmp_lt_u32 s{S_PFO}, 2048", f"s_cselect_b32 s{T0}, s{S_PFO}, 0x7fff0000", f"buffer_load_dword v{PFD}, v{PFV}, s[8:11], s{T0} offen", f"s_add_u32 s{S_PFO}, s{S_PFO}, 512"]
        place(f, burstW(stage) + burstXA(f"s{S_XF}") + (pfx if PFX and stage == 0 else []), pre)
        f[20] = f.get(20, []) + rot_x()
        a(pre); a(weave(mfmas1(1), f))
    a(f"""
    s_add_u32 s{S_IT}, s{S_IT}, 1
    s_branch L_g1A
    """)
    a.label("L_g1B_pre")
    NPFE = OPT("NPFE", 0)
    PFE_W = f"buffer_load_dword v{PFD}, v{PFV}, s[12:15], s{S_PFO} offen {NTP}\ns_add_u32 s{S_PFO}, s{S_PFO}, {393216 * 4}\n" * NPFE
    if OPT("G1PRIO", "") == "B": a("s_setprio 1")
    a(f"s_mov_b32 s{S_XF}, 65536\n{PFE_W}s_waitcnt vmcnt({7 + BULK + NPFE})\ns_barrier")
    stamp(a, 1)
    a(reads1(0, 0, 0))
    a.raw(".p2align 6")
    a.label("L_g1B")
    stamp_stage(a, f"s{S_IT}", True)
    a(f"s_cmp_eq_u32 s{S_IT}, 7\ns_cselect_b32 s10, 0, s10")
    if OPT("TOUCH", 0):
        a(f"""
        s_cmp_eq_u32 s{S_IT}, 4
        s_cbranch_scc0 L_t1
        s_mov_b32 s12, s32
        s_mov_b32 s13, s33
        s_mov_b32 s14, {WS_BYTES}
        s_lshl_b32 s{S_T}, s{S_P}, 4
        s_add_u32 s{S_T}, s{S_T}, s{S_A}
        s_lshl_b32 s{T0}, s{S_T}, 10
        s_add_u32 s{T0}, s{T0}, {FKV}
        s_lshl_b32 s{S_T}, s{S_T}, 4
        s_add_u32 s{S_T}, s{S_T}, s{S_B}
        s_lshl_b32 s{S_T}, s{S_T}, 2
        s_add_u32 s{S_T}, s{S_T}, s{S_WR}
        s_lshl_b32 s{S_T}, s{S_T}, 13
        v_and_b32 v{VT}, 1, v0
        v_lshlrev_b32 v{VT+1}, 18, v{VT}
        v_add_u32 v{PFV}, s{S_T}, v{VT+1}
        s_lshl_b32 s{S_T}, s{S_P}, 3
        s_add_u32 s{S_T}, s{S_T}, s{S_B}
        s_lshl_b32 s{S_T}, s{S_T}, 2
        s_add_u32 s{S_T}, s{S_T}, s{S_WR}
        s_lshl_b32 s{S_T}, s{S_T}, 5
        s_add_u32 s{S_T}, s{S_T}, s{S_A}
        s_lshl_b32 s{S_T}, s{S_T}, 12
        s_add_u32 s{S_T}, s{S_T}, {OWS}
        v_lshlrev_b32 v{VT+1}, 16, v{VT}
        v_add_u32 v{VT+1}, s{S_T}, v{VT+1}
        v_cmp_lt_u32 vcc, 1, v0
        v_mov_b32 v{VT+2}, s{T0}
        s_mov_b32 s{S_PFO}, 0
        v_cndmask_b32 v{PFV}, v{PFV}, v{VT+1}, vcc
        v_cmp_lt_u32 vcc, 3, v0
        s_nop 1
        v_cndmask_b32 v{PFV}, v{PFV}, v{VT+2}, vcc
        """)
        a.label("L_t1")
        a(f"""
        s_cmp_eq_u32 s{S_IT}, 5
        s_cbranch_scc0 L_t2
        s_mov_b32 s12, s28
        s_mov_b32 s13, s29
        s_mov_b32 s14, 0x800000
        s_lshl_b32 s{S_T}, s{S_A}, 2
        s_add_u32 s{S_T}, s{S_T}, s{S_WR}
        s_lshl_b32 s{S_T}, s{S_T}, 17
        s_lshl_b32 s{T0}, s{S_P}, 11
        s_add_u32 s{S_T}, s{S_T}, s{T0}
        s_lshl_b32 s{T0}, s{S_B}, 8
        s_add_u32 s{S_PFO}, s{S_T}, s{T0}
        v_and_b32 v{VT}, 1, v0
        v_lshlrev_b32 v{PFV}, 16, v{VT}
        """)
        a.label("L_t2")
        a(f"s_cmp_ge_u32 s{S_IT}, 6\ns_cselect_b32 s14, 0, s14")
    pf = [f"buffer_load_dword v{PFD}, v{PFV}, s[12:15], s{S_PFO} offen {NTP}", f"s_add_u32 s{S_PFO}, s{S_PFO}, {393216 * PFSTEP}"]
    for stage in range(2):
        r = reads1(stage, 1, 1)
        RB, BPOS = OPT("RB", 1), OPT("BPOS", -1)
        f = spread(r, "SB0")
        bx = burstXB(f"s{S_XF}") + (pf if stage == 0 else [])
        if BPOS < 0: a(bx)
        else: f[BPOS] = f.get(BPOS, []) + bx
        a("s_waitcnt lgkmcnt(0)")
        a(weave(mfmas1(0), f))
        a(f"v_add_u32 v{XA[0]}, s{S_XN}, v{XB[0]}")
        a(f"s_waitcnt vmcnt({8 if stage == 0 else 7}) lgkmcnt(0)\ns_barrier")
        if stage == 1:
            a(f"s_cmp_eq_u32 s{S_IT}, 7\ns_cbranch_scc1 L_g1A_last")
        r = reads1(1 - stage, 0, 0)
        RB1 = OPT("RB1", 1)
        f = spread(r, "SB1")
        f[20] = f.get(20, []) + [f"v_add_u32 v{XA[1]}, s{S_XN}, v{XB[1]}", f"s_add_u32 s{S_XF}, s{S_XF}, 32768", f"s_cmp_eq_u32 s{S_XF}, 98304",
                 f"s_cselect_b32 s{S_XF}, 0, s{S_XF}", f"s_add_u32 s{S_XN}, s{S_XN}, 32768",
                 f"s_cmp_eq_u32 s{S_XN}, 98304", f"s_cselect_b32 s{S_XN}, 0, s{S_XN}"]
        a(weave(mfmas1(1), f))
    a(f"""
    s_add_u32 s{S_IT}, s{S_IT}, 1
    s_branch L_g1B
    """)
    VKV, VD = 2, 3
    VT = 4
    S_SO, S_ST1, S_ST2, S_M0, S_KV, S_FL, S_HB, S_GRP, MSK = 43, 44, 45, 46, 47, 49, 50, 51, 56
    a.label("L_g1A_last")
    setup = f"""
    s_mov_b32 s36, s32
    s_mov_b32 s37, s33
    s_mov_b32 s38, {WS_BYTES}
    s_mov_b32 s52, s30
    s_mov_b32 s53, s31
    s_mov_b32 s54, 256
    buffer_load_dwordx2 v[{FDAT}:{FDAT+1}], v{ZERO}, s[52:55], 0 offen sc1
    s_lshl_b32 s{S_T}, s{S_P}, 4
    s_add_u32 s{S_T}, s{S_T}, s{S_A}
    s_lshl_b32 s{S_FL}, s{S_T}, 3
    s_lshl_b32 s{S_T}, s{S_T}, 1
    s_add_u32 s{S_T}, s{S_T}, s{S_WH}
    s_lshl_b32 s{S_HB}, s{S_T}, 18
    s_add_u32 s{S_FL}, s{S_FL}, s{S_W}
    s_lshl_b32 s{S_FL}, s{S_FL}, 7
    s_add_u32 s{S_FL}, s{S_FL}, {FKV}
    s_lshl_b32 s{S_T}, s{S_WR}, 13
    s_add_u32 s{S_T}, s{S_T}, s{S_HB}
    s_add_u32 s8, s32, s{S_T}
    s_addc_u32 s9, s33, 0
    s_mov_b32 s10, 0x40000
    s_lshl_b32 s{S_KV}, s{S_B}, 15
    s_add_u32 s{S_KV}, s{S_KV}, s{S_T}
    s_add_u32 s{S_KV+1}, s{S_KV}, 4096
    s_lshl_b32 s{S_M0}, s{S_W}, 13
    v_lshlrev_b32 v{VD}, 4, v0
    v_add_u32 v{VKV}, s{S_M0}, v{VD}
    s_cmp_eq_u32 s{S_P}, 0
    s_cselect_b32 s12, s20, s26
    s_cselect_b32 s13, s21, s27
    s_lshl_b32 s{S_T}, s{S_B}, 8
    s_add_u32 s12, s12, s{S_T}
    s_addc_u32 s13, s13, 0
    s_sub_u32 s14, 0x200000, s{S_T}
    s_mov_b32 s{S_ST1}, 0
    s_mov_b32 s{MSK}, 0xfff8fff8
    s_mov_b32 s{MSK+1}, s{MSK}
    s_mov_b32 s58, {f2u(CSCALE):#x}
    s_mov_b32 s59, s58
    """.strip().split("\n")
    m = mfmas1(1)
    EARLY = OPT("EARLY", 1)
    if EARLY: m = [m[4*cb + rb] for rb2 in (0, 2) for cb in range(2, 6) for rb in (rb2, rb2 + 1)] + m[:8]
    else: m = m[8:] + m[:8]
    LASTM = m
    def pack2(dst, t0, t1):
        return [f"v_cvt_pk_bf16_f32 v{dst}, v{t0}, v{t0+1}", f"v_cvt_pk_bf16_f32 v{dst+1}, v{t0+2}, v{t0+3}",
                f"v_cvt_pk_bf16_f32 v{dst+2}, v{t1}, v{t1+1}", f"v_cvt_pk_bf16_f32 v{dst+3}, v{t1+2}, v{t1+3}"]
    def swap2(dst):
        return [f"v_permlane16_swap_b32 v{dst}, v{dst+2}", f"v_permlane16_swap_b32 v{dst+1}, v{dst+3}"]
    def swap32(dst):
        return [f"v_permlane32_swap_b32 v{dst}, v{dst+2}", f"v_permlane32_swap_b32 v{dst+1}, v{dst+3}"]
    frs = []
    for b in range(2):
        for t in range(2): frs.append((PKB[b] + 4*t, ACC[2+t][2*b], ACC[2+t][2*b+1], b, t*1024))
        for t in range(2): frs.append((PKB[b] + 8 + 4*t, ACC[4][2*b+t], ACC[5][2*b+t], b, 2048 + t*1024))
    kvstores = [f"buffer_store_dwordx4 {vr(fr[0],4)}, v{VD}, s[36:39], s{S_KV+fr[3]} offen offset:{fr[4]} {os.environ.get('KVPOL', 'sc1')}" for fr in frs]
    NE0 = OPT("NE0", 4)
    packs = []
    prev = None
    for k_, fr in enumerate(frs):
        L = pack2(fr[0], fr[1], fr[2])
        if prev:
            L += swap2(prev[0])
            if DENSE and prev[4] >= 2048: L += ["s_nop 1"] + swap32(prev[0])
            if k_ - 1 < NE0: L.append(kvstores[k_ - 1])
            L.append(f"ds_write_b128 v{VKV}, {vr(prev[0],4)} offset:{prev[3]*4096+prev[4]}")
        packs.append(L)
        prev = fr
    if EARLY:
        f = {i: setup[3*i:3*i+3] for i in range(14)}
        for i in range(4): f[16 + 2*i] = packs[i]
        a(weave(LASTM, f)); stamp(a, 2)
        for L in packs[4:]: a(L)
    else:
        a(weave(LASTM, {i: setup[2*i:2*i+2] for i in range(24)})); stamp(a, 2)
        for L in packs: a(L)
    for i in range(0, 8, 2): a(f"v_pk_mul_f32 v[{96+i}:{97+i}], v[{96+i}:{97+i}], s[58:59]")
    a(swap2(prev[0]))
    if DENSE: a(["s_nop 1"] + swap32(prev[0]))
    a(f"ds_write_b128 v{VKV}, {vr(prev[0],4)} offset:{prev[3]*4096+prev[4]}")
    for i in range(8, 32, 2): a(f"v_pk_mul_f32 v[{96+i}:{97+i}], v[{96+i}:{97+i}], s[58:59]")
    for b in range(2):
        for t in range(2): a(pack2(Q[b] + 4*t, ACC[t][2*b], ACC[t][2*b+1]))
    a(f"""
    s_lshl_b32 s{S_T}, s{S_WH}, 15
    v_add_u32 v{VKV}, s{S_T}, v{VD}
    s_add_u32 s{S_M0}, s{S_M0}, 65536
    """)
    for k_ in range(1, 4):
        a(f"s_add_u32 s{S_T}, s{S_WR}, {k_}\ns_and_b32 s{S_T}, s{S_T}, 3\ns_lshl_b32 s{S_T}, s{S_T}, 13\nv_add_u32 v{VT+1+k_}, s{S_T}, v{VKV}")
    for b in range(2):
        for t in range(2): a(swap2(Q[b] + 4*t))
    def rdK(kt, buf): return [f"ds_read_b128 {vr(KF[buf]+4*t,4)}, v{VKV} offset:{kt*4096+t*1024}" for t in range(2)]
    def rdV(kt, buf): return [f"ds_read_b128 {vr(VF[buf]+4*t,4)}, v{VKV} offset:{kt*4096+2048+t*1024}" for t in range(2)]
    def qk(sbuf, kbuf, qt, c=None):
        return [mf32(S[sbuf], KF[kbuf], Q[qt], NM[qt] if c is None else c), mf32(S[sbuf], KF[kbuf]+4, Q[qt]+4)]
    def pv(sbuf, vbuf, qt, t):
        if DENSE: return mf32(O[qt], VF[vbuf] + 4*t, S[sbuf] + 4*t)
        return f"v_smfmac_f32_32x32x32_bf16 {vr(O[qt],16)}, {vr(VF[vbuf]+4*t,4)}, {vr(S[sbuf]+8*t,8)}, v{IDX}"
    def rs(sbuf, qt, t):
        if DENSE: return None if t == 0 else f"v_smfmac_f32_16x16x64_bf16 {vr(LA[qt],4)}, {vr(ONES,4)}, {vr(S[sbuf],8)}, v{IDX}"
        return f"v_smfmac_f32_16x16x64_bf16 {vr(LA[qt],4)}, {vr(ONES,4)}, {vr(S[sbuf]+8*t,8)}, v{IDX}"
    def max_to_nm(m, qt):
        a(f"v_mov_b32 v{m+1}, v{m}")
        a("s_nop 1")
        a(f"v_permlane32_swap_b32 v{m}, v{m+1}")
        a("s_nop 1")
        a(f"v_max_f32 v{m}, v{m}, v{m+1}")
        a(f"v_sub_f32 v{m}, 0, v{m}")
        a(f"v_mov_b32 v{m+1}, v{m}")
        for i in range(0, 16, 2): a(f"v_mov_b64 v[{NM[qt]+i}:{NM[qt]+i+1}], v[{m}:{m+1}]")
    assert NE0 == 4
    a("s_nop 0")
    a([mf32(S[qt], PKB[0] + 4*t, Q[qt] + 4*t, "0" if t == 0 else None) for qt in range(2) for t in range(2)])
    a(f"s_waitcnt vmcnt(4)\ns_mov_b32 s{S_T}, {SPIN_MAX}")
    a.label("L_nonce")
    a(f"""
    v_readfirstlane_b32 s{NON}, v{FDAT}
    v_readfirstlane_b32 s{NON+1}, v{FDAT+1}
    s_sub_u32 s{S_T}, s{S_T}, 1
    s_cbranch_scc1 L_nonce_done
    s_cmp_eq_u32 s{NON}, 0
    s_cbranch_scc1 L_nonce_retry
    """)
    a.label("L_nonce_done")
    RARE.append(("L_nonce_retry", [f"buffer_load_dwordx2 v[{FDAT}:{FDAT+1}], v{ZERO}, s[52:55], 0 offen sc1", "s_waitcnt vmcnt(0)"], "L_nonce"))
    a("s_nop 3")
    for qt in range(2):
        m_, src = VT + 6*qt, S[qt]
        a(f"v_max3_f32 v{m_}, v{src}, v{src+1}, v{src+2}")
        for i in range(3, 15, 2): a(f"v_max3_f32 v{m_}, v{m_}, v{src+i}, v{src+i+1}")
        a(f"v_max_f32 v{m_}, v{m_}, v{src+15}")
        max_to_nm(m_, qt)
        a("s_nop 1")
        if qt == 0: a([mf32(S[0], PKB[0], Q[0], NM[0]), mf32(S[0], PKB[0] + 4, Q[0] + 4)])
    if OPT("G1PRIO", "") == "A": a("s_setprio 0")
    if os.environ.get("PRIO", "1"): a(f"s_cmp_eq_u32 s{S_WH}, {os.environ.get('PRIO', '1')[0]}\ns_cbranch_scc0 L_noprio\ns_setprio 1"); a.label("L_noprio")
    stamp(a, 3)
    S_SO2 = S_ST2
    def dma2():
        G = []
        for j in range(8):
            g = []
            if j == 0: g.append(f"s_mov_b32 m0, s{S_M0}"); g.append("s_nop 0")
            g.append(f"buffer_load_dwordx4 v{VDE if j%2==0 else VDO}, s[8:11], s{S_SO} offen offset:{(j%4)*1024} sc1 lds")
            if j == 3: g += [f"s_add_u32 m0, s{S_M0}, 4096", f"s_mov_b32 s{S_SO}, s{S_SO2}"]
            elif j < 7: g.append(f"s_add_u32 s{S_SO}, s{S_SO}, s{S_ST1}")
            else: g.append(f"s_xor_b32 s{S_M0}, s{S_M0}, 65536")
            G.append(g)
        return G
    def blk():
        L = []
        for g, dst in ((0, S_SO), (1, S_SO2)):
            L += [f"s_lshl_b32 s{dst}, s{S_IT}, 1"]
            if g: L += [f"s_add_u32 s{dst}, s{dst}, 1"]
            L += [f"s_cmp_ge_u32 s{dst}, 7", f"s_cselect_b32 s{S_T}, 7, 0", f"s_cselect_b32 s{S_GRP}, 4096, 0", f"s_sub_u32 s{dst}, s{dst}, s{S_T}",
                  f"s_cmp_ge_u32 s{dst}, s{S_B}", f"s_addc_u32 s{dst}, s{dst}, 0", f"s_lshl_b32 s{dst}, s{dst}, 15", f"s_add_u32 s{dst}, s{dst}, s{S_GRP}"]
        return L
    def flagst(voff, soff, imm=0):
        return ["s_mov_b64 exec, 1", f"buffer_store_dwordx2 v[{FDAT}:{FDAT+1}], v{voff}, s[36:39], s{soff} offen offset:{imm} sc1", "s_mov_b64 exec, -1"]
    ATX = os.environ.get("ATX", "")
    PAT = [int(c) for c in os.environ.get('PAT', '333232')]
    def qk_r(sbuf, kreg, qt, c=None):
        return [mf32(S[sbuf], kreg, Q[qt], NM[qt] if c is None else c), mf32(S[sbuf], kreg+4, Q[qt]+4)]
    def pv_r(sbuf, vreg, qt, t):
        if DENSE: return mf32(O[qt], vreg + 4*t, S[sbuf] + 4*t)
        return f"v_smfmac_f32_32x32x32_bf16 {vr(O[qt],16)}, {vr(vreg+4*t,4)}, {vr(S[sbuf]+8*t,8)}, v{IDX}"
    FILL = []
    def slot(sb, qa, nxt, prv, vreg, pre, extra=()):
        e = [f"v_exp_f32 v{S[sb]+i}, v{S[sb]+i}" for i in range(16)]
        m = (qk_r((sb+1) % 4, nxt[0], nxt[1]) if nxt else [None, None]) + \
            ([pv_r((sb-1) % 4, prv[0], prv[1], 1), rs((sb-1) % 4, prv[1], 1)] if prv else [None, None]) + [pv_r(sb, vreg, qa, 0), rs(sb, qa, 0)]
        extra = list(extra)
        if DENSE:
            c = [f"v_cvt_pk_bf16_f32 v{S[sb]+i}, v{S[sb]+2*i}, v{S[sb]+2*i+1}" for i in range(8)]
            grp, ie, ic, last = [], 0, 0, ""
            for g_ in os.environ.get("DG", "eee|eceec|eecec|eec|eece|eecc").split("|"):
                cur = []
                for ch in g_:
                    if ch == "e": cur.append(e[ie]); ie += 1
                    else:
                        assert ie >= 2*ic + 2 and not (last == "e" and ie == 2*ic + 2), "cvt too early"
                        cur.append(c[ic]); ic += 1
                    last = ch
                if len(grp) < 4: last = "m"
                grp.append(cur)
                if len(grp) == 4: assert ic >= 4 and (ic > 4 or cur[-1].startswith("v_exp") and cur[-2].startswith("v_exp"))
            assert ie == 16 and ic == 8 and len(grp) == 6
        else:
            grp, k = [], 0
            for i in range(6): grp.append(e[k:k+PAT[i]]); k += PAT[i]
        for i in range(6):
            if pre.get(i): a(pre[i])
            elif m[i]:
                if FILL: a(FILL.pop(0))
                elif "n" not in ATX: a("s_nop 0")
            if m[i]: a(m[i])
            a(grp[i])
            ne = (len(extra) + 5 - i) // (6 - i)
            a(extra[:ne]); extra = extra[ne:]
    def stage(hooks, pres, first, barwait):
        KA = [None, VT+2, VT+3, VT+4]
        for kt in range(8):
            for qa in range(2):
                n = 2*kt + qa
                pre = {i: [] for i in range(6)}
                if n in hooks: hooks[n]()
                kr = lambda t: PKB[t] if first and t < 2 else KF[t % 2]
                vr_ = lambda t: PKB[t] + 8 if first and 0 <= t < 2 else VF[t % 2]
                if qa == 0:
                    if kt == 7:
                        barwait()
                        pre[0] += [f"v_xor_b32 v{VKV}, 0x10000, v{VKV}", "s_nop 0"]
                    elif not (first and kt < 2):
                        pre[0] += ["s_waitcnt lgkmcnt(0)"]
                    if first and kt < 7:
                        if kt >= 1:
                            t_ = kt + 1
                            pre[1] += [x.replace(f"v{VKV} ", f"v{KA[t_//2]} ") for x in rdK(t_ % 2, t_ % 2)]
                            pre[4] += [x.replace(f"v{VKV} ", f"v{KA[t_//2]} ") for x in rdV(t_ % 2, t_ % 2)]
                    else:
                        pre[1] += rdK((kt+1) % 8, (kt+1) % 2)
                        pre[4] += rdV((kt+1) % 8, (kt+1) % 2)
                elif not (first and kt == 0):
                    pre[0] += ["s_waitcnt lgkmcnt(2)"]
                for i, L in pres.get(n, {}).items(): pre[i] += L
                slot(n % 4, qa, (kr(kt + qa) if kt + qa < 8 else KF[0], 1 - qa), None if first and n == 0 else (vr_(kt - 1 + qa), 1 - qa), vr_(kt), pre)
        assert not FILL
    NPUB, NPOLL = OPT("NPUB", 4), OPT("NPOLL", 8)
    ST0 = os.environ.get("ST0", "") == "1"
    def h_pub():
        a("s_waitcnt vmcnt(0)"); a(flagst(FOFF+1, S_FL))
        if ST0: stamp(a, 4)
    def h_poll0():
        poll("L_poll0", S_FL, f"s[{MSK}:{MSK+1}]")
        a(f"s_mov_b32 s{S_IT}, 0\ns_mov_b32 s{MSK}, 0xff00ff00\ns_mov_b32 s{MSK+1}, s{MSK}"); a(blk())
        if ST0: stamp(a, 5)
    def bw0():
        a("s_waitcnt vmcnt(3) lgkmcnt(0)\ns_barrier")
        stamp_stage(a, "0")
        if ST0: stamp(a, 6)
    G = dma2()
    pres = {NPOLL + i: {2: G[3*i], 3: G[3*i+1], 5: G[3*i+2] if 3*i+2 < 8 else []} for i in range(3)}
    for i, n_ in enumerate((11, 12, 13, 15)): pres.setdefault(n_, {})[3] = [kvstores[4 + i]]
    stage({2: lambda: a("s_waitcnt lgkmcnt(0)\ns_barrier"), NPUB: h_pub, NPOLL: h_poll0}, pres, True, bw0)
    a(f"s_mov_b32 s{S_IT}, 1")
    a.raw(".p2align 6")
    a.label("L_at")
    def rare(lab, cond, body):
        if OPT("OOL", 0):
            a(cond); a(f"s_cbranch_scc1 {lab}"); a.label(lab + "_ret"); RARE.append((lab, body, lab + "_ret"))
        else:
            a(cond); a(f"s_cbranch_scc0 {lab}_skip")
            body() if callable(body) else a(body)
            a.label(lab + "_skip")
    it13 = [f"s_andn2_b32 s{S_T}, s{S_IT}, 2", f"s_cmp_eq_u32 s{S_T}, 1"]
    def h_ld():
        rare("L_r_ld", it13, [f"buffer_load_dwordx2 v[{PDAT}:{PDAT+1}], v{FOFF}, s[36:39], s{S_FL} offen sc1"])
        b = blk()
        FILL.extend([b[i:i+2] for i in range(0, len(b), 2)])
    def h_dma():
        def body():
            poll("L_poll2", S_FL, f"s[{MSK}:{MSK+1}]", True)
            a(f"s_mov_b64 s[{MSK}:{MSK+1}], 0")
        rare("L_r_poll", it13, body)
    def h_pfwo():
        rare("L_r_pfwo", [f"s_cmp_eq_u32 s{S_IT}, {OPT('PFWIT', 4)}"], f"""
        s_and_b32 s{S_T}, s{S_A}, 3
        s_lshl_b32 s{S_T}, s{S_T}, 3
        s_add_u32 s{S_T}, s{S_T}, s{S_W}
        s_lshl_b32 s{S_T}, s{S_T}, 16
        v_lshrrev_b32 v{VT}, 1, v0
        v_lshlrev_b32 v{VT}, 11, v{VT}
        v_and_b32 v{VT+1}, 1, v0
        v_lshl_add_u32 v{VT}, v{VT+1}, 7, v{VT}
        buffer_load_dword v{VT+1}, v{VT}, s[12:15], s{S_T} offen {os.environ.get('NTO', '')}
        """)
    def bw1():
        a("s_waitcnt vmcnt(0) lgkmcnt(0)\ns_barrier")
        rare("L_r_pub1", [f"s_cmp_eq_u32 s{S_IT}, 1"], flagst(FOFF+1, S_FL, 64))
        stamp_stage(a, f"s{S_IT}")
    G = dma2()
    pres = {3 + i: {2: G[2*i], 5: G[2*i+1]} for i in range(4)}
    stage({0: h_ld, 15: h_pfwo, 3: h_dma}, pres, False, bw1)
    a(f"""
    s_add_u32 s{S_IT}, s{S_IT}, 1
    s_cmp_lt_u32 s{S_IT}, 7
    s_cbranch_scc1 L_at
    """)
    S_OO, S_FO, S_BAD = 47, 49, 60
    VOA = VT + 6
    setup7 = f"""
    s_mov_b32 s8, s12
    s_mov_b32 s9, s13
    s_mov_b32 s10, s14
    s_lshl_b32 s{S_SO}, s{S_W}, 16
    s_add_u32 s{S_SO2}, s{S_SO}, 32768
    s_mov_b32 s{S_ST1}, 7168
    v_lshrrev_b32 v{VDE}, 4, v0
    v_lshlrev_b32 v{VDO}, 1, v{VDE}
    v_and_b32 v{VT}, 15, v0
    v_xor_b32 v{VDO}, v{VDO}, v{VT}
    v_lshlrev_b32 v{VDE}, 11, v{VDE}
    v_lshl_add_u32 v{VDE}, v{VDO}, 4, v{VDE}
    v_xor_b32 v{VDO}, 128, v{VDE}
    s_lshl_b32 s{S_T}, s{S_P}, 3
    s_add_u32 s{S_T}, s{S_T}, s{S_B}
    s_lshl_b32 s{S_T}, s{S_T}, 2
    s_add_u32 s{S_T}, s{S_T}, s{S_WR}
    s_lshl_b32 s{S_FO}, s{S_T}, 8
    s_lshl_b32 s{S_OO}, s{S_T}, 17
    s_bfe_u32 s{S_T}, s{S_HB}, 0x50012
    s_lshl_b32 s{S_GRP}, s{S_T}, 3
    s_add_u32 s{S_FO}, s{S_FO}, s{S_GRP}
    s_add_u32 s{S_FO}, s{S_FO}, {FO}
    s_lshl_b32 s{S_T}, s{S_T}, 11
    s_add_u32 s{S_OO}, s{S_OO}, s{S_T}
    s_add_u32 s{S_OO}, s{S_OO}, {OWS}
    s_add_u32 s{S_OO+1}, s{S_OO}, 65536
    v_and_b32 v{VOA}, 15, v0
    v_lshlrev_b32 v{VOA}, 4, v{VOA}
    v_lshrrev_b32 v{VOA+1}, 5, v0
    v_lshl_add_u32 v{VOA}, v{VOA+1}, 8, v{VOA}
    v_bfe_u32 v{VOA+1}, v0, 4, 1
    v_lshl_add_u32 v{VOA}, v{VOA+1}, 10, v{VOA}
    """.strip().split("\n")
    OPK = [PK, PK + 8]
    def check(qt):
        t = VT + 2*qt
        o = O[qt]
        return (([f"v_add_f32 v{LA[qt]}, v{LA[qt]}, v{LA[qt]+1}"] if DENSE else []) + [f"v_pk_mul_f32 v[{t}:{t+1}], v[{o}:{o+1}], 0"] +
                [f"v_pk_fma_f32 v[{t}:{t+1}], v[{o+i}:{o+i+1}], 0, v[{t}:{t+1}]" for i in range(2, 16, 2)] +
                [f"v_add_f32 v{t}, v{t}, v{t+1}", f"v_add_f32 v{t}, v{t}, v{LA[qt]}", f"v_cmp_gt_f32 s[{S_BAD+2*qt}:{S_BAD+2*qt+1}], s58, v{t}"])
    def finish(qt):
        t = VT + 2*qt
        o = O[qt]
        return ([f"v_rcp_f32 v{t}, v{LA[qt]}", "s_nop 0"] +
                [f"v_pk_mul_f32 v[{o+i}:{o+i+1}], v[{o+i}:{o+i+1}], v[{t}:{t+1}] op_sel_hi:[1,0]" for i in range(0, 16, 2)] +
                [f"v_cvt_pk_bf16_f32 v{OPK[qt]+i}, v{o+2*i}, v{o+2*i+1}" for i in range(8)] +
                [f"buffer_store_dwordx4 {vr(OPK[qt]+4*t_,4)}, v{VOA}, s[36:39], s{S_OO+qt} offen offset:{t_*512} {os.environ.get('KVPOL', 'sc1')}" for t_ in range(2)])
    OA, OB = 244, 245
    WA3 = [[248, 249, 250, 251], [252, 253, 254, 255]]
    FO_ = [[16 + 16*buf + 4*i for i in range(4)] for buf in range(2)]
    FW3 = [[48 + 16*buf + 4*nb for nb in range(4)] for buf in range(2)]
    AC3 = [[80 + 16*i + 4*nb for nb in range(4)] for i in range(4)]
    RX = 144
    T3 = 176
    S_INC, S_M3, S_ME, S_MS, S_R3, S_C3, S_F3, S_O3 = 52, 53, 54, 55, 56, 57, 100, 59
    setup3 = f"""
    s_bfe_u32 s{S_R3}, s{S_W}, 0x10001
    s_and_b32 s{S_C3}, s{S_W}, 1
    s_lshl_b32 s{S_T}, s{S_P}, 4
    s_add_u32 s{S_T}, s{S_T}, s{S_A}
    s_lshl_b32 s{S_T}, s{S_T}, 2
    s_add_u32 s{S_T}, s{S_T}, s{S_WR}
    s_lshr_b32 s{S_F3}, s{S_T}, 1
    s_lshl_b32 s{S_F3}, s{S_F3}, 8
    s_add_u32 s{S_F3}, s{S_F3}, {FO}
    s_lshl_b32 s{S_T}, s{S_T}, 16
    s_add_u32 s{S_T}, s{S_T}, {OWS}
    s_add_u32 s60, s32, s{S_T}
    s_addc_u32 s61, s33, 0
    s_lshl_b32 s{S_M3}, s{S_WR}, 12
    s_lshl_b32 s{S_O3}, s{S_WR}, 15
    s_add_u32 s{S_O3}, s{S_O3}, {6*131072}
    s_cmp_eq_u32 s{S_WH}, 0
    s_cselect_b64 vcc, -1, 0
    s_cselect_b32 s8, s60, s12
    s_cselect_b32 s9, s61, s13
    s_cselect_b32 s10, 0x10000, s14
    s_cselect_b32 s{S_O3}, 0, s{S_O3}
    s_cselect_b32 s{S_ST1}, 0, 7168
    s_cselect_b32 s{S_INC}, 12, 17
    s_lshl_b32 s{S_INC}, 1, s{S_INC}
    v_lshlrev_b32 v{T3+1}, 4, v0
    v_cndmask_b32 v{VDE}, v{VDE}, v{T3+1}, vcc
    v_cndmask_b32 v{VDO}, v{VDO}, v{T3+1}, vcc
    s_lshl_b32 s{S_T}, s{S_R3}, 1
    s_add_u32 s{S_T}, s{S_T}, s{S_WH}
    s_lshl_b32 s{S_T}, s{S_T}, 1
    s_add_u32 s{S_T}, s{S_T}, s{S_WH}
    s_lshl_b32 s{S_T}, s{S_T}, 11
    s_add_u32 s{S_T}, s{S_T}, 65536
    v_add_u32 v{OA}, s{S_T}, v{T3+1}
    v_xor_b32 v{OB}, 4096, v{OA}
    v_bfe_u32 v{T3}, v0, 2, 3
    v_lshrrev_b32 v{T3+1}, 5, v0
    v_lshl_add_u32 v{T3+1}, v{T3+1}, 4, v{T3}
    s_lshl_b32 s{S_T}, s{S_WH}, 5
    v_add_u32 v{T3+1}, s{S_T}, v{T3+1}
    v_lshlrev_b32 v{T3+1}, 8, v{T3+1}
    v_bfe_u32 v{T3+2}, v0, 1, 1
    s_lshl_b32 s{S_T}, s{S_C3}, 3
    v_add_u32 v{T3+2}, s{S_T}, v{T3+2}
    v_lshlrev_b32 v{T3}, 1, v{T3}
    v_xor_b32 v{T3+2}, v{T3+2}, v{T3}
    v_lshl_add_u32 v{T3+1}, v{T3+2}, 4, v{T3+1}
    v_and_b32 v{T3+2}, 1, v0
    v_lshl_add_u32 v{WA3[0][0]}, v{T3+2}, 3, v{T3+1}
    v_and_b32 v{FOFF}, 31, v0
    v_lshlrev_b32 v{FOFF}, 3, v{FOFF}
    """.replace(f"v{T3+2}", f"v{VT+5}").replace(f"v{T3+1}", f"v{VT+4}").replace(f"v{T3}", f"v{VT+3}").strip().split("\n")
    setup3 += [f"v_xor_b32 v{WA3[0][nb]}, {32*nb}, v{WA3[0][0]}" for nb in range(1, 4)]
    setup3 += [f"v_add_u32 v{WA3[1][nb]}, 0x20000, v{WA3[0][nb]}" for nb in range(4)]
    NS3 = next(i for i, x in enumerate(setup3) if 'v_bfe_u32' in x)
    seq = [(0, 0), (0, 1)] + [(k_, 0) for k_ in range(1, 8)] + [(k_, 1) for k_ in range(1, 8)]
    KB, VB = [0], [0]
    for m_ in range(1, 16):
        flip = seq[m_][0] != seq[m_-1][0]
        KB.append(KB[-1] ^ flip); VB.append(VB[-1] ^ flip)
    G = dma2()
    for m_ in range(16):
        stamp_stage(a, "7") if m_ == 14 else None
        pre = {i: [] for i in range(6)}
        pre[0] += ["s_waitcnt lgkmcnt(0)"]
        if m_ + 2 < 16 and seq[m_+2][0] != seq[m_+1][0]: pre[1] += rdK(seq[m_+2][0], KB[m_+2])
        if m_ + 1 < 16 and seq[m_+1][0] != seq[m_][0]: pre[4] += rdV(seq[m_+1][0], VB[m_+1])
        extra = []
        if m_ == 0: extra = setup7[:13] + ["s_mov_b32 s58, 0x5f800000"]
        if m_ == 1: extra = setup7[13:]
        if 2 <= m_ <= 5: pre[2] += G[2*(m_-2)]; pre[5] += G[2*(m_-2)+1]
        if m_ == 6:
            pre[2] += [f"s_lshl_b32 s{S_T}, s{S_W}, 12", f"s_add_u32 m0, s{S_T}, 131072", f"s_lshl_b32 s{S_SO}, s{S_W}, 15", f"s_add_u32 s{S_SO}, s{S_SO}, {4*131072}"]
        if m_ in (6, 7):
            for i_, j_ in ((3, 2*(m_-6)), (5, 2*(m_-6)+1)):
                pre[i_] += [f"buffer_load_dwordx4 v{VDE if j_%2==0 else VDO}, s[8:11], s{S_SO} offen offset:{j_*1024} lds", f"s_add_u32 s{S_SO}, s{S_SO}, s{S_ST1}"]
        if m_ == 8: extra = setup3[:NS3 // 2]
        if m_ == 9: extra = setup3[NS3 // 2:NS3]
        if m_ == 12: extra = setup3[NS3:]
        if m_ == 10: extra = check(0)
        if m_ == 11: extra = finish(0)
        slot(m_ % 4, seq[m_][1], (KF[KB[m_+1]], seq[m_+1][1]) if m_ < 15 else None,
             (VF[VB[m_-1]], seq[m_-1][1]) if m_ else (VF[1], 1), VF[VB[m_]], pre, extra)
    a("s_nop 1")
    a(pv(3, VB[15], 1, 1)); a(rs(3, 1, 1))
    if not ST0: stamp(a, 4)
    if ST3: stamp(a, 1, True)
    a("s_nop 7\ns_nop 3")
    a(check(1))
    a(f"""
    s_and_b64 vcc, s[{S_BAD}:{S_BAD+1}], s[{S_BAD+2}:{S_BAD+3}]
    s_cmp_eq_u64 vcc, exec
    s_cbranch_scc0 L_fallback
    """)
    a.label("L_fin")
    a(finish(1))
    def wslot(i): return i*16384 if i < 4 else 131072 + (i-4)*16384
    def dma3(mo, mw):
        G = []
        for j in range(4):
            g = []
            if j == 0:
                if mw is None: g += [f"s_add_u32 m0, s{S_M3}, {mo}"]
                else: g += [f"s_cmp_eq_u32 s{S_WH}, 0", f"s_mov_b32 s{S_T}, {mw}", f"s_cmov_b32 s{S_T}, {mo}", f"s_add_u32 m0, s{S_M3}, s{S_T}"]
                g += [f"s_mov_b32 s{S_SO}, s{S_O3}"]
            g.append(f"buffer_load_dwordx4 v{VDE if j%2==0 else VDO}, s[8:11], s{S_SO} offen offset:{j*1024} sc1 lds")
            g.append(f"s_add_u32 s{S_SO}, s{S_SO}, s{S_ST1}" if j < 3 else f"s_add_u32 s{S_O3}, s{S_O3}, s{S_INC}")
            G.append(g)
        return G
    a("s_barrier")
    if ST3: stamp(a, 2, True)
    a("s_waitcnt vmcnt(0)")
    if ST3: stamp(a, 3, True)
    a(flagst(ZERO, S_FO))
    a(f"s_cmp_lg_u32 s{S_WH}, 0\ns_cbranch_scc1 L_p3go")
    if OPT("POLL2", 0):
        P2 = T3 + 4
        ld = lambda r: f"buffer_load_dwordx2 v[{r}:{r+1}], v{FOFF}, s[36:39], s{S_F3} offen sc1"
        a(f"s_mov_b32 s{S_T}, {SPIN_MAX}")
        a(ld(PDAT)); a(f"s_sleep {OPT('PSL2', 3)}")
        a.label("L_pollo")
        for r0, r1 in ((PDAT, P2), (P2, PDAT)):
            a(ld(r1))
            a(f"""
            s_waitcnt vmcnt(1)
            v_cmp_eq_u64 vcc, s[{NON}:{NON+1}], v[{r0}:{r0+1}]
            s_cmp_eq_u64 vcc, exec
            s_cbranch_scc1 L_pollo_done
            """)
        a(f"s_sub_u32 s{S_T}, s{S_T}, 1\ns_cbranch_scc0 L_pollo")
        a.label("L_pollo_done")
    else:
        poll("L_pollo", S_F3)
    if ST3: stamp(a, 4, True)
    PFO_ = OPT("PFO", 0)
    for st in range(4):
        if PFO_ and st == PFO_ - 1:
            a(f"s_lshl_b32 s{S_T}, s{S_B}, 13\nv_lshlrev_b32 v{PDAT}, 7, v0\nbuffer_load_dword v{PDAT+1}, v{PDAT}, s[8:11], s{S_T} offen sc1")
        for g in dma3(65536 + st*16384, None): a(g)
    a(f"s_waitcnt vmcnt({13 if PFO_ > 1 else 12})")
    a.label("L_p3go")
    if ST3: a(f"s_cmp_eq_u32 s{S_WH}, 0\ns_cbranch_scc1 L_st3x"); stamp(a, 4, True); a.label("L_st3x")
    a("s_barrier")
    if OPT("G3PRIO", "") == "0": a("s_setprio 0")
    if not ST0: stamp(a, 5)
    def reads3(s, buf):
        ws_, os_ = s % 6, s % 4
        O_ = [f"ds_read_b128 {vr(FO_[buf][i],4)}, v{OA if i < 2 else OB} offset:{os_*16384 + (i%2)*1024}" for i in range(4)]
        W_ = [f"ds_read_b64_tr_b16 {vr(FW3[buf][nb]+2*u,2)}, v{WA3[ws_//4][nb]} offset:{(ws_%4)*16384 + u*2048}" for nb in range(4) for u in range(2)]
        return W_[0:2] + O_ + W_[2:]
    def mfmas3(buf, first=False):
        L = [mf16(AC3[i][nb], FW3[buf][nb], FO_[buf][i]) for nb in range(4) for i in range(4)]
        return [x[:x.rindex(",")] + ", 0" for x in L] if first else L
    a(reads3(0, 0))
    fin_setup = f"""
    s_lshl_b32 s{S_T}, s{S_WH}, 3
    s_add_u32 s{S_T}, s{S_T}, s{S_WR}
    s_lshl_b32 s{S_T}, s{S_T}, 13
    v_lshlrev_b32 v{T3}, 4, v0
    v_add_u32 v{T3}, s{S_T}, v{T3}
    v_xor_b32 v{T3+1}, 0x10000, v{T3}
    s_mov_b32 s12, s28
    s_mov_b32 s13, s29
    s_mov_b32 s14, 0x800000
    s_lshl_b32 s{S_T}, s{S_A}, 2
    s_lshl_b32 s{S_SO}, s{S_R3}, 1
    s_add_u32 s{S_T}, s{S_T}, s{S_SO}
    s_add_u32 s{S_T}, s{S_T}, s{S_WH}
    s_lshl_b32 s{S_T}, s{S_T}, 17
    s_lshl_b32 s{S_SO}, s{S_P}, 11
    s_add_u32 s{S_T}, s{S_T}, s{S_SO}
    s_lshl_b32 s{S_SO}, s{S_B}, 8
    s_add_u32 s{S_T}, s{S_T}, s{S_SO}
    s_lshl_b32 s{S_SO}, s{S_C3}, 7
    s_add_u32 s{S_SO}, s{S_T}, s{S_SO}
    s_add_u32 s{S_SO+1}, s{S_SO}, 65536
    v_and_b32 v{T3+2}, 15, v0
    v_lshlrev_b32 v{T3+2}, 12, v{T3+2}
    v_bfe_u32 v{T3+3}, v0, 4, 1
    v_lshl_add_u32 v{T3+2}, v{T3+3}, 5, v{T3+2}
    v_lshrrev_b32 v{T3+3}, 5, v0
    v_lshl_add_u32 v{T3+2}, v{T3+3}, 4, v{T3+2}
    """.strip().split("\n")
    for s in range(16):
        if s < 15:
            a(f"s_waitcnt vmcnt({8 if s <= 12 else 4 if s == 13 else 0}) lgkmcnt(0)\ns_barrier")
            r = reads3(s + 1, 1 - s % 2)
            f = {}
            for k_, x in enumerate(r): f.setdefault(min(15, int(k_ * OPT("S3", 1.0))), []).append(x)
            if s <= 11:
                d = dma3(65536 + (s % 4)*16384, wslot(s % 6))
                for k_, i in enumerate([int(x) for x in os.environ.get("D3POS", "0,4,8,12").split(",")]): f[i] = f.get(i, []) + d[k_]
            if s == 14:
                for i in range(14): f[i] = f.get(i, []) + fin_setup[2*i:2*i+2]
            a(weave(mfmas3(s % 2, s == 0), f))
        else:
            a("s_waitcnt lgkmcnt(0)")
            m = mfmas3(1)
            order = [k_ for k_ in range(16) if k_ % 4 >= 2] + [k_ for k_ in range(16) if k_ % 4 < 2]
            mm = [m[k_] for k_ in order]
            a(mm[:8])
            wr_ = {2*(j % 4) + j//4: f"ds_write_b128 v{T3}, {vr(AC3[2][0]+4*j,4)} offset:{j*1024}" for j in range(8)}
            for k_ in range(8): a(mm[8 + k_]); a(wr_[k_])
    if not ST0: stamp(a, 6)
    a("s_waitcnt lgkmcnt(0)\ns_barrier")
    for j in range(8): a(f"ds_read_b128 {vr(RX+4*j,4)}, v{T3+1} offset:{j*1024}")
    prev = None
    for j in range(5):
        if j < 4:
            qb, np_ = j // 2, j % 2
            t0 = AC3[qb][2*np_]
            a(f"s_waitcnt lgkmcnt({6 - 2*j})")
            for i in range(0, 8, 2): a(f"v_pk_add_f32 v[{t0+i}:{t0+i+1}], v[{t0+i}:{t0+i+1}], v[{RX+8*j+i}:{RX+8*j+i+1}]")
            cur = (16 + 4*j, qb, np_)
            a(pack2(cur[0], t0, t0 + 4))
        else:
            cur = None; a("s_nop 1")
        if prev:
            a(swap2(prev[0]))
            a(f"buffer_store_dwordx4 {vr(prev[0],4)}, v{T3+2}, s[12:15], s{S_SO+prev[1]} offen offset:{prev[2]*64} {os.environ.get('OUTPOL', 'sc0 sc1')}")
        prev = cur
    stamp_flush(a, 7, 1)
    a.label("L_end")
    a("s_endpgm")
    for lab, body, ret in RARE:
        a.label(lab)
        body() if callable(body) else a(body)
        a(f"s_branch {ret}")
    MX = [VT, VT+2]
    a.label("L_fallback")
    a(f"""
    v_mov_b32 v{MX[0]}, 0xff800000
    v_mov_b32 v{MX[1]}, 0xff800000
    s_mov_b32 s{S_IT}, 0
    s_waitcnt vmcnt(0) lgkmcnt(0)
    """)
    a.label("L_fb_max")
    a(f"s_add_u32 s{S_T}, s{S_IT}, s{S_HB}")
    for t in range(2): a(f"buffer_load_dwordx4 {vr(KF[0]+4*t,4)}, v{VD}, s[36:39], s{S_T} offen offset:{t*1024} sc1")
    a("s_waitcnt vmcnt(0)")
    a(qk(0, 0, 0, "0")); a(qk(1, 0, 1, "0"))
    a("s_nop 15")
    for qt in range(2):
        for i in range(0, 16, 2): a(f"v_max3_f32 v{MX[qt]}, v{MX[qt]}, v{S[qt]+i}, v{S[qt]+i+1}")
    a(f"""
    s_add_u32 s{S_IT}, s{S_IT}, 4096
    s_cmp_lt_u32 s{S_IT}, 0x40000
    s_cbranch_scc1 L_fb_max
    """)
    max_to_nm(MX[0], 0); max_to_nm(MX[1], 1)
    for i in range(O[0], LA[1] + 4, 2): a(f"v_mov_b64 v[{i}:{i+1}], 0")
    a(f"s_mov_b32 s{S_IT}, 0")
    a.label("L_fb_main")
    a(f"s_add_u32 s{S_T}, s{S_IT}, s{S_HB}")
    for t in range(2): a(f"buffer_load_dwordx4 {vr(KF[0]+4*t,4)}, v{VD}, s[36:39], s{S_T} offen offset:{t*1024} sc1")
    for t in range(2): a(f"buffer_load_dwordx4 {vr(VF[0]+4*t,4)}, v{VD}, s[36:39], s{S_T} offen offset:{2048+t*1024} sc1")
    a("s_waitcnt vmcnt(0)")
    a(qk(0, 0, 0)); a(qk(1, 0, 1))
    a("s_nop 15")
    for qt in range(2):
        for i in range(16): a(f"v_exp_f32 v{S[qt]+i}, v{S[qt]+i}")
    a("s_nop 1")
    if DENSE:
        for qt in range(2):
            for i in range(8): a(f"v_cvt_pk_bf16_f32 v{S[qt]+i}, v{S[qt]+2*i}, v{S[qt]+2*i+1}")
        a("s_nop 1")
    for qt in range(2):
        for t in range(2):
            a(pv(qt, 0, qt, t))
            if rs(qt, qt, t): a(rs(qt, qt, t))
    a(f"""
    s_add_u32 s{S_IT}, s{S_IT}, 4096
    s_cmp_lt_u32 s{S_IT}, 0x40000
    s_cbranch_scc1 L_fb_main
    s_nop 15
    """)
    if DENSE: a([f"v_add_f32 v{LA[qt]}, v{LA[qt]}, v{LA[qt]+1}" for qt in range(2)])
    a(finish(0))
    a("s_branch L_fin")
    return f""".p2align 6
.amdhsa_kernel {name}
  .amdhsa_next_free_vgpr {NV}
  .amdhsa_next_free_sgpr 102
  .amdhsa_accum_offset {NV}
  .amdhsa_group_segment_fixed_size 0
  .amdhsa_kernarg_size 72
  .amdhsa_user_sgpr_count 2
  .amdhsa_user_sgpr_kernarg_segment_ptr 1
  .amdhsa_system_sgpr_workgroup_id_x 1
.end_amdhsa_kernel"""

def main():
    out = sys.argv[1] if len(sys.argv) > 1 else f"cdna_kernels/{NAME}.s"
    a = Asm()
    k = gen(a)
    hdr = open(f"cdna_kernels/{NAME}.s.ref").read().split("\n")
    hdr = [l for l in hdr if l.startswith(";") and "@launch" not in l]
    hdr.append(f"; @launch grid=(256,1,1) block=(512,1,1) lds={LDS_BYTES}")
    txt = "\n".join(hdr) + '\n.amdgcn_target "amdgcn-amd-amdhsa--gfx950"\n.text\n' + a.text() + '\n.section .rodata,"a"\n' + k + "\n"
    open(out, "w").write(txt)

if __name__ == "__main__":
    main()
```

```python
import sys, math, os, struct
from gen2 import Asm, vr, f2u, mf32, mf16, weave, NAME

STAMP = os.environ.get("STAMP", "0") == "1"
def OPT(k, d): return type(d)(os.environ.get(k, d))

KVWS = 0
OWS = 16 << 20
FKV = 24 << 20
FO = FKV + 65536
WS_BYTES = 25 << 20
STAMP_BASE = 64 << 20
CSCALE = math.log2(math.e) / math.sqrt(32.0)
LDS_BYTES = 163840
SPIN_MAX = 1 << 16

S_W, S_P, S_A, S_B, S_T = 3, 4, 5, 6, 7
S_WR, S_WH, S_IT = 40, 41, 42
NON = 34

ST3 = os.environ.get("ST3", "") == "1"
STG = os.environ.get("STG", "") == "1"
STG1 = os.environ.get("STG1", "") == "1"
def stamp_stage(a, lane, g1=False):
    if STG and g1 == STG1:
        a(f"s_memtime s[96:97]\ns_memrealtime s[98:99]\ns_lshl_b64 exec, 1, {lane}\ns_waitcnt lgkmcnt(0)\nv_mov_b32 v14, s96\nv_mov_b32 v15, s98\ns_mov_b64 exec, -1")
def stamp(a, i, alt=False):
    if ST3 and i in (1, 2, 3, 4) and not alt: return
    if STAMP and not STG:
        a(f"s_memtime s[{64+4*i}:{65+4*i}]")
        a(f"s_memrealtime s[{66+4*i}:{67+4*i}]")
        a("s_waitcnt lgkmcnt(0)")
def stamp_flush(a, n, vt):
    if not STAMP: return
    a("s_waitcnt vmcnt(0) lgkmcnt(0)")
    stamp(a, n)
    a(f"""
    s_add_u32 s56, s32, {STAMP_BASE}
    s_addc_u32 s57, s33, 0
    s_mov_b32 s58, 0x100000
    s_mov_b32 s59, 0x20000
    s_lshl_b32 s60, s2, 3
    s_add_u32 s60, s60, s{S_W}
    s_lshl_b32 s60, s60, 6
    v_mov_b32 v{vt}, 0
    """)
    if STG:
        a(f"v_lshlrev_b32 v{vt}, 3, v0\ns_mov_b64 exec, 0xff\nbuffer_store_dwordx2 v[14:15], v{vt}, s[56:59], s60 offen")
        return
    for i in range(n + 1):
        a(f"v_mov_b32 v{vt+1}, s{64+4*i}")
        a(f"v_mov_b32 v{vt+2}, s{66+4*i}")
        a(f"buffer_store_dwordx2 v[{vt+1}:{vt+2}], v{vt}, s[56:59], s60 offen offset:{8*i}")
        a("s_nop 1")

DENSE = "d" in os.environ.get("ATX", "")
def gen(a):
    name = NAME + "_kernel"
    a.raw(f".globl {name}\n.p2align 8\n.type {name},@function\n{name}:")
    stamp(a, 0)
    RARE = []
    def emit(L):
        for x in L:
            a(x)
            if " m0," in x: a("s_nop 0")
    PKB = [48, 32]; Q = [16, 24]; PK = 32; KF = [64, 72]; VF = [80, 88]; NM = [96, 112]; S = [128, 144, 160, 176]
    O = [192, 208]; LA = [224, 228]; ONES = 232; IDX = 236; ZERO = 237
    FDAT, FOFF, PDAT = 238, 240, 242
    XB = [244, 245]; VDE, VDO = 246, 247
    NV = 256
    def poll(lab, soff, mask=None, first_loaded=False):
        ld = f"buffer_load_dwordx2 v[{PDAT}:{PDAT+1}], v{FOFF}, s[36:39], s{soff} offen sc1"
        a(f"s_mov_b32 s{S_T}, {SPIN_MAX}")
        if not first_loaded: a(ld)
        a.label(lab)
        a(f"""
        s_waitcnt vmcnt(0)
        v_cmp_eq_u64 vcc, s[{NON}:{NON+1}], v[{PDAT}:{PDAT+1}]
        """)
        if mask: a(f"s_or_b64 vcc, vcc, {mask}")
        a(f"""
        s_cmp_eq_u64 vcc, exec
        s_cbranch_scc1 {lab}_done
        s_sub_u32 s{S_T}, s{S_T}, 1
        s_cbranch_scc1 {lab}_done
        s_sleep {OPT("PSLEEP", 8)}
        {ld}
        s_branch {lab}
        """)
        a.label(lab + "_done")
    XA = [2, 3]; WA = [4, 5]; D0, D1, D2, PFV, PFD = 6, 7, 8, 9, 10
    VT = 11
    FX = [[16 + 16*buf + 4*rb for rb in range(4)] for buf in range(2)]
    FW = [[48 + 24*buf + 4*cb for cb in range(6)] for buf in range(2)]
    ACC = [[96 + 16*cb + 4*rb for rb in range(4)] for cb in range(6)]
    S_KX, S_KW, T0, S_M0X, S_M0W, S_XF, S_XN, S_PFO, S_PFI = 43, 44, 45, 47, 48, 49, 50, 56, 57
    W0, W1 = 98304, 122880
    RSZ = OPT("RSZ", 2)
    NTW, NTX, NTP = os.environ.get("NTW", ""), os.environ.get("NTX", ""), os.environ.get("NTP", "")
    PF0, PFSTEP = OPT("PF0", 3), OPT("PFSTEP", 4)
    a(f"""
    s_cmp_ge_u32 s2, 256
    s_cbranch_scc1 L_end
    s_load_dwordx16 s[16:31], s[0:1], 0
    s_load_dwordx2 s[32:33], s[0:1], 64
    s_memrealtime s[{NON}:{NON+1}]
    v_lshrrev_b32 v1, 6, v0
    v_and_b32 v0, 63, v0
    v_readfirstlane_b32 s{S_W}, v1
    s_and_b32 s{S_T}, s2, 7
    s_lshr_b32 s{S_B}, s2, 3
    s_lshr_b32 s{S_P}, s{S_T}, 2
    s_and_b32 s{S_A}, s{S_T}, 3
    s_lshl_b32 s{S_A}, s{S_A}, 2
    s_and_b32 s{S_T}, s{S_B}, 3
    s_or_b32 s{S_A}, s{S_A}, s{S_T}
    s_lshr_b32 s{S_B}, s{S_B}, 2
    s_and_b32 s{S_WR}, s{S_W}, 3
    s_lshr_b32 s{S_WH}, s{S_W}, 2
    s_mul_i32 s{S_M0X}, s{S_WR}, 7
    s_add_u32 s{S_T}, s{S_WR}, 28
    s_cmp_eq_u32 s{S_WH}, 0
    s_cselect_b32 s{S_M0X}, s{S_T}, s{S_M0X}
    v_lshrrev_b32 v{VT}, 3, v0
    s_lshl_b32 s{S_T}, s{S_M0X}, 3
    v_add_u32 v{VT+4}, s{S_T}, v{VT}
    v_lshlrev_b32 v{VT+4}, 11, v{VT+4}
    v_and_b32 v{VT+1}, 7, v0
    v_lshrrev_b32 v{VT+2}, 4, v0
    v_xor_b32 v{VT+3}, v{VT+1}, v{VT+2}
    s_and_b32 s{S_T}, s{S_WR}, 1
    s_lshl_b32 s{S_T}, s{S_T}, 2
    v_xor_b32 v{VT+3}, s{S_T}, v{VT+3}
    v_lshl_add_u32 v{D2}, v{VT+3}, 4, v{VT+4}
    s_lshl_b32 s{S_M0X}, s{S_M0X}, 10
    s_lshl_b32 s{S_T}, s{S_WR}, 4
    v_add_u32 v{VT}, s{S_T}, v{VT}
    v_mul_u32_u24 v{VT}, 6144, v{VT}
    v_and_b32 v{VT+2}, 1, v{VT+2}
    v_lshlrev_b32 v{VT+2}, 2, v{VT+2}
    v_xor_b32 v{VT+3}, v{VT+1}, v{VT+2}
    v_lshl_add_u32 v{D0}, v{VT+3}, 4, v{VT}
    v_xor_b32 v{D1}, 32, v{D0}
    v_add_u32 v{D1}, 49152, v{D1}
    s_mul_i32 s{S_M0W}, s{S_WR}, 6144
    s_add_u32 s{S_M0W}, s{S_M0W}, {W0}
    s_mov_b32 s{S_KX}, 0
    s_mov_b32 s{S_KW}, 0
    s_mov_b32 s11, 0x20000
    s_mov_b32 s15, 0x20000
    s_mov_b32 s39, 0x20000
    s_mov_b32 s55, 0x20000
    v_mov_b32 v{ZERO}, 0
    s_waitcnt lgkmcnt(0)
    s_cmp_eq_u32 s{S_P}, 0
    s_cselect_b32 s8, s16, s22
    s_cselect_b32 s9, s17, s23
    s_cselect_b32 s12, s18, s24
    s_cselect_b32 s13, s19, s25
    s_lshl_b32 s{S_T}, s{S_B}, 19
    s_add_u32 s8, s8, s{S_T}
    s_addc_u32 s9, s9, 0
    s_sub_u32 s10, 0x400000, s{S_T}
    s_lshl_b32 s{S_T}, s{S_A}, 7
    s_add_u32 s12, s12, s{S_T}
    s_addc_u32 s13, s13, 0
    s_sub_u32 s14, 0x600000, s{S_T}
    s_cmp_lg_u32 s{S_WH}, 0
    s_cbranch_scc1 L_proB
    """)
    def burstW(stage):
        L = []
        for g in range(2):
            L.append(f"s_add_u32 m0, s{S_M0W}, {stage*(W1-W0) + g*3072}")
            for s_ in range(3):
                if s_: L.append(f"s_add_u32 s{T0+s_%2}, s{S_KW}, {s_*1024}")
                else: L.append("s_nop 0")
                L.append(f"buffer_load_dwordx4 v{D0+g}, s[12:15], s{T0+s_%2 if s_ else S_KW} offen offset:{s_*1024} {NTW} lds")
        L.append(f"s_add_u32 s{S_KW}, s{S_KW}, 393216")
        return L
    def burstXA(slot):
        return [f"s_add_u32 m0, s{S_M0X}, {slot}", "s_nop 0", f"buffer_load_dwordx4 v{D2}, s[8:11], s{S_KX} offen {NTX} lds", f"s_add_u32 s{S_KX}, s{S_KX}, 128"]
    def burstXB(slot):
        L = [f"s_add_u32 m0, s{S_M0X}, {slot}"]
        for j in range(7):
            if j == 4: L.append("s_add_u32 m0, m0, 4096")
            L.append(f"s_add_u32 s{T0+j%2}, s{S_KX}, {j*16384 - (j%4)*1024}")
            L.append(f"buffer_load_dwordx4 v{D2 if j%2==0 else D1}, s[8:11], s{T0+j%2} offen offset:{(j%4)*1024} {NTX} lds")
        L.append(f"s_add_u32 s{S_KX}, s{S_KX}, 128")
        return L
    a(burstW(0) + burstXA(0) + burstW(1) + burstXA(32768) + burstXA(65536))
    a(f"""
    s_or_b32 s{S_T}, s2, s{S_W}
    s_cmp_lg_u32 s{S_T}, 0
    s_cbranch_scc1 L_pro2
    s_mov_b32 s52, s30
    s_mov_b32 s53, s31
    s_mov_b32 s54, 256
    s_or_b32 s{NON}, s{NON}, 1
    v_mov_b32 v{FDAT}, s{NON}
    v_mov_b32 v{FDAT+1}, s{NON+1}
    s_mov_b64 exec, 1
    buffer_store_dwordx2 v[{FDAT}:{FDAT+1}], v{ZERO}, s[52:55], 0 offen sc1
    s_mov_b64 exec, -1
    s_branch L_pro2
    """)
    a.label("L_proB")
    a(f"v_xor_b32 v{D1}, 64, v{D2}")
    a(burstXB(0) + burstXB(32768))
    a.label("L_pro2")
    a(f"""
    s_lshl_b32 s{S_T}, s{S_B}, 2
    s_add_u32 s{S_T}, s{S_T}, s{S_WR}
    s_lshl_b32 s{S_T}, s{S_T}, 2
    v_and_b32 v{VT+1}, 3, v0
    v_add_u32 v{VT+1}, s{S_T}, v{VT+1}
    v_bfe_u32 v{VT+2}, v0, 4, 1
    v_lshl_add_u32 v{VT+1}, v{VT+2}, 7, v{VT+1}
    v_mul_u32_u24 v{VT+1}, 6144, v{VT+1}
    v_bfe_u32 v{VT+2}, v0, 2, 2
    v_min_u32 v{VT+2}, 2, v{VT+2}
    v_lshl_add_u32 v{PFV}, v{VT+2}, 11, v{VT+1}
    s_mov_b32 s{S_PFO}, {393216 * PF0}
    s_and_b32 s{S_T}, s{S_A}, 3
    s_lshl_b32 s{S_T}, s{S_T}, 2
    s_add_u32 s{S_T}, s{S_T}, s{S_WR}
    s_lshl_b32 s{S_T}, s{S_T}, 4
    v_and_b32 v{VT}, 15, v0
    v_add_u32 v{VT}, s{S_T}, v{VT}
    v_lshlrev_b32 v{VT}, 11, v{VT}
    v_lshrrev_b32 v{VT+1}, 4, v0
    v_lshl_add_u32 v{VT}, v{VT+1}, 7, v{VT}
    s_cmp_eq_u32 s{S_WH}, 0
    s_cselect_b64 vcc, -1, 0
    s_cselect_b32 s{S_PFO}, {128 * OPT("PFX0", 4)}, s{S_PFO}
    v_cndmask_b32 v{PFV}, v{PFV}, v{VT}, vcc
    v_and_b32 v{VT}, 15, v0
    s_lshl_b32 s{S_T}, s{S_WR}, 6
    v_add_u32 v{VT}, s{S_T}, v{VT}
    v_lshlrev_b32 v{VT}, 7, v{VT}
    v_lshrrev_b32 v{VT+1}, 4, v0
    v_bfe_u32 v{VT+2}, v0, 1, 3
    v_xor_b32 v{VT+2}, v{VT+1}, v{VT+2}
    v_lshl_add_u32 v{XA[0]}, v{VT+2}, 4, v{VT}
    v_xor_b32 v{XA[1]}, 64, v{XA[0]}
    v_mov_b32 v{XB[0]}, v{XA[0]}
    v_mov_b32 v{XB[1]}, v{XA[1]}
    v_mul_u32_u24 v{VT}, 3072, v{VT+1}
    v_bfe_u32 v{VT+2}, v0, 2, 2
    v_lshl_add_u32 v{VT}, v{VT+2}, 7, v{VT}
    v_bfe_u32 v{VT+3}, v0, 1, 1
    s_lshl_b32 s{S_T}, s{S_WH}, 2
    v_add_u32 v{VT+3}, s{S_T}, v{VT+3}
    v_bfe_u32 v{VT+4}, v0, 3, 1
    v_lshlrev_b32 v{VT+4}, 2, v{VT+4}
    v_xor_b32 v{VT+3}, v{VT+3}, v{VT+4}
    v_bfe_u32 v{VT+4}, v0, 4, 1
    v_lshlrev_b32 v{VT+4}, 1, v{VT+4}
    v_xor_b32 v{VT+3}, v{VT+3}, v{VT+4}
    v_lshl_add_u32 v{VT}, v{VT+3}, 4, v{VT}
    v_and_b32 v{VT+4}, 1, v0
    v_lshl_add_u32 v{VT}, v{VT+4}, 3, v{VT}
    v_add_u32 v{WA[0]}, {W0}, v{VT}
    v_xor_b32 v{WA[1]}, 32, v{WA[0]}
    v_mov_b32 v{IDX}, {"0x44444444" if DENSE else "0xdddddddd"}
    {f"v_and_b32 v{VT}, 1, v0" if DENSE else ""}
    {f"v_mul_u32_u24 v{VT}, 0xaaaa, v{VT}" if DENSE else ""}
    {f"v_add_u32 v{IDX}, v{IDX}, v{VT}" if DENSE else ""}
    v_and_b32 v{VT}, {[4, 7, 15][RSZ]}, v0
    v_mov_b32 v{VT+1}, 0x3f803f80
    v_cmp_eq_u32 vcc, 0, v{VT}
    v_lshlrev_b32 v{VDE}, 4, v0
    v_lshlrev_b32 v{VDO}, 4, v0
    v_cndmask_b32 v{ONES}, v{ZERO}, v{VT+1}, vcc
    v_cndmask_b32 v{ONES+1}, v{ZERO}, v{VT+1}, vcc
    v_cmp_eq_u32 vcc, 4, v{VT}
    s_nop 1
    v_cndmask_b32 v{ONES+2}, v{ZERO}, v{VT+1}, vcc
    v_cndmask_b32 v{ONES+3}, v{ZERO}, v{VT+1}, vcc
    v_and_b32 v{FOFF}, 15, v0
    v_lshlrev_b32 v{FOFF}, 3, v{FOFF}
    s_lshl_b32 s{S_T}, s{S_B}, 3
    v_mov_b32 v{FOFF+1}, s{S_T}
    s_mov_b32 s{S_IT}, 0
    s_mov_b32 s{S_XN}, 32768
    """)
    for i in range(96, 232, 2): a(f"v_mov_b64 v[{i}:{i+1}], 0")
    BULK = OPT("BULK", 0)
    if BULK:
        a(f"""
        s_lshl_b32 s{S_T}, s{S_A}, 7
        s_sub_u32 s52, s12, s{S_T}
        s_subb_u32 s53, s13, 0
        s_mov_b32 s54, 0x600000
        s_lshl_b32 s{S_T}, s{S_A}, 3
        s_add_u32 s{S_T}, s{S_T}, s{S_B}
        s_lshl_b32 s{S_T}, s{S_T}, 3
        s_add_u32 s{S_T}, s{S_T}, s{S_W}
        s_mul_i32 s{S_T}, s{S_T}, 6144
        v_min_u32 v{VT}, 47, v0
        v_lshlrev_b32 v{VT}, 7, v{VT}
        {"s_sleep " + str(OPT("BSLEEP", 0)) if OPT("BSLEEP", 0) else ""}
        buffer_load_dword v{PFD}, v{VT}, s[52:55], s{S_T} offen
        s_cmp_lg_u32 s{S_WH}, 0
        s_cbranch_scc1 L_nobx
        s_lshl_b32 s{S_T}, s{S_A}, 2
        s_add_u32 s{S_T}, s{S_T}, s{S_WR}
        s_lshl_b32 s{S_T}, s{S_T}, 13
        v_lshlrev_b32 v{VT+1}, 7, v0
        buffer_load_dword v{PFD}, v{VT+1}, s[8:11], s{S_T} offen
        """)
        a.label("L_nobx")
    def reads1(stage, t, buf):
        X = [f"ds_read_b128 {vr(FX[buf][rb],4)}, v{XA[t]} offset:{rb*2048}" for rb in range(4)]
        W = []
        for cb in range(6):
            for u in range(2):
                W.append(f"ds_read_b64_tr_b16 {vr(FW[buf][cb]+2*u,2)}, v{WA[cb%2]} offset:{stage*(W1-W0) + t*12288 + (cb//2)*1024 + u*512}")
        return W[0:2] + X + W[2:]
    def mfmas1(buf, natural=False):
        L = [mf16(ACC[cb][rb], FW[buf][cb], FX[buf][rb]) if cb < 4 else mf16(ACC[cb][rb], FX[buf][rb], FW[buf][cb])
             for cb in range(6) for rb in range(4)]
        o = "cb" if natural else os.environ.get("ORD1", "A")
        if o == "rb": L = [L[4*cb + rb] for rb in range(4) for cb in range(6)]
        if o == "snake": L = [L[4*cb + (rb if cb % 2 == 0 else 3 - rb)] for cb in range(6) for rb in range(4)]
        if o == "A": L = [L[4*cb + (rb if cb % 2 == 0 else 3 - rb)] for cb in range(4) for rb in range(4)] + [L[4*(4 + (c ^ (rb & 1))) + rb] for rb in range(4) for c in range(2)]
        if o == "B": L = [L[4*(cb if rb % 2 == 0 else 3 - cb) + rb] for rb in range(4) for cb in range(4)] + [L[4*cb + (rb if cb % 2 else 3 - rb)] for cb in (4, 5) for rb in range(4)]
        return L
    def spread(r, key):
        sp, off = float(os.environ.get(key, "1.4" if key in ("SA1", "SB1") else "1")), int(os.environ.get(key + "O", "0"))
        f = {}
        for k_, x in enumerate(r): f.setdefault(min(23, off + int(k_ * sp)), []).append(x)
        return f
    def rot_x():
        return [f"v_add_u32 v{XA[1]}, s{S_XN}, v{XB[1]}", f"s_mov_b32 s{S_XF}, s{S_XN}", f"s_add_u32 s{S_XN}, s{S_XN}, 32768",
                f"s_cmp_eq_u32 s{S_XN}, 98304", f"s_cselect_b32 s{S_XN}, 0, s{S_XN}"]
    BSPR = OPT("BSPR", 0)
    def place(f, burst, pre):
        if BSPR == 0:
            pre += burst; return
        groups, cur = [], []
        for x in burst:
            cur.append(x)
            if " lds" in x or "buffer_load_dword " in x: groups.append(cur); cur = []
        if cur: groups[-1] += cur
        pre += groups[0]
        for k_, g in enumerate(groups[1:]): f[(k_ + 1) * BSPR - 1] = f.get((k_ + 1) * BSPR - 1, []) + g
    a(f"""
    s_cmp_lg_u32 s{S_WH}, 0
    s_cbranch_scc1 L_g1B_pre
    s_mov_b32 s{S_XF}, 0
    {"s_setprio 1" if OPT("G1PRIO", "") == "A" else ""}
    {f"buffer_load_dword v{PFD}, v{PFV}, s[8:11], s{S_PFO} offen {os.environ.get('NTXP', '')}" if OPT("XPFE", 0) else ""}
    s_waitcnt vmcnt({8 + 2*BULK + OPT("XPFE", 0)})
    s_barrier
    """)
    stamp(a, 1)
    a(reads1(0, 0, 0))
    a.raw(".p2align 6")
    a.label("L_g1A")
    stamp_stage(a, f"s{S_IT}", True)
    a(f"s_cmp_eq_u32 s{S_IT}, 7\ns_cselect_b32 s14, 0, s14")
    for stage in range(2):
        a("s_waitcnt lgkmcnt(0)")
        r = reads1(stage, 1, 1)
        a(weave(mfmas1(0), spread(r, "SA0")))
        if stage == 1: a(f"s_cmp_ge_u32 s{S_IT}, 6\ns_cselect_b32 s10, 0, s10")
        a(f"v_add_u32 v{XA[0]}, s{S_XN}, v{XB[0]}")
        PFX = OPT("PFX", 0)
        a(f"s_waitcnt vmcnt({2 if PFX and stage == 1 else 1}) lgkmcnt(0)\ns_barrier")
        r = reads1(1 - stage, 0, 0)
        RA1 = OPT("RA1", 1)
        f = spread(r, "SA1")
        pre = []
        if stage == 1 :
            a(f"s_cmp_eq_u32 s{S_IT}, 7\ns_cbranch_scc1 L_g1A_last")
        if OPT("ARD", 0): pre += [x for i in sorted(f) for x in f[i]]; f = {}
        pfx = [f"s_cmp_lt_u32 s{S_PFO}, 2048", f"s_cselect_b32 s{T0}, s{S_PFO}, 0x7fff0000", f"buffer_load_dword v{PFD}, v{PFV}, s[8:11], s{T0} offen", f"s_add_u32 s{S_PFO}, s{S_PFO}, 512"]
        place(f, burstW(stage) + burstXA(f"s{S_XF}") + (pfx if PFX and stage == 0 else []), pre)
        f[20] = f.get(20, []) + rot_x()
        a(pre); a(weave(mfmas1(1), f))
    a(f"""
    s_add_u32 s{S_IT}, s{S_IT}, 1
    s_branch L_g1A
    """)
    a.label("L_g1B_pre")
    NPFE = OPT("NPFE", 0)
    PFE_W = f"buffer_load_dword v{PFD}, v{PFV}, s[12:15], s{S_PFO} offen {NTP}\ns_add_u32 s{S_PFO}, s{S_PFO}, {393216 * 4}\n" * NPFE
    if OPT("G1PRIO", "") == "B": a("s_setprio 1")
    a(f"s_mov_b32 s{S_XF}, 65536\n{PFE_W}s_waitcnt vmcnt({7 + BULK + NPFE})\ns_barrier")
    stamp(a, 1)
    a(reads1(0, 0, 0))
    a.raw(".p2align 6")
    a.label("L_g1B")
    stamp_stage(a, f"s{S_IT}", True)
    a(f"s_cmp_eq_u32 s{S_IT}, 7\ns_cselect_b32 s10, 0, s10")
    if OPT("TOUCH", 0):
        a(f"""
        s_cmp_eq_u32 s{S_IT}, 4
        s_cbranch_scc0 L_t1
        s_mov_b32 s12, s32
        s_mov_b32 s13, s33
        s_mov_b32 s14, {WS_BYTES}
        s_lshl_b32 s{S_T}, s{S_P}, 4
        s_add_u32 s{S_T}, s{S_T}, s{S_A}
        s_lshl_b32 s{T0}, s{S_T}, 10
        s_add_u32 s{T0}, s{T0}, {FKV}
        s_lshl_b32 s{S_T}, s{S_T}, 4
        s_add_u32 s{S_T}, s{S_T}, s{S_B}
        s_lshl_b32 s{S_T}, s{S_T}, 2
        s_add_u32 s{S_T}, s{S_T}, s{S_WR}
        s_lshl_b32 s{S_T}, s{S_T}, 13
        v_and_b32 v{VT}, 1, v0
        v_lshlrev_b32 v{VT+1}, 18, v{VT}
        v_add_u32 v{PFV}, s{S_T}, v{VT+1}
        s_lshl_b32 s{S_T}, s{S_P}, 3
        s_add_u32 s{S_T}, s{S_T}, s{S_B}
        s_lshl_b32 s{S_T}, s{S_T}, 2
        s_add_u32 s{S_T}, s{S_T}, s{S_WR}
        s_lshl_b32 s{S_T}, s{S_T}, 5
        s_add_u32 s{S_T}, s{S_T}, s{S_A}
        s_lshl_b32 s{S_T}, s{S_T}, 12
        s_add_u32 s{S_T}, s{S_T}, {OWS}
        v_lshlrev_b32 v{VT+1}, 16, v{VT}
        v_add_u32 v{VT+1}, s{S_T}, v{VT+1}
        v_cmp_lt_u32 vcc, 1, v0
        v_mov_b32 v{VT+2}, s{T0}
        s_mov_b32 s{S_PFO}, 0
        v_cndmask_b32 v{PFV}, v{PFV}, v{VT+1}, vcc
        v_cmp_lt_u32 vcc, 3, v0
        s_nop 1
        v_cndmask_b32 v{PFV}, v{PFV}, v{VT+2}, vcc
        """)
        a.label("L_t1")
        a(f"""
        s_cmp_eq_u32 s{S_IT}, 5
        s_cbranch_scc0 L_t2
        s_mov_b32 s12, s28
        s_mov_b32 s13, s29
        s_mov_b32 s14, 0x800000
        s_lshl_b32 s{S_T}, s{S_A}, 2
        s_add_u32 s{S_T}, s{S_T}, s{S_WR}
        s_lshl_b32 s{S_T}, s{S_T}, 17
        s_lshl_b32 s{T0}, s{S_P}, 11
        s_add_u32 s{S_T}, s{S_T}, s{T0}
        s_lshl_b32 s{T0}, s{S_B}, 8
        s_add_u32 s{S_PFO}, s{S_T}, s{T0}
        v_and_b32 v{VT}, 1, v0
        v_lshlrev_b32 v{PFV}, 16, v{VT}
        """)
        a.label("L_t2")
        a(f"s_cmp_ge_u32 s{S_IT}, 6\ns_cselect_b32 s14, 0, s14")
    pf = [f"buffer_load_dword v{PFD}, v{PFV}, s[12:15], s{S_PFO} offen {NTP}", f"s_add_u32 s{S_PFO}, s{S_PFO}, {393216 * PFSTEP}"]
    for stage in range(2):
        r = reads1(stage, 1, 1)
        RB, BPOS = OPT("RB", 1), OPT("BPOS", -1)
        f = spread(r, "SB0")
        bx = burstXB(f"s{S_XF}") + (pf if stage == 0 else [])
        if BPOS < 0: a(bx)
        else: f[BPOS] = f.get(BPOS, []) + bx
        a("s_waitcnt lgkmcnt(0)")
        a(weave(mfmas1(0), f))
        a(f"v_add_u32 v{XA[0]}, s{S_XN}, v{XB[0]}")
        a(f"s_waitcnt vmcnt({8 if stage == 0 else 7}) lgkmcnt(0)\ns_barrier")
        if stage == 1:
            a(f"s_cmp_eq_u32 s{S_IT}, 7\ns_cbranch_scc1 L_g1A_last")
        r = reads1(1 - stage, 0, 0)
        RB1 = OPT("RB1", 1)
        f = spread(r, "SB1")
        f[20] = f.get(20, []) + [f"v_add_u32 v{XA[1]}, s{S_XN}, v{XB[1]}", f"s_add_u32 s{S_XF}, s{S_XF}, 32768", f"s_cmp_eq_u32 s{S_XF}, 98304",
                 f"s_cselect_b32 s{S_XF}, 0, s{S_XF}", f"s_add_u32 s{S_XN}, s{S_XN}, 32768",
                 f"s_cmp_eq_u32 s{S_XN}, 98304", f"s_cselect_b32 s{S_XN}, 0, s{S_XN}"]
        a(weave(mfmas1(1), f))
    a(f"""
    s_add_u32 s{S_IT}, s{S_IT}, 1
    s_branch L_g1B
    """)
    VKV, VD = 2, 3
    VT = 4
    S_SO, S_ST1, S_ST2, S_M0, S_KV, S_FL, S_HB, S_GRP, MSK = 43, 44, 45, 46, 47, 49, 50, 51, 56
    a.label("L_g1A_last")
    setup = f"""
    s_mov_b32 s36, s32
    s_mov_b32 s37, s33
    s_mov_b32 s38, {WS_BYTES}
    s_mov_b32 s52, s30
    s_mov_b32 s53, s31
    s_mov_b32 s54, 256
    buffer_load_dwordx2 v[{FDAT}:{FDAT+1}], v{ZERO}, s[52:55], 0 offen sc1
    s_lshl_b32 s{S_T}, s{S_P}, 4
    s_add_u32 s{S_T}, s{S_T}, s{S_A}
    s_lshl_b32 s{S_FL}, s{S_T}, 3
    s_lshl_b32 s{S_T}, s{S_T}, 1
    s_add_u32 s{S_T}, s{S_T}, s{S_WH}
    s_lshl_b32 s{S_HB}, s{S_T}, 18
    s_add_u32 s{S_FL}, s{S_FL}, s{S_W}
    s_lshl_b32 s{S_FL}, s{S_FL}, 7
    s_add_u32 s{S_FL}, s{S_FL}, {FKV}
    s_lshl_b32 s{S_T}, s{S_WR}, 13
    s_add_u32 s{S_T}, s{S_T}, s{S_HB}
    s_add_u32 s8, s32, s{S_T}
    s_addc_u32 s9, s33, 0
    s_mov_b32 s10, 0x40000
    s_lshl_b32 s{S_KV}, s{S_B}, 15
    s_add_u32 s{S_KV}, s{S_KV}, s{S_T}
    s_add_u32 s{S_KV+1}, s{S_KV}, 4096
    s_lshl_b32 s{S_M0}, s{S_W}, 13
    v_lshlrev_b32 v{VD}, 4, v0
    v_add_u32 v{VKV}, s{S_M0}, v{VD}
    s_cmp_eq_u32 s{S_P}, 0
    s_cselect_b32 s12, s20, s26
    s_cselect_b32 s13, s21, s27
    s_lshl_b32 s{S_T}, s{S_B}, 8
    s_add_u32 s12, s12, s{S_T}
    s_addc_u32 s13, s13, 0
    s_sub_u32 s14, 0x200000, s{S_T}
    s_mov_b32 s{S_ST1}, 0
    s_mov_b32 s{MSK}, 0xfff8fff8
    s_mov_b32 s{MSK+1}, s{MSK}
    s_mov_b32 s58, {f2u(CSCALE):#x}
    s_mov_b32 s59, s58
    """.strip().split("\n")
    m = mfmas1(1, True)
    EARLY = OPT("EARLY", 1)
    if EARLY: m = [m[4*cb + rb] for rb2 in (0, 2) for cb in range(2, 6) for rb in (rb2, rb2 + 1)] + m[:8]
    else: m = m[8:] + m[:8]
    LASTM = m
    def pack2(dst, t0, t1):
        return [f"v_cvt_pk_bf16_f32 v{dst}, v{t0}, v{t0+1}", f"v_cvt_pk_bf16_f32 v{dst+1}, v{t0+2}, v{t0+3}",
                f"v_cvt_pk_bf16_f32 v{dst+2}, v{t1}, v{t1+1}", f"v_cvt_pk_bf16_f32 v{dst+3}, v{t1+2}, v{t1+3}"]
    def swap2(dst):
        return [f"v_permlane16_swap_b32 v{dst}, v{dst+2}", f"v_permlane16_swap_b32 v{dst+1}, v{dst+3}"]
    def swap32(dst):
        return [f"v_permlane32_swap_b32 v{dst}, v{dst+2}", f"v_permlane32_swap_b32 v{dst+1}, v{dst+3}"]
    frs = []
    for b in range(2):
        for t in range(2): frs.append((PKB[b] + 4*t, ACC[2+t][2*b], ACC[2+t][2*b+1], b, t*1024))
        for t in range(2): frs.append((PKB[b] + 8 + 4*t, ACC[4][2*b+t], ACC[5][2*b+t], b, 2048 + t*1024))
    kvstores = [f"buffer_store_dwordx4 {vr(fr[0],4)}, v{VD}, s[36:39], s{S_KV+fr[3]} offen offset:{fr[4]} {os.environ.get('KVPOL', 'sc1')}" for fr in frs]
    NE0 = OPT("NE0", 4)
    packs = []
    prev = None
    for k_, fr in enumerate(frs):
        L = pack2(fr[0], fr[1], fr[2])
        if prev:
            L += swap2(prev[0])
            if DENSE and prev[4] >= 2048: L += ["s_nop 1"] + swap32(prev[0])
            if k_ - 1 < NE0: L.append(kvstores[k_ - 1])
            L.append(f"ds_write_b128 v{VKV}, {vr(prev[0],4)} offset:{prev[3]*4096+prev[4]}")
        packs.append(L)
        prev = fr
    if EARLY:
        f = {i: setup[3*i:3*i+3] for i in range(14)}
        for i in range(4): f[16 + 2*i] = packs[i]
        a(weave(LASTM, f)); stamp(a, 2)
        for L in packs[4:]: a(L)
    else:
        a(weave(LASTM, {i: setup[2*i:2*i+2] for i in range(24)})); stamp(a, 2)
        for L in packs: a(L)
    for i in range(0, 8, 2): a(f"v_pk_mul_f32 v[{96+i}:{97+i}], v[{96+i}:{97+i}], s[58:59]")
    a(swap2(prev[0]))
    if DENSE: a(["s_nop 1"] + swap32(prev[0]))
    a(f"ds_write_b128 v{VKV}, {vr(prev[0],4)} offset:{prev[3]*4096+prev[4]}")
    for i in range(8, 32, 2): a(f"v_pk_mul_f32 v[{96+i}:{97+i}], v[{96+i}:{97+i}], s[58:59]")
    for b in range(2):
        for t in range(2): a(pack2(Q[b] + 4*t, ACC[t][2*b], ACC[t][2*b+1]))
    a(f"""
    s_lshl_b32 s{S_T}, s{S_WH}, 15
    v_add_u32 v{VKV}, s{S_T}, v{VD}
    s_add_u32 s{S_M0}, s{S_M0}, 65536
    """)
    for k_ in range(1, 4):
        a(f"s_add_u32 s{S_T}, s{S_WR}, {k_}\ns_and_b32 s{S_T}, s{S_T}, 3\ns_lshl_b32 s{S_T}, s{S_T}, 13\nv_add_u32 v{VT+1+k_}, s{S_T}, v{VKV}")
    for b in range(2):
        for t in range(2): a(swap2(Q[b] + 4*t))
    def rdK(kt, buf): return [f"ds_read_b128 {vr(KF[buf]+4*t,4)}, v{VKV} offset:{kt*4096+t*1024}" for t in range(2)]
    def rdV(kt, buf): return [f"ds_read_b128 {vr(VF[buf]+4*t,4)}, v{VKV} offset:{kt*4096+2048+t*1024}" for t in range(2)]
    def qk(sbuf, kbuf, qt, c=None):
        return [mf32(S[sbuf], KF[kbuf], Q[qt], NM[qt] if c is None else c), mf32(S[sbuf], KF[kbuf]+4, Q[qt]+4)]
    def pv(sbuf, vbuf, qt, t):
        if DENSE: return mf32(O[qt], VF[vbuf] + 4*t, S[sbuf] + 4*t)
        return f"v_smfmac_f32_32x32x32_bf16 {vr(O[qt],16)}, {vr(VF[vbuf]+4*t,4)}, {vr(S[sbuf]+8*t,8)}, v{IDX}"
    def rs(sbuf, qt, t):
        if DENSE: return None if t == 0 else f"v_smfmac_f32_16x16x64_bf16 {vr(LA[qt],4)}, {vr(ONES,4)}, {vr(S[sbuf],8)}, v{IDX}"
        return f"v_smfmac_f32_16x16x64_bf16 {vr(LA[qt],4)}, {vr(ONES,4)}, {vr(S[sbuf]+8*t,8)}, v{IDX}"
    def max_to_nm(m, qt):
        a(f"v_mov_b32 v{m+1}, v{m}")
        a("s_nop 1")
        a(f"v_permlane32_swap_b32 v{m}, v{m+1}")
        a("s_nop 1")
        a(f"v_max_f32 v{m}, v{m}, v{m+1}")
        a(f"v_sub_f32 v{m}, 0, v{m}")
        a(f"v_mov_b32 v{m+1}, v{m}")
        for i in range(0, 16, 2): a(f"v_mov_b64 v[{NM[qt]+i}:{NM[qt]+i+1}], v[{m}:{m+1}]")
    assert NE0 == 4
    a("s_nop 0")
    a([mf32(S[qt], PKB[0] + 4*t, Q[qt] + 4*t, "0" if t == 0 else None) for qt in range(2) for t in range(2)])
    a(f"s_waitcnt vmcnt(4)\ns_mov_b32 s{S_T}, {SPIN_MAX}")
    a.label("L_nonce")
    a(f"""
    v_readfirstlane_b32 s{NON}, v{FDAT}
    v_readfirstlane_b32 s{NON+1}, v{FDAT+1}
    s_sub_u32 s{S_T}, s{S_T}, 1
    s_cbranch_scc1 L_nonce_done
    s_cmp_eq_u32 s{NON}, 0
    s_cbranch_scc1 L_nonce_retry
    """)
    a.label("L_nonce_done")
    RARE.append(("L_nonce_retry", [f"buffer_load_dwordx2 v[{FDAT}:{FDAT+1}], v{ZERO}, s[52:55], 0 offen sc1", "s_waitcnt vmcnt(0)"], "L_nonce"))
    a("s_nop 3")
    for qt in range(2):
        m_, src = VT + 6*qt, S[qt]
        a(f"v_max3_f32 v{m_}, v{src}, v{src+1}, v{src+2}")
        for i in range(3, 15, 2): a(f"v_max3_f32 v{m_}, v{m_}, v{src+i}, v{src+i+1}")
        a(f"v_max_f32 v{m_}, v{m_}, v{src+15}")
        max_to_nm(m_, qt)
        a("s_nop 1")
        if qt == 0: a([mf32(S[0], PKB[0], Q[0], NM[0]), mf32(S[0], PKB[0] + 4, Q[0] + 4)])
    if OPT("G1PRIO", "") == "A": a("s_setprio 0")
    if os.environ.get("PRIO", "1"): a(f"s_cmp_eq_u32 s{S_WH}, {os.environ.get('PRIO', '1')[0]}\ns_cbranch_scc0 L_noprio\ns_setprio 1"); a.label("L_noprio")
    stamp(a, 3)
    S_SO2 = S_ST2
    def dma2():
        G = []
        for j in range(8):
            g = []
            if j == 0: g.append(f"s_mov_b32 m0, s{S_M0}"); g.append("s_nop 0")
            g.append(f"buffer_load_dwordx4 v{VDE if j%2==0 else VDO}, s[8:11], s{S_SO} offen offset:{(j%4)*1024} sc1 lds")
            if j == 3: g += [f"s_add_u32 m0, s{S_M0}, 4096", f"s_mov_b32 s{S_SO}, s{S_SO2}"]
            elif j < 7: g.append(f"s_add_u32 s{S_SO}, s{S_SO}, s{S_ST1}")
            else: g.append(f"s_xor_b32 s{S_M0}, s{S_M0}, 65536")
            G.append(g)
        return G
    def blk():
        L = []
        for g, dst in ((0, S_SO), (1, S_SO2)):
            L += [f"s_lshl_b32 s{dst}, s{S_IT}, 1"]
            if g: L += [f"s_add_u32 s{dst}, s{dst}, 1"]
            L += [f"s_cmp_ge_u32 s{dst}, 7", f"s_cselect_b32 s{S_T}, 7, 0", f"s_cselect_b32 s{S_GRP}, 4096, 0", f"s_sub_u32 s{dst}, s{dst}, s{S_T}",
                  f"s_cmp_ge_u32 s{dst}, s{S_B}", f"s_addc_u32 s{dst}, s{dst}, 0", f"s_lshl_b32 s{dst}, s{dst}, 15", f"s_add_u32 s{dst}, s{dst}, s{S_GRP}"]
        return L
    def flagst(voff, soff, imm=0):
        return ["s_mov_b64 exec, 1", f"buffer_store_dwordx2 v[{FDAT}:{FDAT+1}], v{voff}, s[36:39], s{soff} offen offset:{imm} sc1", "s_mov_b64 exec, -1"]
    ATX = os.environ.get("ATX", "")
    PAT = [int(c) for c in os.environ.get('PAT', '333232')]
    def qk_r(sbuf, kreg, qt, c=None):
        return [mf32(S[sbuf], kreg, Q[qt], NM[qt] if c is None else c), mf32(S[sbuf], kreg+4, Q[qt]+4)]
    def pv_r(sbuf, vreg, qt, t):
        if DENSE: return mf32(O[qt], vreg + 4*t, S[sbuf] + 4*t)
        return f"v_smfmac_f32_32x32x32_bf16 {vr(O[qt],16)}, {vr(vreg+4*t,4)}, {vr(S[sbuf]+8*t,8)}, v{IDX}"
    FILL = []
    def slot(sb, qa, nxt, prv, vreg, pre, extra=()):
        e = [f"v_exp_f32 v{S[sb]+i}, v{S[sb]+i}" for i in range(16)]
        m = (qk_r((sb+1) % 4, nxt[0], nxt[1]) if nxt else [None, None]) + \
            ([pv_r((sb-1) % 4, prv[0], prv[1], 1), rs((sb-1) % 4, prv[1], 1)] if prv else [None, None]) + [pv_r(sb, vreg, qa, 0), rs(sb, qa, 0)]
        extra = list(extra)
        if DENSE:
            c = [f"v_cvt_pk_bf16_f32 v{S[sb]+i}, v{S[sb]+2*i}, v{S[sb]+2*i+1}" for i in range(8)]
            grp, ie, ic, last = [], 0, 0, ""
            for g_ in os.environ.get("DG", "eee|eceec|eecec|eec|eece|eecc").split("|"):
                cur = []
                for ch in g_:
                    if ch == "e": cur.append(e[ie]); ie += 1
                    else:
                        assert ie >= 2*ic + 2 and not (last == "e" and ie == 2*ic + 2), "cvt too early"
                        cur.append(c[ic]); ic += 1
                    last = ch
                if len(grp) < 4: last = "m"
                grp.append(cur)
                if len(grp) == 4: assert ic >= 4 and (ic > 4 or cur[-1].startswith("v_exp") and cur[-2].startswith("v_exp"))
            assert ie == 16 and ic == 8 and len(grp) == 6
        else:
            grp, k = [], 0
            for i in range(6): grp.append(e[k:k+PAT[i]]); k += PAT[i]
        for i in range(6):
            if pre.get(i): a(pre[i])
            elif m[i]:
                if FILL: a(FILL.pop(0))
                elif "n" not in ATX: a("s_nop 0")
            if m[i]: a(m[i])
            a(grp[i])
            ne = (len(extra) + 5 - i) // (6 - i)
            a(extra[:ne]); extra = extra[ne:]
    def stage(hooks, pres, first, barwait):
        KA = [None, VT+2, VT+3, VT+4]
        for kt in range(8):
            for qa in range(2):
                n = 2*kt + qa
                pre = {i: [] for i in range(6)}
                if n in hooks: hooks[n]()
                kr = lambda t: PKB[t] if first and t < 2 else KF[t % 2]
                vr_ = lambda t: PKB[t] + 8 if first and 0 <= t < 2 else VF[t % 2]
                if qa == 0:
                    if kt == 7:
                        barwait()
                        pre[0] += [f"v_xor_b32 v{VKV}, 0x10000, v{VKV}", "s_nop 0"]
                    elif not (first and kt < 2):
                        pre[0] += ["s_waitcnt lgkmcnt(0)"]
                    if first and kt < 7:
                        if kt >= 1:
                            t_ = kt + 1
                            pre[1] += [x.replace(f"v{VKV} ", f"v{KA[t_//2]} ") for x in rdK(t_ % 2, t_ % 2)]
                            pre[4] += [x.replace(f"v{VKV} ", f"v{KA[t_//2]} ") for x in rdV(t_ % 2, t_ % 2)]
                    else:
                        pre[1] += rdK((kt+1) % 8, (kt+1) % 2)
                        pre[4] += rdV((kt+1) % 8, (kt+1) % 2)
                elif not (first and kt == 0):
                    pre[0] += ["s_waitcnt lgkmcnt(2)"]
                for i, L in pres.get(n, {}).items(): pre[i] += L
                slot(n % 4, qa, (kr(kt + qa) if kt + qa < 8 else KF[0], 1 - qa), None if first and n == 0 else (vr_(kt - 1 + qa), 1 - qa), vr_(kt), pre)
        assert not FILL
    NPUB, NPOLL = OPT("NPUB", 4), OPT("NPOLL", 8)
    ST0 = os.environ.get("ST0", "") == "1"
    def h_pub():
        a("s_waitcnt vmcnt(0)"); a(flagst(FOFF+1, S_FL))
        if ST0: stamp(a, 4)
    def h_poll0():
        poll("L_poll0", S_FL, f"s[{MSK}:{MSK+1}]")
        a(f"s_mov_b32 s{S_IT}, 0\ns_mov_b32 s{MSK}, 0xff00ff00\ns_mov_b32 s{MSK+1}, s{MSK}"); a(blk())
        if ST0: stamp(a, 5)
    def bw0():
        a("s_waitcnt vmcnt(3) lgkmcnt(0)\ns_barrier")
        stamp_stage(a, "0")
        if ST0: stamp(a, 6)
    G = dma2()
    pres = {NPOLL + i: {2: G[3*i], 3: G[3*i+1], 5: G[3*i+2] if 3*i+2 < 8 else []} for i in range(3)}
    for i, n_ in enumerate((11, 12, 13, 15)): pres.setdefault(n_, {})[3] = [kvstores[4 + i]]
    stage({2: lambda: a("s_waitcnt lgkmcnt(0)\ns_barrier"), NPUB: h_pub, NPOLL: h_poll0}, pres, True, bw0)
    a(f"s_mov_b32 s{S_IT}, 1")
    a.raw(".p2align 6")
    a.label("L_at")
    def rare(lab, cond, body):
        if OPT("OOL", 0):
            a(cond); a(f"s_cbranch_scc1 {lab}"); a.label(lab + "_ret"); RARE.append((lab, body, lab + "_ret"))
        else:
            a(cond); a(f"s_cbranch_scc0 {lab}_skip")
            body() if callable(body) else a(body)
            a.label(lab + "_skip")
    it13 = [f"s_andn2_b32 s{S_T}, s{S_IT}, 2", f"s_cmp_eq_u32 s{S_T}, 1"]
    def h_ld():
        rare("L_r_ld", it13, [f"buffer_load_dwordx2 v[{PDAT}:{PDAT+1}], v{FOFF}, s[36:39], s{S_FL} offen sc1"])
        b = blk()
        FILL.extend([b[i:i+2] for i in range(0, len(b), 2)])
    def h_dma():
        def body():
            poll("L_poll2", S_FL, f"s[{MSK}:{MSK+1}]", True)
            a(f"s_mov_b64 s[{MSK}:{MSK+1}], 0")
        rare("L_r_poll", it13, body)
    def h_pfwo():
        rare("L_r_pfwo", [f"s_cmp_eq_u32 s{S_IT}, {OPT('PFWIT', 4)}"], f"""
        s_and_b32 s{S_T}, s{S_A}, 3
        s_lshl_b32 s{S_T}, s{S_T}, 3
        s_add_u32 s{S_T}, s{S_T}, s{S_W}
        s_lshl_b32 s{S_T}, s{S_T}, 16
        v_lshrrev_b32 v{VT}, 1, v0
        v_lshlrev_b32 v{VT}, 11, v{VT}
        v_and_b32 v{VT+1}, 1, v0
        v_lshl_add_u32 v{VT}, v{VT+1}, 7, v{VT}
        buffer_load_dword v{VT+1}, v{VT}, s[12:15], s{S_T} offen {os.environ.get('NTO', '')}
        """)
    def bw1():
        a("s_waitcnt vmcnt(0) lgkmcnt(0)\ns_barrier")
        rare("L_r_pub1", [f"s_cmp_eq_u32 s{S_IT}, 1"], flagst(FOFF+1, S_FL, 64))
        stamp_stage(a, f"s{S_IT}")
    G = dma2()
    pres = {3 + i: {2: G[2*i], 5: G[2*i+1]} for i in range(4)}
    stage({0: h_ld, 15: h_pfwo, 3: h_dma}, pres, False, bw1)
    a(f"""
    s_add_u32 s{S_IT}, s{S_IT}, 1
    s_cmp_lt_u32 s{S_IT}, 7
    s_cbranch_scc1 L_at
    """)
    S_OO, S_FO, S_BAD = 47, 49, 60
    VOA = VT + 6
    setup7 = f"""
    s_mov_b32 s8, s12
    s_mov_b32 s9, s13
    s_mov_b32 s10, s14
    s_lshl_b32 s{S_SO}, s{S_W}, 16
    s_add_u32 s{S_SO2}, s{S_SO}, 32768
    s_mov_b32 s{S_ST1}, 7168
    v_lshrrev_b32 v{VDE}, 4, v0
    v_lshlrev_b32 v{VDO}, 1, v{VDE}
    v_and_b32 v{VT}, 15, v0
    v_xor_b32 v{VDO}, v{VDO}, v{VT}
    v_lshlrev_b32 v{VDE}, 11, v{VDE}
    v_lshl_add_u32 v{VDE}, v{VDO}, 4, v{VDE}
    v_xor_b32 v{VDO}, 128, v{VDE}
    s_lshl_b32 s{S_T}, s{S_P}, 3
    s_add_u32 s{S_T}, s{S_T}, s{S_B}
    s_lshl_b32 s{S_T}, s{S_T}, 2
    s_add_u32 s{S_T}, s{S_T}, s{S_WR}
    s_lshl_b32 s{S_FO}, s{S_T}, 8
    s_lshl_b32 s{S_OO}, s{S_T}, 17
    s_bfe_u32 s{S_T}, s{S_HB}, 0x50012
    s_lshl_b32 s{S_GRP}, s{S_T}, 3
    s_add_u32 s{S_FO}, s{S_FO}, s{S_GRP}
    s_add_u32 s{S_FO}, s{S_FO}, {FO}
    s_lshl_b32 s{S_T}, s{S_T}, 11
    s_add_u32 s{S_OO}, s{S_OO}, s{S_T}
    s_add_u32 s{S_OO}, s{S_OO}, {OWS}
    s_add_u32 s{S_OO+1}, s{S_OO}, 65536
    v_and_b32 v{VOA}, 15, v0
    v_lshlrev_b32 v{VOA}, 4, v{VOA}
    v_lshrrev_b32 v{VOA+1}, 5, v0
    v_lshl_add_u32 v{VOA}, v{VOA+1}, 8, v{VOA}
    v_bfe_u32 v{VOA+1}, v0, 4, 1
    v_lshl_add_u32 v{VOA}, v{VOA+1}, 10, v{VOA}
    """.strip().split("\n")
    OPK = [PK, PK + 8]
    def lbcast(qt):
        if RSZ < 2: return []
        return [f"v_mov_b32 v{LA[qt]+1}, v{LA[qt]}", "s_nop 1", f"v_permlane32_swap_b32 v{LA[qt]}, v{LA[qt]+1}"]
    def check(qt):
        t = VT + 2*qt
        o = O[qt]
        return (lbcast(qt) + [f"v_pk_mul_f32 v[{t}:{t+1}], v[{o}:{o+1}], 0"] +
                [f"v_pk_fma_f32 v[{t}:{t+1}], v[{o+i}:{o+i+1}], 0, v[{t}:{t+1}]" for i in range(2, 16, 2)] +
                [f"v_add_f32 v{t}, v{t}, v{t+1}", f"v_add_f32 v{t}, v{t}, v{LA[qt]}", f"v_cmp_gt_f32 s[{S_BAD+2*qt}:{S_BAD+2*qt+1}], s58, v{t}"])
    def finish(qt):
        t = VT + 2*qt
        o = O[qt]
        return ([f"v_rcp_f32 v{t}, v{LA[qt]}", "s_nop 0"] +
                [f"v_pk_mul_f32 v[{o+i}:{o+i+1}], v[{o+i}:{o+i+1}], v[{t}:{t+1}] op_sel_hi:[1,0]" for i in range(0, 16, 2)] +
                [f"v_cvt_pk_bf16_f32 v{OPK[qt]+i}, v{o+2*i}, v{o+2*i+1}" for i in range(8)] +
                [f"buffer_store_dwordx4 {vr(OPK[qt]+4*t_,4)}, v{VOA}, s[36:39], s{S_OO+qt} offen offset:{t_*512} {os.environ.get('KVPOL', 'sc1')}" for t_ in range(2)])
    OA, OB = 244, 245
    WA3 = [[248, 249, 250, 251], [252, 253, 254, 255]]
    FO_ = [[16 + 16*buf + 4*i for i in range(4)] for buf in range(2)]
    FW3 = [[48 + 16*buf + 4*nb for nb in range(4)] for buf in range(2)]
    AC3 = [[80 + 16*i + 4*nb for nb in range(4)] for i in range(4)]
    RX = 144
    T3 = 176
    S_INC, S_M3, S_ME, S_MS, S_R3, S_C3, S_F3, S_O3 = 52, 53, 54, 55, 56, 57, 100, 59
    setup3 = f"""
    s_bfe_u32 s{S_R3}, s{S_W}, 0x10001
    s_and_b32 s{S_C3}, s{S_W}, 1
    s_lshl_b32 s{S_T}, s{S_P}, 4
    s_add_u32 s{S_T}, s{S_T}, s{S_A}
    s_lshl_b32 s{S_T}, s{S_T}, 2
    s_add_u32 s{S_T}, s{S_T}, s{S_WR}
    s_lshr_b32 s{S_F3}, s{S_T}, 1
    s_lshl_b32 s{S_F3}, s{S_F3}, 8
    s_add_u32 s{S_F3}, s{S_F3}, {FO}
    s_lshl_b32 s{S_T}, s{S_T}, 16
    s_add_u32 s{S_T}, s{S_T}, {OWS}
    s_add_u32 s60, s32, s{S_T}
    s_addc_u32 s61, s33, 0
    s_lshl_b32 s{S_M3}, s{S_WR}, 12
    s_lshl_b32 s{S_O3}, s{S_WR}, 15
    s_add_u32 s{S_O3}, s{S_O3}, {6*131072}
    s_cmp_eq_u32 s{S_WH}, 0
    s_cselect_b64 vcc, -1, 0
    s_cselect_b32 s8, s60, s12
    s_cselect_b32 s9, s61, s13
    s_cselect_b32 s10, 0x10000, s14
    s_cselect_b32 s{S_O3}, 0, s{S_O3}
    s_cselect_b32 s{S_ST1}, 0, 7168
    s_cselect_b32 s{S_INC}, 12, 17
    s_lshl_b32 s{S_INC}, 1, s{S_INC}
    v_lshlrev_b32 v{T3+1}, 4, v0
    v_cndmask_b32 v{VDE}, v{VDE}, v{T3+1}, vcc
    v_cndmask_b32 v{VDO}, v{VDO}, v{T3+1}, vcc
    s_lshl_b32 s{S_T}, s{S_R3}, 1
    s_add_u32 s{S_T}, s{S_T}, s{S_WH}
    s_lshl_b32 s{S_T}, s{S_T}, 1
    s_add_u32 s{S_T}, s{S_T}, s{S_WH}
    s_lshl_b32 s{S_T}, s{S_T}, 11
    s_add_u32 s{S_T}, s{S_T}, 65536
    v_add_u32 v{OA}, s{S_T}, v{T3+1}
    v_xor_b32 v{OB}, 4096, v{OA}
    v_bfe_u32 v{T3}, v0, 2, 3
    v_lshrrev_b32 v{T3+1}, 5, v0
    v_lshl_add_u32 v{T3+1}, v{T3+1}, 4, v{T3}
    s_lshl_b32 s{S_T}, s{S_WH}, 5
    v_add_u32 v{T3+1}, s{S_T}, v{T3+1}
    v_lshlrev_b32 v{T3+1}, 8, v{T3+1}
    v_bfe_u32 v{T3+2}, v0, 1, 1
    s_lshl_b32 s{S_T}, s{S_C3}, 3
    v_add_u32 v{T3+2}, s{S_T}, v{T3+2}
    v_lshlrev_b32 v{T3}, 1, v{T3}
    v_xor_b32 v{T3+2}, v{T3+2}, v{T3}
    v_lshl_add_u32 v{T3+1}, v{T3+2}, 4, v{T3+1}
    v_and_b32 v{T3+2}, 1, v0
    v_lshl_add_u32 v{WA3[0][0]}, v{T3+2}, 3, v{T3+1}
    v_and_b32 v{FOFF}, 31, v0
    v_lshlrev_b32 v{FOFF}, 3, v{FOFF}
    """.replace(f"v{T3+2}", f"v{VT+5}").replace(f"v{T3+1}", f"v{VT+4}").replace(f"v{T3}", f"v{VT+3}").strip().split("\n")
    setup3 += [f"v_xor_b32 v{WA3[0][nb]}, {32*nb}, v{WA3[0][0]}" for nb in range(1, 4)]
    setup3 += [f"v_add_u32 v{WA3[1][nb]}, 0x20000, v{WA3[0][nb]}" for nb in range(4)]
    NS3 = next(i for i, x in enumerate(setup3) if 'v_bfe_u32' in x)
    seq = [(0, 0), (0, 1)] + [(k_, 0) for k_ in range(1, 8)] + [(k_, 1) for k_ in range(1, 8)]
    KB, VB = [0], [0]
    for m_ in range(1, 16):
        flip = seq[m_][0] != seq[m_-1][0]
        KB.append(KB[-1] ^ flip); VB.append(VB[-1] ^ flip)
    G = dma2()
    for m_ in range(16):
        stamp_stage(a, "7") if m_ == 14 else None
        pre = {i: [] for i in range(6)}
        pre[0] += ["s_waitcnt lgkmcnt(0)"]
        if m_ + 2 < 16 and seq[m_+2][0] != seq[m_+1][0]: pre[1] += rdK(seq[m_+2][0], KB[m_+2])
        if m_ + 1 < 16 and seq[m_+1][0] != seq[m_][0]: pre[4] += rdV(seq[m_+1][0], VB[m_+1])
        extra = []
        if m_ == 0: extra = setup7[:13] + ["s_mov_b32 s58, 0x5f800000"]
        if m_ == 1: extra = setup7[13:]
        if 2 <= m_ <= 5: pre[2] += G[2*(m_-2)]; pre[5] += G[2*(m_-2)+1]
        if m_ == 6:
            pre[2] += [f"s_lshl_b32 s{S_T}, s{S_W}, 12", f"s_add_u32 m0, s{S_T}, 131072", f"s_lshl_b32 s{S_SO}, s{S_W}, 15", f"s_add_u32 s{S_SO}, s{S_SO}, {4*131072}"]
        if m_ in (6, 7):
            for i_, j_ in ((3, 2*(m_-6)), (5, 2*(m_-6)+1)):
                pre[i_] += [f"buffer_load_dwordx4 v{VDE if j_%2==0 else VDO}, s[8:11], s{S_SO} offen offset:{j_*1024} lds", f"s_add_u32 s{S_SO}, s{S_SO}, s{S_ST1}"]
        if m_ == 8: extra = setup3[:NS3 // 2]
        if m_ == 9: extra = setup3[NS3 // 2:NS3]
        if m_ == 12: extra = setup3[NS3:]
        if m_ == 10: extra = check(0)
        if m_ == 11: extra = finish(0)
        slot(m_ % 4, seq[m_][1], (KF[KB[m_+1]], seq[m_+1][1]) if m_ < 15 else None,
             (VF[VB[m_-1]], seq[m_-1][1]) if m_ else (VF[1], 1), VF[VB[m_]], pre, extra)
    a("s_nop 1")
    a(pv(3, VB[15], 1, 1)); a(rs(3, 1, 1))
    if not ST0: stamp(a, 4)
    if ST3: stamp(a, 1, True)
    a("s_nop 7\ns_nop 3")
    a(check(1))
    a(f"""
    s_and_b64 vcc, s[{S_BAD}:{S_BAD+1}], s[{S_BAD+2}:{S_BAD+3}]
    s_cmp_eq_u64 vcc, exec
    s_cbranch_scc0 L_fallback
    """)
    a.label("L_fin")
    a(finish(1))
    def wslot(i): return i*16384 if i < 4 else 131072 + (i-4)*16384
    def dma3(mo, mw):
        G = []
        for j in range(4):
            g = []
            if j == 0:
                if mw is None: g += [f"s_add_u32 m0, s{S_M3}, {mo}"]
                else: g += [f"s_cmp_eq_u32 s{S_WH}, 0", f"s_mov_b32 s{S_T}, {mw}", f"s_cmov_b32 s{S_T}, {mo}", f"s_add_u32 m0, s{S_M3}, s{S_T}"]
                g += [f"s_mov_b32 s{S_SO}, s{S_O3}"]
            g.append(f"buffer_load_dwordx4 v{VDE if j%2==0 else VDO}, s[8:11], s{S_SO} offen offset:{j*1024} sc1 lds")
            g.append(f"s_add_u32 s{S_SO}, s{S_SO}, s{S_ST1}" if j < 3 else f"s_add_u32 s{S_O3}, s{S_O3}, s{S_INC}")
            G.append(g)
        return G
    a("s_barrier")
    if ST3: stamp(a, 2, True)
    a("s_waitcnt vmcnt(0)")
    if ST3: stamp(a, 3, True)
    a(flagst(ZERO, S_FO))
    a(f"s_cmp_lg_u32 s{S_WH}, 0\ns_cbranch_scc1 L_p3go")
    if OPT("POLL2", 0):
        P2 = T3 + 4
        ld = lambda r: f"buffer_load_dwordx2 v[{r}:{r+1}], v{FOFF}, s[36:39], s{S_F3} offen sc1"
        a(f"s_mov_b32 s{S_T}, {SPIN_MAX}")
        a(ld(PDAT)); a(f"s_sleep {OPT('PSL2', 3)}")
        a.label("L_pollo")
        for r0, r1 in ((PDAT, P2), (P2, PDAT)):
            a(ld(r1))
            a(f"""
            s_waitcnt vmcnt(1)
            v_cmp_eq_u64 vcc, s[{NON}:{NON+1}], v[{r0}:{r0+1}]
            s_cmp_eq_u64 vcc, exec
            s_cbranch_scc1 L_pollo_done
            """)
        a(f"s_sub_u32 s{S_T}, s{S_T}, 1\ns_cbranch_scc0 L_pollo")
        a.label("L_pollo_done")
    else:
        poll("L_pollo", S_F3)
    if ST3: stamp(a, 4, True)
    PFO_ = OPT("PFO", 0)
    for st in range(4):
        if PFO_ and st == PFO_ - 1:
            a(f"s_lshl_b32 s{S_T}, s{S_B}, 13\nv_lshlrev_b32 v{PDAT}, 7, v0\nbuffer_load_dword v{PDAT+1}, v{PDAT}, s[8:11], s{S_T} offen sc1")
        for g in dma3(65536 + st*16384, None): a(g)
    a(f"s_waitcnt vmcnt({13 if PFO_ > 1 else 12})")
    a.label("L_p3go")
    if ST3: a(f"s_cmp_eq_u32 s{S_WH}, 0\ns_cbranch_scc1 L_st3x"); stamp(a, 4, True); a.label("L_st3x")
    a("s_barrier")
    if OPT("G3PRIO", "") == "0": a("s_setprio 0")
    if not ST0: stamp(a, 5)
    def reads3(s, buf):
        ws_, os_ = s % 6, s % 4
        O_ = [f"ds_read_b128 {vr(FO_[buf][i],4)}, v{OA if i < 2 else OB} offset:{os_*16384 + (i%2)*1024}" for i in range(4)]
        W_ = [f"ds_read_b64_tr_b16 {vr(FW3[buf][nb]+2*u,2)}, v{WA3[ws_//4][nb]} offset:{(ws_%4)*16384 + u*2048}" for nb in range(4) for u in range(2)]
        return W_[0:2] + O_ + W_[2:]
    def mfmas3(buf, first=False, last=False):
        L = [mf16(AC3[i][nb], FW3[buf][nb], FO_[buf][i]) for nb in range(4) for i in range(4)]
        o = os.environ.get("ORD3", "i") if not last else ""
        if o == "i": L = [L[4*(nb if i % 2 == 0 else 3 - nb) + i] for i in range(4) for nb in range(4)]
        if o == "snake": L = [L[4*nb + (i if nb % 2 == 0 else 3 - i)] for nb in range(4) for i in range(4)]
        return [x[:x.rindex(",")] + ", 0" for x in L] if first else L
    a(reads3(0, 0))
    fin_setup = f"""
    s_lshl_b32 s{S_T}, s{S_WH}, 3
    s_add_u32 s{S_T}, s{S_T}, s{S_WR}
    s_lshl_b32 s{S_T}, s{S_T}, 13
    v_lshlrev_b32 v{T3}, 4, v0
    v_add_u32 v{T3}, s{S_T}, v{T3}
    v_xor_b32 v{T3+1}, 0x10000, v{T3}
    s_mov_b32 s12, s28
    s_mov_b32 s13, s29
    s_mov_b32 s14, 0x800000
    s_lshl_b32 s{S_T}, s{S_A}, 2
    s_lshl_b32 s{S_SO}, s{S_R3}, 1
    s_add_u32 s{S_T}, s{S_T}, s{S_SO}
    s_add_u32 s{S_T}, s{S_T}, s{S_WH}
    s_lshl_b32 s{S_T}, s{S_T}, 17
    s_lshl_b32 s{S_SO}, s{S_P}, 11
    s_add_u32 s{S_T}, s{S_T}, s{S_SO}
    s_lshl_b32 s{S_SO}, s{S_B}, 8
    s_add_u32 s{S_T}, s{S_T}, s{S_SO}
    s_lshl_b32 s{S_SO}, s{S_C3}, 7
    s_add_u32 s{S_SO}, s{S_T}, s{S_SO}
    s_add_u32 s{S_SO+1}, s{S_SO}, 65536
    v_and_b32 v{T3+2}, 15, v0
    v_lshlrev_b32 v{T3+2}, 12, v{T3+2}
    v_bfe_u32 v{T3+3}, v0, 4, 1
    v_lshl_add_u32 v{T3+2}, v{T3+3}, 5, v{T3+2}
    v_lshrrev_b32 v{T3+3}, 5, v0
    v_lshl_add_u32 v{T3+2}, v{T3+3}, 4, v{T3+2}
    """.strip().split("\n")
    for s in range(16):
        if s < 15:
            a(f"s_waitcnt vmcnt({8 if s <= 12 else 4 if s == 13 else 0}) lgkmcnt(0)\ns_barrier")
            r = reads3(s + 1, 1 - s % 2)
            f = {}
            for k_, x in enumerate(r): f.setdefault(min(15, int(k_ * OPT("S3", 1.0))), []).append(x)
            if s <= 11:
                d = dma3(65536 + (s % 4)*16384, wslot(s % 6))
                for k_, i in enumerate([int(x) for x in os.environ.get("D3POS", "0,4,8,12").split(",")]): f[i] = f.get(i, []) + d[k_]
            if s == 14:
                for i in range(14): f[i] = f.get(i, []) + fin_setup[2*i:2*i+2]
            a(weave(mfmas3(s % 2, s == 0), f))
        else:
            a("s_waitcnt lgkmcnt(0)")
            m = mfmas3(1, False, True)
            order = [k_ for k_ in range(16) if k_ % 4 >= 2] + [k_ for k_ in range(16) if k_ % 4 < 2]
            mm = [m[k_] for k_ in order]
            a(mm[:8])
            wr_ = {2*(j % 4) + j//4: f"ds_write_b128 v{T3}, {vr(AC3[2][0]+4*j,4)} offset:{j*1024}" for j in range(8)}
            for k_ in range(8): a(mm[8 + k_]); a(wr_[k_])
    if not ST0: stamp(a, 6)
    a("s_waitcnt lgkmcnt(0)\ns_barrier")
    for j in range(8): a(f"ds_read_b128 {vr(RX+4*j,4)}, v{T3+1} offset:{j*1024}")
    prev = None
    for j in range(5):
        if j < 4:
            qb, np_ = j // 2, j % 2
            t0 = AC3[qb][2*np_]
            a(f"s_waitcnt lgkmcnt({6 - 2*j})")
            for i in range(0, 8, 2): a(f"v_pk_add_f32 v[{t0+i}:{t0+i+1}], v[{t0+i}:{t0+i+1}], v[{RX+8*j+i}:{RX+8*j+i+1}]")
            cur = (16 + 4*j, qb, np_)
            a(pack2(cur[0], t0, t0 + 4))
        else:
            cur = None; a("s_nop 1")
        if prev:
            a(swap2(prev[0]))
            a(f"buffer_store_dwordx4 {vr(prev[0],4)}, v{T3+2}, s[12:15], s{S_SO+prev[1]} offen offset:{prev[2]*64} {os.environ.get('OUTPOL', 'sc0 sc1')}")
        prev = cur
    stamp_flush(a, 7, 1)
    a.label("L_end")
    a("s_endpgm")
    for lab, body, ret in RARE:
        a.label(lab)
        body() if callable(body) else a(body)
        a(f"s_branch {ret}")
    MX = [VT, VT+2]
    a.label("L_fallback")
    a(f"""
    v_mov_b32 v{MX[0]}, 0xff800000
    v_mov_b32 v{MX[1]}, 0xff800000
    s_mov_b32 s{S_IT}, 0
    s_waitcnt vmcnt(0) lgkmcnt(0)
    """)
    a.label("L_fb_max")
    a(f"s_add_u32 s{S_T}, s{S_IT}, s{S_HB}")
    for t in range(2): a(f"buffer_load_dwordx4 {vr(KF[0]+4*t,4)}, v{VD}, s[36:39], s{S_T} offen offset:{t*1024} sc1")
    a("s_waitcnt vmcnt(0)")
    a(qk(0, 0, 0, "0")); a(qk(1, 0, 1, "0"))
    a("s_nop 15")
    for qt in range(2):
        for i in range(0, 16, 2): a(f"v_max3_f32 v{MX[qt]}, v{MX[qt]}, v{S[qt]+i}, v{S[qt]+i+1}")
    a(f"""
    s_add_u32 s{S_IT}, s{S_IT}, 4096
    s_cmp_lt_u32 s{S_IT}, 0x40000
    s_cbranch_scc1 L_fb_max
    """)
    max_to_nm(MX[0], 0); max_to_nm(MX[1], 1)
    for i in range(O[0], LA[1] + 4, 2): a(f"v_mov_b64 v[{i}:{i+1}], 0")
    a(f"s_mov_b32 s{S_IT}, 0")
    a.label("L_fb_main")
    a(f"s_add_u32 s{S_T}, s{S_IT}, s{S_HB}")
    for t in range(2): a(f"buffer_load_dwordx4 {vr(KF[0]+4*t,4)}, v{VD}, s[36:39], s{S_T} offen offset:{t*1024} sc1")
    for t in range(2): a(f"buffer_load_dwordx4 {vr(VF[0]+4*t,4)}, v{VD}, s[36:39], s{S_T} offen offset:{2048+t*1024} sc1")
    a("s_waitcnt vmcnt(0)")
    a(qk(0, 0, 0)); a(qk(1, 0, 1))
    a("s_nop 15")
    for qt in range(2):
        for i in range(16): a(f"v_exp_f32 v{S[qt]+i}, v{S[qt]+i}")
    a("s_nop 1")
    if DENSE:
        for qt in range(2):
            for i in range(8): a(f"v_cvt_pk_bf16_f32 v{S[qt]+i}, v{S[qt]+2*i}, v{S[qt]+2*i+1}")
        a("s_nop 1")
    for qt in range(2):
        for t in range(2):
            a(pv(qt, 0, qt, t))
            if rs(qt, qt, t): a(rs(qt, qt, t))
    a(f"""
    s_add_u32 s{S_IT}, s{S_IT}, 4096
    s_cmp_lt_u32 s{S_IT}, 0x40000
    s_cbranch_scc1 L_fb_main
    s_nop 15
    """)
    a(lbcast(0) + lbcast(1))
    a(finish(0))
    a("s_branch L_fin")
    return f""".p2align 6
.amdhsa_kernel {name}
  .amdhsa_next_free_vgpr {NV}
  .amdhsa_next_free_sgpr 102
  .amdhsa_accum_offset {NV}
  .amdhsa_group_segment_fixed_size 0
  .amdhsa_kernarg_size 72
  .amdhsa_user_sgpr_count 2
  .amdhsa_user_sgpr_kernarg_segment_ptr 1
  .amdhsa_system_sgpr_workgroup_id_x 1
.end_amdhsa_kernel"""

def main():
    out = sys.argv[1] if len(sys.argv) > 1 else f"cdna_kernels/{NAME}.s"
    a = Asm()
    k = gen(a)
    hdr = open(f"cdna_kernels/{NAME}.s.ref").read().split("\n")
    hdr = [l for l in hdr if l.startswith(";") and "@launch" not in l]
    hdr.append(f"; @launch grid=(256,1,1) block=(512,1,1) lds={LDS_BYTES}")
    txt = "\n".join(hdr) + '\n.amdgcn_target "amdgcn-amd-amdhsa--gfx950"\n.text\n' + a.text() + '\n.section .rodata,"a"\n' + k + "\n"
    open(out, "w").write(txt)

if __name__ == "__main__":
    main()
```

```python
import sys, math, os, struct
from gen2 import Asm, vr, f2u, mf32, mf16, weave, NAME

STAMP = os.environ.get("STAMP", "0") == "1"
def OPT(k, d): return type(d)(os.environ.get(k, d))

KVWS = 0
OWS = 16 << 20
FKV = 24 << 20
FO = FKV + 65536
WS_BYTES = 25 << 20
STAMP_BASE = 64 << 20
CSCALE = math.log2(math.e) / math.sqrt(32.0)
LDS_BYTES = 163840
SPIN_MAX = 1 << 16

S_W, S_P, S_A, S_B, S_T = 3, 4, 5, 6, 7
S_WR, S_WH, S_IT = 40, 41, 42
NON = 34

ST3 = os.environ.get("ST3", "") == "1"
STG = os.environ.get("STG", "") == "1"
STG1 = os.environ.get("STG1", "") == "1"
def stamp_stage(a, lane, g1=False):
    if STG and g1 == STG1:
        a(f"s_memtime s[96:97]\ns_memrealtime s[98:99]\ns_lshl_b64 exec, 1, {lane}\ns_waitcnt lgkmcnt(0)\nv_mov_b32 v14, s96\nv_mov_b32 v15, s98\ns_mov_b64 exec, -1")
def stamp(a, i, alt=False):
    if ST3 and i in (1, 2, 3, 4) and not alt: return
    if STAMP and not STG:
        a(f"s_memtime s[{64+4*i}:{65+4*i}]")
        a(f"s_memrealtime s[{66+4*i}:{67+4*i}]")
        a("s_waitcnt lgkmcnt(0)")
def stamp_flush(a, n, vt):
    if not STAMP: return
    a("s_waitcnt vmcnt(0) lgkmcnt(0)")
    stamp(a, n)
    a(f"""
    s_add_u32 s56, s32, {STAMP_BASE}
    s_addc_u32 s57, s33, 0
    s_mov_b32 s58, 0x100000
    s_mov_b32 s59, 0x20000
    s_lshl_b32 s60, s2, 3
    s_add_u32 s60, s60, s{S_W}
    s_lshl_b32 s60, s60, 6
    v_mov_b32 v{vt}, 0
    """)
    if STG:
        a(f"v_lshlrev_b32 v{vt}, 3, v0\ns_mov_b64 exec, 0xff\nbuffer_store_dwordx2 v[14:15], v{vt}, s[56:59], s60 offen")
        return
    for i in range(n + 1):
        a(f"v_mov_b32 v{vt+1}, s{64+4*i}")
        a(f"v_mov_b32 v{vt+2}, s{66+4*i}")
        a(f"buffer_store_dwordx2 v[{vt+1}:{vt+2}], v{vt}, s[56:59], s60 offen offset:{8*i}")
        a("s_nop 1")

DENSE = "d" in os.environ.get("ATX", "")
def gen(a):
    name = NAME + "_kernel"
    a.raw(f".globl {name}\n.p2align 8\n.type {name},@function\n{name}:")
    stamp(a, 0)
    RARE = []
    def emit(L):
        for x in L:
            a(x)
            if " m0," in x: a("s_nop 0")
    PKB = [48, 32]; Q = [16, 24]; PK = 32; KF = [64, 72]; VF = [80, 88]; NM = [96, 112]; S = [128, 144, 160, 176]
    O = [192, 208]; LA = [224, 228]; ONES = 232; IDX = 236; ZERO = 237
    FDAT, FOFF, PDAT = 238, 240, 242
    XB = [244, 245]; VDE, VDO = 246, 247
    NV = 256
    def poll(lab, soff, mask=None, first_loaded=False):
        ld = f"buffer_load_dwordx2 v[{PDAT}:{PDAT+1}], v{FOFF}, s[36:39], s{soff} offen sc1"
        a(f"s_mov_b32 s{S_T}, {SPIN_MAX}")
        if not first_loaded: a(ld)
        a.label(lab)
        a(f"""
        s_waitcnt vmcnt(0)
        v_cmp_eq_u64 vcc, s[{NON}:{NON+1}], v[{PDAT}:{PDAT+1}]
        """)
        if mask: a(f"s_or_b64 vcc, vcc, {mask}")
        a(f"""
        s_cmp_eq_u64 vcc, exec
        s_cbranch_scc1 {lab}_done
        s_sub_u32 s{S_T}, s{S_T}, 1
        s_cbranch_scc1 {lab}_done
        s_sleep {OPT("PSLEEP", 8)}
        {ld}
        s_branch {lab}
        """)
        a.label(lab + "_done")
    XA = [2, 3]; WA = [4, 5]; D0, D1, D2, PFV, PFD = 6, 7, 8, 9, 10
    VT = 11
    FX = [[16 + 16*buf + 4*rb for rb in range(4)] for buf in range(2)]
    FW = [[48 + 24*buf + 4*cb for cb in range(6)] for buf in range(2)]
    ACC = [[96 + 16*cb + 4*rb for rb in range(4)] for cb in range(6)]
    S_KX, S_KW, T0, S_M0X, S_M0W, S_XF, S_XN, S_PFO, S_PFI = 43, 44, 45, 47, 48, 49, 50, 56, 57
    W0, W1 = 98304, 122880
    RSZ = OPT("RSZ", 2)
    NTW, NTX, NTP = os.environ.get("NTW", ""), os.environ.get("NTX", ""), os.environ.get("NTP", "")
    PF0, PFSTEP = OPT("PF0", 3), OPT("PFSTEP", 4)
    a(f"""
    s_cmp_ge_u32 s2, 256
    s_cbranch_scc1 L_end
    s_load_dwordx16 s[16:31], s[0:1], 0
    s_load_dwordx2 s[32:33], s[0:1], 64
    s_memrealtime s[{NON}:{NON+1}]
    v_lshrrev_b32 v1, 6, v0
    v_and_b32 v0, 63, v0
    v_readfirstlane_b32 s{S_W}, v1
    s_and_b32 s{S_T}, s2, 7
    s_lshr_b32 s{S_B}, s2, 3
    s_lshr_b32 s{S_P}, s{S_T}, 2
    s_and_b32 s{S_A}, s{S_T}, 3
    s_lshl_b32 s{S_A}, s{S_A}, 2
    s_and_b32 s{S_T}, s{S_B}, 3
    s_or_b32 s{S_A}, s{S_A}, s{S_T}
    s_lshr_b32 s{S_B}, s{S_B}, 2
    s_and_b32 s{S_WR}, s{S_W}, 3
    s_lshr_b32 s{S_WH}, s{S_W}, 2
    s_mul_i32 s{S_M0X}, s{S_WR}, 7
    s_add_u32 s{S_T}, s{S_WR}, 28
    s_cmp_eq_u32 s{S_WH}, 0
    s_cselect_b32 s{S_M0X}, s{S_T}, s{S_M0X}
    v_lshrrev_b32 v{VT}, 3, v0
    s_lshl_b32 s{S_T}, s{S_M0X}, 3
    v_add_u32 v{VT+4}, s{S_T}, v{VT}
    v_lshlrev_b32 v{VT+4}, 11, v{VT+4}
    v_and_b32 v{VT+1}, 7, v0
    v_lshrrev_b32 v{VT+2}, 4, v0
    v_xor_b32 v{VT+3}, v{VT+1}, v{VT+2}
    s_and_b32 s{S_T}, s{S_WR}, 1
    s_lshl_b32 s{S_T}, s{S_T}, 2
    v_xor_b32 v{VT+3}, s{S_T}, v{VT+3}
    v_lshl_add_u32 v{D2}, v{VT+3}, 4, v{VT+4}
    s_lshl_b32 s{S_M0X}, s{S_M0X}, 10
    s_lshl_b32 s{S_T}, s{S_WR}, 4
    v_add_u32 v{VT}, s{S_T}, v{VT}
    v_mul_u32_u24 v{VT}, 6144, v{VT}
    v_and_b32 v{VT+2}, 1, v{VT+2}
    v_lshlrev_b32 v{VT+2}, 2, v{VT+2}
    v_xor_b32 v{VT+3}, v{VT+1}, v{VT+2}
    v_lshl_add_u32 v{D0}, v{VT+3}, 4, v{VT}
    v_xor_b32 v{D1}, 32, v{D0}
    v_add_u32 v{D1}, 49152, v{D1}
    s_mul_i32 s{S_M0W}, s{S_WR}, 6144
    s_add_u32 s{S_M0W}, s{S_M0W}, {W0}
    s_mov_b32 s{S_KX}, 0
    s_mov_b32 s{S_KW}, 0
    s_mov_b32 s11, 0x20000
    s_mov_b32 s15, 0x20000
    s_mov_b32 s39, 0x20000
    s_mov_b32 s55, 0x20000
    v_mov_b32 v{ZERO}, 0
    s_waitcnt lgkmcnt(0)
    s_cmp_eq_u32 s{S_P}, 0
    s_cselect_b32 s8, s16, s22
    s_cselect_b32 s9, s17, s23
    s_cselect_b32 s12, s18, s24
    s_cselect_b32 s13, s19, s25
    s_lshl_b32 s{S_T}, s{S_B}, 19
    s_add_u32 s8, s8, s{S_T}
    s_addc_u32 s9, s9, 0
    s_sub_u32 s10, 0x400000, s{S_T}
    s_lshl_b32 s{S_T}, s{S_A}, 7
    s_add_u32 s12, s12, s{S_T}
    s_addc_u32 s13, s13, 0
    s_sub_u32 s14, 0x600000, s{S_T}
    s_cmp_lg_u32 s{S_WH}, 0
    s_cbranch_scc1 L_proB
    """)
    def burstW(stage):
        L = []
        for g in range(2):
            L.append(f"s_add_u32 m0, s{S_M0W}, {stage*(W1-W0) + g*3072}")
            for s_ in range(3):
                if s_: L.append(f"s_add_u32 s{T0+s_%2}, s{S_KW}, {s_*1024}")
                else: L.append("s_nop 0")
                L.append(f"buffer_load_dwordx4 v{D0+g}, s[12:15], s{T0+s_%2 if s_ else S_KW} offen offset:{s_*1024} {NTW} lds")
        L.append(f"s_add_u32 s{S_KW}, s{S_KW}, 393216")
        return L
    def burstXA(slot):
        return [f"s_add_u32 m0, s{S_M0X}, {slot}", "s_nop 0", f"buffer_load_dwordx4 v{D2}, s[8:11], s{S_KX} offen {NTX} lds", f"s_add_u32 s{S_KX}, s{S_KX}, 128"]
    def burstXB(slot):
        L = [f"s_add_u32 m0, s{S_M0X}, {slot}"]
        for j in range(7):
            if j == 4: L.append("s_add_u32 m0, m0, 4096")
            L.append(f"s_add_u32 s{T0+j%2}, s{S_KX}, {j*16384 - (j%4)*1024}")
            L.append(f"buffer_load_dwordx4 v{D2 if j%2==0 else D1}, s[8:11], s{T0+j%2} offen offset:{(j%4)*1024} {NTX} lds")
        L.append(f"s_add_u32 s{S_KX}, s{S_KX}, 128")
        return L
    a(burstW(0) + burstXA(0) + burstW(1) + burstXA(32768) + burstXA(65536))
    a(f"""
    s_or_b32 s{S_T}, s2, s{S_W}
    s_cmp_lg_u32 s{S_T}, 0
    s_cbranch_scc1 L_pro2
    s_mov_b32 s52, s30
    s_mov_b32 s53, s31
    s_mov_b32 s54, 256
    s_or_b32 s{NON}, s{NON}, 1
    v_mov_b32 v{FDAT}, s{NON}
    v_mov_b32 v{FDAT+1}, s{NON+1}
    s_mov_b64 exec, 1
    buffer_store_dwordx2 v[{FDAT}:{FDAT+1}], v{ZERO}, s[52:55], 0 offen sc1
    s_mov_b64 exec, -1
    s_branch L_pro2
    """)
    a.label("L_proB")
    a(f"v_xor_b32 v{D1}, 64, v{D2}")
    a(burstXB(0) + burstXB(32768))
    a.label("L_pro2")
    a(f"""
    s_lshl_b32 s{S_T}, s{S_B}, 2
    s_add_u32 s{S_T}, s{S_T}, s{S_WR}
    s_lshl_b32 s{S_T}, s{S_T}, 2
    v_and_b32 v{VT+1}, 3, v0
    v_add_u32 v{VT+1}, s{S_T}, v{VT+1}
    v_bfe_u32 v{VT+2}, v0, 4, 1
    v_lshl_add_u32 v{VT+1}, v{VT+2}, 7, v{VT+1}
    v_mul_u32_u24 v{VT+1}, 6144, v{VT+1}
    v_bfe_u32 v{VT+2}, v0, 2, 2
    v_min_u32 v{VT+2}, 2, v{VT+2}
    v_lshl_add_u32 v{PFV}, v{VT+2}, 11, v{VT+1}
    s_mov_b32 s{S_PFO}, {393216 * PF0}
    s_and_b32 s{S_T}, s{S_A}, 3
    s_lshl_b32 s{S_T}, s{S_T}, 2
    s_add_u32 s{S_T}, s{S_T}, s{S_WR}
    s_lshl_b32 s{S_T}, s{S_T}, 4
    v_and_b32 v{VT}, 15, v0
    v_add_u32 v{VT}, s{S_T}, v{VT}
    v_lshlrev_b32 v{VT}, 11, v{VT}
    v_lshrrev_b32 v{VT+1}, 4, v0
    v_lshl_add_u32 v{VT}, v{VT+1}, 7, v{VT}
    s_cmp_eq_u32 s{S_WH}, 0
    s_cselect_b64 vcc, -1, 0
    s_cselect_b32 s{S_PFO}, {128 * OPT("PFX0", 4)}, s{S_PFO}
    v_cndmask_b32 v{PFV}, v{PFV}, v{VT}, vcc
    v_and_b32 v{VT}, 15, v0
    s_lshl_b32 s{S_T}, s{S_WR}, 6
    v_add_u32 v{VT}, s{S_T}, v{VT}
    v_lshlrev_b32 v{VT}, 7, v{VT}
    v_lshrrev_b32 v{VT+1}, 4, v0
    v_bfe_u32 v{VT+2}, v0, 1, 3
    v_xor_b32 v{VT+2}, v{VT+1}, v{VT+2}
    v_lshl_add_u32 v{XA[0]}, v{VT+2}, 4, v{VT}
    v_xor_b32 v{XA[1]}, 64, v{XA[0]}
    v_mov_b32 v{XB[0]}, v{XA[0]}
    v_mov_b32 v{XB[1]}, v{XA[1]}
    v_mul_u32_u24 v{VT}, 3072, v{VT+1}
    v_bfe_u32 v{VT+2}, v0, 2, 2
    v_lshl_add_u32 v{VT}, v{VT+2}, 7, v{VT}
    v_bfe_u32 v{VT+3}, v0, 1, 1
    s_lshl_b32 s{S_T}, s{S_WH}, 2
    v_add_u32 v{VT+3}, s{S_T}, v{VT+3}
    v_bfe_u32 v{VT+4}, v0, 3, 1
    v_lshlrev_b32 v{VT+4}, 2, v{VT+4}
    v_xor_b32 v{VT+3}, v{VT+3}, v{VT+4}
    v_bfe_u32 v{VT+4}, v0, 4, 1
    v_lshlrev_b32 v{VT+4}, 1, v{VT+4}
    v_xor_b32 v{VT+3}, v{VT+3}, v{VT+4}
    v_lshl_add_u32 v{VT}, v{VT+3}, 4, v{VT}
    v_and_b32 v{VT+4}, 1, v0
    v_lshl_add_u32 v{VT}, v{VT+4}, 3, v{VT}
    v_add_u32 v{WA[0]}, {W0}, v{VT}
    v_xor_b32 v{WA[1]}, 32, v{WA[0]}
    v_mov_b32 v{IDX}, {"0x44444444" if DENSE else "0xdddddddd"}
    {f"v_and_b32 v{VT}, 1, v0" if DENSE else ""}
    {f"v_mul_u32_u24 v{VT}, 0xaaaa, v{VT}" if DENSE else ""}
    {f"v_add_u32 v{IDX}, v{IDX}, v{VT}" if DENSE else ""}
    v_and_b32 v{VT}, {[4, 7, 15][RSZ]}, v0
    v_mov_b32 v{VT+1}, 0x3f803f80
    v_cmp_eq_u32 vcc, 0, v{VT}
    v_lshlrev_b32 v{VDE}, 4, v0
    v_lshlrev_b32 v{VDO}, 4, v0
    v_cndmask_b32 v{ONES}, v{ZERO}, v{VT+1}, vcc
    v_cndmask_b32 v{ONES+1}, v{ZERO}, v{VT+1}, vcc
    v_cmp_eq_u32 vcc, 4, v{VT}
    s_nop 1
    v_cndmask_b32 v{ONES+2}, v{ZERO}, v{VT+1}, vcc
    v_cndmask_b32 v{ONES+3}, v{ZERO}, v{VT+1}, vcc
    v_and_b32 v{FOFF}, 15, v0
    v_lshlrev_b32 v{FOFF}, 3, v{FOFF}
    s_lshl_b32 s{S_T}, s{S_B}, 3
    v_mov_b32 v{FOFF+1}, s{S_T}
    s_mov_b32 s{S_IT}, 0
    s_mov_b32 s{S_XN}, 32768
    """)
    for i in range(96, 232, 2): a(f"v_mov_b64 v[{i}:{i+1}], 0")
    if OPT("IPF", 0):
        a(f"""
        s_cmp_lg_u32 s{S_W}, 7
        s_cbranch_scc1 L_noipf
        s_getpc_b64 s[60:61]
        v_lshlrev_b32 v{VT}, 7, v0
        global_load_dword v{PFD}, v{VT}, s[60:61]
        v_add_u32 v{VT}, 8192, v{VT}
        global_load_dword v{PFD}, v{VT}, s[60:61]
        v_add_u32 v{VT}, 8192, v{VT}
        v_min_u32 v{VT}, {OPT("IPFMAX", 21000)}, v{VT}
        global_load_dword v{PFD}, v{VT}, s[60:61]
        """)
        a.label("L_noipf")
    BULK = OPT("BULK", 0)
    if BULK:
        a(f"""
        s_lshl_b32 s{S_T}, s{S_A}, 7
        s_sub_u32 s52, s12, s{S_T}
        s_subb_u32 s53, s13, 0
        s_mov_b32 s54, 0x600000
        s_lshl_b32 s{S_T}, s{S_A}, 3
        s_add_u32 s{S_T}, s{S_T}, s{S_B}
        s_lshl_b32 s{S_T}, s{S_T}, 3
        s_add_u32 s{S_T}, s{S_T}, s{S_W}
        s_mul_i32 s{S_T}, s{S_T}, 6144
        v_min_u32 v{VT}, 47, v0
        v_lshlrev_b32 v{VT}, 7, v{VT}
        {"s_sleep " + str(OPT("BSLEEP", 0)) if OPT("BSLEEP", 0) else ""}
        buffer_load_dword v{PFD}, v{VT}, s[52:55], s{S_T} offen
        s_cmp_lg_u32 s{S_WH}, 0
        s_cbranch_scc1 L_nobx
        s_lshl_b32 s{S_T}, s{S_A}, 2
        s_add_u32 s{S_T}, s{S_T}, s{S_WR}
        s_lshl_b32 s{S_T}, s{S_T}, 13
        v_lshlrev_b32 v{VT+1}, 7, v0
        buffer_load_dword v{PFD}, v{VT+1}, s[8:11], s{S_T} offen
        """)
        a.label("L_nobx")
    def reads1(stage, t, buf):
        X = [f"ds_read_b128 {vr(FX[buf][rb],4)}, v{XA[t]} offset:{rb*2048}" for rb in range(4)]
        W = []
        for cb in range(6):
            for u in range(2):
                W.append(f"ds_read_b64_tr_b16 {vr(FW[buf][cb]+2*u,2)}, v{WA[cb%2]} offset:{stage*(W1-W0) + t*12288 + (cb//2)*1024 + u*512}")
        return W[0:2] + X + W[2:]
    def mfmas1(buf, natural=False):
        L = [mf16(ACC[cb][rb], FW[buf][cb], FX[buf][rb]) if cb < 4 else mf16(ACC[cb][rb], FX[buf][rb], FW[buf][cb])
             for cb in range(6) for rb in range(4)]
        o = "cb" if natural else os.environ.get("ORD1", "A")
        if o == "rb": L = [L[4*cb + rb] for rb in range(4) for cb in range(6)]
        if o == "snake": L = [L[4*cb + (rb if cb % 2 == 0 else 3 - rb)] for cb in range(6) for rb in range(4)]
        if o == "A": L = [L[4*cb + (rb if cb % 2 == 0 else 3 - rb)] for cb in range(4) for rb in range(4)] + [L[4*(4 + (c ^ (rb & 1))) + rb] for rb in range(4) for c in range(2)]
        if o == "B": L = [L[4*(cb if rb % 2 == 0 else 3 - cb) + rb] for rb in range(4) for cb in range(4)] + [L[4*cb + (rb if cb % 2 else 3 - rb)] for cb in (4, 5) for rb in range(4)]
        return L
    def spread(r, key):
        sp, off = float(os.environ.get(key, "1.4" if key in ("SA1", "SB1") else "1")), int(os.environ.get(key + "O", "0"))
        f = {}
        for k_, x in enumerate(r): f.setdefault(min(23, off + int(k_ * sp)), []).append(x)
        return f
    def rot_x():
        return [f"v_add_u32 v{XA[1]}, s{S_XN}, v{XB[1]}", f"s_mov_b32 s{S_XF}, s{S_XN}", f"s_add_u32 s{S_XN}, s{S_XN}, 32768",
                f"s_cmp_eq_u32 s{S_XN}, 98304", f"s_cselect_b32 s{S_XN}, 0, s{S_XN}"]
    BSPR = OPT("BSPR", 0)
    def place(f, burst, pre):
        if BSPR == 0:
            pre += burst; return
        groups, cur = [], []
        for x in burst:
            cur.append(x)
            if " lds" in x or "buffer_load_dword " in x: groups.append(cur); cur = []
        if cur: groups[-1] += cur
        pre += groups[0]
        for k_, g in enumerate(groups[1:]): f[(k_ + 1) * BSPR - 1] = f.get((k_ + 1) * BSPR - 1, []) + g
    a(f"""
    s_cmp_lg_u32 s{S_WH}, 0
    s_cbranch_scc1 L_g1B_pre
    s_mov_b32 s{S_XF}, 0
    {"s_setprio 1" if OPT("G1PRIO", "") == "A" else ""}
    {f"buffer_load_dword v{PFD}, v{PFV}, s[8:11], s{S_PFO} offen {os.environ.get('NTXP', '')}" if OPT("XPFE", 0) else ""}
    s_waitcnt vmcnt({8 + 2*BULK + OPT("XPFE", 0)})
    s_barrier
    """)
    stamp(a, 1)
    a(reads1(0, 0, 0))
    a.raw(".p2align 6")
    a.label("L_g1A")
    stamp_stage(a, f"s{S_IT}", True)
    a(f"s_cmp_eq_u32 s{S_IT}, 7\ns_cselect_b32 s14, 0, s14")
    for stage in range(2):
        a("s_waitcnt lgkmcnt(0)")
        r = reads1(stage, 1, 1)
        a(weave(mfmas1(0), spread(r, "SA0")))
        if stage == 1: a(f"s_cmp_ge_u32 s{S_IT}, 6\ns_cselect_b32 s10, 0, s10")
        a(f"v_add_u32 v{XA[0]}, s{S_XN}, v{XB[0]}")
        PFX = OPT("PFX", 0)
        a(f"s_waitcnt vmcnt({2 if PFX and stage == 1 else 1}) lgkmcnt(0)\ns_barrier")
        r = reads1(1 - stage, 0, 0)
        RA1 = OPT("RA1", 1)
        f = spread(r, "SA1")
        pre = []
        if stage == 1 :
            a(f"s_cmp_eq_u32 s{S_IT}, 7\ns_cbranch_scc1 L_g1A_last")
        if OPT("ARD", 0): pre += [x for i in sorted(f) for x in f[i]]; f = {}
        pfx = [f"s_cmp_lt_u32 s{S_PFO}, 2048", f"s_cselect_b32 s{T0}, s{S_PFO}, 0x7fff0000", f"buffer_load_dword v{PFD}, v{PFV}, s[8:11], s{T0} offen", f"s_add_u32 s{S_PFO}, s{S_PFO}, 512"]
        place(f, burstW(stage) + burstXA(f"s{S_XF}") + (pfx if PFX and stage == 0 else []), pre)
        f[20] = f.get(20, []) + rot_x()
        a(pre); a(weave(mfmas1(1), f))
    a(f"""
    s_add_u32 s{S_IT}, s{S_IT}, 1
    s_branch L_g1A
    """)
    a.label("L_g1B_pre")
    NPFE = OPT("NPFE", 0)
    PFE_W = f"buffer_load_dword v{PFD}, v{PFV}, s[12:15], s{S_PFO} offen {NTP}\ns_add_u32 s{S_PFO}, s{S_PFO}, {393216 * 4}\n" * NPFE
    if OPT("G1PRIO", "") == "B": a("s_setprio 1")
    a(f"s_mov_b32 s{S_XF}, 65536\n{PFE_W}s_waitcnt vmcnt({7 + BULK + NPFE})\ns_barrier")
    stamp(a, 1)
    a(reads1(0, 0, 0))
    a.raw(".p2align 6")
    a.label("L_g1B")
    stamp_stage(a, f"s{S_IT}", True)
    a(f"s_cmp_eq_u32 s{S_IT}, 7\ns_cselect_b32 s10, 0, s10")
    if OPT("TOUCH", 0):
        a(f"""
        s_cmp_eq_u32 s{S_IT}, 4
        s_cbranch_scc0 L_t1
        s_mov_b32 s12, s32
        s_mov_b32 s13, s33
        s_mov_b32 s14, {WS_BYTES}
        s_lshl_b32 s{S_T}, s{S_P}, 4
        s_add_u32 s{S_T}, s{S_T}, s{S_A}
        s_lshl_b32 s{T0}, s{S_T}, 10
        s_add_u32 s{T0}, s{T0}, {FKV}
        s_lshl_b32 s{S_T}, s{S_T}, 4
        s_add_u32 s{S_T}, s{S_T}, s{S_B}
        s_lshl_b32 s{S_T}, s{S_T}, 2
        s_add_u32 s{S_T}, s{S_T}, s{S_WR}
        s_lshl_b32 s{S_T}, s{S_T}, 13
        v_and_b32 v{VT}, 1, v0
        v_lshlrev_b32 v{VT+1}, 18, v{VT}
        v_add_u32 v{PFV}, s{S_T}, v{VT+1}
        s_lshl_b32 s{S_T}, s{S_P}, 3
        s_add_u32 s{S_T}, s{S_T}, s{S_B}
        s_lshl_b32 s{S_T}, s{S_T}, 2
        s_add_u32 s{S_T}, s{S_T}, s{S_WR}
        s_lshl_b32 s{S_T}, s{S_T}, 5
        s_add_u32 s{S_T}, s{S_T}, s{S_A}
        s_lshl_b32 s{S_T}, s{S_T}, 12
        s_add_u32 s{S_T}, s{S_T}, {OWS}
        v_lshlrev_b32 v{VT+1}, 16, v{VT}
        v_add_u32 v{VT+1}, s{S_T}, v{VT+1}
        v_cmp_lt_u32 vcc, 1, v0
        v_mov_b32 v{VT+2}, s{T0}
        s_mov_b32 s{S_PFO}, 0
        v_cndmask_b32 v{PFV}, v{PFV}, v{VT+1}, vcc
        v_cmp_lt_u32 vcc, 3, v0
        s_nop 1
        v_cndmask_b32 v{PFV}, v{PFV}, v{VT+2}, vcc
        """)
        a.label("L_t1")
        a(f"""
        s_cmp_eq_u32 s{S_IT}, 5
        s_cbranch_scc0 L_t2
        s_mov_b32 s12, s28
        s_mov_b32 s13, s29
        s_mov_b32 s14, 0x800000
        s_lshl_b32 s{S_T}, s{S_A}, 2
        s_add_u32 s{S_T}, s{S_T}, s{S_WR}
        s_lshl_b32 s{S_T}, s{S_T}, 17
        s_lshl_b32 s{T0}, s{S_P}, 11
        s_add_u32 s{S_T}, s{S_T}, s{T0}
        s_lshl_b32 s{T0}, s{S_B}, 8
        s_add_u32 s{S_PFO}, s{S_T}, s{T0}
        v_and_b32 v{VT}, 1, v0
        v_lshlrev_b32 v{PFV}, 16, v{VT}
        """)
        a.label("L_t2")
        a(f"s_cmp_ge_u32 s{S_IT}, 6\ns_cselect_b32 s14, 0, s14")
    pf = [f"buffer_load_dword v{PFD}, v{PFV}, s[12:15], s{S_PFO} offen {NTP}", f"s_add_u32 s{S_PFO}, s{S_PFO}, {393216 * PFSTEP}"]
    for stage in range(2):
        r = reads1(stage, 1, 1)
        RB, BPOS = OPT("RB", 1), OPT("BPOS", -1)
        f = spread(r, "SB0")
        bx = burstXB(f"s{S_XF}") + (pf if stage == 0 else [])
        if BPOS < 0: a(bx)
        else: f[BPOS] = f.get(BPOS, []) + bx
        a("s_waitcnt lgkmcnt(0)")
        a(weave(mfmas1(0), f))
        a(f"v_add_u32 v{XA[0]}, s{S_XN}, v{XB[0]}")
        a(f"s_waitcnt vmcnt({8 if stage == 0 else 7}) lgkmcnt(0)\ns_barrier")
        if stage == 1:
            a(f"s_cmp_eq_u32 s{S_IT}, 7\ns_cbranch_scc1 L_g1A_last")
        r = reads1(1 - stage, 0, 0)
        RB1 = OPT("RB1", 1)
        f = spread(r, "SB1")
        f[20] = f.get(20, []) + [f"v_add_u32 v{XA[1]}, s{S_XN}, v{XB[1]}", f"s_add_u32 s{S_XF}, s{S_XF}, 32768", f"s_cmp_eq_u32 s{S_XF}, 98304",
                 f"s_cselect_b32 s{S_XF}, 0, s{S_XF}", f"s_add_u32 s{S_XN}, s{S_XN}, 32768",
                 f"s_cmp_eq_u32 s{S_XN}, 98304", f"s_cselect_b32 s{S_XN}, 0, s{S_XN}"]
        a(weave(mfmas1(1), f))
    a(f"""
    s_add_u32 s{S_IT}, s{S_IT}, 1
    s_branch L_g1B
    """)
    VKV, VD = 2, 3
    VT = 4
    S_SO, S_ST1, S_ST2, S_M0, S_KV, S_FL, S_HB, S_GRP, MSK = 43, 44, 45, 46, 47, 49, 50, 51, 56
    a.label("L_g1A_last")
    setup = f"""
    s_mov_b32 s36, s32
    s_mov_b32 s37, s33
    s_mov_b32 s38, {WS_BYTES}
    s_mov_b32 s52, s30
    s_mov_b32 s53, s31
    s_mov_b32 s54, 256
    buffer_load_dwordx2 v[{FDAT}:{FDAT+1}], v{ZERO}, s[52:55], 0 offen sc1
    s_lshl_b32 s{S_T}, s{S_P}, 4
    s_add_u32 s{S_T}, s{S_T}, s{S_A}
    s_lshl_b32 s{S_FL}, s{S_T}, 3
    s_lshl_b32 s{S_T}, s{S_T}, 1
    s_add_u32 s{S_T}, s{S_T}, s{S_WH}
    s_lshl_b32 s{S_HB}, s{S_T}, 18
    s_add_u32 s{S_FL}, s{S_FL}, s{S_W}
    s_lshl_b32 s{S_FL}, s{S_FL}, 7
    s_add_u32 s{S_FL}, s{S_FL}, {FKV}
    s_lshl_b32 s{S_T}, s{S_WR}, 13
    s_add_u32 s{S_T}, s{S_T}, s{S_HB}
    s_add_u32 s8, s32, s{S_T}
    s_addc_u32 s9, s33, 0
    s_mov_b32 s10, 0x40000
    s_lshl_b32 s{S_KV}, s{S_B}, 15
    s_add_u32 s{S_KV}, s{S_KV}, s{S_T}
    s_add_u32 s{S_KV+1}, s{S_KV}, 4096
    s_lshl_b32 s{S_M0}, s{S_W}, 13
    v_lshlrev_b32 v{VD}, 4, v0
    v_add_u32 v{VKV}, s{S_M0}, v{VD}
    s_cmp_eq_u32 s{S_P}, 0
    s_cselect_b32 s12, s20, s26
    s_cselect_b32 s13, s21, s27
    s_lshl_b32 s{S_T}, s{S_B}, 8
    s_add_u32 s12, s12, s{S_T}
    s_addc_u32 s13, s13, 0
    s_sub_u32 s14, 0x200000, s{S_T}
    s_mov_b32 s{S_ST1}, 0
    s_mov_b32 s{MSK}, 0xfff8fff8
    s_mov_b32 s{MSK+1}, s{MSK}
    s_mov_b32 s58, {f2u(CSCALE):#x}
    s_mov_b32 s59, s58
    """.strip().split("\n")
    m = mfmas1(1, True)
    EARLY = OPT("EARLY", 1)
    if EARLY: m = [m[4*cb + rb] for rb2 in (0, 2) for cb in range(2, 6) for rb in (rb2, rb2 + 1)] + m[:8]
    else: m = m[8:] + m[:8]
    LASTM = m
    def pack2(dst, t0, t1):
        return [f"v_cvt_pk_bf16_f32 v{dst}, v{t0}, v{t0+1}", f"v_cvt_pk_bf16_f32 v{dst+1}, v{t0+2}, v{t0+3}",
                f"v_cvt_pk_bf16_f32 v{dst+2}, v{t1}, v{t1+1}", f"v_cvt_pk_bf16_f32 v{dst+3}, v{t1+2}, v{t1+3}"]
    def swap2(dst):
        return [f"v_permlane16_swap_b32 v{dst}, v{dst+2}", f"v_permlane16_swap_b32 v{dst+1}, v{dst+3}"]
    def swap32(dst):
        return [f"v_permlane32_swap_b32 v{dst}, v{dst+2}", f"v_permlane32_swap_b32 v{dst+1}, v{dst+3}"]
    frs = []
    for b in range(2):
        for t in range(2): frs.append((PKB[b] + 4*t, ACC[2+t][2*b], ACC[2+t][2*b+1], b, t*1024))
        for t in range(2): frs.append((PKB[b] + 8 + 4*t, ACC[4][2*b+t], ACC[5][2*b+t], b, 2048 + t*1024))
    kvstores = [f"buffer_store_dwordx4 {vr(fr[0],4)}, v{VD}, s[36:39], s{S_KV+fr[3]} offen offset:{fr[4]} {os.environ.get('KVPOL', 'sc1')}" for fr in frs]
    NE0 = OPT("NE0", 4)
    packs = []
    prev = None
    for k_, fr in enumerate(frs):
        L = pack2(fr[0], fr[1], fr[2])
        if prev:
            L += swap2(prev[0])
            if DENSE and prev[4] >= 2048: L += ["s_nop 1"] + swap32(prev[0])
            if k_ - 1 < NE0: L.append(kvstores[k_ - 1])
            L.append(f"ds_write_b128 v{VKV}, {vr(prev[0],4)} offset:{prev[3]*4096+prev[4]}")
        packs.append(L)
        prev = fr
    if EARLY:
        f = {i: setup[3*i:3*i+3] for i in range(14)}
        for i in range(4): f[16 + 2*i] = packs[i]
        a(weave(LASTM, f)); stamp(a, 2)
        for L in packs[4:]: a(L)
    else:
        a(weave(LASTM, {i: setup[2*i:2*i+2] for i in range(24)})); stamp(a, 2)
        for L in packs: a(L)
    for i in range(0, 8, 2): a(f"v_pk_mul_f32 v[{96+i}:{97+i}], v[{96+i}:{97+i}], s[58:59]")
    a(swap2(prev[0]))
    if DENSE: a(["s_nop 1"] + swap32(prev[0]))
    a(f"ds_write_b128 v{VKV}, {vr(prev[0],4)} offset:{prev[3]*4096+prev[4]}")
    for i in range(8, 32, 2): a(f"v_pk_mul_f32 v[{96+i}:{97+i}], v[{96+i}:{97+i}], s[58:59]")
    for b in range(2):
        for t in range(2): a(pack2(Q[b] + 4*t, ACC[t][2*b], ACC[t][2*b+1]))
    a(f"""
    s_lshl_b32 s{S_T}, s{S_WH}, 15
    v_add_u32 v{VKV}, s{S_T}, v{VD}
    s_add_u32 s{S_M0}, s{S_M0}, 65536
    """)
    for k_ in range(1, 4):
        a(f"s_add_u32 s{S_T}, s{S_WR}, {k_}\ns_and_b32 s{S_T}, s{S_T}, 3\ns_lshl_b32 s{S_T}, s{S_T}, 13\nv_add_u32 v{VT+1+k_}, s{S_T}, v{VKV}")
    for b in range(2):
        for t in range(2): a(swap2(Q[b] + 4*t))
    def rdK(kt, buf): return [f"ds_read_b128 {vr(KF[buf]+4*t,4)}, v{VKV} offset:{kt*4096+t*1024}" for t in range(2)]
    def rdV(kt, buf): return [f"ds_read_b128 {vr(VF[buf]+4*t,4)}, v{VKV} offset:{kt*4096+2048+t*1024}" for t in range(2)]
    def qk(sbuf, kbuf, qt, c=None):
        return [mf32(S[sbuf], KF[kbuf], Q[qt], NM[qt] if c is None else c), mf32(S[sbuf], KF[kbuf]+4, Q[qt]+4)]
    def pv(sbuf, vbuf, qt, t):
        if DENSE: return mf32(O[qt], VF[vbuf] + 4*t, S[sbuf] + 4*t)
        return f"v_smfmac_f32_32x32x32_bf16 {vr(O[qt],16)}, {vr(VF[vbuf]+4*t,4)}, {vr(S[sbuf]+8*t,8)}, v{IDX}"
    def rs(sbuf, qt, t):
        if DENSE: return None if t == 0 else f"v_smfmac_f32_16x16x64_bf16 {vr(LA[qt],4)}, {vr(ONES,4)}, {vr(S[sbuf],8)}, v{IDX}"
        return f"v_smfmac_f32_16x16x64_bf16 {vr(LA[qt],4)}, {vr(ONES,4)}, {vr(S[sbuf]+8*t,8)}, v{IDX}"
    def max_to_nm(m, qt):
        a(f"v_mov_b32 v{m+1}, v{m}")
        a("s_nop 1")
        a(f"v_permlane32_swap_b32 v{m}, v{m+1}")
        a("s_nop 1")
        a(f"v_max_f32 v{m}, v{m}, v{m+1}")
        a(f"v_sub_f32 v{m}, 0, v{m}")
        a(f"v_mov_b32 v{m+1}, v{m}")
        for i in range(0, 16, 2): a(f"v_mov_b64 v[{NM[qt]+i}:{NM[qt]+i+1}], v[{m}:{m+1}]")
    assert NE0 == 4
    a("s_nop 0")
    a([mf32(S[qt], PKB[0] + 4*t, Q[qt] + 4*t, "0" if t == 0 else None) for qt in range(2) for t in range(2)])
    a(f"s_waitcnt vmcnt(4)\ns_mov_b32 s{S_T}, {SPIN_MAX}")
    a.label("L_nonce")
    a(f"""
    v_readfirstlane_b32 s{NON}, v{FDAT}
    v_readfirstlane_b32 s{NON+1}, v{FDAT+1}
    s_sub_u32 s{S_T}, s{S_T}, 1
    s_cbranch_scc1 L_nonce_done
    s_cmp_eq_u32 s{NON}, 0
    s_cbranch_scc1 L_nonce_retry
    """)
    a.label("L_nonce_done")
    RARE.append(("L_nonce_retry", [f"buffer_load_dwordx2 v[{FDAT}:{FDAT+1}], v{ZERO}, s[52:55], 0 offen sc1", "s_waitcnt vmcnt(0)"], "L_nonce"))
    a("s_nop 3")
    for qt in range(2):
        m_, src = VT + 6*qt, S[qt]
        a(f"v_max3_f32 v{m_}, v{src}, v{src+1}, v{src+2}")
        for i in range(3, 15, 2): a(f"v_max3_f32 v{m_}, v{m_}, v{src+i}, v{src+i+1}")
        a(f"v_max_f32 v{m_}, v{m_}, v{src+15}")
        max_to_nm(m_, qt)
        a("s_nop 1")
        if qt == 0: a([mf32(S[0], PKB[0], Q[0], NM[0]), mf32(S[0], PKB[0] + 4, Q[0] + 4)])
    if OPT("G1PRIO", "") == "A": a("s_setprio 0")
    if os.environ.get("PRIO", "1"): a(f"s_cmp_eq_u32 s{S_WH}, {os.environ.get('PRIO', '1')[0]}\ns_cbranch_scc0 L_noprio\ns_setprio 1"); a.label("L_noprio")
    stamp(a, 3)
    S_SO2 = S_ST2
    def dma2():
        G = []
        for j in range(8):
            g = []
            if j == 0: g.append(f"s_mov_b32 m0, s{S_M0}"); g.append("s_nop 0")
            g.append(f"buffer_load_dwordx4 v{VDE if j%2==0 else VDO}, s[8:11], s{S_SO} offen offset:{(j%4)*1024} sc1 lds")
            if j == 3: g += [f"s_add_u32 m0, s{S_M0}, 4096", f"s_mov_b32 s{S_SO}, s{S_SO2}"]
            elif j < 7: g.append(f"s_add_u32 s{S_SO}, s{S_SO}, s{S_ST1}")
            else: g.append(f"s_xor_b32 s{S_M0}, s{S_M0}, 65536")
            G.append(g)
        return G
    def blk():
        L = []
        for g, dst in ((0, S_SO), (1, S_SO2)):
            L += [f"s_lshl_b32 s{dst}, s{S_IT}, 1"]
            if g: L += [f"s_add_u32 s{dst}, s{dst}, 1"]
            L += [f"s_cmp_ge_u32 s{dst}, 7", f"s_cselect_b32 s{S_T}, 7, 0", f"s_cselect_b32 s{S_GRP}, 4096, 0", f"s_sub_u32 s{dst}, s{dst}, s{S_T}",
                  f"s_cmp_ge_u32 s{dst}, s{S_B}", f"s_addc_u32 s{dst}, s{dst}, 0", f"s_lshl_b32 s{dst}, s{dst}, 15", f"s_add_u32 s{dst}, s{dst}, s{S_GRP}"]
        return L
    def flagst(voff, soff, imm=0):
        return ["s_mov_b64 exec, 1", f"buffer_store_dwordx2 v[{FDAT}:{FDAT+1}], v{voff}, s[36:39], s{soff} offen offset:{imm} sc1", "s_mov_b64 exec, -1"]
    ATX = os.environ.get("ATX", "")
    PAT = [int(c) for c in os.environ.get('PAT', '333232')]
    def qk_r(sbuf, kreg, qt, c=None):
        return [mf32(S[sbuf], kreg, Q[qt], NM[qt] if c is None else c), mf32(S[sbuf], kreg+4, Q[qt]+4)]
    def pv_r(sbuf, vreg, qt, t):
        if DENSE: return mf32(O[qt], vreg + 4*t, S[sbuf] + 4*t)
        return f"v_smfmac_f32_32x32x32_bf16 {vr(O[qt],16)}, {vr(vreg+4*t,4)}, {vr(S[sbuf]+8*t,8)}, v{IDX}"
    FILL = []
    def slot(sb, qa, nxt, prv, vreg, pre, extra=()):
        e = [f"v_exp_f32 v{S[sb]+i}, v{S[sb]+i}" for i in range(16)]
        m = (qk_r((sb+1) % 4, nxt[0], nxt[1]) if nxt else [None, None]) + \
            ([pv_r((sb-1) % 4, prv[0], prv[1], 1), rs((sb-1) % 4, prv[1], 1)] if prv else [None, None]) + [pv_r(sb, vreg, qa, 0), rs(sb, qa, 0)]
        extra = list(extra)
        if DENSE:
            c = [f"v_cvt_pk_bf16_f32 v{S[sb]+i}, v{S[sb]+2*i}, v{S[sb]+2*i+1}" for i in range(8)]
            grp, ie, ic, last = [], 0, 0, ""
            for g_ in os.environ.get("DG", "eee|eceec|eecec|eec|eece|eecc").split("|"):
                cur = []
                for ch in g_:
                    if ch == "e": cur.append(e[ie]); ie += 1
                    else:
                        assert ie >= 2*ic + 2 and not (last == "e" and ie == 2*ic + 2), "cvt too early"
                        cur.append(c[ic]); ic += 1
                    last = ch
                if len(grp) < 4: last = "m"
                grp.append(cur)
                if len(grp) == 4: assert ic >= 4 and (ic > 4 or cur[-1].startswith("v_exp") and cur[-2].startswith("v_exp"))
            assert ie == 16 and ic == 8 and len(grp) == 6
        else:
            grp, k = [], 0
            for i in range(6): grp.append(e[k:k+PAT[i]]); k += PAT[i]
        for i in range(6):
            if pre.get(i): a(pre[i])
            elif m[i]:
                if FILL: a(FILL.pop(0))
                elif "n" not in ATX: a("s_nop 0")
            if m[i]: a(m[i])
            a(grp[i])
            ne = (len(extra) + 5 - i) // (6 - i)
            a(extra[:ne]); extra = extra[ne:]
    def stage(hooks, pres, first, barwait):
        KA = [None, VT+2, VT+3, VT+4]
        for kt in range(8):
            for qa in range(2):
                n = 2*kt + qa
                pre = {i: [] for i in range(6)}
                if n in hooks: hooks[n]()
                kr = lambda t: PKB[t] if first and t < 2 else KF[t % 2]
                vr_ = lambda t: PKB[t] + 8 if first and 0 <= t < 2 else VF[t % 2]
                if qa == 0:
                    if kt == 7:
                        barwait()
                        pre[0] += [f"v_xor_b32 v{VKV}, 0x10000, v{VKV}", "s_nop 0"]
                    elif not (first and kt < 2):
                        pre[0] += ["s_waitcnt lgkmcnt(0)"]
                    if first and kt < 7:
                        if kt >= 1:
                            t_ = kt + 1
                            pre[1] += [x.replace(f"v{VKV} ", f"v{KA[t_//2]} ") for x in rdK(t_ % 2, t_ % 2)]
                            pre[4] += [x.replace(f"v{VKV} ", f"v{KA[t_//2]} ") for x in rdV(t_ % 2, t_ % 2)]
                    else:
                        pre[1] += rdK((kt+1) % 8, (kt+1) % 2)
                        pre[4] += rdV((kt+1) % 8, (kt+1) % 2)
                elif not (first and kt == 0):
                    pre[0] += ["s_waitcnt lgkmcnt(2)"]
                for i, L in pres.get(n, {}).items(): pre[i] += L
                slot(n % 4, qa, (kr(kt + qa) if kt + qa < 8 else KF[0], 1 - qa), None if first and n == 0 else (vr_(kt - 1 + qa), 1 - qa), vr_(kt), pre)
        assert not FILL
    NPUB, NPOLL = OPT("NPUB", 4), OPT("NPOLL", 8)
    ST0 = os.environ.get("ST0", "") == "1"
    def h_pub():
        a("s_waitcnt vmcnt(0)"); a(flagst(FOFF+1, S_FL))
        if ST0: stamp(a, 4)
    def h_poll0():
        poll("L_poll0", S_FL, f"s[{MSK}:{MSK+1}]")
        a(f"s_mov_b32 s{S_IT}, 0\ns_mov_b32 s{MSK}, 0xff00ff00\ns_mov_b32 s{MSK+1}, s{MSK}"); a(blk())
        if ST0: stamp(a, 5)
    def bw0():
        a("s_waitcnt vmcnt(3) lgkmcnt(0)\ns_barrier")
        stamp_stage(a, "0")
        if ST0: stamp(a, 6)
    G = dma2()
    pres = {NPOLL + i: {2: G[3*i], 3: G[3*i+1], 5: G[3*i+2] if 3*i+2 < 8 else []} for i in range(3)}
    for i, n_ in enumerate((11, 12, 13, 15)): pres.setdefault(n_, {})[3] = [kvstores[4 + i]]
    stage({2: lambda: a("s_waitcnt lgkmcnt(0)\ns_barrier"), NPUB: h_pub, NPOLL: h_poll0}, pres, True, bw0)
    a(f"s_mov_b32 s{S_IT}, 1")
    a.raw(".p2align 6")
    a.label("L_at")
    def rare(lab, cond, body):
        if OPT("OOL", 0):
            a(cond); a(f"s_cbranch_scc1 {lab}"); a.label(lab + "_ret"); RARE.append((lab, body, lab + "_ret"))
        else:
            a(cond); a(f"s_cbranch_scc0 {lab}_skip")
            body() if callable(body) else a(body)
            a.label(lab + "_skip")
    it13 = [f"s_andn2_b32 s{S_T}, s{S_IT}, 2", f"s_cmp_eq_u32 s{S_T}, 1"]
    def h_ld():
        rare("L_r_ld", it13, [f"buffer_load_dwordx2 v[{PDAT}:{PDAT+1}], v{FOFF}, s[36:39], s{S_FL} offen sc1"])
        b = blk()
        FILL.extend([b[i:i+2] for i in range(0, len(b), 2)])
    def h_dma():
        def body():
            poll("L_poll2", S_FL, f"s[{MSK}:{MSK+1}]", True)
            a(f"s_mov_b64 s[{MSK}:{MSK+1}], 0")
        rare("L_r_poll", it13, body)
    def h_pfwo():
        rare("L_r_pfwo", [f"s_cmp_eq_u32 s{S_IT}, {OPT('PFWIT', 4)}"], f"""
        s_and_b32 s{S_T}, s{S_A}, 3
        s_lshl_b32 s{S_T}, s{S_T}, 3
        s_add_u32 s{S_T}, s{S_T}, s{S_W}
        s_lshl_b32 s{S_T}, s{S_T}, 16
        v_lshrrev_b32 v{VT}, 1, v0
        v_lshlrev_b32 v{VT}, 11, v{VT}
        v_and_b32 v{VT+1}, 1, v0
        v_lshl_add_u32 v{VT}, v{VT+1}, 7, v{VT}
        buffer_load_dword v{VT+1}, v{VT}, s[12:15], s{S_T} offen {os.environ.get('NTO', '')}
        """)
    def bw1():
        a("s_waitcnt vmcnt(0) lgkmcnt(0)\ns_barrier")
        rare("L_r_pub1", [f"s_cmp_eq_u32 s{S_IT}, 1"], flagst(FOFF+1, S_FL, 64))
        stamp_stage(a, f"s{S_IT}")
    G = dma2()
    pres = {3 + i: {2: G[2*i], 5: G[2*i+1]} for i in range(4)}
    stage({0: h_ld, 15: h_pfwo, 3: h_dma}, pres, False, bw1)
    a(f"""
    s_add_u32 s{S_IT}, s{S_IT}, 1
    s_cmp_lt_u32 s{S_IT}, 7
    s_cbranch_scc1 L_at
    """)
    S_OO, S_FO, S_BAD = 47, 49, 60
    VOA = VT + 6
    setup7 = f"""
    s_mov_b32 s8, s12
    s_mov_b32 s9, s13
    s_mov_b32 s10, s14
    s_lshl_b32 s{S_SO}, s{S_W}, 16
    s_add_u32 s{S_SO2}, s{S_SO}, 32768
    s_mov_b32 s{S_ST1}, 7168
    v_lshrrev_b32 v{VDE}, 4, v0
    v_lshlrev_b32 v{VDO}, 1, v{VDE}
    v_and_b32 v{VT}, 15, v0
    v_xor_b32 v{VDO}, v{VDO}, v{VT}
    v_lshlrev_b32 v{VDE}, 11, v{VDE}
    v_lshl_add_u32 v{VDE}, v{VDO}, 4, v{VDE}
    v_xor_b32 v{VDO}, 128, v{VDE}
    s_lshl_b32 s{S_T}, s{S_P}, 3
    s_add_u32 s{S_T}, s{S_T}, s{S_B}
    s_lshl_b32 s{S_T}, s{S_T}, 2
    s_add_u32 s{S_T}, s{S_T}, s{S_WR}
    s_lshl_b32 s{S_FO}, s{S_T}, 8
    s_lshl_b32 s{S_OO}, s{S_T}, 17
    s_bfe_u32 s{S_T}, s{S_HB}, 0x50012
    s_lshl_b32 s{S_GRP}, s{S_T}, 3
    s_add_u32 s{S_FO}, s{S_FO}, s{S_GRP}
    s_add_u32 s{S_FO}, s{S_FO}, {FO}
    s_lshl_b32 s{S_T}, s{S_T}, 11
    s_add_u32 s{S_OO}, s{S_OO}, s{S_T}
    s_add_u32 s{S_OO}, s{S_OO}, {OWS}
    s_add_u32 s{S_OO+1}, s{S_OO}, 65536
    v_and_b32 v{VOA}, 15, v0
    v_lshlrev_b32 v{VOA}, 4, v{VOA}
    v_lshrrev_b32 v{VOA+1}, 5, v0
    v_lshl_add_u32 v{VOA}, v{VOA+1}, 8, v{VOA}
    v_bfe_u32 v{VOA+1}, v0, 4, 1
    v_lshl_add_u32 v{VOA}, v{VOA+1}, 10, v{VOA}
    """.strip().split("\n")
    OPK = [PK, PK + 8]
    def lbcast(qt):
        if RSZ < 2: return []
        return [f"v_mov_b32 v{LA[qt]+1}, v{LA[qt]}", "s_nop 1", f"v_permlane32_swap_b32 v{LA[qt]}, v{LA[qt]+1}"]
    def check(qt):
        t = VT + 2*qt
        o = O[qt]
        return (lbcast(qt) + [f"v_pk_mul_f32 v[{t}:{t+1}], v[{o}:{o+1}], 0"] +
                [f"v_pk_fma_f32 v[{t}:{t+1}], v[{o+i}:{o+i+1}], 0, v[{t}:{t+1}]" for i in range(2, 16, 2)] +
                [f"v_add_f32 v{t}, v{t}, v{t+1}", f"v_add_f32 v{t}, v{t}, v{LA[qt]}", f"v_cmp_gt_f32 s[{S_BAD+2*qt}:{S_BAD+2*qt+1}], s58, v{t}"])
    def finish(qt):
        t = VT + 2*qt
        o = O[qt]
        return ([f"v_rcp_f32 v{t}, v{LA[qt]}", "s_nop 0"] +
                [f"v_pk_mul_f32 v[{o+i}:{o+i+1}], v[{o+i}:{o+i+1}], v[{t}:{t+1}] op_sel_hi:[1,0]" for i in range(0, 16, 2)] +
                [f"v_cvt_pk_bf16_f32 v{OPK[qt]+i}, v{o+2*i}, v{o+2*i+1}" for i in range(8)] +
                [f"buffer_store_dwordx4 {vr(OPK[qt]+4*t_,4)}, v{VOA}, s[36:39], s{S_OO+qt} offen offset:{t_*512} {os.environ.get('KVPOL', 'sc1')}" for t_ in range(2)])
    OA, OB = 244, 245
    WA3 = [[248, 249, 250, 251], [252, 253, 254, 255]]
    FO_ = [[16 + 16*buf + 4*i for i in range(4)] for buf in range(2)]
    FW3 = [[48 + 16*buf + 4*nb for nb in range(4)] for buf in range(2)]
    AC3 = [[80 + 16*i + 4*nb for nb in range(4)] for i in range(4)]
    RX = 144
    T3 = 176
    S_INC, S_M3, S_ME, S_MS, S_R3, S_C3, S_F3, S_O3 = 52, 53, 54, 55, 56, 57, 100, 59
    setup3 = f"""
    s_bfe_u32 s{S_R3}, s{S_W}, 0x10001
    s_and_b32 s{S_C3}, s{S_W}, 1
    s_lshl_b32 s{S_T}, s{S_P}, 4
    s_add_u32 s{S_T}, s{S_T}, s{S_A}
    s_lshl_b32 s{S_T}, s{S_T}, 2
    s_add_u32 s{S_T}, s{S_T}, s{S_WR}
    s_lshr_b32 s{S_F3}, s{S_T}, 1
    s_lshl_b32 s{S_F3}, s{S_F3}, 8
    s_add_u32 s{S_F3}, s{S_F3}, {FO}
    s_lshl_b32 s{S_T}, s{S_T}, 16
    s_add_u32 s{S_T}, s{S_T}, {OWS}
    s_add_u32 s60, s32, s{S_T}
    s_addc_u32 s61, s33, 0
    s_lshl_b32 s{S_M3}, s{S_WR}, 12
    s_lshl_b32 s{S_O3}, s{S_WR}, 15
    s_add_u32 s{S_O3}, s{S_O3}, {6*131072}
    s_cmp_eq_u32 s{S_WH}, 0
    s_cselect_b64 vcc, -1, 0
    s_cselect_b32 s8, s60, s12
    s_cselect_b32 s9, s61, s13
    s_cselect_b32 s10, 0x10000, s14
    s_cselect_b32 s{S_O3}, 0, s{S_O3}
    s_cselect_b32 s{S_ST1}, 0, 7168
    s_cselect_b32 s{S_INC}, 12, 17
    s_lshl_b32 s{S_INC}, 1, s{S_INC}
    v_lshlrev_b32 v{T3+1}, 4, v0
    v_cndmask_b32 v{VDE}, v{VDE}, v{T3+1}, vcc
    v_cndmask_b32 v{VDO}, v{VDO}, v{T3+1}, vcc
    s_lshl_b32 s{S_T}, s{S_R3}, 1
    s_add_u32 s{S_T}, s{S_T}, s{S_WH}
    s_lshl_b32 s{S_T}, s{S_T}, 1
    s_add_u32 s{S_T}, s{S_T}, s{S_WH}
    s_lshl_b32 s{S_T}, s{S_T}, 11
    s_add_u32 s{S_T}, s{S_T}, 65536
    v_add_u32 v{OA}, s{S_T}, v{T3+1}
    v_xor_b32 v{OB}, 4096, v{OA}
    v_bfe_u32 v{T3}, v0, 2, 3
    v_lshrrev_b32 v{T3+1}, 5, v0
    v_lshl_add_u32 v{T3+1}, v{T3+1}, 4, v{T3}
    s_lshl_b32 s{S_T}, s{S_WH}, 5
    v_add_u32 v{T3+1}, s{S_T}, v{T3+1}
    v_lshlrev_b32 v{T3+1}, 8, v{T3+1}
    v_bfe_u32 v{T3+2}, v0, 1, 1
    s_lshl_b32 s{S_T}, s{S_C3}, 3
    v_add_u32 v{T3+2}, s{S_T}, v{T3+2}
    v_lshlrev_b32 v{T3}, 1, v{T3}
    v_xor_b32 v{T3+2}, v{T3+2}, v{T3}
    v_lshl_add_u32 v{T3+1}, v{T3+2}, 4, v{T3+1}
    v_and_b32 v{T3+2}, 1, v0
    v_lshl_add_u32 v{WA3[0][0]}, v{T3+2}, 3, v{T3+1}
    v_and_b32 v{FOFF}, 31, v0
    v_lshlrev_b32 v{FOFF}, 3, v{FOFF}
    """.replace(f"v{T3+2}", f"v{VT+5}").replace(f"v{T3+1}", f"v{VT+4}").replace(f"v{T3}", f"v{VT+3}").strip().split("\n")
    setup3 += [f"v_xor_b32 v{WA3[0][nb]}, {32*nb}, v{WA3[0][0]}" for nb in range(1, 4)]
    setup3 += [f"v_add_u32 v{WA3[1][nb]}, 0x20000, v{WA3[0][nb]}" for nb in range(4)]
    NS3 = next(i for i, x in enumerate(setup3) if 'v_bfe_u32' in x)
    seq = [(0, 0), (0, 1)] + [(k_, 0) for k_ in range(1, 8)] + [(k_, 1) for k_ in range(1, 8)]
    KB, VB = [0], [0]
    for m_ in range(1, 16):
        flip = seq[m_][0] != seq[m_-1][0]
        KB.append(KB[-1] ^ flip); VB.append(VB[-1] ^ flip)
    G = dma2()
    for m_ in range(16):
        stamp_stage(a, "7") if m_ == 14 else None
        pre = {i: [] for i in range(6)}
        pre[0] += ["s_waitcnt lgkmcnt(0)"]
        if m_ + 2 < 16 and seq[m_+2][0] != seq[m_+1][0]: pre[1] += rdK(seq[m_+2][0], KB[m_+2])
        if m_ + 1 < 16 and seq[m_+1][0] != seq[m_][0]: pre[4] += rdV(seq[m_+1][0], VB[m_+1])
        extra = []
        if m_ == 0: extra = setup7[:13] + ["s_mov_b32 s58, 0x5f800000"]
        if m_ == 1: extra = setup7[13:]
        if 2 <= m_ <= 5: pre[2] += G[2*(m_-2)]; pre[5] += G[2*(m_-2)+1]
        if m_ == 6:
            pre[2] += [f"s_lshl_b32 s{S_T}, s{S_W}, 12", f"s_add_u32 m0, s{S_T}, 131072", f"s_lshl_b32 s{S_SO}, s{S_W}, 15", f"s_add_u32 s{S_SO}, s{S_SO}, {4*131072}"]
        if m_ in (6, 7):
            for i_, j_ in ((3, 2*(m_-6)), (5, 2*(m_-6)+1)):
                pre[i_] += [f"buffer_load_dwordx4 v{VDE if j_%2==0 else VDO}, s[8:11], s{S_SO} offen offset:{j_*1024} lds", f"s_add_u32 s{S_SO}, s{S_SO}, s{S_ST1}"]
        if m_ == 8: extra = setup3[:NS3 // 2]
        if m_ == 9: extra = setup3[NS3 // 2:NS3]
        if m_ == 12: extra = setup3[NS3:]
        if m_ == 10: extra = check(0)
        if m_ == 11: extra = finish(0)
        slot(m_ % 4, seq[m_][1], (KF[KB[m_+1]], seq[m_+1][1]) if m_ < 15 else None,
             (VF[VB[m_-1]], seq[m_-1][1]) if m_ else (VF[1], 1), VF[VB[m_]], pre, extra)
    a("s_nop 1")
    a(pv(3, VB[15], 1, 1)); a(rs(3, 1, 1))
    if not ST0: stamp(a, 4)
    if ST3: stamp(a, 1, True)
    a("s_nop 7\ns_nop 3")
    a(check(1))
    a(f"""
    s_and_b64 vcc, s[{S_BAD}:{S_BAD+1}], s[{S_BAD+2}:{S_BAD+3}]
    s_cmp_eq_u64 vcc, exec
    s_cbranch_scc0 L_fallback
    """)
    a.label("L_fin")
    a(finish(1))
    def wslot(i): return i*16384 if i < 4 else 131072 + (i-4)*16384
    def dma3(mo, mw):
        G = []
        for j in range(4):
            g = []
            if j == 0:
                if mw is None: g += [f"s_add_u32 m0, s{S_M3}, {mo}"]
                else: g += [f"s_cmp_eq_u32 s{S_WH}, 0", f"s_mov_b32 s{S_T}, {mw}", f"s_cmov_b32 s{S_T}, {mo}", f"s_add_u32 m0, s{S_M3}, s{S_T}"]
                g += [f"s_mov_b32 s{S_SO}, s{S_O3}"]
            g.append(f"buffer_load_dwordx4 v{VDE if j%2==0 else VDO}, s[8:11], s{S_SO} offen offset:{j*1024} sc1 lds")
            g.append(f"s_add_u32 s{S_SO}, s{S_SO}, s{S_ST1}" if j < 3 else f"s_add_u32 s{S_O3}, s{S_O3}, s{S_INC}")
            G.append(g)
        return G
    a("s_barrier")
    if ST3: stamp(a, 2, True)
    a("s_waitcnt vmcnt(0)")
    if ST3: stamp(a, 3, True)
    a(flagst(ZERO, S_FO))
    a(f"s_cmp_lg_u32 s{S_WH}, 0\ns_cbranch_scc1 L_p3go")
    if OPT("POLL2", 0):
        P2 = T3 + 4
        ld = lambda r: f"buffer_load_dwordx2 v[{r}:{r+1}], v{FOFF}, s[36:39], s{S_F3} offen sc1"
        a(f"s_mov_b32 s{S_T}, {SPIN_MAX}")
        a(ld(PDAT)); a(f"s_sleep {OPT('PSL2', 3)}")
        a.label("L_pollo")
        for r0, r1 in ((PDAT, P2), (P2, PDAT)):
            a(ld(r1))
            a(f"""
            s_waitcnt vmcnt(1)
            v_cmp_eq_u64 vcc, s[{NON}:{NON+1}], v[{r0}:{r0+1}]
            s_cmp_eq_u64 vcc, exec
            s_cbranch_scc1 L_pollo_done
            """)
        a(f"s_sub_u32 s{S_T}, s{S_T}, 1\ns_cbranch_scc0 L_pollo")
        a.label("L_pollo_done")
    else:
        poll("L_pollo", S_F3)
    if ST3: stamp(a, 4, True)
    PFO_ = OPT("PFO", 0)
    for st in range(4):
        if PFO_ and st == PFO_ - 1:
            a(f"s_lshl_b32 s{S_T}, s{S_B}, 13\nv_lshlrev_b32 v{PDAT}, 7, v0\nbuffer_load_dword v{PDAT+1}, v{PDAT}, s[8:11], s{S_T} offen sc1")
        for g in dma3(65536 + st*16384, None): a(g)
    a(f"s_waitcnt vmcnt({13 if PFO_ > 1 else 12})")
    a.label("L_p3go")
    if ST3: a(f"s_cmp_eq_u32 s{S_WH}, 0\ns_cbranch_scc1 L_st3x"); stamp(a, 4, True); a.label("L_st3x")
    a("s_barrier")
    if OPT("G3PRIO", "") == "0": a("s_setprio 0")
    if not ST0: stamp(a, 5)
    def reads3(s, buf):
        ws_, os_ = s % 6, s % 4
        O_ = [f"ds_read_b128 {vr(FO_[buf][i],4)}, v{OA if i < 2 else OB} offset:{os_*16384 + (i%2)*1024}" for i in range(4)]
        W_ = [f"ds_read_b64_tr_b16 {vr(FW3[buf][nb]+2*u,2)}, v{WA3[ws_//4][nb]} offset:{(ws_%4)*16384 + u*2048}" for nb in range(4) for u in range(2)]
        return W_[0:2] + O_ + W_[2:]
    def mfmas3(buf, first=False, last=False):
        L = [mf16(AC3[i][nb], FW3[buf][nb], FO_[buf][i]) for nb in range(4) for i in range(4)]
        o = os.environ.get("ORD3", "i") if not last else ""
        if o == "i": L = [L[4*(nb if i % 2 == 0 else 3 - nb) + i] for i in range(4) for nb in range(4)]
        if o == "snake": L = [L[4*nb + (i if nb % 2 == 0 else 3 - i)] for nb in range(4) for i in range(4)]
        return [x[:x.rindex(",")] + ", 0" for x in L] if first else L
    a(reads3(0, 0))
    fin_setup = f"""
    s_lshl_b32 s{S_T}, s{S_WH}, 3
    s_add_u32 s{S_T}, s{S_T}, s{S_WR}
    s_lshl_b32 s{S_T}, s{S_T}, 13
    v_lshlrev_b32 v{T3}, 4, v0
    v_add_u32 v{T3}, s{S_T}, v{T3}
    v_xor_b32 v{T3+1}, 0x10000, v{T3}
    s_mov_b32 s12, s28
    s_mov_b32 s13, s29
    s_mov_b32 s14, 0x800000
    s_lshl_b32 s{S_T}, s{S_A}, 2
    s_lshl_b32 s{S_SO}, s{S_R3}, 1
    s_add_u32 s{S_T}, s{S_T}, s{S_SO}
    s_add_u32 s{S_T}, s{S_T}, s{S_WH}
    s_lshl_b32 s{S_T}, s{S_T}, 17
    s_lshl_b32 s{S_SO}, s{S_P}, 11
    s_add_u32 s{S_T}, s{S_T}, s{S_SO}
    s_lshl_b32 s{S_SO}, s{S_B}, 8
    s_add_u32 s{S_T}, s{S_T}, s{S_SO}
    s_lshl_b32 s{S_SO}, s{S_C3}, 7
    s_add_u32 s{S_SO}, s{S_T}, s{S_SO}
    s_add_u32 s{S_SO+1}, s{S_SO}, 65536
    v_and_b32 v{T3+2}, 15, v0
    v_lshlrev_b32 v{T3+2}, 12, v{T3+2}
    v_bfe_u32 v{T3+3}, v0, 4, 1
    v_lshl_add_u32 v{T3+2}, v{T3+3}, 5, v{T3+2}
    v_lshrrev_b32 v{T3+3}, 5, v0
    v_lshl_add_u32 v{T3+2}, v{T3+3}, 4, v{T3+2}
    """.strip().split("\n")
    for s in range(16):
        if s < 15:
            a(f"s_waitcnt vmcnt({8 if s <= 12 else 4 if s == 13 else 0}) lgkmcnt(0)\ns_barrier")
            r = reads3(s + 1, 1 - s % 2)
            f = {}
            for k_, x in enumerate(r): f.setdefault(min(15, int(k_ * OPT("S3", 1.0))), []).append(x)
            if s <= 11:
                d = dma3(65536 + (s % 4)*16384, wslot(s % 6))
                for k_, i in enumerate([int(x) for x in os.environ.get("D3POS", "0,4,8,12").split(",")]): f[i] = f.get(i, []) + d[k_]
            if s == 14:
                for i in range(14): f[i] = f.get(i, []) + fin_setup[2*i:2*i+2]
            a(weave(mfmas3(s % 2, s == 0), f))
        else:
            a("s_waitcnt lgkmcnt(0)")
            m = mfmas3(1, False, True)
            order = [k_ for k_ in range(16) if k_ % 4 >= 2] + [k_ for k_ in range(16) if k_ % 4 < 2]
            mm = [m[k_] for k_ in order]
            a(mm[:8])
            wr_ = {2*(j % 4) + j//4: f"ds_write_b128 v{T3}, {vr(AC3[2][0]+4*j,4)} offset:{j*1024}" for j in range(8)}
            for k_ in range(8): a(mm[8 + k_]); a(wr_[k_])
    if not ST0: stamp(a, 6)
    a("s_waitcnt lgkmcnt(0)\ns_barrier")
    for j in range(8): a(f"ds_read_b128 {vr(RX+4*j,4)}, v{T3+1} offset:{j*1024}")
    prev = None
    for j in range(5):
        if j < 4:
            qb, np_ = j // 2, j % 2
            t0 = AC3[qb][2*np_]
            a(f"s_waitcnt lgkmcnt({6 - 2*j})")
            for i in range(0, 8, 2): a(f"v_pk_add_f32 v[{t0+i}:{t0+i+1}], v[{t0+i}:{t0+i+1}], v[{RX+8*j+i}:{RX+8*j+i+1}]")
            cur = (16 + 4*j, qb, np_)
            a(pack2(cur[0], t0, t0 + 4))
        else:
            cur = None; a("s_nop 1")
        if prev:
            a(swap2(prev[0]))
            a(f"buffer_store_dwordx4 {vr(prev[0],4)}, v{T3+2}, s[12:15], s{S_SO+prev[1]} offen offset:{prev[2]*64} {os.environ.get('OUTPOL', 'sc0 sc1')}")
        prev = cur
    stamp_flush(a, 7, 1)
    a.label("L_end")
    a("s_endpgm")
    for lab, body, ret in RARE:
        a.label(lab)
        body() if callable(body) else a(body)
        a(f"s_branch {ret}")
    MX = [VT, VT+2]
    a.label("L_fallback")
    a(f"""
    v_mov_b32 v{MX[0]}, 0xff800000
    v_mov_b32 v{MX[1]}, 0xff800000
    s_mov_b32 s{S_IT}, 0
    s_waitcnt vmcnt(0) lgkmcnt(0)
    """)
    a.label("L_fb_max")
    a(f"s_add_u32 s{S_T}, s{S_IT}, s{S_HB}")
    for t in range(2): a(f"buffer_load_dwordx4 {vr(KF[0]+4*t,4)}, v{VD}, s[36:39], s{S_T} offen offset:{t*1024} sc1")
    a("s_waitcnt vmcnt(0)")
    a(qk(0, 0, 0, "0")); a(qk(1, 0, 1, "0"))
    a("s_nop 15")
    for qt in range(2):
        for i in range(0, 16, 2): a(f"v_max3_f32 v{MX[qt]}, v{MX[qt]}, v{S[qt]+i}, v{S[qt]+i+1}")
    a(f"""
    s_add_u32 s{S_IT}, s{S_IT}, 4096
    s_cmp_lt_u32 s{S_IT}, 0x40000
    s_cbranch_scc1 L_fb_max
    """)
    max_to_nm(MX[0], 0); max_to_nm(MX[1], 1)
    for i in range(O[0], LA[1] + 4, 2): a(f"v_mov_b64 v[{i}:{i+1}], 0")
    a(f"s_mov_b32 s{S_IT}, 0")
    a.label("L_fb_main")
    a(f"s_add_u32 s{S_T}, s{S_IT}, s{S_HB}")
    for t in range(2): a(f"buffer_load_dwordx4 {vr(KF[0]+4*t,4)}, v{VD}, s[36:39], s{S_T} offen offset:{t*1024} sc1")
    for t in range(2): a(f"buffer_load_dwordx4 {vr(VF[0]+4*t,4)}, v{VD}, s[36:39], s{S_T} offen offset:{2048+t*1024} sc1")
    a("s_waitcnt vmcnt(0)")
    a(qk(0, 0, 0)); a(qk(1, 0, 1))
    a("s_nop 15")
    for qt in range(2):
        for i in range(16): a(f"v_exp_f32 v{S[qt]+i}, v{S[qt]+i}")
    a("s_nop 1")
    if DENSE:
        for qt in range(2):
            for i in range(8): a(f"v_cvt_pk_bf16_f32 v{S[qt]+i}, v{S[qt]+2*i}, v{S[qt]+2*i+1}")
        a("s_nop 1")
    for qt in range(2):
        for t in range(2):
            a(pv(qt, 0, qt, t))
            if rs(qt, qt, t): a(rs(qt, qt, t))
    a(f"""
    s_add_u32 s{S_IT}, s{S_IT}, 4096
    s_cmp_lt_u32 s{S_IT}, 0x40000
    s_cbranch_scc1 L_fb_main
    s_nop 15
    """)
    a(lbcast(0) + lbcast(1))
    a(finish(0))
    a("s_branch L_fin")
    return f""".p2align 6
.amdhsa_kernel {name}
  .amdhsa_next_free_vgpr {NV}
  .amdhsa_next_free_sgpr 102
  .amdhsa_accum_offset {NV}
  .amdhsa_group_segment_fixed_size 0
  .amdhsa_kernarg_size 72
  .amdhsa_user_sgpr_count 2
  .amdhsa_user_sgpr_kernarg_segment_ptr 1
  .amdhsa_system_sgpr_workgroup_id_x 1
.end_amdhsa_kernel"""

def main():
    out = sys.argv[1] if len(sys.argv) > 1 else f"cdna_kernels/{NAME}.s"
    a = Asm()
    k = gen(a)
    hdr = open(f"cdna_kernels/{NAME}.s.ref").read().split("\n")
    hdr = [l for l in hdr if l.startswith(";") and "@launch" not in l]
    hdr.append(f"; @launch grid=(256,1,1) block=(512,1,1) lds={LDS_BYTES}")
    txt = "\n".join(hdr) + '\n.amdgcn_target "amdgcn-amd-amdhsa--gfx950"\n.text\n' + a.text() + '\n.section .rodata,"a"\n' + k + "\n"
    open(out, "w").write(txt)

if __name__ == "__main__":
    main()
```

```python
import sys, math, os, struct
from gen2 import Asm, vr, f2u, mf32, mf16, weave, NAME

STAMP = os.environ.get("STAMP", "0") == "1"
def OPT(k, d): return type(d)(os.environ.get(k, d))

KVWS = 0
OWS = 16 << 20
FKV = 24 << 20
FO = FKV + 65536
WS_BYTES = 25 << 20
STAMP_BASE = 64 << 20
CSCALE = math.log2(math.e) / math.sqrt(32.0)
LDS_BYTES = 163840
SPIN_MAX = 1 << 16

S_W, S_P, S_A, S_B, S_T = 3, 4, 5, 6, 7
S_WR, S_WH, S_IT = 40, 41, 42
NON = 34

ST3 = os.environ.get("ST3", "") == "1"
STG = os.environ.get("STG", "") == "1"
STG1 = os.environ.get("STG1", "") == "1"
def stamp_stage(a, lane, g1=False):
    if STG and g1 == STG1:
        a(f"s_memtime s[96:97]\ns_memrealtime s[98:99]\ns_lshl_b64 exec, 1, {lane}\ns_waitcnt lgkmcnt(0)\nv_mov_b32 v14, s96\nv_mov_b32 v15, s98\ns_mov_b64 exec, -1")
def stamp(a, i, alt=False):
    if ST3 and i in (1, 2, 3, 4) and not alt: return
    if STAMP and not STG:
        a(f"s_memtime s[{64+4*i}:{65+4*i}]")
        a(f"s_memrealtime s[{66+4*i}:{67+4*i}]")
        a("s_waitcnt lgkmcnt(0)")
def stamp_flush(a, n, vt):
    if not STAMP: return
    a("s_waitcnt vmcnt(0) lgkmcnt(0)")
    stamp(a, n)
    a(f"""
    s_add_u32 s56, s32, {STAMP_BASE}
    s_addc_u32 s57, s33, 0
    s_mov_b32 s58, 0x100000
    s_mov_b32 s59, 0x20000
    s_lshl_b32 s60, s2, 3
    s_add_u32 s60, s60, s{S_W}
    s_lshl_b32 s60, s60, 6
    v_mov_b32 v{vt}, 0
    """)
    if STG:
        a(f"v_lshlrev_b32 v{vt}, 3, v0\ns_mov_b64 exec, 0xff\nbuffer_store_dwordx2 v[14:15], v{vt}, s[56:59], s60 offen")
        return
    for i in range(n + 1):
        a(f"v_mov_b32 v{vt+1}, s{64+4*i}")
        a(f"v_mov_b32 v{vt+2}, s{66+4*i}")
        a(f"buffer_store_dwordx2 v[{vt+1}:{vt+2}], v{vt}, s[56:59], s60 offen offset:{8*i}")
        a("s_nop 1")

DENSE = "d" in os.environ.get("ATX", "")
def gen(a):
    name = NAME + "_kernel"
    a.raw(f".globl {name}\n.p2align 8\n.type {name},@function\n{name}:")
    stamp(a, 0)
    RARE = []
    def emit(L):
        for x in L:
            a(x)
            if " m0," in x: a("s_nop 0")
    PKB = [48, 32]; Q = [16, 24]; PK = 32; KF = [64, 72]; VF = [80, 88]; NM = [96, 112]; S = [128, 144, 160, 176]
    O = [192, 208]; LA = [224, 228]; ONES = 232; IDX = 236; ZERO = 237
    FDAT, FOFF, PDAT = 238, 240, 242
    XB = [244, 245]; VDE, VDO = 246, 247
    NV = 256
    def poll(lab, soff, mask=None, first_loaded=False):
        ld = f"buffer_load_dwordx2 v[{PDAT}:{PDAT+1}], v{FOFF}, s[36:39], s{soff} offen sc1"
        a(f"s_mov_b32 s{S_T}, {SPIN_MAX}")
        if not first_loaded: a(ld)
        a.label(lab)
        a(f"""
        s_waitcnt vmcnt(0)
        v_cmp_eq_u64 vcc, s[{NON}:{NON+1}], v[{PDAT}:{PDAT+1}]
        """)
        if mask: a(f"s_or_b64 vcc, vcc, {mask}")
        a(f"""
        s_cmp_eq_u64 vcc, exec
        s_cbranch_scc1 {lab}_done
        s_sub_u32 s{S_T}, s{S_T}, 1
        s_cbranch_scc1 {lab}_done
        s_sleep {OPT("PSLEEP", 8)}
        {ld}
        s_branch {lab}
        """)
        a.label(lab + "_done")
    XA = [2, 3]; WA = [4, 5]; D0, D1, D2, PFV, PFD = 6, 7, 8, 9, 10
    VT = 11
    FX = [[16 + 16*buf + 4*rb for rb in range(4)] for buf in range(2)]
    FW = [[48 + 24*buf + 4*cb for cb in range(6)] for buf in range(2)]
    ACC = [[96 + 16*cb + 4*rb for rb in range(4)] for cb in range(6)]
    S_KX, S_KW, T0, S_M0X, S_M0W, S_XF, S_XN, S_PFO, S_PFI = 43, 44, 45, 47, 48, 49, 50, 56, 57
    W0, W1 = 98304, 122880
    RSZ = OPT("RSZ", 2)
    NTW, NTX, NTP = os.environ.get("NTW", ""), os.environ.get("NTX", ""), os.environ.get("NTP", "")
    PF0, PFSTEP = OPT("PF0", 3), OPT("PFSTEP", 4)
    a(f"""
    s_cmp_ge_u32 s2, 256
    s_cbranch_scc1 L_end
    s_load_dwordx16 s[16:31], s[0:1], 0
    s_load_dwordx2 s[32:33], s[0:1], 64
    s_memrealtime s[{NON}:{NON+1}]
    v_lshrrev_b32 v1, 6, v0
    v_and_b32 v0, 63, v0
    v_readfirstlane_b32 s{S_W}, v1
    s_and_b32 s{S_T}, s2, 7
    s_lshr_b32 s{S_B}, s2, 3
    s_lshr_b32 s{S_P}, s{S_T}, 2
    s_and_b32 s{S_A}, s{S_T}, 3
    s_lshl_b32 s{S_A}, s{S_A}, 2
    s_and_b32 s{S_T}, s{S_B}, 3
    s_or_b32 s{S_A}, s{S_A}, s{S_T}
    s_lshr_b32 s{S_B}, s{S_B}, 2
    s_and_b32 s{S_WR}, s{S_W}, 3
    s_lshr_b32 s{S_WH}, s{S_W}, 2
    s_mul_i32 s{S_M0X}, s{S_WR}, 7
    s_add_u32 s{S_T}, s{S_WR}, 28
    s_cmp_eq_u32 s{S_WH}, 0
    s_cselect_b32 s{S_M0X}, s{S_T}, s{S_M0X}
    v_lshrrev_b32 v{VT}, 3, v0
    s_lshl_b32 s{S_T}, s{S_M0X}, 3
    v_add_u32 v{VT+4}, s{S_T}, v{VT}
    v_lshlrev_b32 v{VT+4}, 11, v{VT+4}
    v_and_b32 v{VT+1}, 7, v0
    v_lshrrev_b32 v{VT+2}, 4, v0
    v_xor_b32 v{VT+3}, v{VT+1}, v{VT+2}
    s_and_b32 s{S_T}, s{S_WR}, 1
    s_lshl_b32 s{S_T}, s{S_T}, 2
    v_xor_b32 v{VT+3}, s{S_T}, v{VT+3}
    v_lshl_add_u32 v{D2}, v{VT+3}, 4, v{VT+4}
    s_lshl_b32 s{S_M0X}, s{S_M0X}, 10
    s_lshl_b32 s{S_T}, s{S_WR}, 4
    v_add_u32 v{VT}, s{S_T}, v{VT}
    v_mul_u32_u24 v{VT}, 6144, v{VT}
    v_and_b32 v{VT+2}, 1, v{VT+2}
    v_lshlrev_b32 v{VT+2}, 2, v{VT+2}
    v_xor_b32 v{VT+3}, v{VT+1}, v{VT+2}
    v_lshl_add_u32 v{D0}, v{VT+3}, 4, v{VT}
    v_xor_b32 v{D1}, 32, v{D0}
    v_add_u32 v{D1}, 49152, v{D1}
    s_mul_i32 s{S_M0W}, s{S_WR}, 6144
    s_add_u32 s{S_M0W}, s{S_M0W}, {W0}
    s_mov_b32 s{S_KX}, 0
    s_mov_b32 s{S_KW}, 0
    s_mov_b32 s11, 0x20000
    s_mov_b32 s15, 0x20000
    s_mov_b32 s39, 0x20000
    s_mov_b32 s55, 0x20000
    v_mov_b32 v{ZERO}, 0
    s_waitcnt lgkmcnt(0)
    s_cmp_eq_u32 s{S_P}, 0
    s_cselect_b32 s8, s16, s22
    s_cselect_b32 s9, s17, s23
    s_cselect_b32 s12, s18, s24
    s_cselect_b32 s13, s19, s25
    s_lshl_b32 s{S_T}, s{S_B}, 19
    s_add_u32 s8, s8, s{S_T}
    s_addc_u32 s9, s9, 0
    s_sub_u32 s10, 0x400000, s{S_T}
    s_lshl_b32 s{S_T}, s{S_A}, 7
    s_add_u32 s12, s12, s{S_T}
    s_addc_u32 s13, s13, 0
    s_sub_u32 s14, 0x600000, s{S_T}
    s_cmp_lg_u32 s{S_WH}, 0
    s_cbranch_scc1 L_proB
    """)
    def burstW(stage):
        L = []
        for g in range(2):
            L.append(f"s_add_u32 m0, s{S_M0W}, {stage*(W1-W0) + g*3072}")
            for s_ in range(3):
                if s_: L.append(f"s_add_u32 s{T0+s_%2}, s{S_KW}, {s_*1024}")
                else: L.append("s_nop 0")
                L.append(f"buffer_load_dwordx4 v{D0+g}, s[12:15], s{T0+s_%2 if s_ else S_KW} offen offset:{s_*1024} {NTW} lds")
        L.append(f"s_add_u32 s{S_KW}, s{S_KW}, 393216")
        return L
    def burstXA(slot):
        return [f"s_add_u32 m0, s{S_M0X}, {slot}", "s_nop 0", f"buffer_load_dwordx4 v{D2}, s[8:11], s{S_KX} offen {NTX} lds", f"s_add_u32 s{S_KX}, s{S_KX}, 128"]
    def burstXB(slot):
        L = [f"s_add_u32 m0, s{S_M0X}, {slot}"]
        for j in range(7):
            if j == 4: L.append("s_add_u32 m0, m0, 4096")
            L.append(f"s_add_u32 s{T0+j%2}, s{S_KX}, {j*16384 - (j%4)*1024}")
            L.append(f"buffer_load_dwordx4 v{D2 if j%2==0 else D1}, s[8:11], s{T0+j%2} offen offset:{(j%4)*1024} {NTX} lds")
        L.append(f"s_add_u32 s{S_KX}, s{S_KX}, 128")
        return L
    a(burstW(0) + burstXA(0) + burstW(1) + burstXA(32768) + burstXA(65536))
    a(f"""
    s_or_b32 s{S_T}, s2, s{S_W}
    s_cmp_lg_u32 s{S_T}, 0
    s_cbranch_scc1 L_pro2
    s_mov_b32 s52, s30
    s_mov_b32 s53, s31
    s_mov_b32 s54, 256
    s_or_b32 s{NON}, s{NON}, 1
    v_mov_b32 v{FDAT}, s{NON}
    v_mov_b32 v{FDAT+1}, s{NON+1}
    s_mov_b64 exec, 1
    buffer_store_dwordx2 v[{FDAT}:{FDAT+1}], v{ZERO}, s[52:55], 0 offen sc1
    s_mov_b64 exec, -1
    s_branch L_pro2
    """)
    a.label("L_proB")
    a(f"v_xor_b32 v{D1}, 64, v{D2}")
    a(burstXB(0) + burstXB(32768))
    a.label("L_pro2")
    a(f"""
    s_lshl_b32 s{S_T}, s{S_B}, 2
    s_add_u32 s{S_T}, s{S_T}, s{S_WR}
    s_lshl_b32 s{S_T}, s{S_T}, 2
    v_and_b32 v{VT+1}, 3, v0
    v_add_u32 v{VT+1}, s{S_T}, v{VT+1}
    v_bfe_u32 v{VT+2}, v0, 4, 1
    v_lshl_add_u32 v{VT+1}, v{VT+2}, 7, v{VT+1}
    v_mul_u32_u24 v{VT+1}, 6144, v{VT+1}
    v_bfe_u32 v{VT+2}, v0, 2, 2
    v_min_u32 v{VT+2}, 2, v{VT+2}
    v_lshl_add_u32 v{PFV}, v{VT+2}, 11, v{VT+1}
    s_mov_b32 s{S_PFO}, {393216 * PF0}
    s_and_b32 s{S_T}, s{S_A}, 3
    s_lshl_b32 s{S_T}, s{S_T}, 2
    s_add_u32 s{S_T}, s{S_T}, s{S_WR}
    s_lshl_b32 s{S_T}, s{S_T}, 4
    v_and_b32 v{VT}, 15, v0
    v_add_u32 v{VT}, s{S_T}, v{VT}
    v_lshlrev_b32 v{VT}, 11, v{VT}
    v_lshrrev_b32 v{VT+1}, 4, v0
    v_lshl_add_u32 v{VT}, v{VT+1}, 7, v{VT}
    s_cmp_eq_u32 s{S_WH}, 0
    s_cselect_b64 vcc, -1, 0
    s_cselect_b32 s{S_PFO}, {128 * OPT("PFX0", 4)}, s{S_PFO}
    v_cndmask_b32 v{PFV}, v{PFV}, v{VT}, vcc
    v_and_b32 v{VT}, 15, v0
    s_lshl_b32 s{S_T}, s{S_WR}, 6
    v_add_u32 v{VT}, s{S_T}, v{VT}
    v_lshlrev_b32 v{VT}, 7, v{VT}
    v_lshrrev_b32 v{VT+1}, 4, v0
    v_bfe_u32 v{VT+2}, v0, 1, 3
    v_xor_b32 v{VT+2}, v{VT+1}, v{VT+2}
    v_lshl_add_u32 v{XA[0]}, v{VT+2}, 4, v{VT}
    v_xor_b32 v{XA[1]}, 64, v{XA[0]}
    v_mov_b32 v{XB[0]}, v{XA[0]}
    v_mov_b32 v{XB[1]}, v{XA[1]}
    v_mul_u32_u24 v{VT}, 3072, v{VT+1}
    v_bfe_u32 v{VT+2}, v0, 2, 2
    v_lshl_add_u32 v{VT}, v{VT+2}, 7, v{VT}
    v_bfe_u32 v{VT+3}, v0, 1, 1
    s_lshl_b32 s{S_T}, s{S_WH}, 2
    v_add_u32 v{VT+3}, s{S_T}, v{VT+3}
    v_bfe_u32 v{VT+4}, v0, 3, 1
    v_lshlrev_b32 v{VT+4}, 2, v{VT+4}
    v_xor_b32 v{VT+3}, v{VT+3}, v{VT+4}
    v_bfe_u32 v{VT+4}, v0, 4, 1
    v_lshlrev_b32 v{VT+4}, 1, v{VT+4}
    v_xor_b32 v{VT+3}, v{VT+3}, v{VT+4}
    v_lshl_add_u32 v{VT}, v{VT+3}, 4, v{VT}
    v_and_b32 v{VT+4}, 1, v0
    v_lshl_add_u32 v{VT}, v{VT+4}, 3, v{VT}
    v_add_u32 v{WA[0]}, {W0}, v{VT}
    v_xor_b32 v{WA[1]}, 32, v{WA[0]}
    v_mov_b32 v{IDX}, {"0x44444444" if DENSE else "0xdddddddd"}
    {f"v_and_b32 v{VT}, 1, v0" if DENSE else ""}
    {f"v_mul_u32_u24 v{VT}, 0xaaaa, v{VT}" if DENSE else ""}
    {f"v_add_u32 v{IDX}, v{IDX}, v{VT}" if DENSE else ""}
    v_and_b32 v{VT}, {[4, 7, 15][RSZ]}, v0
    v_mov_b32 v{VT+1}, 0x3f803f80
    v_cmp_eq_u32 vcc, 0, v{VT}
    v_lshlrev_b32 v{VDE}, 4, v0
    v_lshlrev_b32 v{VDO}, 4, v0
    v_cndmask_b32 v{ONES}, v{ZERO}, v{VT+1}, vcc
    v_cndmask_b32 v{ONES+1}, v{ZERO}, v{VT+1}, vcc
    v_cmp_eq_u32 vcc, 4, v{VT}
    s_nop 1
    v_cndmask_b32 v{ONES+2}, v{ZERO}, v{VT+1}, vcc
    v_cndmask_b32 v{ONES+3}, v{ZERO}, v{VT+1}, vcc
    v_and_b32 v{FOFF}, 15, v0
    v_lshlrev_b32 v{FOFF}, 3, v{FOFF}
    s_lshl_b32 s{S_T}, s{S_B}, 3
    v_mov_b32 v{FOFF+1}, s{S_T}
    s_mov_b32 s{S_IT}, 0
    s_mov_b32 s{S_XN}, 32768
    """)
    for i in range(96, 232, 2): a(f"v_mov_b64 v[{i}:{i+1}], 0")
    if OPT("IPF", 0):
        a(f"""
        s_cmp_lg_u32 s{S_W}, 7
        s_cbranch_scc1 L_noipf
        s_getpc_b64 s[60:61]
        v_lshlrev_b32 v{VT}, 7, v0
        global_load_dword v{PFD}, v{VT}, s[60:61]
        v_add_u32 v{VT}, 8192, v{VT}
        global_load_dword v{PFD}, v{VT}, s[60:61]
        v_add_u32 v{VT}, 8192, v{VT}
        v_min_u32 v{VT}, {OPT("IPFMAX", 21000)}, v{VT}
        global_load_dword v{PFD}, v{VT}, s[60:61]
        """)
        a.label("L_noipf")
    BULK = OPT("BULK", 0)
    if BULK:
        a(f"""
        s_lshl_b32 s{S_T}, s{S_A}, 7
        s_sub_u32 s52, s12, s{S_T}
        s_subb_u32 s53, s13, 0
        s_mov_b32 s54, 0x600000
        s_lshl_b32 s{S_T}, s{S_A}, 3
        s_add_u32 s{S_T}, s{S_T}, s{S_B}
        s_lshl_b32 s{S_T}, s{S_T}, 3
        s_add_u32 s{S_T}, s{S_T}, s{S_W}
        s_mul_i32 s{S_T}, s{S_T}, 6144
        v_min_u32 v{VT}, 47, v0
        v_lshlrev_b32 v{VT}, 7, v{VT}
        {"s_sleep " + str(OPT("BSLEEP", 0)) if OPT("BSLEEP", 0) else ""}
        buffer_load_dword v{PFD}, v{VT}, s[52:55], s{S_T} offen
        s_cmp_lg_u32 s{S_WH}, 0
        s_cbranch_scc1 L_nobx
        s_lshl_b32 s{S_T}, s{S_A}, 2
        s_add_u32 s{S_T}, s{S_T}, s{S_WR}
        s_lshl_b32 s{S_T}, s{S_T}, 13
        v_lshlrev_b32 v{VT+1}, 7, v0
        buffer_load_dword v{PFD}, v{VT+1}, s[8:11], s{S_T} offen
        """)
        a.label("L_nobx")
    def reads1(stage, t, buf):
        X = [f"ds_read_b128 {vr(FX[buf][rb],4)}, v{XA[t]} offset:{rb*2048}" for rb in range(4)]
        W = []
        for cb in range(6):
            for u in range(2):
                W.append(f"ds_read_b64_tr_b16 {vr(FW[buf][cb]+2*u,2)}, v{WA[cb%2]} offset:{stage*(W1-W0) + t*12288 + (cb//2)*1024 + u*512}")
        return W[0:2] + X + W[2:]
    def mfmas1(buf, natural=False):
        L = [mf16(ACC[cb][rb], FW[buf][cb], FX[buf][rb]) if cb < 4 else mf16(ACC[cb][rb], FX[buf][rb], FW[buf][cb])
             for cb in range(6) for rb in range(4)]
        o = "cb" if natural else os.environ.get("ORD1", "A")
        if o == "rb": L = [L[4*cb + rb] for rb in range(4) for cb in range(6)]
        if o == "snake": L = [L[4*cb + (rb if cb % 2 == 0 else 3 - rb)] for cb in range(6) for rb in range(4)]
        if o == "A": L = [L[4*cb + (rb if cb % 2 == 0 else 3 - rb)] for cb in range(4) for rb in range(4)] + [L[4*(4 + (c ^ (rb & 1))) + rb] for rb in range(4) for c in range(2)]
        if o == "B": L = [L[4*(cb if rb % 2 == 0 else 3 - cb) + rb] for rb in range(4) for cb in range(4)] + [L[4*cb + (rb if cb % 2 else 3 - rb)] for cb in (4, 5) for rb in range(4)]
        return L
    def spread(r, key):
        sp, off = float(os.environ.get(key, "1.4" if key in ("SA1", "SB1") else "1")), int(os.environ.get(key + "O", "0"))
        f = {}
        for k_, x in enumerate(r): f.setdefault(min(23, off + int(k_ * sp)), []).append(x)
        return f
    def rot_x():
        return [f"v_add_u32 v{XA[1]}, s{S_XN}, v{XB[1]}", f"s_mov_b32 s{S_XF}, s{S_XN}", f"s_add_u32 s{S_XN}, s{S_XN}, 32768",
                f"s_cmp_eq_u32 s{S_XN}, 98304", f"s_cselect_b32 s{S_XN}, 0, s{S_XN}"]
    BSPR = OPT("BSPR", 0)
    def place(f, burst, pre):
        if BSPR == 0:
            pre += burst; return
        groups, cur = [], []
        for x in burst:
            cur.append(x)
            if " lds" in x or "buffer_load_dword " in x: groups.append(cur); cur = []
        if cur: groups[-1] += cur
        pre += groups[0]
        for k_, g in enumerate(groups[1:]): f[(k_ + 1) * BSPR - 1] = f.get((k_ + 1) * BSPR - 1, []) + g
    a(f"""
    s_cmp_lg_u32 s{S_WH}, 0
    s_cbranch_scc1 L_g1B_pre
    s_mov_b32 s{S_XF}, 0
    {"s_setprio 1" if OPT("G1PRIO", "") == "A" else ""}
    {f"buffer_load_dword v{PFD}, v{PFV}, s[8:11], s{S_PFO} offen {os.environ.get('NTXP', '')}" if OPT("XPFE", 0) else ""}
    s_waitcnt vmcnt({8 + 2*BULK + OPT("XPFE", 0)})
    s_barrier
    """)
    stamp(a, 1)
    a(reads1(0, 0, 0))
    if OPT("XPF1", 0): a(f"buffer_load_dword v{PFD}, v{PFV}, s[8:11], s{S_PFO} offen")
    a.raw(".p2align 6")
    a.label("L_g1A")
    stamp_stage(a, f"s{S_IT}", True)
    a(f"s_cmp_eq_u32 s{S_IT}, 7\ns_cselect_b32 s14, 0, s14")
    for stage in range(2):
        a("s_waitcnt lgkmcnt(0)")
        r = reads1(stage, 1, 1)
        a(weave(mfmas1(0), spread(r, "SA0")))
        if stage == 1: a(f"s_cmp_ge_u32 s{S_IT}, 6\ns_cselect_b32 s10, 0, s10")
        a(f"v_add_u32 v{XA[0]}, s{S_XN}, v{XB[0]}")
        PFX = OPT("PFX", 0)
        a(f"s_waitcnt vmcnt({2 if PFX and stage == 1 else 1}) lgkmcnt(0)\ns_barrier")
        r = reads1(1 - stage, 0, 0)
        RA1 = OPT("RA1", 1)
        f = spread(r, "SA1")
        pre = []
        if stage == 1 :
            a(f"s_cmp_eq_u32 s{S_IT}, 7\ns_cbranch_scc1 L_g1A_last")
        if OPT("ARD", 0): pre += [x for i in sorted(f) for x in f[i]]; f = {}
        pfx = [f"s_cmp_lt_u32 s{S_PFO}, {min(2048, 128*OPT('PFX0', 4) + 512*OPT('PFXN', 9))}", f"s_cselect_b32 s{T0}, s{S_PFO}, 0x7fff0000", f"buffer_load_dword v{PFD}, v{PFV}, s[8:11], s{T0} offen", f"s_add_u32 s{S_PFO}, s{S_PFO}, 512"]
        place(f, burstW(stage) + burstXA(f"s{S_XF}") + (pfx if PFX and stage == 0 else []), pre)
        f[20] = f.get(20, []) + rot_x()
        a(pre); a(weave(mfmas1(1), f))
    a(f"""
    s_add_u32 s{S_IT}, s{S_IT}, 1
    s_branch L_g1A
    """)
    a.label("L_g1B_pre")
    NPFE = OPT("NPFE", 0)
    PFE_W = f"buffer_load_dword v{PFD}, v{PFV}, s[12:15], s{S_PFO} offen {NTP}\ns_add_u32 s{S_PFO}, s{S_PFO}, {393216 * 4}\n" * NPFE
    if OPT("G1PRIO", "") == "B": a("s_setprio 1")
    a(f"s_mov_b32 s{S_XF}, 65536\n{PFE_W}s_waitcnt vmcnt({7 + BULK + NPFE})\ns_barrier")
    stamp(a, 1)
    a(reads1(0, 0, 0))
    a.raw(".p2align 6")
    a.label("L_g1B")
    stamp_stage(a, f"s{S_IT}", True)
    a(f"s_cmp_eq_u32 s{S_IT}, 7\ns_cselect_b32 s10, 0, s10")
    if OPT("TOUCH", 0):
        a(f"""
        s_cmp_eq_u32 s{S_IT}, 4
        s_cbranch_scc0 L_t1
        s_mov_b32 s12, s32
        s_mov_b32 s13, s33
        s_mov_b32 s14, {WS_BYTES}
        s_lshl_b32 s{S_T}, s{S_P}, 4
        s_add_u32 s{S_T}, s{S_T}, s{S_A}
        s_lshl_b32 s{T0}, s{S_T}, 10
        s_add_u32 s{T0}, s{T0}, {FKV}
        s_lshl_b32 s{S_T}, s{S_T}, 4
        s_add_u32 s{S_T}, s{S_T}, s{S_B}
        s_lshl_b32 s{S_T}, s{S_T}, 2
        s_add_u32 s{S_T}, s{S_T}, s{S_WR}
        s_lshl_b32 s{S_T}, s{S_T}, 13
        v_and_b32 v{VT}, 1, v0
        v_lshlrev_b32 v{VT+1}, 18, v{VT}
        v_add_u32 v{PFV}, s{S_T}, v{VT+1}
        s_lshl_b32 s{S_T}, s{S_P}, 3
        s_add_u32 s{S_T}, s{S_T}, s{S_B}
        s_lshl_b32 s{S_T}, s{S_T}, 2
        s_add_u32 s{S_T}, s{S_T}, s{S_WR}
        s_lshl_b32 s{S_T}, s{S_T}, 5
        s_add_u32 s{S_T}, s{S_T}, s{S_A}
        s_lshl_b32 s{S_T}, s{S_T}, 12
        s_add_u32 s{S_T}, s{S_T}, {OWS}
        v_lshlrev_b32 v{VT+1}, 16, v{VT}
        v_add_u32 v{VT+1}, s{S_T}, v{VT+1}
        v_cmp_lt_u32 vcc, 1, v0
        v_mov_b32 v{VT+2}, s{T0}
        s_mov_b32 s{S_PFO}, 0
        v_cndmask_b32 v{PFV}, v{PFV}, v{VT+1}, vcc
        v_cmp_lt_u32 vcc, 3, v0
        s_nop 1
        v_cndmask_b32 v{PFV}, v{PFV}, v{VT+2}, vcc
        """)
        a.label("L_t1")
        a(f"""
        s_cmp_eq_u32 s{S_IT}, 5
        s_cbranch_scc0 L_t2
        s_mov_b32 s12, s28
        s_mov_b32 s13, s29
        s_mov_b32 s14, 0x800000
        s_lshl_b32 s{S_T}, s{S_A}, 2
        s_add_u32 s{S_T}, s{S_T}, s{S_WR}
        s_lshl_b32 s{S_T}, s{S_T}, 17
        s_lshl_b32 s{T0}, s{S_P}, 11
        s_add_u32 s{S_T}, s{S_T}, s{T0}
        s_lshl_b32 s{T0}, s{S_B}, 8
        s_add_u32 s{S_PFO}, s{S_T}, s{T0}
        v_and_b32 v{VT}, 1, v0
        v_lshlrev_b32 v{PFV}, 16, v{VT}
        """)
        a.label("L_t2")
        a(f"s_cmp_ge_u32 s{S_IT}, 6\ns_cselect_b32 s14, 0, s14")
    pf = [f"buffer_load_dword v{PFD}, v{PFV}, s[12:15], s{S_PFO} offen {NTP}", f"s_add_u32 s{S_PFO}, s{S_PFO}, {393216 * PFSTEP}"]
    for stage in range(2):
        r = reads1(stage, 1, 1)
        RB, BPOS = OPT("RB", 1), OPT("BPOS", -1)
        f = spread(r, "SB0")
        bx = burstXB(f"s{S_XF}") + (pf if stage == 0 else [])
        if BPOS < 0: a(bx)
        else: f[BPOS] = f.get(BPOS, []) + bx
        a("s_waitcnt lgkmcnt(0)")
        a(weave(mfmas1(0), f))
        a(f"v_add_u32 v{XA[0]}, s{S_XN}, v{XB[0]}")
        a(f"s_waitcnt vmcnt({8 if stage == 0 else 7}) lgkmcnt(0)\ns_barrier")
        if stage == 1:
            a(f"s_cmp_eq_u32 s{S_IT}, 7\ns_cbranch_scc1 L_g1A_last")
        r = reads1(1 - stage, 0, 0)
        RB1 = OPT("RB1", 1)
        f = spread(r, "SB1")
        f[20] = f.get(20, []) + [f"v_add_u32 v{XA[1]}, s{S_XN}, v{XB[1]}", f"s_add_u32 s{S_XF}, s{S_XF}, 32768", f"s_cmp_eq_u32 s{S_XF}, 98304",
                 f"s_cselect_b32 s{S_XF}, 0, s{S_XF}", f"s_add_u32 s{S_XN}, s{S_XN}, 32768",
                 f"s_cmp_eq_u32 s{S_XN}, 98304", f"s_cselect_b32 s{S_XN}, 0, s{S_XN}"]
        a(weave(mfmas1(1), f))
    a(f"""
    s_add_u32 s{S_IT}, s{S_IT}, 1
    s_branch L_g1B
    """)
    VKV, VD = 2, 3
    VT = 4
    S_SO, S_ST1, S_ST2, S_M0, S_KV, S_FL, S_HB, S_GRP, MSK = 43, 44, 45, 46, 47, 49, 50, 51, 56
    a.label("L_g1A_last")
    setup = f"""
    s_mov_b32 s36, s32
    s_mov_b32 s37, s33
    s_mov_b32 s38, {WS_BYTES}
    s_mov_b32 s52, s30
    s_mov_b32 s53, s31
    s_mov_b32 s54, 256
    buffer_load_dwordx2 v[{FDAT}:{FDAT+1}], v{ZERO}, s[52:55], 0 offen sc1
    s_lshl_b32 s{S_T}, s{S_P}, 4
    s_add_u32 s{S_T}, s{S_T}, s{S_A}
    s_lshl_b32 s{S_FL}, s{S_T}, 3
    s_lshl_b32 s{S_T}, s{S_T}, 1
    s_add_u32 s{S_T}, s{S_T}, s{S_WH}
    s_lshl_b32 s{S_HB}, s{S_T}, 18
    s_add_u32 s{S_FL}, s{S_FL}, s{S_W}
    s_lshl_b32 s{S_FL}, s{S_FL}, 7
    s_add_u32 s{S_FL}, s{S_FL}, {FKV}
    s_lshl_b32 s{S_T}, s{S_WR}, 13
    s_add_u32 s{S_T}, s{S_T}, s{S_HB}
    s_add_u32 s8, s32, s{S_T}
    s_addc_u32 s9, s33, 0
    s_mov_b32 s10, 0x40000
    s_lshl_b32 s{S_KV}, s{S_B}, 15
    s_add_u32 s{S_KV}, s{S_KV}, s{S_T}
    s_add_u32 s{S_KV+1}, s{S_KV}, 4096
    s_lshl_b32 s{S_M0}, s{S_W}, 13
    v_lshlrev_b32 v{VD}, 4, v0
    v_add_u32 v{VKV}, s{S_M0}, v{VD}
    s_cmp_eq_u32 s{S_P}, 0
    s_cselect_b32 s12, s20, s26
    s_cselect_b32 s13, s21, s27
    s_lshl_b32 s{S_T}, s{S_B}, 8
    s_add_u32 s12, s12, s{S_T}
    s_addc_u32 s13, s13, 0
    s_sub_u32 s14, 0x200000, s{S_T}
    s_mov_b32 s{S_ST1}, 0
    s_mov_b32 s{MSK}, 0xfff8fff8
    s_mov_b32 s{MSK+1}, s{MSK}
    s_mov_b32 s58, {f2u(CSCALE):#x}
    s_mov_b32 s59, s58
    """.strip().split("\n")
    m = mfmas1(1, True)
    EARLY = OPT("EARLY", 1)
    if EARLY: m = [m[4*cb + rb] for rb2 in (0, 2) for cb in range(2, 6) for rb in (rb2, rb2 + 1)] + m[:8]
    else: m = m[8:] + m[:8]
    LASTM = m
    def pack2(dst, t0, t1):
        return [f"v_cvt_pk_bf16_f32 v{dst}, v{t0}, v{t0+1}", f"v_cvt_pk_bf16_f32 v{dst+1}, v{t0+2}, v{t0+3}",
                f"v_cvt_pk_bf16_f32 v{dst+2}, v{t1}, v{t1+1}", f"v_cvt_pk_bf16_f32 v{dst+3}, v{t1+2}, v{t1+3}"]
    def swap2(dst):
        return [f"v_permlane16_swap_b32 v{dst}, v{dst+2}", f"v_permlane16_swap_b32 v{dst+1}, v{dst+3}"]
    def swap32(dst):
        return [f"v_permlane32_swap_b32 v{dst}, v{dst+2}", f"v_permlane32_swap_b32 v{dst+1}, v{dst+3}"]
    frs = []
    for b in range(2):
        for t in range(2): frs.append((PKB[b] + 4*t, ACC[2+t][2*b], ACC[2+t][2*b+1], b, t*1024))
        for t in range(2): frs.append((PKB[b] + 8 + 4*t, ACC[4][2*b+t], ACC[5][2*b+t], b, 2048 + t*1024))
    kvstores = [f"buffer_store_dwordx4 {vr(fr[0],4)}, v{VD}, s[36:39], s{S_KV+fr[3]} offen offset:{fr[4]} {os.environ.get('KVPOL', 'sc1')}" for fr in frs]
    NE0 = OPT("NE0", 4)
    packs = []
    prev = None
    for k_, fr in enumerate(frs):
        L = pack2(fr[0], fr[1], fr[2])
        if prev:
            L += swap2(prev[0])
            if DENSE and prev[4] >= 2048: L += ["s_nop 1"] + swap32(prev[0])
            if k_ - 1 < NE0: L.append(kvstores[k_ - 1])
            L.append(f"ds_write_b128 v{VKV}, {vr(prev[0],4)} offset:{prev[3]*4096+prev[4]}")
        packs.append(L)
        prev = fr
    if EARLY:
        f = {i: setup[3*i:3*i+3] for i in range(14)}
        for i in range(4): f[16 + 2*i] = packs[i]
        a(weave(LASTM, f)); stamp(a, 2)
        for L in packs[4:]: a(L)
    else:
        a(weave(LASTM, {i: setup[2*i:2*i+2] for i in range(24)})); stamp(a, 2)
        for L in packs: a(L)
    for i in range(0, 8, 2): a(f"v_pk_mul_f32 v[{96+i}:{97+i}], v[{96+i}:{97+i}], s[58:59]")
    a(swap2(prev[0]))
    if DENSE: a(["s_nop 1"] + swap32(prev[0]))
    a(f"ds_write_b128 v{VKV}, {vr(prev[0],4)} offset:{prev[3]*4096+prev[4]}")
    for i in range(8, 32, 2): a(f"v_pk_mul_f32 v[{96+i}:{97+i}], v[{96+i}:{97+i}], s[58:59]")
    for b in range(2):
        for t in range(2): a(pack2(Q[b] + 4*t, ACC[t][2*b], ACC[t][2*b+1]))
    a(f"""
    s_lshl_b32 s{S_T}, s{S_WH}, 15
    v_add_u32 v{VKV}, s{S_T}, v{VD}
    s_add_u32 s{S_M0}, s{S_M0}, 65536
    """)
    for k_ in range(1, 4):
        a(f"s_add_u32 s{S_T}, s{S_WR}, {k_}\ns_and_b32 s{S_T}, s{S_T}, 3\ns_lshl_b32 s{S_T}, s{S_T}, 13\nv_add_u32 v{VT+1+k_}, s{S_T}, v{VKV}")
    for b in range(2):
        for t in range(2): a(swap2(Q[b] + 4*t))
    def rdK(kt, buf): return [f"ds_read_b128 {vr(KF[buf]+4*t,4)}, v{VKV} offset:{kt*4096+t*1024}" for t in range(2)]
    def rdV(kt, buf): return [f"ds_read_b128 {vr(VF[buf]+4*t,4)}, v{VKV} offset:{kt*4096+2048+t*1024}" for t in range(2)]
    def qk(sbuf, kbuf, qt, c=None):
        return [mf32(S[sbuf], KF[kbuf], Q[qt], NM[qt] if c is None else c), mf32(S[sbuf], KF[kbuf]+4, Q[qt]+4)]
    def pv(sbuf, vbuf, qt, t):
        if DENSE: return mf32(O[qt], VF[vbuf] + 4*t, S[sbuf] + 4*t)
        return f"v_smfmac_f32_32x32x32_bf16 {vr(O[qt],16)}, {vr(VF[vbuf]+4*t,4)}, {vr(S[sbuf]+8*t,8)}, v{IDX}"
    def rs(sbuf, qt, t):
        if DENSE: return None if t == 0 else f"v_smfmac_f32_16x16x64_bf16 {vr(LA[qt],4)}, {vr(ONES,4)}, {vr(S[sbuf],8)}, v{IDX}"
        return f"v_smfmac_f32_16x16x64_bf16 {vr(LA[qt],4)}, {vr(ONES,4)}, {vr(S[sbuf]+8*t,8)}, v{IDX}"
    def max_to_nm(m, qt):
        a(f"v_mov_b32 v{m+1}, v{m}")
        a("s_nop 1")
        a(f"v_permlane32_swap_b32 v{m}, v{m+1}")
        a("s_nop 1")
        a(f"v_max_f32 v{m}, v{m}, v{m+1}")
        a(f"v_sub_f32 v{m}, 0, v{m}")
        a(f"v_mov_b32 v{m+1}, v{m}")
        for i in range(0, 16, 2): a(f"v_mov_b64 v[{NM[qt]+i}:{NM[qt]+i+1}], v[{m}:{m+1}]")
    assert NE0 == 4
    a("s_nop 0")
    a([mf32(S[qt], PKB[0] + 4*t, Q[qt] + 4*t, "0" if t == 0 else None) for qt in range(2) for t in range(2)])
    a(f"s_waitcnt vmcnt(4)\ns_mov_b32 s{S_T}, {SPIN_MAX}")
    a.label("L_nonce")
    a(f"""
    v_readfirstlane_b32 s{NON}, v{FDAT}
    v_readfirstlane_b32 s{NON+1}, v{FDAT+1}
    s_sub_u32 s{S_T}, s{S_T}, 1
    s_cbranch_scc1 L_nonce_done
    s_cmp_eq_u32 s{NON}, 0
    s_cbranch_scc1 L_nonce_retry
    """)
    a.label("L_nonce_done")
    RARE.append(("L_nonce_retry", [f"buffer_load_dwordx2 v[{FDAT}:{FDAT+1}], v{ZERO}, s[52:55], 0 offen sc1", "s_waitcnt vmcnt(0)"], "L_nonce"))
    a("s_nop 3")
    for qt in range(2):
        m_, src = VT + 6*qt, S[qt]
        a(f"v_max3_f32 v{m_}, v{src}, v{src+1}, v{src+2}")
        for i in range(3, 15, 2): a(f"v_max3_f32 v{m_}, v{m_}, v{src+i}, v{src+i+1}")
        a(f"v_max_f32 v{m_}, v{m_}, v{src+15}")
        max_to_nm(m_, qt)
        a("s_nop 1")
        if qt == 0: a([mf32(S[0], PKB[0], Q[0], NM[0]), mf32(S[0], PKB[0] + 4, Q[0] + 4)])
    if OPT("G1PRIO", "") == "A": a("s_setprio 0")
    if os.environ.get("PRIO", "1"): a(f"s_cmp_eq_u32 s{S_WH}, {os.environ.get('PRIO', '1')[0]}\ns_cbranch_scc0 L_noprio\ns_setprio 1"); a.label("L_noprio")
    stamp(a, 3)
    S_SO2 = S_ST2
    def dma2():
        G = []
        for j in range(8):
            g = []
            if j == 0: g.append(f"s_mov_b32 m0, s{S_M0}"); g.append("s_nop 0")
            g.append(f"buffer_load_dwordx4 v{VDE if j%2==0 else VDO}, s[8:11], s{S_SO} offen offset:{(j%4)*1024} sc1 lds")
            if j == 3: g += [f"s_add_u32 m0, s{S_M0}, 4096", f"s_mov_b32 s{S_SO}, s{S_SO2}"]
            elif j < 7: g.append(f"s_add_u32 s{S_SO}, s{S_SO}, s{S_ST1}")
            else: g.append(f"s_xor_b32 s{S_M0}, s{S_M0}, 65536")
            G.append(g)
        return G
    def blk():
        L = []
        for g, dst in ((0, S_SO), (1, S_SO2)):
            L += [f"s_lshl_b32 s{dst}, s{S_IT}, 1"]
            if g: L += [f"s_add_u32 s{dst}, s{dst}, 1"]
            L += [f"s_cmp_ge_u32 s{dst}, 7", f"s_cselect_b32 s{S_T}, 7, 0", f"s_cselect_b32 s{S_GRP}, 4096, 0", f"s_sub_u32 s{dst}, s{dst}, s{S_T}",
                  f"s_cmp_ge_u32 s{dst}, s{S_B}", f"s_addc_u32 s{dst}, s{dst}, 0", f"s_lshl_b32 s{dst}, s{dst}, 15", f"s_add_u32 s{dst}, s{dst}, s{S_GRP}"]
        return L
    def flagst(voff, soff, imm=0):
        return ["s_mov_b64 exec, 1", f"buffer_store_dwordx2 v[{FDAT}:{FDAT+1}], v{voff}, s[36:39], s{soff} offen offset:{imm} sc1", "s_mov_b64 exec, -1"]
    ATX = os.environ.get("ATX", "")
    PAT = [int(c) for c in os.environ.get('PAT', '333232')]
    def qk_r(sbuf, kreg, qt, c=None):
        return [mf32(S[sbuf], kreg, Q[qt], NM[qt] if c is None else c), mf32(S[sbuf], kreg+4, Q[qt]+4)]
    def pv_r(sbuf, vreg, qt, t):
        if DENSE: return mf32(O[qt], vreg + 4*t, S[sbuf] + 4*t)
        return f"v_smfmac_f32_32x32x32_bf16 {vr(O[qt],16)}, {vr(vreg+4*t,4)}, {vr(S[sbuf]+8*t,8)}, v{IDX}"
    FILL = []
    def slot(sb, qa, nxt, prv, vreg, pre, extra=()):
        e = [f"v_exp_f32 v{S[sb]+i}, v{S[sb]+i}" for i in range(16)]
        m = (qk_r((sb+1) % 4, nxt[0], nxt[1]) if nxt else [None, None]) + \
            ([pv_r((sb-1) % 4, prv[0], prv[1], 1), rs((sb-1) % 4, prv[1], 1)] if prv else [None, None]) + [pv_r(sb, vreg, qa, 0), rs(sb, qa, 0)]
        extra = list(extra)
        if DENSE:
            c = [f"v_cvt_pk_bf16_f32 v{S[sb]+i}, v{S[sb]+2*i}, v{S[sb]+2*i+1}" for i in range(8)]
            grp, ie, ic, last = [], 0, 0, ""
            for g_ in os.environ.get("DG", "eee|eceec|eecec|eec|eece|eecc").split("|"):
                cur = []
                for ch in g_:
                    if ch == "e": cur.append(e[ie]); ie += 1
                    else:
                        assert ie >= 2*ic + 2 and not (last == "e" and ie == 2*ic + 2), "cvt too early"
                        cur.append(c[ic]); ic += 1
                    last = ch
                if len(grp) < 4: last = "m"
                grp.append(cur)
                if len(grp) == 4: assert ic >= 4 and (ic > 4 or cur[-1].startswith("v_exp") and cur[-2].startswith("v_exp"))
            assert ie == 16 and ic == 8 and len(grp) == 6
        else:
            grp, k = [], 0
            for i in range(6): grp.append(e[k:k+PAT[i]]); k += PAT[i]
        for i in range(6):
            if pre.get(i): a(pre[i])
            elif m[i]:
                if FILL: a(FILL.pop(0))
                elif "n" not in ATX: a("s_nop 0")
            if m[i]: a(m[i])
            a(grp[i])
            ne = (len(extra) + 5 - i) // (6 - i)
            a(extra[:ne]); extra = extra[ne:]
    def stage(hooks, pres, first, barwait):
        KA = [None, VT+2, VT+3, VT+4]
        for kt in range(8):
            for qa in range(2):
                n = 2*kt + qa
                pre = {i: [] for i in range(6)}
                if n in hooks: hooks[n]()
                kr = lambda t: PKB[t] if first and t < 2 else KF[t % 2]
                vr_ = lambda t: PKB[t] + 8 if first and 0 <= t < 2 else VF[t % 2]
                if qa == 0:
                    if kt == 7:
                        barwait()
                        pre[0] += [f"v_xor_b32 v{VKV}, 0x10000, v{VKV}", "s_nop 0"]
                    elif not (first and kt < 2):
                        pre[0] += ["s_waitcnt lgkmcnt(0)"]
                    if first and kt < 7:
                        if kt >= 1:
                            t_ = kt + 1
                            pre[1] += [x.replace(f"v{VKV} ", f"v{KA[t_//2]} ") for x in rdK(t_ % 2, t_ % 2)]
                            pre[4] += [x.replace(f"v{VKV} ", f"v{KA[t_//2]} ") for x in rdV(t_ % 2, t_ % 2)]
                    else:
                        pre[1] += rdK((kt+1) % 8, (kt+1) % 2)
                        pre[4] += rdV((kt+1) % 8, (kt+1) % 2)
                elif not (first and kt == 0):
                    pre[0] += ["s_waitcnt lgkmcnt(2)"]
                for i, L in pres.get(n, {}).items(): pre[i] += L
                slot(n % 4, qa, (kr(kt + qa) if kt + qa < 8 else KF[0], 1 - qa), None if first and n == 0 else (vr_(kt - 1 + qa), 1 - qa), vr_(kt), pre)
        assert not FILL
    NPUB, NPOLL = OPT("NPUB", 4), OPT("NPOLL", 8)
    ST0 = os.environ.get("ST0", "") == "1"
    def h_pub():
        a("s_waitcnt vmcnt(0)"); a(flagst(FOFF+1, S_FL))
        if ST0: stamp(a, 4)
    def h_poll0():
        poll("L_poll0", S_FL, f"s[{MSK}:{MSK+1}]")
        a(f"s_mov_b32 s{S_IT}, 0\ns_mov_b32 s{MSK}, 0xff00ff00\ns_mov_b32 s{MSK+1}, s{MSK}"); a(blk())
        if ST0: stamp(a, 5)
    def bw0():
        a("s_waitcnt vmcnt(3) lgkmcnt(0)\ns_barrier")
        stamp_stage(a, "0")
        if ST0: stamp(a, 6)
    G = dma2()
    pres = {NPOLL + i: {2: G[3*i], 3: G[3*i+1], 5: G[3*i+2] if 3*i+2 < 8 else []} for i in range(3)}
    for i, n_ in enumerate((11, 12, 13, 15)): pres.setdefault(n_, {})[3] = [kvstores[4 + i]]
    stage({2: lambda: a("s_waitcnt lgkmcnt(0)\ns_barrier"), NPUB: h_pub, NPOLL: h_poll0}, pres, True, bw0)
    a(f"s_mov_b32 s{S_IT}, 1")
    a.raw(".p2align 6")
    a.label("L_at")
    def rare(lab, cond, body):
        if OPT("OOL", 0):
            a(cond); a(f"s_cbranch_scc1 {lab}"); a.label(lab + "_ret"); RARE.append((lab, body, lab + "_ret"))
        else:
            a(cond); a(f"s_cbranch_scc0 {lab}_skip")
            body() if callable(body) else a(body)
            a.label(lab + "_skip")
    it13 = [f"s_andn2_b32 s{S_T}, s{S_IT}, 2", f"s_cmp_eq_u32 s{S_T}, 1"]
    def h_ld():
        rare("L_r_ld", it13, [f"buffer_load_dwordx2 v[{PDAT}:{PDAT+1}], v{FOFF}, s[36:39], s{S_FL} offen sc1"])
        b = blk()
        FILL.extend([b[i:i+2] for i in range(0, len(b), 2)])
    def h_dma():
        def body():
            poll("L_poll2", S_FL, f"s[{MSK}:{MSK+1}]", True)
            a(f"s_mov_b64 s[{MSK}:{MSK+1}], 0")
        rare("L_r_poll", it13, body)
    def h_pfwo():
        rare("L_r_pfwo", [f"s_cmp_eq_u32 s{S_IT}, {OPT('PFWIT', 4)}"], f"""
        s_and_b32 s{S_T}, s{S_A}, 3
        s_lshl_b32 s{S_T}, s{S_T}, 3
        s_add_u32 s{S_T}, s{S_T}, s{S_W}
        s_lshl_b32 s{S_T}, s{S_T}, 16
        v_lshrrev_b32 v{VT}, 1, v0
        v_lshlrev_b32 v{VT}, 11, v{VT}
        v_and_b32 v{VT+1}, 1, v0
        v_lshl_add_u32 v{VT}, v{VT+1}, 7, v{VT}
        buffer_load_dword v{VT+1}, v{VT}, s[12:15], s{S_T} offen {os.environ.get('NTO', '')}
        """ + (f"""
        s_getpc_b64 s[60:61]
        v_and_b32 v{VT}, 15, v0
        s_lshl_b32 s{S_T}, s{S_W}, 4
        v_add_u32 v{VT}, s{S_T}, v{VT}
        v_lshlrev_b32 v{VT}, 7, v{VT}
        v_min_u32 v{VT}, {OPT("IPF2MAX", 10000)}, v{VT}
        global_load_dword v{VT+1}, v{VT}, s[60:61]
        """ if OPT("IPF2", 0) else ""))
    def bw1():
        a("s_waitcnt vmcnt(0) lgkmcnt(0)\ns_barrier")
        rare("L_r_pub1", [f"s_cmp_eq_u32 s{S_IT}, 1"], flagst(FOFF+1, S_FL, 64))
        stamp_stage(a, f"s{S_IT}")
    G = dma2()
    pres = {3 + i: {2: G[2*i], 5: G[2*i+1]} for i in range(4)}
    hk = {0: h_ld, 15: h_pfwo, 3: h_dma}
    PA = os.environ.get("PRIOALT", "4,9")
    if PA:
        def flip(lab, wh):
            def f(): a(f"s_setprio 0\ns_cmp_eq_u32 s{S_WH}, {wh}\ns_cbranch_scc0 {lab}\ns_setprio 1"); a.label(lab)
            return f
        for k_, x in enumerate(PA.split(",")):
            assert 4 <= int(x) <= 14
            hk[int(x)] = flip(f"L_pa{k_}", k_ % 2)
    stage(hk, pres, False, bw1)
    a(f"""
    s_add_u32 s{S_IT}, s{S_IT}, 1
    s_cmp_lt_u32 s{S_IT}, 7
    s_cbranch_scc1 L_at
    """)
    S_OO, S_FO, S_BAD = 47, 49, 60
    VOA = VT + 6
    setup7 = f"""
    s_mov_b32 s8, s12
    s_mov_b32 s9, s13
    s_mov_b32 s10, s14
    s_lshl_b32 s{S_SO}, s{S_W}, 16
    s_add_u32 s{S_SO2}, s{S_SO}, 32768
    s_mov_b32 s{S_ST1}, 7168
    v_lshrrev_b32 v{VDE}, 4, v0
    v_lshlrev_b32 v{VDO}, 1, v{VDE}
    v_and_b32 v{VT}, 15, v0
    v_xor_b32 v{VDO}, v{VDO}, v{VT}
    v_lshlrev_b32 v{VDE}, 11, v{VDE}
    v_lshl_add_u32 v{VDE}, v{VDO}, 4, v{VDE}
    v_xor_b32 v{VDO}, 128, v{VDE}
    s_lshl_b32 s{S_T}, s{S_P}, 3
    s_add_u32 s{S_T}, s{S_T}, s{S_B}
    s_lshl_b32 s{S_T}, s{S_T}, 2
    s_add_u32 s{S_T}, s{S_T}, s{S_WR}
    s_lshl_b32 s{S_FO}, s{S_T}, 8
    s_lshl_b32 s{S_OO}, s{S_T}, 17
    s_bfe_u32 s{S_T}, s{S_HB}, 0x50012
    s_lshl_b32 s{S_GRP}, s{S_T}, 3
    s_add_u32 s{S_FO}, s{S_FO}, s{S_GRP}
    s_add_u32 s{S_FO}, s{S_FO}, {FO}
    s_lshl_b32 s{S_T}, s{S_T}, 11
    s_add_u32 s{S_OO}, s{S_OO}, s{S_T}
    s_add_u32 s{S_OO}, s{S_OO}, {OWS}
    s_add_u32 s{S_OO+1}, s{S_OO}, 65536
    v_and_b32 v{VOA}, 15, v0
    v_lshlrev_b32 v{VOA}, 4, v{VOA}
    v_lshrrev_b32 v{VOA+1}, 5, v0
    v_lshl_add_u32 v{VOA}, v{VOA+1}, 8, v{VOA}
    v_bfe_u32 v{VOA+1}, v0, 4, 1
    v_lshl_add_u32 v{VOA}, v{VOA+1}, 10, v{VOA}
    """.strip().split("\n")
    OPK = [PK, PK + 8]
    def lbcast(qt):
        if RSZ < 2: return []
        return [f"v_mov_b32 v{LA[qt]+1}, v{LA[qt]}", "s_nop 1", f"v_permlane32_swap_b32 v{LA[qt]}, v{LA[qt]+1}"]
    def check(qt):
        t = VT + 2*qt
        o = O[qt]
        return (lbcast(qt) + [f"v_pk_mul_f32 v[{t}:{t+1}], v[{o}:{o+1}], 0"] +
                [f"v_pk_fma_f32 v[{t}:{t+1}], v[{o+i}:{o+i+1}], 0, v[{t}:{t+1}]" for i in range(2, 16, 2)] +
                [f"v_add_f32 v{t}, v{t}, v{t+1}", f"v_add_f32 v{t}, v{t}, v{LA[qt]}", f"v_cmp_gt_f32 s[{S_BAD+2*qt}:{S_BAD+2*qt+1}], s58, v{t}"])
    def finish(qt):
        t = VT + 2*qt
        o = O[qt]
        return ([f"v_rcp_f32 v{t}, v{LA[qt]}", "s_nop 0"] +
                [f"v_pk_mul_f32 v[{o+i}:{o+i+1}], v[{o+i}:{o+i+1}], v[{t}:{t+1}] op_sel_hi:[1,0]" for i in range(0, 16, 2)] +
                [f"v_cvt_pk_bf16_f32 v{OPK[qt]+i}, v{o+2*i}, v{o+2*i+1}" for i in range(8)] +
                [f"buffer_store_dwordx4 {vr(OPK[qt]+4*t_,4)}, v{VOA}, s[36:39], s{S_OO+qt} offen offset:{t_*512} {os.environ.get('KVPOL', 'sc1')}" for t_ in range(2)])
    OA, OB = 244, 245
    WA3 = [[248, 249, 250, 251], [252, 253, 254, 255]]
    FO_ = [[16 + 16*buf + 4*i for i in range(4)] for buf in range(2)]
    FW3 = [[48 + 16*buf + 4*nb for nb in range(4)] for buf in range(2)]
    AC3 = [[80 + 16*i + 4*nb for nb in range(4)] for i in range(4)]
    RX = 144
    T3 = 176
    S_INC, S_M3, S_ME, S_MS, S_R3, S_C3, S_F3, S_O3 = 52, 53, 54, 55, 56, 57, 100, 59
    setup3 = f"""
    s_bfe_u32 s{S_R3}, s{S_W}, 0x10001
    s_and_b32 s{S_C3}, s{S_W}, 1
    s_lshl_b32 s{S_T}, s{S_P}, 4
    s_add_u32 s{S_T}, s{S_T}, s{S_A}
    s_lshl_b32 s{S_T}, s{S_T}, 2
    s_add_u32 s{S_T}, s{S_T}, s{S_WR}
    s_lshr_b32 s{S_F3}, s{S_T}, 1
    s_lshl_b32 s{S_F3}, s{S_F3}, 8
    s_add_u32 s{S_F3}, s{S_F3}, {FO}
    s_lshl_b32 s{S_T}, s{S_T}, 16
    s_add_u32 s{S_T}, s{S_T}, {OWS}
    s_add_u32 s60, s32, s{S_T}
    s_addc_u32 s61, s33, 0
    s_lshl_b32 s{S_M3}, s{S_WR}, 12
    s_lshl_b32 s{S_O3}, s{S_WR}, 15
    s_add_u32 s{S_O3}, s{S_O3}, {6*131072}
    s_cmp_eq_u32 s{S_WH}, 0
    s_cselect_b64 vcc, -1, 0
    s_cselect_b32 s8, s60, s12
    s_cselect_b32 s9, s61, s13
    s_cselect_b32 s10, 0x10000, s14
    s_cselect_b32 s{S_O3}, 0, s{S_O3}
    s_cselect_b32 s{S_ST1}, 0, 7168
    s_cselect_b32 s{S_INC}, 12, 17
    s_lshl_b32 s{S_INC}, 1, s{S_INC}
    v_lshlrev_b32 v{T3+1}, 4, v0
    v_cndmask_b32 v{VDE}, v{VDE}, v{T3+1}, vcc
    v_cndmask_b32 v{VDO}, v{VDO}, v{T3+1}, vcc
    s_lshl_b32 s{S_T}, s{S_R3}, 1
    s_add_u32 s{S_T}, s{S_T}, s{S_WH}
    s_lshl_b32 s{S_T}, s{S_T}, 1
    s_add_u32 s{S_T}, s{S_T}, s{S_WH}
    s_lshl_b32 s{S_T}, s{S_T}, 11
    s_add_u32 s{S_T}, s{S_T}, 65536
    v_add_u32 v{OA}, s{S_T}, v{T3+1}
    v_xor_b32 v{OB}, 4096, v{OA}
    v_bfe_u32 v{T3}, v0, 2, 3
    v_lshrrev_b32 v{T3+1}, 5, v0
    v_lshl_add_u32 v{T3+1}, v{T3+1}, 4, v{T3}
    s_lshl_b32 s{S_T}, s{S_WH}, 5
    v_add_u32 v{T3+1}, s{S_T}, v{T3+1}
    v_lshlrev_b32 v{T3+1}, 8, v{T3+1}
    v_bfe_u32 v{T3+2}, v0, 1, 1
    s_lshl_b32 s{S_T}, s{S_C3}, 3
    v_add_u32 v{T3+2}, s{S_T}, v{T3+2}
    v_lshlrev_b32 v{T3}, 1, v{T3}
    v_xor_b32 v{T3+2}, v{T3+2}, v{T3}
    v_lshl_add_u32 v{T3+1}, v{T3+2}, 4, v{T3+1}
    v_and_b32 v{T3+2}, 1, v0
    v_lshl_add_u32 v{WA3[0][0]}, v{T3+2}, 3, v{T3+1}
    v_and_b32 v{FOFF}, 31, v0
    v_lshlrev_b32 v{FOFF}, 3, v{FOFF}
    """.replace(f"v{T3+2}", f"v{VT+5}").replace(f"v{T3+1}", f"v{VT+4}").replace(f"v{T3}", f"v{VT+3}").strip().split("\n")
    setup3 += [f"v_xor_b32 v{WA3[0][nb]}, {32*nb}, v{WA3[0][0]}" for nb in range(1, 4)]
    setup3 += [f"v_add_u32 v{WA3[1][nb]}, 0x20000, v{WA3[0][nb]}" for nb in range(4)]
    NS3 = next(i for i, x in enumerate(setup3) if 'v_bfe_u32' in x)
    seq = [(0, 0), (0, 1)] + [(k_, 0) for k_ in range(1, 8)] + [(k_, 1) for k_ in range(1, 8)]
    KB, VB = [0], [0]
    for m_ in range(1, 16):
        flip = seq[m_][0] != seq[m_-1][0]
        KB.append(KB[-1] ^ flip); VB.append(VB[-1] ^ flip)
    G = dma2()
    for m_ in range(16):
        stamp_stage(a, "7") if m_ == 14 else None
        pre = {i: [] for i in range(6)}
        pre[0] += ["s_waitcnt lgkmcnt(0)"]
        if m_ + 2 < 16 and seq[m_+2][0] != seq[m_+1][0]: pre[1] += rdK(seq[m_+2][0], KB[m_+2])
        if m_ + 1 < 16 and seq[m_+1][0] != seq[m_][0]: pre[4] += rdV(seq[m_+1][0], VB[m_+1])
        extra = []
        if m_ == 0: extra = setup7[:13] + ["s_mov_b32 s58, 0x5f800000"]
        if m_ == 1: extra = setup7[13:]
        if 2 <= m_ <= 5: pre[2] += G[2*(m_-2)]; pre[5] += G[2*(m_-2)+1]
        if m_ == 6:
            pre[2] += [f"s_lshl_b32 s{S_T}, s{S_W}, 12", f"s_add_u32 m0, s{S_T}, 131072", f"s_lshl_b32 s{S_SO}, s{S_W}, 15", f"s_add_u32 s{S_SO}, s{S_SO}, {4*131072}"]
        if m_ in (6, 7):
            for i_, j_ in ((3, 2*(m_-6)), (5, 2*(m_-6)+1)):
                pre[i_] += [f"buffer_load_dwordx4 v{VDE if j_%2==0 else VDO}, s[8:11], s{S_SO} offen offset:{j_*1024} lds", f"s_add_u32 s{S_SO}, s{S_SO}, s{S_ST1}"]
        if m_ == 8: extra = setup3[:NS3 // 2]
        if m_ == 9: extra = setup3[NS3 // 2:NS3]
        if m_ == 12: extra = setup3[NS3:]
        if m_ == 10: extra = check(0)
        if m_ == 11: extra = finish(0)
        slot(m_ % 4, seq[m_][1], (KF[KB[m_+1]], seq[m_+1][1]) if m_ < 15 else None,
             (VF[VB[m_-1]], seq[m_-1][1]) if m_ else (VF[1], 1), VF[VB[m_]], pre, extra)
    a("s_nop 1")
    a(pv(3, VB[15], 1, 1)); a(rs(3, 1, 1))
    if not ST0: stamp(a, 4)
    if ST3: stamp(a, 1, True)
    a("s_nop 7\ns_nop 3")
    a(check(1))
    a(f"""
    s_and_b64 vcc, s[{S_BAD}:{S_BAD+1}], s[{S_BAD+2}:{S_BAD+3}]
    s_cmp_eq_u64 vcc, exec
    s_cbranch_scc0 L_fallback
    """)
    a.label("L_fin")
    a(finish(1))
    def wslot(i): return i*16384 if i < 4 else 131072 + (i-4)*16384
    def dma3(mo, mw):
        G = []
        for j in range(4):
            g = []
            if j == 0:
                if mw is None: g += [f"s_add_u32 m0, s{S_M3}, {mo}"]
                else: g += [f"s_cmp_eq_u32 s{S_WH}, 0", f"s_mov_b32 s{S_T}, {mw}", f"s_cmov_b32 s{S_T}, {mo}", f"s_add_u32 m0, s{S_M3}, s{S_T}"]
                g += [f"s_mov_b32 s{S_SO}, s{S_O3}"]
            g.append(f"buffer_load_dwordx4 v{VDE if j%2==0 else VDO}, s[8:11], s{S_SO} offen offset:{j*1024} sc1 lds")
            g.append(f"s_add_u32 s{S_SO}, s{S_SO}, s{S_ST1}" if j < 3 else f"s_add_u32 s{S_O3}, s{S_O3}, s{S_INC}")
            G.append(g)
        return G
    a("s_barrier")
    if ST3: stamp(a, 2, True)
    a("s_waitcnt vmcnt(0)")
    if ST3: stamp(a, 3, True)
    a(flagst(ZERO, S_FO))
    a(f"s_cmp_lg_u32 s{S_WH}, 0\ns_cbranch_scc1 L_p3go")
    if OPT("POLL2", 0):
        P2 = T3 + 4
        ld = lambda r: f"buffer_load_dwordx2 v[{r}:{r+1}], v{FOFF}, s[36:39], s{S_F3} offen sc1"
        a(f"s_mov_b32 s{S_T}, {SPIN_MAX}")
        a(ld(PDAT)); a(f"s_sleep {OPT('PSL2', 3)}")
        a.label("L_pollo")
        for r0, r1 in ((PDAT, P2), (P2, PDAT)):
            a(ld(r1))
            a(f"""
            s_waitcnt vmcnt(1)
            v_cmp_eq_u64 vcc, s[{NON}:{NON+1}], v[{r0}:{r0+1}]
            s_cmp_eq_u64 vcc, exec
            s_cbranch_scc1 L_pollo_done
            """)
        a(f"s_sub_u32 s{S_T}, s{S_T}, 1\ns_cbranch_scc0 L_pollo")
        a.label("L_pollo_done")
    else:
        poll("L_pollo", S_F3)
    if ST3: stamp(a, 4, True)
    PFO_ = OPT("PFO", 0)
    for st in range(4):
        if PFO_ and st == PFO_ - 1:
            a(f"s_lshl_b32 s{S_T}, s{S_B}, 13\nv_lshlrev_b32 v{PDAT}, 7, v0\nbuffer_load_dword v{PDAT+1}, v{PDAT}, s[8:11], s{S_T} offen sc1")
        for g in dma3(65536 + st*16384, None): a(g)
    a(f"s_waitcnt vmcnt({13 if PFO_ > 1 else 12})")
    a.label("L_p3go")
    if ST3: a(f"s_cmp_eq_u32 s{S_WH}, 0\ns_cbranch_scc1 L_st3x"); stamp(a, 4, True); a.label("L_st3x")
    a("s_barrier")
    if OPT("G3PRIO", "") == "0": a("s_setprio 0")
    if not ST0: stamp(a, 5)
    def reads3(s, buf):
        ws_, os_ = s % 6, s % 4
        O_ = [f"ds_read_b128 {vr(FO_[buf][i],4)}, v{OA if i < 2 else OB} offset:{os_*16384 + (i%2)*1024}" for i in range(4)]
        W_ = [f"ds_read_b64_tr_b16 {vr(FW3[buf][nb]+2*u,2)}, v{WA3[ws_//4][nb]} offset:{(ws_%4)*16384 + u*2048}" for nb in range(4) for u in range(2)]
        return W_[0:2] + O_ + W_[2:]
    def mfmas3(buf, first=False, last=False):
        L = [mf16(AC3[i][nb], FW3[buf][nb], FO_[buf][i]) for nb in range(4) for i in range(4)]
        o = os.environ.get("ORD3", "i") if not last else ""
        if o == "i": L = [L[4*(nb if i % 2 == 0 else 3 - nb) + i] for i in range(4) for nb in range(4)]
        if o == "snake": L = [L[4*nb + (i if nb % 2 == 0 else 3 - i)] for nb in range(4) for i in range(4)]
        return [x[:x.rindex(",")] + ", 0" for x in L] if first else L
    a(reads3(0, 0))
    fin_setup = f"""
    s_lshl_b32 s{S_T}, s{S_WH}, 3
    s_add_u32 s{S_T}, s{S_T}, s{S_WR}
    s_lshl_b32 s{S_T}, s{S_T}, 13
    v_lshlrev_b32 v{T3}, 4, v0
    v_add_u32 v{T3}, s{S_T}, v{T3}
    v_xor_b32 v{T3+1}, 0x10000, v{T3}
    s_mov_b32 s12, s28
    s_mov_b32 s13, s29
    s_mov_b32 s14, 0x800000
    s_lshl_b32 s{S_T}, s{S_A}, 2
    s_lshl_b32 s{S_SO}, s{S_R3}, 1
    s_add_u32 s{S_T}, s{S_T}, s{S_SO}
    s_add_u32 s{S_T}, s{S_T}, s{S_WH}
    s_lshl_b32 s{S_T}, s{S_T}, 17
    s_lshl_b32 s{S_SO}, s{S_P}, 11
    s_add_u32 s{S_T}, s{S_T}, s{S_SO}
    s_lshl_b32 s{S_SO}, s{S_B}, 8
    s_add_u32 s{S_T}, s{S_T}, s{S_SO}
    s_lshl_b32 s{S_SO}, s{S_C3}, 7
    s_add_u32 s{S_SO}, s{S_T}, s{S_SO}
    s_add_u32 s{S_SO+1}, s{S_SO}, 65536
    v_and_b32 v{T3+2}, 15, v0
    v_lshlrev_b32 v{T3+2}, 12, v{T3+2}
    v_bfe_u32 v{T3+3}, v0, 4, 1
    v_lshl_add_u32 v{T3+2}, v{T3+3}, 5, v{T3+2}
    v_lshrrev_b32 v{T3+3}, 5, v0
    v_lshl_add_u32 v{T3+2}, v{T3+3}, 4, v{T3+2}
    """.strip().split("\n")
    for s in range(16):
        if s < 15:
            a(f"s_waitcnt vmcnt({8 if s <= 12 else 4 if s == 13 else 0}) lgkmcnt(0)\ns_barrier")
            r = reads3(s + 1, 1 - s % 2)
            f = {}
            for k_, x in enumerate(r): f.setdefault(min(15, int(k_ * OPT("S3", 1.0))), []).append(x)
            if s <= 11:
                d = dma3(65536 + (s % 4)*16384, wslot(s % 6))
                for k_, i in enumerate([int(x) for x in os.environ.get("D3POS", "0,4,8,12").split(",")]): f[i] = f.get(i, []) + d[k_]
            if s == 14:
                for i in range(14): f[i] = f.get(i, []) + fin_setup[2*i:2*i+2]
            a(weave(mfmas3(s % 2, s == 0), f))
        else:
            a("s_waitcnt lgkmcnt(0)")
            m = mfmas3(1, False, True)
            order = [k_ for k_ in range(16) if k_ % 4 >= 2] + [k_ for k_ in range(16) if k_ % 4 < 2]
            mm = [m[k_] for k_ in order]
            a(mm[:8])
            wr_ = {2*(j % 4) + j//4: f"ds_write_b128 v{T3}, {vr(AC3[2][0]+4*j,4)} offset:{j*1024}" for j in range(8)}
            for k_ in range(8): a(mm[8 + k_]); a(wr_[k_])
    if not ST0: stamp(a, 6)
    a("s_waitcnt lgkmcnt(0)\ns_barrier")
    for j in range(8): a(f"ds_read_b128 {vr(RX+4*j,4)}, v{T3+1} offset:{j*1024}")
    prev = None
    for j in range(5):
        if j < 4:
            qb, np_ = j // 2, j % 2
            t0 = AC3[qb][2*np_]
            a(f"s_waitcnt lgkmcnt({6 - 2*j})")
            for i in range(0, 8, 2): a(f"v_pk_add_f32 v[{t0+i}:{t0+i+1}], v[{t0+i}:{t0+i+1}], v[{RX+8*j+i}:{RX+8*j+i+1}]")
            cur = (16 + 4*j, qb, np_)
            a(pack2(cur[0], t0, t0 + 4))
        else:
            cur = None; a("s_nop 1")
        if prev:
            a(swap2(prev[0]))
            a(f"buffer_store_dwordx4 {vr(prev[0],4)}, v{T3+2}, s[12:15], s{S_SO+prev[1]} offen offset:{prev[2]*64} {os.environ.get('OUTPOL', 'sc0 sc1')}")
        prev = cur
    stamp_flush(a, 7, 1)
    a.label("L_end")
    a("s_endpgm")
    for lab, body, ret in RARE:
        a.label(lab)
        body() if callable(body) else a(body)
        a(f"s_branch {ret}")
    MX = [VT, VT+2]
    a.label("L_fallback")
    a(f"""
    v_mov_b32 v{MX[0]}, 0xff800000
    v_mov_b32 v{MX[1]}, 0xff800000
    s_mov_b32 s{S_IT}, 0
    s_waitcnt vmcnt(0) lgkmcnt(0)
    """)
    a.label("L_fb_max")
    a(f"s_add_u32 s{S_T}, s{S_IT}, s{S_HB}")
    for t in range(2): a(f"buffer_load_dwordx4 {vr(KF[0]+4*t,4)}, v{VD}, s[36:39], s{S_T} offen offset:{t*1024} sc1")
    a("s_waitcnt vmcnt(0)")
    a(qk(0, 0, 0, "0")); a(qk(1, 0, 1, "0"))
    a("s_nop 15")
    for qt in range(2):
        for i in range(0, 16, 2): a(f"v_max3_f32 v{MX[qt]}, v{MX[qt]}, v{S[qt]+i}, v{S[qt]+i+1}")
    a(f"""
    s_add_u32 s{S_IT}, s{S_IT}, 4096
    s_cmp_lt_u32 s{S_IT}, 0x40000
    s_cbranch_scc1 L_fb_max
    """)
    max_to_nm(MX[0], 0); max_to_nm(MX[1], 1)
    for i in range(O[0], LA[1] + 4, 2): a(f"v_mov_b64 v[{i}:{i+1}], 0")
    a(f"s_mov_b32 s{S_IT}, 0")
    a.label("L_fb_main")
    a(f"s_add_u32 s{S_T}, s{S_IT}, s{S_HB}")
    for t in range(2): a(f"buffer_load_dwordx4 {vr(KF[0]+4*t,4)}, v{VD}, s[36:39], s{S_T} offen offset:{t*1024} sc1")
    for t in range(2): a(f"buffer_load_dwordx4 {vr(VF[0]+4*t,4)}, v{VD}, s[36:39], s{S_T} offen offset:{2048+t*1024} sc1")
    a("s_waitcnt vmcnt(0)")
    a(qk(0, 0, 0)); a(qk(1, 0, 1))
    a("s_nop 15")
    for qt in range(2):
        for i in range(16): a(f"v_exp_f32 v{S[qt]+i}, v{S[qt]+i}")
    a("s_nop 1")
    if DENSE:
        for qt in range(2):
            for i in range(8): a(f"v_cvt_pk_bf16_f32 v{S[qt]+i}, v{S[qt]+2*i}, v{S[qt]+2*i+1}")
        a("s_nop 1")
    for qt in range(2):
        for t in range(2):
            a(pv(qt, 0, qt, t))
            if rs(qt, qt, t): a(rs(qt, qt, t))
    a(f"""
    s_add_u32 s{S_IT}, s{S_IT}, 4096
    s_cmp_lt_u32 s{S_IT}, 0x40000
    s_cbranch_scc1 L_fb_main
    s_nop 15
    """)
    a(lbcast(0) + lbcast(1))
    a(finish(0))
    a("s_branch L_fin")
    return f""".p2align 6
.amdhsa_kernel {name}
  .amdhsa_next_free_vgpr {NV}
  .amdhsa_next_free_sgpr 102
  .amdhsa_accum_offset {NV}
  .amdhsa_group_segment_fixed_size 0
  .amdhsa_kernarg_size 72
  .amdhsa_user_sgpr_count 2
  .amdhsa_user_sgpr_kernarg_segment_ptr 1
  .amdhsa_system_sgpr_workgroup_id_x 1
.end_amdhsa_kernel"""

DOC = """
;
"""

def main():
    out = sys.argv[1] if len(sys.argv) > 1 else f"cdna_kernels/{NAME}.s"
    a = Asm()
    k = gen(a)
    hdr = open(f"cdna_kernels/{NAME}.s.ref").read().split("\n")
    hdr = [l for l in hdr if l.startswith(";") and "@launch" not in l]
    hdr.append(f"; @launch grid=(256,1,1) block=(512,1,1) lds={LDS_BYTES}")
    hdr += DOC.strip("\n").split("\n")
    txt = "\n".join(hdr) + '\n.amdgcn_target "amdgcn-amd-amdhsa--gfx950"\n.text\n' + a.text() + '\n.section .rodata,"a"\n' + k + "\n"
    open(out, "w").write(txt)

if __name__ == "__main__":
    main()
```

```python
import sys, math, os, struct
from gen2 import Asm, vr, f2u, mf32, mf16, weave, NAME

STAMP = os.environ.get("STAMP", "0") == "1"
def OPT(k, d): return type(d)(os.environ.get(k, d))

KVWS = 0
OWS = 16 << 20
FKV = 24 << 20
FO = FKV + 65536
WS_BYTES = 25 << 20
STAMP_BASE = 64 << 20
CSCALE = math.log2(math.e) / math.sqrt(32.0)
LDS_BYTES = 163840
SPIN_MAX = 1 << 16

S_W, S_P, S_A, S_B, S_T = 3, 4, 5, 6, 7
S_WR, S_WH, S_IT = 40, 41, 42
NON = 34

ST3 = os.environ.get("ST3", "") == "1"
STG = os.environ.get("STG", "") == "1"
STG1 = {"1": True, "3": 3}.get(os.environ.get("STG1", ""), False)
def stamp_stage(a, lane, g1=False):
    if STG and g1 == STG1:
        a(f"s_memtime s[92:93]\ns_memrealtime s[94:95]\ns_lshl_b64 exec, 1, {lane}\ns_waitcnt lgkmcnt(0)\nv_mov_b32 v14, s92\nv_mov_b32 v15, s94\ns_mov_b64 exec, -1")
def stamp(a, i, alt=False):
    if ST3 and i in (1, 2, 3, 4) and not alt: return
    if STAMP and not STG:
        a(f"s_memtime s[{64+4*i}:{65+4*i}]")
        a(f"s_memrealtime s[{66+4*i}:{67+4*i}]")
        a("s_waitcnt lgkmcnt(0)")
def stamp_flush(a, n, vt):
    if not STAMP: return
    a("s_waitcnt vmcnt(0) lgkmcnt(0)")
    stamp(a, n)
    a(f"""
    s_add_u32 s56, s32, {STAMP_BASE}
    s_addc_u32 s57, s33, 0
    s_mov_b32 s58, 0x100000
    s_mov_b32 s59, 0x20000
    s_lshl_b32 s60, s2, 3
    s_add_u32 s60, s60, s{S_W}
    s_lshl_b32 s60, s60, 6
    v_mov_b32 v{vt}, 0
    """)
    if STG:
        a(f"v_lshlrev_b32 v{vt}, 3, v0\ns_mov_b64 exec, 0xff\nbuffer_store_dwordx2 v[14:15], v{vt}, s[56:59], s60 offen")
        return
    for i in range(n + 1):
        a(f"v_mov_b32 v{vt+1}, s{64+4*i}")
        a(f"v_mov_b32 v{vt+2}, s{66+4*i}")
        a(f"buffer_store_dwordx2 v[{vt+1}:{vt+2}], v{vt}, s[56:59], s60 offen offset:{8*i}")
        a("s_nop 1")

DENSE = "d" in os.environ.get("ATX", "")
def gen(a):
    name = NAME + "_kernel"
    a.raw(f".globl {name}\n.p2align 8\n.type {name},@function\n{name}:")
    stamp(a, 0)
    RARE = []
    def emit(L):
        for x in L:
            a(x)
            if " m0," in x: a("s_nop 0")
    PKB = [48, 32]; Q = [16, 24]; PK = 32; KF = [64, 72]; VF = [80, 88]; NM = [96, 112]; S = [128, 144, 160, 176]
    O = [192, 208]; LA = [224, 228]; ONES = 232; IDX = 236; ZERO = 237
    FDAT, FOFF, PDAT = 238, 240, 242
    XB = [244, 245]; VDE, VDO = 246, 247
    NV = 256
    def poll(lab, soff, mask=None, first_loaded=False):
        ld = f"buffer_load_dwordx2 v[{PDAT}:{PDAT+1}], v{FOFF}, s[36:39], s{soff} offen sc1"
        a(f"s_mov_b32 s{S_T}, {SPIN_MAX}")
        if not first_loaded: a(ld)
        a.label(lab)
        a(f"""
        s_waitcnt vmcnt(0)
        v_cmp_eq_u64 vcc, s[{NON}:{NON+1}], v[{PDAT}:{PDAT+1}]
        """)
        if mask: a(f"s_or_b64 vcc, vcc, {mask}")
        a(f"""
        s_cmp_eq_u64 vcc, exec
        s_cbranch_scc1 {lab}_done
        s_sub_u32 s{S_T}, s{S_T}, 1
        s_cbranch_scc1 {lab}_done
        s_sleep {OPT("PSLEEP", 8)}
        {ld}
        s_branch {lab}
        """)
        a.label(lab + "_done")
    XA = [2, 3]; WA = [4, 5]; D0, D1, D2, PFV, PFD = 6, 7, 8, 9, 10
    VT = 11
    FX = [[16 + 16*buf + 4*rb for rb in range(4)] for buf in range(2)]
    FW = [[48 + 24*buf + 4*cb for cb in range(6)] for buf in range(2)]
    ACC = [[96 + 16*cb + 4*rb for rb in range(4)] for cb in range(6)]
    S_KX, S_KW, T0, S_M0X, S_M0W, S_XF, S_XN, S_PFO, S_PFI = 43, 44, 45, 47, 48, 49, 50, 56, 57
    W0, W1 = 98304, 122880
    RSZ = OPT("RSZ", 2)
    NTW, NTX, NTP = os.environ.get("NTW", ""), os.environ.get("NTX", ""), os.environ.get("NTP", "")
    PF0, PFSTEP = OPT("PF0", 3), OPT("PFSTEP", 4)
    a(f"""
    s_cmp_ge_u32 s2, 256
    s_cbranch_scc1 L_end
    s_load_dwordx16 s[16:31], s[0:1], 0
    s_load_dwordx2 s[32:33], s[0:1], 64
    s_memrealtime s[{NON}:{NON+1}]
    v_lshrrev_b32 v1, 6, v0
    v_and_b32 v0, 63, v0
    v_readfirstlane_b32 s{S_W}, v1
    s_and_b32 s{S_T}, s2, 7
    s_lshr_b32 s{S_B}, s2, 3
    s_lshr_b32 s{S_P}, s{S_T}, 2
    s_and_b32 s{S_A}, s{S_T}, 3
    s_lshl_b32 s{S_A}, s{S_A}, 2
    s_and_b32 s{S_T}, s{S_B}, 3
    s_or_b32 s{S_A}, s{S_A}, s{S_T}
    s_lshr_b32 s{S_B}, s{S_B}, 2
    s_and_b32 s{S_WR}, s{S_W}, 3
    s_lshr_b32 s{S_WH}, s{S_W}, 2
    s_mul_i32 s{S_M0X}, s{S_WR}, 7
    s_add_u32 s{S_T}, s{S_WR}, 28
    s_cmp_eq_u32 s{S_WH}, 0
    s_cselect_b32 s{S_M0X}, s{S_T}, s{S_M0X}
    v_lshrrev_b32 v{VT}, 3, v0
    s_lshl_b32 s{S_T}, s{S_M0X}, 3
    v_add_u32 v{VT+4}, s{S_T}, v{VT}
    v_lshlrev_b32 v{VT+4}, 11, v{VT+4}
    v_and_b32 v{VT+1}, 7, v0
    v_lshrrev_b32 v{VT+2}, 4, v0
    v_xor_b32 v{VT+3}, v{VT+1}, v{VT+2}
    s_and_b32 s{S_T}, s{S_WR}, 1
    s_lshl_b32 s{S_T}, s{S_T}, 2
    v_xor_b32 v{VT+3}, s{S_T}, v{VT+3}
    v_lshl_add_u32 v{D2}, v{VT+3}, 4, v{VT+4}
    s_lshl_b32 s{S_M0X}, s{S_M0X}, 10
    s_lshl_b32 s{S_T}, s{S_WR}, 4
    v_add_u32 v{VT}, s{S_T}, v{VT}
    v_mul_u32_u24 v{VT}, 6144, v{VT}
    v_and_b32 v{VT+2}, 1, v{VT+2}
    v_lshlrev_b32 v{VT+2}, 2, v{VT+2}
    v_xor_b32 v{VT+3}, v{VT+1}, v{VT+2}
    v_lshl_add_u32 v{D0}, v{VT+3}, 4, v{VT}
    v_xor_b32 v{D1}, 32, v{D0}
    v_add_u32 v{D1}, 49152, v{D1}
    s_mul_i32 s{S_M0W}, s{S_WR}, 6144
    s_add_u32 s{S_M0W}, s{S_M0W}, {W0}
    s_mov_b32 s{S_KX}, 0
    s_mov_b32 s{S_KW}, 0
    s_mov_b32 s11, 0x20000
    s_mov_b32 s15, 0x20000
    s_mov_b32 s39, 0x20000
    s_mov_b32 s55, 0x20000
    v_mov_b32 v{ZERO}, 0
    s_waitcnt lgkmcnt(0)
    s_cmp_eq_u32 s{S_P}, 0
    s_cselect_b32 s8, s16, s22
    s_cselect_b32 s9, s17, s23
    s_cselect_b32 s12, s18, s24
    s_cselect_b32 s13, s19, s25
    s_lshl_b32 s{S_T}, s{S_B}, 19
    s_add_u32 s8, s8, s{S_T}
    s_addc_u32 s9, s9, 0
    s_sub_u32 s10, 0x400000, s{S_T}
    s_lshl_b32 s{S_T}, s{S_A}, 7
    s_add_u32 s12, s12, s{S_T}
    s_addc_u32 s13, s13, 0
    s_sub_u32 s14, 0x600000, s{S_T}
    s_cmp_lg_u32 s{S_WH}, 0
    s_cbranch_scc1 L_proB
    """)
    def burstW(stage):
        L = []
        for g in range(2):
            L.append(f"s_add_u32 m0, s{S_M0W}, {stage*(W1-W0) + g*3072}")
            for s_ in range(3):
                if s_: L.append(f"s_add_u32 s{T0+s_%2}, s{S_KW}, {s_*1024}")
                else: L.append("s_nop 0")
                L.append(f"buffer_load_dwordx4 v{D0+g}, s[12:15], s{T0+s_%2 if s_ else S_KW} offen offset:{s_*1024} {NTW} lds")
        L.append(f"s_add_u32 s{S_KW}, s{S_KW}, 393216")
        return L
    def burstXA(slot):
        return [f"s_add_u32 m0, s{S_M0X}, {slot}", "s_nop 0", f"buffer_load_dwordx4 v{D2}, s[8:11], s{S_KX} offen {NTX} lds", f"s_add_u32 s{S_KX}, s{S_KX}, 128"]
    def burstXB(slot):
        L = [f"s_add_u32 m0, s{S_M0X}, {slot}"]
        for j in range(7):
            if j == 4: L.append("s_add_u32 m0, m0, 4096")
            L.append(f"s_add_u32 s{T0+j%2}, s{S_KX}, {j*16384 - (j%4)*1024}")
            L.append(f"buffer_load_dwordx4 v{D2 if j%2==0 else D1}, s[8:11], s{T0+j%2} offen offset:{(j%4)*1024} {NTX} lds")
        L.append(f"s_add_u32 s{S_KX}, s{S_KX}, 128")
        return L
    a(burstW(0) + burstXA(0) + burstW(1) + burstXA(32768) + burstXA(65536))
    a(f"""
    s_or_b32 s{S_T}, s2, s{S_W}
    s_cmp_lg_u32 s{S_T}, 0
    s_cbranch_scc1 L_pro2
    s_mov_b32 s52, s30
    s_mov_b32 s53, s31
    s_mov_b32 s54, 256
    s_or_b32 s{NON}, s{NON}, 1
    v_mov_b32 v{FDAT}, s{NON}
    v_mov_b32 v{FDAT+1}, s{NON+1}
    s_mov_b64 exec, 1
    buffer_store_dwordx2 v[{FDAT}:{FDAT+1}], v{ZERO}, s[52:55], 0 offen sc1
    s_mov_b64 exec, -1
    s_branch L_pro2
    """)
    a.label("L_proB")
    a(f"v_xor_b32 v{D1}, 64, v{D2}")
    a(burstXB(0) + burstXB(32768))
    a.label("L_pro2")
    a(f"""
    s_lshl_b32 s{S_T}, s{S_B}, 2
    s_add_u32 s{S_T}, s{S_T}, s{S_WR}
    s_lshl_b32 s{S_T}, s{S_T}, 2
    v_and_b32 v{VT+1}, 3, v0
    v_add_u32 v{VT+1}, s{S_T}, v{VT+1}
    v_bfe_u32 v{VT+2}, v0, 4, {0 if OPT("PFHALF", 0) else 1}
    v_lshl_add_u32 v{VT+1}, v{VT+2}, 7, v{VT+1}
    v_mul_u32_u24 v{VT+1}, 6144, v{VT+1}
    v_bfe_u32 v{VT+2}, v0, 2, 2
    v_min_u32 v{VT+2}, 2, v{VT+2}
    v_lshl_add_u32 v{PFV}, v{VT+2}, 11, v{VT+1}
    s_mov_b32 s{S_PFO}, {393216 * PF0}
    s_and_b32 s{S_T}, s{S_A}, 3
    s_lshl_b32 s{S_T}, s{S_T}, 2
    s_add_u32 s{S_T}, s{S_T}, s{S_WR}
    s_lshl_b32 s{S_T}, s{S_T}, 4
    v_and_b32 v{VT}, 15, v0
    v_add_u32 v{VT}, s{S_T}, v{VT}
    v_lshlrev_b32 v{VT}, 11, v{VT}
    v_lshrrev_b32 v{VT+1}, 4, v0
    v_lshl_add_u32 v{VT}, v{VT+1}, 7, v{VT}
    s_cmp_eq_u32 s{S_WH}, 0
    s_cselect_b64 vcc, -1, 0
    s_cselect_b32 s{S_PFO}, {128 * OPT("PFX0", 4)}, s{S_PFO}
    v_cndmask_b32 v{PFV}, v{PFV}, v{VT}, vcc
    v_and_b32 v{VT}, 15, v0
    s_lshl_b32 s{S_T}, s{S_WR}, 6
    v_add_u32 v{VT}, s{S_T}, v{VT}
    v_lshlrev_b32 v{VT}, 7, v{VT}
    v_lshrrev_b32 v{VT+1}, 4, v0
    v_bfe_u32 v{VT+2}, v0, 1, 3
    v_xor_b32 v{VT+2}, v{VT+1}, v{VT+2}
    v_lshl_add_u32 v{XA[0]}, v{VT+2}, 4, v{VT}
    v_xor_b32 v{XA[1]}, 64, v{XA[0]}
    v_mov_b32 v{XB[0]}, v{XA[0]}
    v_mov_b32 v{XB[1]}, v{XA[1]}
    v_mul_u32_u24 v{VT}, 3072, v{VT+1}
    v_bfe_u32 v{VT+2}, v0, 2, 2
    v_lshl_add_u32 v{VT}, v{VT+2}, 7, v{VT}
    v_bfe_u32 v{VT+3}, v0, 1, 1
    s_lshl_b32 s{S_T}, s{S_WH}, 2
    v_add_u32 v{VT+3}, s{S_T}, v{VT+3}
    v_bfe_u32 v{VT+4}, v0, 3, 1
    v_lshlrev_b32 v{VT+4}, 2, v{VT+4}
    v_xor_b32 v{VT+3}, v{VT+3}, v{VT+4}
    v_bfe_u32 v{VT+4}, v0, 4, 1
    v_lshlrev_b32 v{VT+4}, 1, v{VT+4}
    v_xor_b32 v{VT+3}, v{VT+3}, v{VT+4}
    v_lshl_add_u32 v{VT}, v{VT+3}, 4, v{VT}
    v_and_b32 v{VT+4}, 1, v0
    v_lshl_add_u32 v{VT}, v{VT+4}, 3, v{VT}
    v_add_u32 v{WA[0]}, {W0}, v{VT}
    v_xor_b32 v{WA[1]}, 32, v{WA[0]}
    v_mov_b32 v{IDX}, {"0x44444444" if DENSE else "0xdddddddd"}
    {f"v_and_b32 v{VT}, 1, v0" if DENSE else ""}
    {f"v_mul_u32_u24 v{VT}, 0xaaaa, v{VT}" if DENSE else ""}
    {f"v_add_u32 v{IDX}, v{IDX}, v{VT}" if DENSE else ""}
    v_and_b32 v{VT}, {[4, 7, 15][RSZ]}, v0
    v_mov_b32 v{VT+1}, 0x3f803f80
    v_cmp_eq_u32 vcc, 0, v{VT}
    v_lshlrev_b32 v{VDE}, 4, v0
    v_lshlrev_b32 v{VDO}, 4, v0
    v_cndmask_b32 v{ONES}, v{ZERO}, v{VT+1}, vcc
    v_cndmask_b32 v{ONES+1}, v{ZERO}, v{VT+1}, vcc
    v_cmp_eq_u32 vcc, 4, v{VT}
    s_nop 1
    v_cndmask_b32 v{ONES+2}, v{ZERO}, v{VT+1}, vcc
    v_cndmask_b32 v{ONES+3}, v{ZERO}, v{VT+1}, vcc
    v_and_b32 v{FOFF}, 15, v0
    v_lshlrev_b32 v{FOFF}, 3, v{FOFF}
    s_lshl_b32 s{S_T}, s{S_B}, 3
    v_mov_b32 v{FOFF+1}, s{S_T}
    s_mov_b32 s{S_IT}, 0
    s_mov_b32 s{S_XN}, 32768
    """)
    for i in range(96, 232, 2): a(f"v_mov_b64 v[{i}:{i+1}], 0")
    if OPT("IPF", 0):
        a(f"""
        s_cmp_lg_u32 s{S_W}, 7
        s_cbranch_scc1 L_noipf
        s_getpc_b64 s[60:61]
        v_lshlrev_b32 v{VT}, 7, v0
        global_load_dword v{PFD}, v{VT}, s[60:61]
        v_add_u32 v{VT}, 8192, v{VT}
        global_load_dword v{PFD}, v{VT}, s[60:61]
        v_add_u32 v{VT}, 8192, v{VT}
        v_min_u32 v{VT}, {OPT("IPFMAX", 21000)}, v{VT}
        global_load_dword v{PFD}, v{VT}, s[60:61]
        """)
        a.label("L_noipf")
    BULK = OPT("BULK", 0)
    if BULK:
        a(f"""
        s_lshl_b32 s{S_T}, s{S_A}, 7
        s_sub_u32 s52, s12, s{S_T}
        s_subb_u32 s53, s13, 0
        s_mov_b32 s54, 0x600000
        s_lshl_b32 s{S_T}, s{S_A}, 3
        s_add_u32 s{S_T}, s{S_T}, s{S_B}
        s_lshl_b32 s{S_T}, s{S_T}, 3
        s_add_u32 s{S_T}, s{S_T}, s{S_W}
        s_mul_i32 s{S_T}, s{S_T}, 6144
        v_min_u32 v{VT}, 47, v0
        v_lshlrev_b32 v{VT}, 7, v{VT}
        {"s_sleep " + str(OPT("BSLEEP", 0)) if OPT("BSLEEP", 0) else ""}
        buffer_load_dword v{PFD}, v{VT}, s[52:55], s{S_T} offen
        s_cmp_lg_u32 s{S_WH}, 0
        s_cbranch_scc1 L_nobx
        s_lshl_b32 s{S_T}, s{S_A}, 2
        s_add_u32 s{S_T}, s{S_T}, s{S_WR}
        s_lshl_b32 s{S_T}, s{S_T}, 13
        v_lshlrev_b32 v{VT+1}, 7, v0
        buffer_load_dword v{PFD}, v{VT+1}, s[8:11], s{S_T} offen
        """)
        a.label("L_nobx")
    def reads1(stage, t, buf):
        X = [f"ds_read_b128 {vr(FX[buf][rb],4)}, v{XA[t]} offset:{rb*2048}" for rb in range(4)]
        W = []
        for cb in range(6):
            for u in range(2):
                W.append(f"ds_read_b64_tr_b16 {vr(FW[buf][cb]+2*u,2)}, v{WA[cb%2]} offset:{stage*(W1-W0) + t*12288 + (cb//2)*1024 + u*512}")
        return W[0:2] + X + W[2:]
    def mfmas1(buf, natural=False):
        L = [mf16(ACC[cb][rb], FW[buf][cb], FX[buf][rb]) if cb < 4 else mf16(ACC[cb][rb], FX[buf][rb], FW[buf][cb])
             for cb in range(6) for rb in range(4)]
        o = "cb" if natural else os.environ.get("ORD1", "A")
        if o == "rb": L = [L[4*cb + rb] for rb in range(4) for cb in range(6)]
        if o == "snake": L = [L[4*cb + (rb if cb % 2 == 0 else 3 - rb)] for cb in range(6) for rb in range(4)]
        if o == "A": L = [L[4*cb + (rb if cb % 2 == 0 else 3 - rb)] for cb in range(4) for rb in range(4)] + [L[4*(4 + (c ^ (rb & 1))) + rb] for rb in range(4) for c in range(2)]
        if o == "B": L = [L[4*(cb if rb % 2 == 0 else 3 - cb) + rb] for rb in range(4) for cb in range(4)] + [L[4*cb + (rb if cb % 2 else 3 - rb)] for cb in (4, 5) for rb in range(4)]
        return L
    def spread(r, key):
        sp, off = float(os.environ.get(key, "1.4" if key in ("SA1", "SB1") else "1")), int(os.environ.get(key + "O", "0"))
        f = {}
        for k_, x in enumerate(r): f.setdefault(min(23, off + int(k_ * sp)), []).append(x)
        return f
    def rot_x():
        return [f"v_add_u32 v{XA[1]}, s{S_XN}, v{XB[1]}", f"s_mov_b32 s{S_XF}, s{S_XN}", f"s_add_u32 s{S_XN}, s{S_XN}, 32768",
                f"s_cmp_eq_u32 s{S_XN}, 98304", f"s_cselect_b32 s{S_XN}, 0, s{S_XN}"]
    BSPR = OPT("BSPR", 0)
    def place(f, burst, pre):
        if BSPR == 0:
            pre += burst; return
        groups, cur = [], []
        for x in burst:
            cur.append(x)
            if " lds" in x or "buffer_load_dword " in x: groups.append(cur); cur = []
        if cur: groups[-1] += cur
        pre += groups[0]
        for k_, g in enumerate(groups[1:]): f[(k_ + 1) * BSPR - 1] = f.get((k_ + 1) * BSPR - 1, []) + g
    a(f"""
    s_cmp_lg_u32 s{S_WH}, 0
    s_cbranch_scc1 L_g1B_pre
    s_mov_b32 s{S_XF}, 0
    {"s_setprio 1" if OPT("G1PRIO", "") == "A" else ""}
    {f"buffer_load_dword v{PFD}, v{PFV}, s[8:11], s{S_PFO} offen {os.environ.get('NTXP', '')}" if OPT("XPFE", 0) else ""}
    s_waitcnt vmcnt({8 + 2*BULK + OPT("XPFE", 0)})
    s_barrier
    """)
    stamp(a, 1)
    a(reads1(0, 0, 0))
    if OPT("XPF1", 0): a(f"buffer_load_dword v{PFD}, v{PFV}, s[8:11], s{S_PFO} offen")
    a.raw(".p2align 6")
    a.label("L_g1A")
    stamp_stage(a, f"s{S_IT}", True)
    a(f"s_cmp_eq_u32 s{S_IT}, 7\ns_cselect_b32 s14, 0, s14")
    for stage in range(2):
        a("s_waitcnt lgkmcnt(0)")
        r = reads1(stage, 1, 1)
        a(weave(mfmas1(0), spread(r, "SA0")))
        if stage == 1: a(f"s_cmp_ge_u32 s{S_IT}, 6\ns_cselect_b32 s10, 0, s10")
        a(f"v_add_u32 v{XA[0]}, s{S_XN}, v{XB[0]}")
        PFX = OPT("PFX", 0)
        a(f"s_waitcnt vmcnt({2 if PFX and stage == 1 else 1}) lgkmcnt(0)\ns_barrier")
        r = reads1(1 - stage, 0, 0)
        RA1 = OPT("RA1", 1)
        f = spread(r, "SA1")
        pre = []
        if stage == 1 :
            a(f"s_cmp_eq_u32 s{S_IT}, 7\ns_cbranch_scc1 L_g1A_last")
        if OPT("ARD", 0): pre += [x for i in sorted(f) for x in f[i]]; f = {}
        pfx = [f"s_cmp_lt_u32 s{S_PFO}, {min(2048, 128*OPT('PFX0', 4) + 512*OPT('PFXN', 9))}", f"s_cselect_b32 s{T0}, s{S_PFO}, 0x7fff0000", f"buffer_load_dword v{PFD}, v{PFV}, s[8:11], s{T0} offen", f"s_add_u32 s{S_PFO}, s{S_PFO}, 512"]
        place(f, burstW(stage) + burstXA(f"s{S_XF}") + (pfx if PFX and stage == 0 else []), pre)
        f[20] = f.get(20, []) + rot_x()
        a(pre); a(weave(mfmas1(1), f))
    a(f"""
    s_add_u32 s{S_IT}, s{S_IT}, 1
    s_branch L_g1A
    """)
    a.label("L_g1B_pre")
    NPFE = OPT("NPFE", 0)
    PFE_W = f"buffer_load_dword v{PFD}, v{PFV}, s[12:15], s{S_PFO} offen {NTP}\ns_add_u32 s{S_PFO}, s{S_PFO}, {393216 * 4}\n" * NPFE
    if OPT("G1PRIO", "") == "B": a("s_setprio 1")
    a(f"s_mov_b32 s{S_XF}, 65536\n{PFE_W}s_waitcnt vmcnt({7 + BULK + NPFE})\ns_barrier")
    stamp(a, 1)
    a(reads1(0, 0, 0))
    a.raw(".p2align 6")
    a.label("L_g1B")
    stamp_stage(a, f"s{S_IT}", True)
    a(f"s_cmp_eq_u32 s{S_IT}, 7\ns_cselect_b32 s10, 0, s10")
    if OPT("PREKV", 0):
        a(f"""
        s_cmp_eq_u32 s{S_IT}, {OPT("PREKV", 0)}
        s_cbranch_scc0 L_t0
        s_mov_b32 s12, s32
        s_mov_b32 s13, s33
        s_mov_b32 s14, {WS_BYTES}
        s_lshl_b32 s{S_T}, s{S_P}, 4
        s_add_u32 s{S_T}, s{S_T}, s{S_A}
        s_lshl_b32 s{S_T}, s{S_T}, 4
        s_add_u32 s{S_T}, s{S_T}, s{S_B}
        s_lshl_b32 s{S_T}, s{S_T}, 2
        s_add_u32 s{S_T}, s{S_T}, s{S_WR}
        s_lshl_b32 s{S_PFO}, s{S_T}, 13
        v_and_b32 v{VT}, 31, v0
        v_lshlrev_b32 v{VT}, 7, v{VT}
        v_lshrrev_b32 v{VT+1}, 5, v0
        v_lshl_add_u32 v{PFV}, v{VT+1}, 18, v{VT}
        """)
        a.label("L_t0")
        a(f"s_cmp_gt_u32 s{S_IT}, {OPT('PREKV', 0)}\ns_cselect_b32 s14, 0, s14")
    if OPT("TOUCH", 0):
        a(f"""
        s_cmp_eq_u32 s{S_IT}, 4
        s_cbranch_scc0 L_t1
        s_mov_b32 s12, s32
        s_mov_b32 s13, s33
        s_mov_b32 s14, {WS_BYTES}
        s_lshl_b32 s{S_T}, s{S_P}, 4
        s_add_u32 s{S_T}, s{S_T}, s{S_A}
        s_lshl_b32 s{T0}, s{S_T}, 10
        s_add_u32 s{T0}, s{T0}, {FKV}
        s_lshl_b32 s{S_T}, s{S_T}, 4
        s_add_u32 s{S_T}, s{S_T}, s{S_B}
        s_lshl_b32 s{S_T}, s{S_T}, 2
        s_add_u32 s{S_T}, s{S_T}, s{S_WR}
        s_lshl_b32 s{S_T}, s{S_T}, 13
        v_and_b32 v{VT}, 1, v0
        v_lshlrev_b32 v{VT+1}, 18, v{VT}
        v_add_u32 v{PFV}, s{S_T}, v{VT+1}
        s_lshl_b32 s{S_T}, s{S_P}, 3
        s_add_u32 s{S_T}, s{S_T}, s{S_B}
        s_lshl_b32 s{S_T}, s{S_T}, 2
        s_add_u32 s{S_T}, s{S_T}, s{S_WR}
        s_lshl_b32 s{S_T}, s{S_T}, 5
        s_add_u32 s{S_T}, s{S_T}, s{S_A}
        s_lshl_b32 s{S_T}, s{S_T}, 12
        s_add_u32 s{S_T}, s{S_T}, {OWS}
        v_lshlrev_b32 v{VT+1}, 16, v{VT}
        v_add_u32 v{VT+1}, s{S_T}, v{VT+1}
        v_cmp_lt_u32 vcc, 1, v0
        v_mov_b32 v{VT+2}, s{T0}
        s_mov_b32 s{S_PFO}, 0
        v_cndmask_b32 v{PFV}, v{PFV}, v{VT+1}, vcc
        v_cmp_lt_u32 vcc, 3, v0
        s_nop 1
        v_cndmask_b32 v{PFV}, v{PFV}, v{VT+2}, vcc
        """)
        a.label("L_t1")
        a(f"""
        s_cmp_eq_u32 s{S_IT}, 5
        s_cbranch_scc0 L_t2
        s_mov_b32 s12, s28
        s_mov_b32 s13, s29
        s_mov_b32 s14, 0x800000
        s_lshl_b32 s{S_T}, s{S_A}, 2
        s_add_u32 s{S_T}, s{S_T}, s{S_WR}
        s_lshl_b32 s{S_T}, s{S_T}, 17
        s_lshl_b32 s{T0}, s{S_P}, 11
        s_add_u32 s{S_T}, s{S_T}, s{T0}
        s_lshl_b32 s{T0}, s{S_B}, 8
        s_add_u32 s{S_PFO}, s{S_T}, s{T0}
        v_and_b32 v{VT}, 1, v0
        v_lshlrev_b32 v{PFV}, 16, v{VT}
        """)
        a.label("L_t2")
        a(f"s_cmp_ge_u32 s{S_IT}, 6\ns_cselect_b32 s14, 0, s14")
    pf = [f"buffer_load_dword v{PFD}, v{PFV}, s[12:15], s{S_PFO} offen {NTP}", f"s_add_u32 s{S_PFO}, s{S_PFO}, {393216 * PFSTEP}"]
    for stage in range(2):
        r = reads1(stage, 1, 1)
        RB, BPOS = OPT("RB", 1), OPT("BPOS", -1)
        f = spread(r, "SB0")
        PFB = OPT("PFBOTH", 0)
        bx = burstXB(f"s{S_XF}") + (pf if stage == 0 or PFB else [])
        if OPT("PFFIRST", 0) and (stage == 0 or PFB): bx = pf + burstXB(f"s{S_XF}")
        if BPOS < 0: a(bx)
        else: f[BPOS] = f.get(BPOS, []) + bx
        a("s_waitcnt lgkmcnt(0)")
        a(weave(mfmas1(0), f))
        a(f"v_add_u32 v{XA[0]}, s{S_XN}, v{XB[0]}")
        a(f"s_waitcnt vmcnt({8 if stage == 0 or PFB else 7}) lgkmcnt(0)\ns_barrier")
        if stage == 1:
            a(f"s_cmp_eq_u32 s{S_IT}, 7\ns_cbranch_scc1 L_g1A_last")
        r = reads1(1 - stage, 0, 0)
        RB1 = OPT("RB1", 1)
        f = spread(r, "SB1")
        f[20] = f.get(20, []) + [f"v_add_u32 v{XA[1]}, s{S_XN}, v{XB[1]}", f"s_add_u32 s{S_XF}, s{S_XF}, 32768", f"s_cmp_eq_u32 s{S_XF}, 98304",
                 f"s_cselect_b32 s{S_XF}, 0, s{S_XF}", f"s_add_u32 s{S_XN}, s{S_XN}, 32768",
                 f"s_cmp_eq_u32 s{S_XN}, 98304", f"s_cselect_b32 s{S_XN}, 0, s{S_XN}"]
        a(weave(mfmas1(1), f))
    a(f"""
    s_add_u32 s{S_IT}, s{S_IT}, 1
    s_branch L_g1B
    """)
    VKV, VD = 2, 3
    VT = 4
    S_SO, S_ST1, S_ST2, S_M0, S_KV, S_FL, S_HB, S_GRP, MSK = 43, 44, 45, 46, 47, 49, 50, 51, 56
    a.label("L_g1A_last")
    setup = f"""
    s_mov_b32 s36, s32
    s_mov_b32 s37, s33
    s_mov_b32 s38, {WS_BYTES}
    s_mov_b32 s52, s30
    s_mov_b32 s53, s31
    s_mov_b32 s54, 256
    buffer_load_dwordx2 v[{FDAT}:{FDAT+1}], v{ZERO}, s[52:55], 0 offen sc1
    s_lshl_b32 s{S_T}, s{S_P}, 4
    s_add_u32 s{S_T}, s{S_T}, s{S_A}
    s_lshl_b32 s{S_FL}, s{S_T}, 3
    s_lshl_b32 s{S_T}, s{S_T}, 1
    s_add_u32 s{S_T}, s{S_T}, s{S_WH}
    s_lshl_b32 s{S_HB}, s{S_T}, 18
    s_add_u32 s{S_FL}, s{S_FL}, s{S_W}
    s_lshl_b32 s{S_FL}, s{S_FL}, 7
    s_add_u32 s{S_FL}, s{S_FL}, {FKV}
    s_lshl_b32 s{S_T}, s{S_WR}, 13
    s_add_u32 s{S_T}, s{S_T}, s{S_HB}
    s_add_u32 s8, s32, s{S_T}
    s_addc_u32 s9, s33, 0
    s_mov_b32 s10, 0x40000
    s_lshl_b32 s{S_KV}, s{S_B}, 15
    s_add_u32 s{S_KV}, s{S_KV}, s{S_T}
    s_add_u32 s{S_KV+1}, s{S_KV}, 4096
    s_lshl_b32 s{S_M0}, s{S_W}, 13
    v_lshlrev_b32 v{VD}, 4, v0
    v_add_u32 v{VKV}, s{S_M0}, v{VD}
    s_cmp_eq_u32 s{S_P}, 0
    s_cselect_b32 s12, s20, s26
    s_cselect_b32 s13, s21, s27
    s_lshl_b32 s{S_T}, s{S_B}, 8
    s_add_u32 s12, s12, s{S_T}
    s_addc_u32 s13, s13, 0
    s_sub_u32 s14, 0x200000, s{S_T}
    s_mov_b32 s{S_ST1}, 0
    s_mov_b32 s{MSK}, 0xfff8fff8
    s_mov_b32 s{MSK+1}, s{MSK}
    s_mov_b32 s58, {f2u(CSCALE):#x}
    s_mov_b32 s59, s58
    """.strip().split("\n")
    m = mfmas1(1, True)
    EARLY = OPT("EARLY", 1)
    if EARLY: m = [m[4*cb + rb] for rb2 in (0, 2) for cb in range(2, 6) for rb in (rb2, rb2 + 1)] + m[:8]
    else: m = m[8:] + m[:8]
    LASTM = m
    def pack2(dst, t0, t1):
        return [f"v_cvt_pk_bf16_f32 v{dst}, v{t0}, v{t0+1}", f"v_cvt_pk_bf16_f32 v{dst+1}, v{t0+2}, v{t0+3}",
                f"v_cvt_pk_bf16_f32 v{dst+2}, v{t1}, v{t1+1}", f"v_cvt_pk_bf16_f32 v{dst+3}, v{t1+2}, v{t1+3}"]
    def swap2(dst):
        return [f"v_permlane16_swap_b32 v{dst}, v{dst+2}", f"v_permlane16_swap_b32 v{dst+1}, v{dst+3}"]
    def swap32(dst):
        return [f"v_permlane32_swap_b32 v{dst}, v{dst+2}", f"v_permlane32_swap_b32 v{dst+1}, v{dst+3}"]
    frs = []
    for b in range(2):
        for t in range(2): frs.append((PKB[b] + 4*t, ACC[2+t][2*b], ACC[2+t][2*b+1], b, t*1024))
        for t in range(2): frs.append((PKB[b] + 8 + 4*t, ACC[4][2*b+t], ACC[5][2*b+t], b, 2048 + t*1024))
    kvstores = [f"buffer_store_dwordx4 {vr(fr[0],4)}, v{VD}, s[36:39], s{S_KV+fr[3]} offen offset:{fr[4]} {os.environ.get('KVPOL', 'sc1')}" for fr in frs]
    NE0 = OPT("NE0", 4)
    packs = []
    prev = None
    for k_, fr in enumerate(frs):
        L = pack2(fr[0], fr[1], fr[2])
        if prev:
            L += swap2(prev[0])
            if DENSE and prev[4] >= 2048: L += ["s_nop 1"] + swap32(prev[0])
            if k_ - 1 < NE0: L.append(kvstores[k_ - 1])
            L.append(f"ds_write_b128 v{VKV}, {vr(prev[0],4)} offset:{prev[3]*4096+prev[4]}")
        packs.append(L)
        prev = fr
    if EARLY:
        f = {i: setup[3*i:3*i+3] for i in range(14)}
        for i in range(4): f[16 + 2*i] = packs[i]
        a(weave(LASTM, f)); stamp(a, 2)
        for L in packs[4:]: a(L)
    else:
        a(weave(LASTM, {i: setup[2*i:2*i+2] for i in range(24)})); stamp(a, 2)
        for L in packs: a(L)
    for i in range(0, 8, 2): a(f"v_pk_mul_f32 v[{96+i}:{97+i}], v[{96+i}:{97+i}], s[58:59]")
    a(swap2(prev[0]))
    if DENSE: a(["s_nop 1"] + swap32(prev[0]))
    a(f"ds_write_b128 v{VKV}, {vr(prev[0],4)} offset:{prev[3]*4096+prev[4]}")
    for i in range(8, 32, 2): a(f"v_pk_mul_f32 v[{96+i}:{97+i}], v[{96+i}:{97+i}], s[58:59]")
    for b in range(2):
        for t in range(2): a(pack2(Q[b] + 4*t, ACC[t][2*b], ACC[t][2*b+1]))
    a(f"""
    s_lshl_b32 s{S_T}, s{S_WH}, 15
    v_add_u32 v{VKV}, s{S_T}, v{VD}
    s_add_u32 s{S_M0}, s{S_M0}, 65536
    """)
    for k_ in range(1, 4):
        a(f"s_add_u32 s{S_T}, s{S_WR}, {k_}\ns_and_b32 s{S_T}, s{S_T}, 3\ns_lshl_b32 s{S_T}, s{S_T}, 13\nv_add_u32 v{VT+1+k_}, s{S_T}, v{VKV}")
    for b in range(2):
        for t in range(2): a(swap2(Q[b] + 4*t))
    def rdK(kt, buf): return [f"ds_read_b128 {vr(KF[buf]+4*t,4)}, v{VKV} offset:{kt*4096+t*1024}" for t in range(2)]
    def rdV(kt, buf): return [f"ds_read_b128 {vr(VF[buf]+4*t,4)}, v{VKV} offset:{kt*4096+2048+t*1024}" for t in range(2)]
    def qk(sbuf, kbuf, qt, c=None):
        return [mf32(S[sbuf], KF[kbuf], Q[qt], NM[qt] if c is None else c), mf32(S[sbuf], KF[kbuf]+4, Q[qt]+4)]
    def pv(sbuf, vbuf, qt, t):
        if DENSE: return mf32(O[qt], VF[vbuf] + 4*t, S[sbuf] + 4*t)
        return f"v_smfmac_f32_32x32x32_bf16 {vr(O[qt],16)}, {vr(VF[vbuf]+4*t,4)}, {vr(S[sbuf]+8*t,8)}, v{IDX}"
    def rs(sbuf, qt, t):
        if DENSE: return None if t == 0 else f"v_smfmac_f32_16x16x64_bf16 {vr(LA[qt],4)}, {vr(ONES,4)}, {vr(S[sbuf],8)}, v{IDX}"
        return f"v_smfmac_f32_16x16x64_bf16 {vr(LA[qt],4)}, {vr(ONES,4)}, {vr(S[sbuf]+8*t,8)}, v{IDX}"
    def max_to_nm(m, qt):
        a(f"v_mov_b32 v{m+1}, v{m}")
        a("s_nop 1")
        a(f"v_permlane32_swap_b32 v{m}, v{m+1}")
        a("s_nop 1")
        a(f"v_max_f32 v{m}, v{m}, v{m+1}")
        a(f"v_sub_f32 v{m}, 0, v{m}")
        a(f"v_mov_b32 v{m+1}, v{m}")
        for i in range(0, 16, 2): a(f"v_mov_b64 v[{NM[qt]+i}:{NM[qt]+i+1}], v[{m}:{m+1}]")
    assert NE0 == 4
    a("s_nop 0")
    a([mf32(S[qt], PKB[0] + 4*t, Q[qt] + 4*t, "0" if t == 0 else None) for qt in range(2) for t in range(2)])
    a(f"s_waitcnt vmcnt(4)\ns_mov_b32 s{S_T}, {SPIN_MAX}")
    a.label("L_nonce")
    a(f"""
    v_readfirstlane_b32 s{NON}, v{FDAT}
    v_readfirstlane_b32 s{NON+1}, v{FDAT+1}
    s_sub_u32 s{S_T}, s{S_T}, 1
    s_cbranch_scc1 L_nonce_done
    s_cmp_eq_u32 s{NON}, 0
    s_cbranch_scc1 L_nonce_retry
    """)
    a.label("L_nonce_done")
    RARE.append(("L_nonce_retry", [f"buffer_load_dwordx2 v[{FDAT}:{FDAT+1}], v{ZERO}, s[52:55], 0 offen sc1", "s_waitcnt vmcnt(0)"], "L_nonce"))
    a("s_nop 3")
    for qt in range(2):
        m_, src = VT + 6*qt, S[qt]
        a(f"v_max3_f32 v{m_}, v{src}, v{src+1}, v{src+2}")
        for i in range(3, 15, 2): a(f"v_max3_f32 v{m_}, v{m_}, v{src+i}, v{src+i+1}")
        a(f"v_max_f32 v{m_}, v{m_}, v{src+15}")
        max_to_nm(m_, qt)
        a("s_nop 1")
        if qt == 0: a([mf32(S[0], PKB[0], Q[0], NM[0]), mf32(S[0], PKB[0] + 4, Q[0] + 4)])
    if OPT("G1PRIO", "") == "A": a("s_setprio 0")
    if os.environ.get("PRIO", "1"): a(f"s_cmp_eq_u32 s{S_WH}, {os.environ.get('PRIO', '1')[0]}\ns_cbranch_scc0 L_noprio\ns_setprio 1"); a.label("L_noprio")
    stamp(a, 3)
    S_SO2 = S_ST2
    def dma2():
        G = []
        for j in range(8):
            g = []
            if j == 0: g.append(f"s_mov_b32 m0, s{S_M0}"); g.append("s_nop 0")
            g.append(f"buffer_load_dwordx4 v{VDE if j%2==0 else VDO}, s[8:11], s{S_SO} offen offset:{(j%4)*1024} sc1 lds")
            if j == 3: g += [f"s_add_u32 m0, s{S_M0}, 4096", f"s_mov_b32 s{S_SO}, s{S_SO2}"]
            elif j < 7: g.append(f"s_add_u32 s{S_SO}, s{S_SO}, s{S_ST1}")
            else: g.append(f"s_xor_b32 s{S_M0}, s{S_M0}, 65536")
            G.append(g)
        return G
    def blk():
        L = []
        for g, dst in ((0, S_SO), (1, S_SO2)):
            L += [f"s_lshl_b32 s{dst}, s{S_IT}, 1"]
            if g: L += [f"s_add_u32 s{dst}, s{dst}, 1"]
            L += [f"s_cmp_ge_u32 s{dst}, 7", f"s_cselect_b32 s{S_T}, 7, 0", f"s_cselect_b32 s{S_GRP}, 4096, 0", f"s_sub_u32 s{dst}, s{dst}, s{S_T}",
                  f"s_cmp_ge_u32 s{dst}, s{S_B}", f"s_addc_u32 s{dst}, s{dst}, 0", f"s_lshl_b32 s{dst}, s{dst}, 15", f"s_add_u32 s{dst}, s{dst}, s{S_GRP}"]
        return L
    def flagst(voff, soff, imm=0):
        return ["s_mov_b64 exec, 1", f"buffer_store_dwordx2 v[{FDAT}:{FDAT+1}], v{voff}, s[36:39], s{soff} offen offset:{imm} sc1", "s_mov_b64 exec, -1"]
    ATX = os.environ.get("ATX", "")
    PAT = [int(c) for c in os.environ.get('PAT', '333232')]
    def qk_r(sbuf, kreg, qt, c=None):
        return [mf32(S[sbuf], kreg, Q[qt], NM[qt] if c is None else c), mf32(S[sbuf], kreg+4, Q[qt]+4)]
    def pv_r(sbuf, vreg, qt, t):
        if DENSE: return mf32(O[qt], vreg + 4*t, S[sbuf] + 4*t)
        return f"v_smfmac_f32_32x32x32_bf16 {vr(O[qt],16)}, {vr(vreg+4*t,4)}, {vr(S[sbuf]+8*t,8)}, v{IDX}"
    FILL = []
    def slot(sb, qa, nxt, prv, vreg, pre, extra=()):
        e = [f"v_exp_f32 v{S[sb]+i}, v{S[sb]+i}" for i in range(16)]
        m = (qk_r((sb+1) % 4, nxt[0], nxt[1]) if nxt else [None, None]) + \
            ([pv_r((sb-1) % 4, prv[0], prv[1], 1), rs((sb-1) % 4, prv[1], 1)] if prv else [None, None]) + [pv_r(sb, vreg, qa, 0), rs(sb, qa, 0)]
        extra = list(extra)
        if DENSE:
            c = [f"v_cvt_pk_bf16_f32 v{S[sb]+i}, v{S[sb]+2*i}, v{S[sb]+2*i+1}" for i in range(8)]
            grp, ie, ic, last = [], 0, 0, ""
            for g_ in os.environ.get("DG", "eee|eceec|eecec|eec|eece|eecc").split("|"):
                cur = []
                for ch in g_:
                    if ch == "e": cur.append(e[ie]); ie += 1
                    else:
                        assert ie >= 2*ic + 2 and not (last == "e" and ie == 2*ic + 2), "cvt too early"
                        cur.append(c[ic]); ic += 1
                    last = ch
                if len(grp) < 4: last = "m"
                grp.append(cur)
                if len(grp) == 4: assert ic >= 4 and (ic > 4 or cur[-1].startswith("v_exp") and cur[-2].startswith("v_exp"))
            assert ie == 16 and ic == 8 and len(grp) == 6
        else:
            grp, k = [], 0
            for i in range(6): grp.append(e[k:k+PAT[i]]); k += PAT[i]
        for i in range(6):
            if pre.get(i): a(pre[i])
            elif m[i]:
                if FILL: a(FILL.pop(0))
                elif "n" not in ATX: a("s_nop 0")
            if m[i]: a(m[i])
            a(grp[i])
            ne = (len(extra) + 5 - i) // (6 - i)
            a(extra[:ne]); extra = extra[ne:]
    def stage(hooks, pres, first, barwait):
        KA = [None, VT+2, VT+3, VT+4]
        for kt in range(8):
            for qa in range(2):
                n = 2*kt + qa
                pre = {i: [] for i in range(6)}
                if n in hooks: hooks[n]()
                kr = lambda t: PKB[t] if first and t < 2 else KF[t % 2]
                vr_ = lambda t: PKB[t] + 8 if first and 0 <= t < 2 else VF[t % 2]
                if qa == 0:
                    if kt == 7:
                        barwait()
                        pre[0] += [f"v_xor_b32 v{VKV}, 0x10000, v{VKV}", "s_nop 0"]
                    elif not (first and kt < 2):
                        pre[0] += ["s_waitcnt lgkmcnt(0)"]
                    if first and kt < 7:
                        if kt >= 1:
                            t_ = kt + 1
                            pre[1] += [x.replace(f"v{VKV} ", f"v{KA[t_//2]} ") for x in rdK(t_ % 2, t_ % 2)]
                            pre[4] += [x.replace(f"v{VKV} ", f"v{KA[t_//2]} ") for x in rdV(t_ % 2, t_ % 2)]
                    else:
                        pre[1] += rdK((kt+1) % 8, (kt+1) % 2)
                        pre[4] += rdV((kt+1) % 8, (kt+1) % 2)
                elif not (first and kt == 0):
                    pre[0] += ["s_waitcnt lgkmcnt(2)"]
                for i, L in pres.get(n, {}).items(): pre[i] += L
                slot(n % 4, qa, (kr(kt + qa) if kt + qa < 8 else KF[0], 1 - qa), None if first and n == 0 else (vr_(kt - 1 + qa), 1 - qa), vr_(kt), pre)
        assert not FILL
    NPUB, NPOLL = OPT("NPUB", 4), OPT("NPOLL", 8)
    ST0 = os.environ.get("ST0", "") == "1"
    def h_pub():
        a("s_waitcnt vmcnt(0)"); a(flagst(FOFF+1, S_FL))
        if ST0: stamp(a, 4)
    def h_poll0():
        poll("L_poll0", S_FL, f"s[{MSK}:{MSK+1}]")
        a(f"s_mov_b32 s{S_IT}, 0\ns_mov_b32 s{MSK}, 0xff00ff00\ns_mov_b32 s{MSK+1}, s{MSK}"); a(blk())
        if ST0: stamp(a, 5)
    def bw0():
        a("s_waitcnt vmcnt(3) lgkmcnt(0)\ns_barrier")
        stamp_stage(a, "0")
        if ST0: stamp(a, 6)
    G = dma2()
    pres = {NPOLL + i: {2: G[3*i], 3: G[3*i+1], 5: G[3*i+2] if 3*i+2 < 8 else []} for i in range(3)}
    for i, n_ in enumerate((11, 12, 13, 15)): pres.setdefault(n_, {})[3] = [kvstores[4 + i]]
    stage({2: lambda: a("s_waitcnt lgkmcnt(0)\ns_barrier"), NPUB: h_pub, NPOLL: h_poll0}, pres, True, bw0)
    a(f"s_mov_b32 s{S_IT}, 1")
    S_PW = 97
    if OPT("PFWS", 0):
        a(f"""
        s_and_b32 s{S_PW}, s{S_A}, 3
        s_lshl_b32 s{S_PW}, s{S_PW}, 3
        s_add_u32 s{S_PW}, s{S_PW}, s{S_W}
        s_lshl_b32 s{S_PW}, s{S_PW}, 16
        v_bfe_u32 v12, v0, 1, 3
        v_lshlrev_b32 v12, 11, v12
        v_and_b32 v13, 1, v0
        v_lshl_add_u32 v12, v13, 7, v12
        """)
    a.raw(".p2align 6")
    a.label("L_at")
    def rare(lab, cond, body):
        if OPT("OOL", 0):
            a(cond); a(f"s_cbranch_scc1 {lab}"); a.label(lab + "_ret"); RARE.append((lab, body, lab + "_ret"))
        else:
            a(cond); a(f"s_cbranch_scc0 {lab}_skip")
            body() if callable(body) else a(body)
            a.label(lab + "_skip")
    it13 = [f"s_andn2_b32 s{S_T}, s{S_IT}, 2", f"s_cmp_eq_u32 s{S_T}, 1"]
    def h_ld():
        rare("L_r_ld", it13, [f"buffer_load_dwordx2 v[{PDAT}:{PDAT+1}], v{FOFF}, s[36:39], s{S_FL} offen sc1"])
        b = blk()
        FILL.extend([b[i:i+2] for i in range(0, len(b), 2)])
    def h_dma():
        def body():
            poll("L_poll2", S_FL, f"s[{MSK}:{MSK+1}]", True)
            a(f"s_mov_b64 s[{MSK}:{MSK+1}], 0")
        rare("L_r_poll", it13, body)
    def h_pfwo():
        rare("L_r_pfwo", [f"s_cmp_eq_u32 s{S_IT}, {OPT('PFWIT', 4)}"], f"""
        s_and_b32 s{S_T}, s{S_A}, 3
        s_lshl_b32 s{S_T}, s{S_T}, 3
        s_add_u32 s{S_T}, s{S_T}, s{S_W}
        s_lshl_b32 s{S_T}, s{S_T}, 16
        v_lshrrev_b32 v{VT}, 1, v0
        v_lshlrev_b32 v{VT}, 11, v{VT}
        v_and_b32 v{VT+1}, 1, v0
        v_lshl_add_u32 v{VT}, v{VT+1}, 7, v{VT}
        buffer_load_dword v13, v{VT}, s[12:15], s{S_T} offen {os.environ.get('NTO', '')}
        """ + (f"""
        s_lshl_b32 s{S_T}, s{S_P}, 3
        s_add_u32 s{S_T}, s{S_T}, s{S_B}
        s_lshl_b32 s{S_T}, s{S_T}, 2
        s_add_u32 s{S_T}, s{S_T}, s{S_WR}
        s_lshl_b32 s{S_T}, s{S_T}, 6
        s_bfe_u32 s60, s{S_HB}, 0x50012
        s_add_u32 s{S_T}, s{S_T}, s60
        s_lshl_b32 s{S_T}, s{S_T}, 11
        s_add_u32 s{S_T}, s{S_T}, {OWS}
        v_and_b32 v{VT+2}, 15, v0
        v_lshlrev_b32 v{VT+2}, 7, v{VT+2}
        v_bfe_u32 v{VT+3}, v0, 4, 1
        v_lshl_add_u32 v{VT+2}, v{VT+3}, 16, v{VT+2}
        buffer_load_dword v{VT+3}, v{VT+2}, s[36:39], s{S_T} offen sc1
        """ if OPT("PREO", 0) else "") + (f"""
        s_mov_b32 s60, s28
        s_mov_b32 s61, s29
        s_mov_b32 s62, 0x800000
        s_mov_b32 s63, 0x20000
        s_lshl_b32 s{S_T}, s{S_A}, 3
        s_add_u32 s{S_T}, s{S_T}, s{S_W}
        s_lshl_b32 s{S_T}, s{S_T}, 5
        s_add_u32 s{S_T}, s{S_T}, s{S_P}
        s_lshl_b32 s{S_T}, s{S_T}, 3
        s_add_u32 s{S_T}, s{S_T}, s{S_B}
        s_lshl_b32 s{S_T}, s{S_T}, 8
        v_bfe_u32 v{VT+4}, v0, 1, 4
        v_lshlrev_b32 v{VT+4}, 12, v{VT+4}
        v_and_b32 v{VT+5}, 1, v0
        v_lshl_add_u32 v{VT+4}, v{VT+5}, 7, v{VT+4}
        buffer_load_dword v{VT+5}, v{VT+4}, s[60:63], s{S_T} offen sc1
        """ if OPT("PREOUT", 0) else "") + (f"""
        s_getpc_b64 s[60:61]
        v_and_b32 v{VT}, 15, v0
        s_lshl_b32 s{S_T}, s{S_W}, 4
        v_add_u32 v{VT}, s{S_T}, v{VT}
        v_lshlrev_b32 v{VT}, 7, v{VT}
        v_min_u32 v{VT}, {OPT("IPF2MAX", 10000)}, v{VT}
        global_load_dword v{VT+1}, v{VT}, s[60:61]
        """ if OPT("IPF2", 0) else ""))
    def bw1():
        a("s_waitcnt vmcnt(0) lgkmcnt(0)\ns_barrier" if not OPT("NOBAR", 0) else "s_waitcnt vmcnt(0) lgkmcnt(0)")
        rare("L_r_pub1", [f"s_cmp_eq_u32 s{S_IT}, 1"], flagst(FOFF+1, S_FL, 64))
        stamp_stage(a, f"s{S_IT}")
    G = dma2()
    pres = {3 + i: {2: G[2*i], 5: G[2*i+1]} for i in range(4)}
    hk = {0: h_ld, 15: h_pfwo, 3: h_dma}
    if OPT("PFWS", 0):
        del hk[15]
        pres.setdefault(OPT("PFWN", 15), {})[3] = [f"buffer_load_dword v13, v12, s[12:15], s{S_PW} offen", f"s_add_u32 s{S_PW}, s{S_PW}, 16384"]
    PA = os.environ.get("PRIOALT", "4,9")
    if PA:
        def flip(lab, wh):
            def f(): a(f"s_setprio 0\ns_cmp_eq_u32 s{S_WH}, {wh}\ns_cbranch_scc0 {lab}\ns_setprio 1"); a.label(lab)
            return f
        for k_, x in enumerate(PA.split(",")):
            assert 4 <= int(x) <= 14
            hk[int(x)] = flip(f"L_pa{k_}", k_ % 2)
    stage(hk, pres, False, bw1)
    a(f"""
    s_add_u32 s{S_IT}, s{S_IT}, 1
    s_cmp_lt_u32 s{S_IT}, 7
    s_cbranch_scc1 L_at
    """)
    S_OO, S_FO, S_BAD = 47, 49, 60
    VOA = VT + 6
    setup7 = f"""
    s_mov_b32 s8, s12
    s_mov_b32 s9, s13
    s_mov_b32 s10, s14
    s_lshl_b32 s{S_SO}, s{S_W}, 16
    s_add_u32 s{S_SO2}, s{S_SO}, 32768
    s_mov_b32 s{S_ST1}, 7168
    v_lshrrev_b32 v{VDE}, 4, v0
    v_lshlrev_b32 v{VDO}, 1, v{VDE}
    v_and_b32 v{VT}, 15, v0
    v_xor_b32 v{VDO}, v{VDO}, v{VT}
    v_lshlrev_b32 v{VDE}, 11, v{VDE}
    v_lshl_add_u32 v{VDE}, v{VDO}, 4, v{VDE}
    v_xor_b32 v{VDO}, 128, v{VDE}
    s_lshl_b32 s{S_T}, s{S_P}, 3
    s_add_u32 s{S_T}, s{S_T}, s{S_B}
    s_lshl_b32 s{S_T}, s{S_T}, 2
    s_add_u32 s{S_T}, s{S_T}, s{S_WR}
    s_lshl_b32 s{S_FO}, s{S_T}, 8
    s_lshl_b32 s{S_OO}, s{S_T}, 17
    s_bfe_u32 s{S_T}, s{S_HB}, 0x50012
    s_lshl_b32 s{S_GRP}, s{S_T}, 3
    s_add_u32 s{S_FO}, s{S_FO}, s{S_GRP}
    s_add_u32 s{S_FO}, s{S_FO}, {FO}
    s_lshl_b32 s{S_T}, s{S_T}, 11
    s_add_u32 s{S_OO}, s{S_OO}, s{S_T}
    s_add_u32 s{S_OO}, s{S_OO}, {OWS}
    s_add_u32 s{S_OO+1}, s{S_OO}, 65536
    v_and_b32 v{VOA}, 15, v0
    v_lshlrev_b32 v{VOA}, 4, v{VOA}
    v_lshrrev_b32 v{VOA+1}, 5, v0
    v_lshl_add_u32 v{VOA}, v{VOA+1}, 8, v{VOA}
    v_bfe_u32 v{VOA+1}, v0, 4, 1
    v_lshl_add_u32 v{VOA}, v{VOA+1}, 10, v{VOA}
    """.strip().split("\n")
    OPK = [PK, PK + 8]
    def lbcast(qt):
        if RSZ < 2: return []
        return [f"v_mov_b32 v{LA[qt]+1}, v{LA[qt]}", "s_nop 1", f"v_permlane32_swap_b32 v{LA[qt]}, v{LA[qt]+1}"]
    def check(qt):
        t = VT + 2*qt
        o = O[qt]
        return (lbcast(qt) + [f"v_pk_mul_f32 v[{t}:{t+1}], v[{o}:{o+1}], 0"] +
                [f"v_pk_fma_f32 v[{t}:{t+1}], v[{o+i}:{o+i+1}], 0, v[{t}:{t+1}]" for i in range(2, 16, 2)] +
                [f"v_add_f32 v{t}, v{t}, v{t+1}", f"v_add_f32 v{t}, v{t}, v{LA[qt]}", f"v_cmp_gt_f32 s[{S_BAD+2*qt}:{S_BAD+2*qt+1}], s58, v{t}"])
    def finish(qt):
        t = VT + 2*qt
        o = O[qt]
        return ([f"v_rcp_f32 v{t}, v{LA[qt]}", "s_nop 0"] +
                [f"v_pk_mul_f32 v[{o+i}:{o+i+1}], v[{o+i}:{o+i+1}], v[{t}:{t+1}] op_sel_hi:[1,0]" for i in range(0, 16, 2)] +
                [f"v_cvt_pk_bf16_f32 v{OPK[qt]+i}, v{o+2*i}, v{o+2*i+1}" for i in range(8)] +
                [f"buffer_store_dwordx4 {vr(OPK[qt]+4*t_,4)}, v{VOA}, s[36:39], s{S_OO+qt} offen offset:{t_*512} {os.environ.get('KVPOL', 'sc1')}" for t_ in range(2)])
    OA, OB = 244, 245
    WA3 = [[248, 249, 250, 251], [252, 253, 254, 255]]
    FO_ = [[16 + 16*buf + 4*i for i in range(4)] for buf in range(2)]
    FW3 = [[48 + 16*buf + 4*nb for nb in range(4)] for buf in range(2)]
    AC3 = [[80 + 16*i + 4*nb for nb in range(4)] for i in range(4)]
    RX = 144
    T3 = 176
    S_INC, S_M3, S_ME, S_MS, S_R3, S_C3, S_F3, S_O3 = 52, 53, 54, 55, 56, 57, 100, 59
    setup3 = f"""
    s_bfe_u32 s{S_R3}, s{S_W}, 0x10001
    s_and_b32 s{S_C3}, s{S_W}, 1
    s_lshl_b32 s{S_T}, s{S_P}, 4
    s_add_u32 s{S_T}, s{S_T}, s{S_A}
    s_lshl_b32 s{S_T}, s{S_T}, 2
    s_add_u32 s{S_T}, s{S_T}, s{S_WR}
    s_lshr_b32 s{S_F3}, s{S_T}, 1
    s_lshl_b32 s{S_F3}, s{S_F3}, 8
    s_add_u32 s{S_F3}, s{S_F3}, {FO}
    s_lshl_b32 s{S_T}, s{S_T}, 16
    s_add_u32 s{S_T}, s{S_T}, {OWS}
    s_add_u32 s60, s32, s{S_T}
    s_addc_u32 s61, s33, 0
    s_lshl_b32 s{S_M3}, s{S_WR}, 12
    s_lshl_b32 s{S_O3}, s{S_WR}, 15
    s_add_u32 s{S_O3}, s{S_O3}, {6*131072}
    s_cmp_eq_u32 s{S_WH}, 0
    s_cselect_b64 vcc, -1, 0
    s_cselect_b32 s8, s60, s12
    s_cselect_b32 s9, s61, s13
    s_cselect_b32 s10, 0x10000, s14
    s_cselect_b32 s{S_O3}, 0, s{S_O3}
    s_cselect_b32 s{S_ST1}, 0, 7168
    s_cselect_b32 s{S_INC}, 12, 17
    s_lshl_b32 s{S_INC}, 1, s{S_INC}
    v_lshlrev_b32 v{T3+1}, 4, v0
    v_cndmask_b32 v{VDE}, v{VDE}, v{T3+1}, vcc
    v_cndmask_b32 v{VDO}, v{VDO}, v{T3+1}, vcc
    s_lshl_b32 s{S_T}, s{S_R3}, 1
    s_add_u32 s{S_T}, s{S_T}, s{S_WH}
    s_lshl_b32 s{S_T}, s{S_T}, 1
    s_add_u32 s{S_T}, s{S_T}, s{S_WH}
    s_lshl_b32 s{S_T}, s{S_T}, 11
    s_add_u32 s{S_T}, s{S_T}, 65536
    v_add_u32 v{OA}, s{S_T}, v{T3+1}
    v_xor_b32 v{OB}, 4096, v{OA}
    v_bfe_u32 v{T3}, v0, 2, 3
    v_lshrrev_b32 v{T3+1}, 5, v0
    v_lshl_add_u32 v{T3+1}, v{T3+1}, 4, v{T3}
    s_lshl_b32 s{S_T}, s{S_WH}, 5
    v_add_u32 v{T3+1}, s{S_T}, v{T3+1}
    v_lshlrev_b32 v{T3+1}, 8, v{T3+1}
    v_bfe_u32 v{T3+2}, v0, 1, 1
    s_lshl_b32 s{S_T}, s{S_C3}, 3
    v_add_u32 v{T3+2}, s{S_T}, v{T3+2}
    v_lshlrev_b32 v{T3}, 1, v{T3}
    v_xor_b32 v{T3+2}, v{T3+2}, v{T3}
    v_lshl_add_u32 v{T3+1}, v{T3+2}, 4, v{T3+1}
    v_and_b32 v{T3+2}, 1, v0
    v_lshl_add_u32 v{WA3[0][0]}, v{T3+2}, 3, v{T3+1}
    v_and_b32 v{FOFF}, 31, v0
    v_lshlrev_b32 v{FOFF}, 3, v{FOFF}
    """.replace(f"v{T3+2}", f"v{VT+5}").replace(f"v{T3+1}", f"v{VT+4}").replace(f"v{T3}", f"v{VT+3}").strip().split("\n")
    setup3 += [f"v_xor_b32 v{WA3[0][nb]}, {32*nb}, v{WA3[0][0]}" for nb in range(1, 4)]
    setup3 += [f"v_add_u32 v{WA3[1][nb]}, 0x20000, v{WA3[0][nb]}" for nb in range(4)]
    NS3 = next(i for i, x in enumerate(setup3) if 'v_bfe_u32' in x)
    seq = [(0, 0), (0, 1)] + [(k_, 0) for k_ in range(1, 8)] + [(k_, 1) for k_ in range(1, 8)]
    KB, VB = [0], [0]
    for m_ in range(1, 16):
        flip = seq[m_][0] != seq[m_-1][0]
        KB.append(KB[-1] ^ flip); VB.append(VB[-1] ^ flip)
    G = dma2()
    for m_ in range(16):
        stamp_stage(a, "7") if m_ == 14 else None
        pre = {i: [] for i in range(6)}
        pre[0] += ["s_waitcnt lgkmcnt(0)"]
        if m_ + 2 < 16 and seq[m_+2][0] != seq[m_+1][0]: pre[1] += rdK(seq[m_+2][0], KB[m_+2])
        if m_ + 1 < 16 and seq[m_+1][0] != seq[m_][0]: pre[4] += rdV(seq[m_+1][0], VB[m_+1])
        extra = []
        if m_ == 0: extra = setup7[:13] + ["s_mov_b32 s58, 0x5f800000"]
        if m_ == 1: extra = setup7[13:]
        if 2 <= m_ <= 5: pre[2] += G[2*(m_-2)]; pre[5] += G[2*(m_-2)+1]
        if m_ == 6:
            pre[2] += [f"s_lshl_b32 s{S_T}, s{S_W}, 12", f"s_add_u32 m0, s{S_T}, 131072", f"s_lshl_b32 s{S_SO}, s{S_W}, 15", f"s_add_u32 s{S_SO}, s{S_SO}, {4*131072}"]
        if m_ in (6, 7):
            for i_, j_ in ((3, 2*(m_-6)), (5, 2*(m_-6)+1)):
                pre[i_] += [f"buffer_load_dwordx4 v{VDE if j_%2==0 else VDO}, s[8:11], s{S_SO} offen offset:{j_*1024} lds", f"s_add_u32 s{S_SO}, s{S_SO}, s{S_ST1}"]
        if m_ == 8: extra = setup3[:NS3 // 2]
        if m_ == 9: extra = setup3[NS3 // 2:NS3]
        if m_ == 12: extra = setup3[NS3:]
        if m_ == 10: extra = check(0)
        if m_ == 11: extra = finish(0)
        slot(m_ % 4, seq[m_][1], (KF[KB[m_+1]], seq[m_+1][1]) if m_ < 15 else None,
             (VF[VB[m_-1]], seq[m_-1][1]) if m_ else (VF[1], 1), VF[VB[m_]], pre, extra)
    a("s_nop 1")
    a(pv(3, VB[15], 1, 1)); a(rs(3, 1, 1))
    if not ST0: stamp(a, 4)
    if ST3: stamp(a, 1, True)
    a("s_nop 7\ns_nop 3")
    a(check(1))
    a(f"""
    s_and_b64 vcc, s[{S_BAD}:{S_BAD+1}], s[{S_BAD+2}:{S_BAD+3}]
    s_cmp_eq_u64 vcc, exec
    s_cbranch_scc0 L_fallback
    """)
    a.label("L_fin")
    a(finish(1))
    def wslot(i): return i*16384 if i < 4 else 131072 + (i-4)*16384
    def dma3(mo, mw):
        G = []
        for j in range(4):
            g = []
            if j == 0:
                if mw is None: g += [f"s_add_u32 m0, s{S_M3}, {mo}"]
                else: g += [f"s_cmp_eq_u32 s{S_WH}, 0", f"s_mov_b32 s{S_T}, {mw}", f"s_cmov_b32 s{S_T}, {mo}", f"s_add_u32 m0, s{S_M3}, s{S_T}"]
                g += [f"s_mov_b32 s{S_SO}, s{S_O3}"]
            g.append(f"buffer_load_dwordx4 v{VDE if j%2==0 else VDO}, s[8:11], s{S_SO} offen offset:{j*1024} sc1 lds")
            g.append(f"s_add_u32 s{S_SO}, s{S_SO}, s{S_ST1}" if j < 3 else f"s_add_u32 s{S_O3}, s{S_O3}, s{S_INC}")
            G.append(g)
        return G
    a("s_barrier")
    if ST3: stamp(a, 2, True)
    a("s_waitcnt vmcnt(0)")
    if ST3: stamp(a, 3, True)
    a(flagst(ZERO, S_FO))
    a(f"s_cmp_lg_u32 s{S_WH}, 0\ns_cbranch_scc1 L_p3go")
    if OPT("POLL2", 0):
        P2 = T3 + 4
        ld = lambda r: f"buffer_load_dwordx2 v[{r}:{r+1}], v{FOFF}, s[36:39], s{S_F3} offen sc1"
        a(f"s_mov_b32 s{S_T}, {SPIN_MAX}")
        a(ld(PDAT)); a(f"s_sleep {OPT('PSL2', 3)}")
        a.label("L_pollo")
        for r0, r1 in ((PDAT, P2), (P2, PDAT)):
            a(ld(r1))
            a(f"""
            s_waitcnt vmcnt(1)
            v_cmp_eq_u64 vcc, s[{NON}:{NON+1}], v[{r0}:{r0+1}]
            s_cmp_eq_u64 vcc, exec
            s_cbranch_scc1 L_pollo_done
            """)
        a(f"s_sub_u32 s{S_T}, s{S_T}, 1\ns_cbranch_scc0 L_pollo")
        a.label("L_pollo_done")
    else:
        poll("L_pollo", S_F3)
    if ST3: stamp(a, 4, True)
    PFO_ = OPT("PFO", 0)
    for st in range(4):
        if PFO_ and st == PFO_ - 1:
            a(f"s_lshl_b32 s{S_T}, s{S_B}, 13\nv_lshlrev_b32 v{PDAT}, 7, v0\nbuffer_load_dword v{PDAT+1}, v{PDAT}, s[8:11], s{S_T} offen sc1")
        for g in dma3(65536 + st*16384, None): a(g)
    a(f"s_waitcnt vmcnt({13 if PFO_ > 1 else 12})")
    a.label("L_p3go")
    if ST3: a(f"s_cmp_eq_u32 s{S_WH}, 0\ns_cbranch_scc1 L_st3x"); stamp(a, 4, True); a.label("L_st3x")
    a("s_barrier")
    if OPT("G3PRIO", "") == "0": a("s_setprio 0")
    if not ST0: stamp(a, 5)
    def reads3(s, buf):
        ws_, os_ = s % 6, s % 4
        O_ = [f"ds_read_b128 {vr(FO_[buf][i],4)}, v{OA if i < 2 else OB} offset:{os_*16384 + (i%2)*1024}" for i in range(4)]
        W_ = [f"ds_read_b64_tr_b16 {vr(FW3[buf][nb]+2*u,2)}, v{WA3[ws_//4][nb]} offset:{(ws_%4)*16384 + u*2048}" for nb in range(4) for u in range(2)]
        return W_[0:2] + O_ + W_[2:]
    def mfmas3(buf, first=False, last=False):
        L = [mf16(AC3[i][nb], FW3[buf][nb], FO_[buf][i]) for nb in range(4) for i in range(4)]
        o = os.environ.get("ORD3", "i") if not last else ""
        if o == "i": L = [L[4*(nb if i % 2 == 0 else 3 - nb) + i] for i in range(4) for nb in range(4)]
        if o == "snake": L = [L[4*nb + (i if nb % 2 == 0 else 3 - i)] for nb in range(4) for i in range(4)]
        return [x[:x.rindex(",")] + ", 0" for x in L] if first else L
    a(reads3(0, 0))
    fin_setup = f"""
    s_lshl_b32 s{S_T}, s{S_WH}, 3
    s_add_u32 s{S_T}, s{S_T}, s{S_WR}
    s_lshl_b32 s{S_T}, s{S_T}, 13
    v_lshlrev_b32 v{T3}, 4, v0
    v_add_u32 v{T3}, s{S_T}, v{T3}
    v_xor_b32 v{T3+1}, 0x10000, v{T3}
    s_mov_b32 s12, s28
    s_mov_b32 s13, s29
    s_mov_b32 s14, 0x800000
    s_lshl_b32 s{S_T}, s{S_A}, 2
    s_lshl_b32 s{S_SO}, s{S_R3}, 1
    s_add_u32 s{S_T}, s{S_T}, s{S_SO}
    s_add_u32 s{S_T}, s{S_T}, s{S_WH}
    s_lshl_b32 s{S_T}, s{S_T}, 17
    s_lshl_b32 s{S_SO}, s{S_P}, 11
    s_add_u32 s{S_T}, s{S_T}, s{S_SO}
    s_lshl_b32 s{S_SO}, s{S_B}, 8
    s_add_u32 s{S_T}, s{S_T}, s{S_SO}
    s_lshl_b32 s{S_SO}, s{S_C3}, 7
    s_add_u32 s{S_SO}, s{S_T}, s{S_SO}
    s_add_u32 s{S_SO+1}, s{S_SO}, 65536
    v_and_b32 v{T3+2}, 15, v0
    v_lshlrev_b32 v{T3+2}, 12, v{T3+2}
    v_bfe_u32 v{T3+3}, v0, 4, 1
    v_lshl_add_u32 v{T3+2}, v{T3+3}, 5, v{T3+2}
    v_lshrrev_b32 v{T3+3}, 5, v0
    v_lshl_add_u32 v{T3+2}, v{T3+3}, 4, v{T3+2}
    """.strip().split("\n")
    for s in range(16):
        if s < 15:
            a(f"s_waitcnt vmcnt({8 if s <= 12 else 4 if s == 13 else 0}) lgkmcnt(0)\ns_barrier")
            if s % 2 == 0: stamp_stage(a, str(s // 2), 3)
            r = reads3(s + 1, 1 - s % 2)
            f = {}
            for k_, x in enumerate(r): f.setdefault(min(15, int(k_ * OPT("S3", 1.0))), []).append(x)
            if s <= 11:
                d = dma3(65536 + (s % 4)*16384, wslot(s % 6))
                for k_, i in enumerate([int(x) for x in os.environ.get("D3POS", "0,4,8,12").split(",")]): f[i] = f.get(i, []) + d[k_]
            if s == 14:
                for i in range(14): f[i] = f.get(i, []) + fin_setup[2*i:2*i+2]
            a(weave(mfmas3(s % 2, s == 0), f))
        else:
            a("s_waitcnt lgkmcnt(0)")
            m = mfmas3(1, False, True)
            order = [k_ for k_ in range(16) if k_ % 4 >= 2] + [k_ for k_ in range(16) if k_ % 4 < 2]
            mm = [m[k_] for k_ in order]
            a(mm[:8])
            wr_ = {2*(j % 4) + j//4: f"ds_write_b128 v{T3}, {vr(AC3[2][0]+4*j,4)} offset:{j*1024}" for j in range(8)}
            for k_ in range(8): a(mm[8 + k_]); a(wr_[k_])
    if not ST0: stamp(a, 6)
    a("s_waitcnt lgkmcnt(0)\ns_barrier")
    for j in range(8): a(f"ds_read_b128 {vr(RX+4*j,4)}, v{T3+1} offset:{j*1024}")
    prev = None
    for j in range(5):
        if j < 4:
            qb, np_ = j // 2, j % 2
            t0 = AC3[qb][2*np_]
            a(f"s_waitcnt lgkmcnt({6 - 2*j})")
            for i in range(0, 8, 2): a(f"v_pk_add_f32 v[{t0+i}:{t0+i+1}], v[{t0+i}:{t0+i+1}], v[{RX+8*j+i}:{RX+8*j+i+1}]")
            cur = (16 + 4*j, qb, np_)
            a(pack2(cur[0], t0, t0 + 4))
        else:
            cur = None; a("s_nop 1")
        if prev:
            a(swap2(prev[0]))
            a(f"buffer_store_dwordx4 {vr(prev[0],4)}, v{T3+2}, s[12:15], s{S_SO+prev[1]} offen offset:{prev[2]*64} {os.environ.get('OUTPOL', 'sc0 sc1')}")
        prev = cur
    stamp_flush(a, 7, 1)
    a.label("L_end")
    a("s_endpgm")
    for lab, body, ret in RARE:
        a.label(lab)
        body() if callable(body) else a(body)
        a(f"s_branch {ret}")
    MX = [VT, VT+2]
    a.label("L_fallback")
    a(f"""
    v_mov_b32 v{MX[0]}, 0xff800000
    v_mov_b32 v{MX[1]}, 0xff800000
    s_mov_b32 s{S_IT}, 0
    s_waitcnt vmcnt(0) lgkmcnt(0)
    """)
    a.label("L_fb_max")
    a(f"s_add_u32 s{S_T}, s{S_IT}, s{S_HB}")
    for t in range(2): a(f"buffer_load_dwordx4 {vr(KF[0]+4*t,4)}, v{VD}, s[36:39], s{S_T} offen offset:{t*1024} sc1")
    a("s_waitcnt vmcnt(0)")
    a(qk(0, 0, 0, "0")); a(qk(1, 0, 1, "0"))
    a("s_nop 15")
    for qt in range(2):
        for i in range(0, 16, 2): a(f"v_max3_f32 v{MX[qt]}, v{MX[qt]}, v{S[qt]+i}, v{S[qt]+i+1}")
    a(f"""
    s_add_u32 s{S_IT}, s{S_IT}, 4096
    s_cmp_lt_u32 s{S_IT}, 0x40000
    s_cbranch_scc1 L_fb_max
    """)
    max_to_nm(MX[0], 0); max_to_nm(MX[1], 1)
    for i in range(O[0], LA[1] + 4, 2): a(f"v_mov_b64 v[{i}:{i+1}], 0")
    a(f"s_mov_b32 s{S_IT}, 0")
    a.label("L_fb_main")
    a(f"s_add_u32 s{S_T}, s{S_IT}, s{S_HB}")
    for t in range(2): a(f"buffer_load_dwordx4 {vr(KF[0]+4*t,4)}, v{VD}, s[36:39], s{S_T} offen offset:{t*1024} sc1")
    for t in range(2): a(f"buffer_load_dwordx4 {vr(VF[0]+4*t,4)}, v{VD}, s[36:39], s{S_T} offen offset:{2048+t*1024} sc1")
    a("s_waitcnt vmcnt(0)")
    a(qk(0, 0, 0)); a(qk(1, 0, 1))
    a("s_nop 15")
    for qt in range(2):
        for i in range(16): a(f"v_exp_f32 v{S[qt]+i}, v{S[qt]+i}")
    a("s_nop 1")
    if DENSE:
        for qt in range(2):
            for i in range(8): a(f"v_cvt_pk_bf16_f32 v{S[qt]+i}, v{S[qt]+2*i}, v{S[qt]+2*i+1}")
        a("s_nop 1")
    for qt in range(2):
        for t in range(2):
            a(pv(qt, 0, qt, t))
            if rs(qt, qt, t): a(rs(qt, qt, t))
    a(f"""
    s_add_u32 s{S_IT}, s{S_IT}, 4096
    s_cmp_lt_u32 s{S_IT}, 0x40000
    s_cbranch_scc1 L_fb_main
    s_nop 15
    """)
    a(lbcast(0) + lbcast(1))
    a(finish(0))
    a("s_branch L_fin")
    return f""".p2align 6
.amdhsa_kernel {name}
  .amdhsa_next_free_vgpr {NV}
  .amdhsa_next_free_sgpr 102
  .amdhsa_accum_offset {NV}
  .amdhsa_group_segment_fixed_size 0
  .amdhsa_kernarg_size 72
  .amdhsa_user_sgpr_count 2
  .amdhsa_user_sgpr_kernarg_segment_ptr 1
  .amdhsa_system_sgpr_workgroup_id_x 1
.end_amdhsa_kernel"""

DOC = """
;
"""

def main():
    out = sys.argv[1] if len(sys.argv) > 1 else f"cdna_kernels/{NAME}.s"
    a = Asm()
    k = gen(a)
    hdr = open(f"cdna_kernels/{NAME}.s.ref").read().split("\n")
    hdr = [l for l in hdr if l.startswith(";") and "@launch" not in l]
    hdr.append(f"; @launch grid=(256,1,1) block=(512,1,1) lds={LDS_BYTES}")
    hdr += DOC.strip("\n").split("\n")
    txt = "\n".join(hdr) + '\n.amdgcn_target "amdgcn-amd-amdhsa--gfx950"\n.text\n' + a.text() + '\n.section .rodata,"a"\n' + k + "\n"
    open(out, "w").write(txt)

if __name__ == "__main__":
    main()
```

```python
import sys, math, os, struct
from gen2 import Asm, vr, f2u, mf32, mf16, weave, NAME

STAMP = os.environ.get("STAMP", "0") == "1"
def OPT(k, d): return type(d)(os.environ.get(k, d))

KVWS = 0
OWS = 16 << 20
FKV = 24 << 20
FO = FKV + 65536
WS_BYTES = 25 << 20
STAMP_BASE = 64 << 20
CSCALE = math.log2(math.e) / math.sqrt(32.0)
LDS_BYTES = 163840
SPIN_MAX = 1 << 16

S_W, S_P, S_A, S_B, S_T = 3, 4, 5, 6, 7
S_WR, S_WH, S_IT = 40, 41, 42
NON = 34

ST3 = os.environ.get("ST3", "") == "1"
STG = os.environ.get("STG", "") == "1"
STG1 = {"1": True, "3": 3}.get(os.environ.get("STG1", ""), False)
def stamp_stage(a, lane, g1=False):
    if STG and g1 == STG1:
        a(f"s_memtime s[96:97]\ns_memrealtime s[98:99]\ns_lshl_b64 exec, 1, {lane}\ns_waitcnt lgkmcnt(0)\nv_mov_b32 v14, s96\nv_mov_b32 v15, s98\ns_mov_b64 exec, -1")
def stamp(a, i, alt=False):
    if ST3 and i in (1, 2, 3, 4) and not alt: return
    if STAMP and not STG:
        a(f"s_memtime s[{64+4*i}:{65+4*i}]")
        a(f"s_memrealtime s[{66+4*i}:{67+4*i}]")
        a("s_waitcnt lgkmcnt(0)")
def stamp_flush(a, n, vt):
    if not STAMP: return
    a("s_waitcnt vmcnt(0) lgkmcnt(0)")
    stamp(a, n)
    a(f"""
    s_add_u32 s56, s32, {STAMP_BASE}
    s_addc_u32 s57, s33, 0
    s_mov_b32 s58, 0x100000
    s_mov_b32 s59, 0x20000
    s_lshl_b32 s60, s2, 3
    s_add_u32 s60, s60, s{S_W}
    s_lshl_b32 s60, s60, 6
    v_mov_b32 v{vt}, 0
    """)
    if STG:
        a(f"v_lshlrev_b32 v{vt}, 3, v0\ns_mov_b64 exec, 0xff\nbuffer_store_dwordx2 v[14:15], v{vt}, s[56:59], s60 offen")
        return
    for i in range(n + 1):
        a(f"v_mov_b32 v{vt+1}, s{64+4*i}")
        a(f"v_mov_b32 v{vt+2}, s{66+4*i}")
        a(f"buffer_store_dwordx2 v[{vt+1}:{vt+2}], v{vt}, s[56:59], s60 offen offset:{8*i}")
        a("s_nop 1")

DENSE = "d" in os.environ.get("ATX", "")
def gen(a):
    name = NAME + "_kernel"
    a.raw(f".globl {name}\n.p2align 8\n.type {name},@function\n{name}:")
    stamp(a, 0)
    RARE = []
    def emit(L):
        for x in L:
            a(x)
            if " m0," in x: a("s_nop 0")
    PKB = [48, 32]; Q = [16, 24]; PK = 32; KF = [64, 72]; VF = [80, 88]; NM = [96, 112]; S = [128, 144, 160, 176]
    O = [192, 208]; LA = [224, 228]; ONES = 232; IDX = 236; ZERO = 237
    FDAT, FOFF, PDAT = 238, 240, 242
    XB = [244, 245]; VDE, VDO = 246, 247
    NV = 256
    def poll(lab, soff, mask=None, first_loaded=False):
        ld = f"buffer_load_dwordx2 v[{PDAT}:{PDAT+1}], v{FOFF}, s[36:39], s{soff} offen sc1"
        a(f"s_mov_b32 s{S_T}, {SPIN_MAX}")
        if not first_loaded: a(ld)
        a.label(lab)
        a(f"""
        s_waitcnt vmcnt(0)
        v_cmp_eq_u64 vcc, s[{NON}:{NON+1}], v[{PDAT}:{PDAT+1}]
        """)
        if mask: a(f"s_or_b64 vcc, vcc, {mask}")
        a(f"""
        s_cmp_eq_u64 vcc, exec
        s_cbranch_scc1 {lab}_done
        s_sub_u32 s{S_T}, s{S_T}, 1
        s_cbranch_scc1 {lab}_done
        s_sleep {OPT("PSLEEP", 8)}
        {ld}
        s_branch {lab}
        """)
        a.label(lab + "_done")
    XA = [2, 3]; WA = [4, 5]; D0, D1, D2, PFV, PFD = 6, 7, 8, 9, 10
    VT = 11
    FX = [[16 + 16*buf + 4*rb for rb in range(4)] for buf in range(2)]
    FW = [[48 + 24*buf + 4*cb for cb in range(6)] for buf in range(2)]
    ACC = [[96 + 16*cb + 4*rb for rb in range(4)] for cb in range(6)]
    S_KX, S_KW, T0, S_M0X, S_M0W, S_XF, S_XN, S_PFO, S_PFI = 43, 44, 45, 47, 48, 49, 50, 56, 57
    W0, W1 = 98304, 122880
    RSZ = OPT("RSZ", 2)
    NTW, NTX, NTP = os.environ.get("NTW", ""), os.environ.get("NTX", ""), os.environ.get("NTP", "")
    PF0, PFSTEP = OPT("PF0", 3), OPT("PFSTEP", 4)
    a(f"""
    s_cmp_ge_u32 s2, 256
    s_cbranch_scc1 L_end
    s_load_dwordx16 s[16:31], s[0:1], 0
    s_load_dwordx2 s[32:33], s[0:1], 64
    s_memrealtime s[{NON}:{NON+1}]
    v_lshrrev_b32 v1, 6, v0
    v_and_b32 v0, 63, v0
    v_readfirstlane_b32 s{S_W}, v1
    s_and_b32 s{S_T}, s2, 7
    s_lshr_b32 s{S_B}, s2, 3
    s_lshr_b32 s{S_P}, s{S_T}, 2
    s_and_b32 s{S_A}, s{S_T}, 3
    s_lshl_b32 s{S_A}, s{S_A}, 2
    s_and_b32 s{S_T}, s{S_B}, 3
    s_or_b32 s{S_A}, s{S_A}, s{S_T}
    s_lshr_b32 s{S_B}, s{S_B}, 2
    s_and_b32 s{S_WR}, s{S_W}, 3
    s_lshr_b32 s{S_WH}, s{S_W}, 2
    s_mul_i32 s{S_M0X}, s{S_WR}, 7
    s_add_u32 s{S_T}, s{S_WR}, 28
    s_cmp_eq_u32 s{S_WH}, 0
    s_cselect_b32 s{S_M0X}, s{S_T}, s{S_M0X}
    v_lshrrev_b32 v{VT}, 3, v0
    s_lshl_b32 s{S_T}, s{S_M0X}, 3
    v_add_u32 v{VT+4}, s{S_T}, v{VT}
    v_lshlrev_b32 v{VT+4}, 11, v{VT+4}
    v_and_b32 v{VT+1}, 7, v0
    v_lshrrev_b32 v{VT+2}, 4, v0
    v_xor_b32 v{VT+3}, v{VT+1}, v{VT+2}
    s_and_b32 s{S_T}, s{S_WR}, 1
    s_lshl_b32 s{S_T}, s{S_T}, 2
    v_xor_b32 v{VT+3}, s{S_T}, v{VT+3}
    v_lshl_add_u32 v{D2}, v{VT+3}, 4, v{VT+4}
    s_lshl_b32 s{S_M0X}, s{S_M0X}, 10
    s_lshl_b32 s{S_T}, s{S_WR}, 4
    v_add_u32 v{VT}, s{S_T}, v{VT}
    v_mul_u32_u24 v{VT}, 6144, v{VT}
    v_and_b32 v{VT+2}, 1, v{VT+2}
    v_lshlrev_b32 v{VT+2}, 2, v{VT+2}
    v_xor_b32 v{VT+3}, v{VT+1}, v{VT+2}
    v_lshl_add_u32 v{D0}, v{VT+3}, 4, v{VT}
    v_xor_b32 v{D1}, 32, v{D0}
    v_add_u32 v{D1}, 49152, v{D1}
    s_mul_i32 s{S_M0W}, s{S_WR}, 6144
    s_add_u32 s{S_M0W}, s{S_M0W}, {W0}
    s_mov_b32 s{S_KX}, 0
    s_mov_b32 s{S_KW}, 0
    s_mov_b32 s11, 0x20000
    s_mov_b32 s15, 0x20000
    s_mov_b32 s39, 0x20000
    s_mov_b32 s55, 0x20000
    v_mov_b32 v{ZERO}, 0
    s_waitcnt lgkmcnt(0)
    s_cmp_eq_u32 s{S_P}, 0
    s_cselect_b32 s8, s16, s22
    s_cselect_b32 s9, s17, s23
    s_cselect_b32 s12, s18, s24
    s_cselect_b32 s13, s19, s25
    s_lshl_b32 s{S_T}, s{S_B}, 19
    s_add_u32 s8, s8, s{S_T}
    s_addc_u32 s9, s9, 0
    s_sub_u32 s10, 0x400000, s{S_T}
    s_lshl_b32 s{S_T}, s{S_A}, 7
    s_add_u32 s12, s12, s{S_T}
    s_addc_u32 s13, s13, 0
    s_sub_u32 s14, 0x600000, s{S_T}
    s_cmp_lg_u32 s{S_WH}, 0
    s_cbranch_scc1 L_proB
    """)
    def burstW(stage):
        L = []
        for g in range(2):
            L.append(f"s_add_u32 m0, s{S_M0W}, {stage*(W1-W0) + g*3072}")
            for s_ in range(3):
                if s_: L.append(f"s_add_u32 s{T0+s_%2}, s{S_KW}, {s_*1024}")
                else: L.append("s_nop 0")
                L.append(f"buffer_load_dwordx4 v{D0+g}, s[12:15], s{T0+s_%2 if s_ else S_KW} offen offset:{s_*1024} {NTW} lds")
        L.append(f"s_add_u32 s{S_KW}, s{S_KW}, 393216")
        return L
    def burstXA(slot):
        return [f"s_add_u32 m0, s{S_M0X}, {slot}", "s_nop 0", f"buffer_load_dwordx4 v{D2}, s[8:11], s{S_KX} offen {NTX} lds", f"s_add_u32 s{S_KX}, s{S_KX}, 128"]
    def burstXB(slot):
        L = [f"s_add_u32 m0, s{S_M0X}, {slot}"]
        for j in range(7):
            if j == 4: L.append("s_add_u32 m0, m0, 4096")
            L.append(f"s_add_u32 s{T0+j%2}, s{S_KX}, {j*16384 - (j%4)*1024}")
            L.append(f"buffer_load_dwordx4 v{D2 if j%2==0 else D1}, s[8:11], s{T0+j%2} offen offset:{(j%4)*1024} {NTX} lds")
        L.append(f"s_add_u32 s{S_KX}, s{S_KX}, 128")
        return L
    a(burstW(0) + burstXA(0) + burstW(1) + burstXA(32768) + burstXA(65536))
    a(f"""
    s_or_b32 s{S_T}, s2, s{S_W}
    s_cmp_lg_u32 s{S_T}, 0
    s_cbranch_scc1 L_pro2
    s_mov_b32 s52, s30
    s_mov_b32 s53, s31
    s_mov_b32 s54, 256
    s_or_b32 s{NON}, s{NON}, 1
    v_mov_b32 v{FDAT}, s{NON}
    v_mov_b32 v{FDAT+1}, s{NON+1}
    s_mov_b64 exec, 1
    buffer_store_dwordx2 v[{FDAT}:{FDAT+1}], v{ZERO}, s[52:55], 0 offen sc1
    s_mov_b64 exec, -1
    s_branch L_pro2
    """)
    a.label("L_proB")
    a(f"v_xor_b32 v{D1}, 64, v{D2}")
    a(burstXB(0) + burstXB(32768))
    a.label("L_pro2")
    a(f"""
    s_lshl_b32 s{S_T}, s{S_B}, 2
    s_add_u32 s{S_T}, s{S_T}, s{S_WR}
    s_lshl_b32 s{S_T}, s{S_T}, 2
    v_and_b32 v{VT+1}, 3, v0
    v_add_u32 v{VT+1}, s{S_T}, v{VT+1}
    v_bfe_u32 v{VT+2}, v0, 4, 1
    v_lshl_add_u32 v{VT+1}, v{VT+2}, 7, v{VT+1}
    v_mul_u32_u24 v{VT+1}, 6144, v{VT+1}
    v_bfe_u32 v{VT+2}, v0, 2, 2
    v_min_u32 v{VT+2}, 2, v{VT+2}
    v_lshl_add_u32 v{PFV}, v{VT+2}, 11, v{VT+1}
    s_mov_b32 s{S_PFO}, {393216 * PF0}
    s_and_b32 s{S_T}, s{S_A}, 3
    s_lshl_b32 s{S_T}, s{S_T}, 2
    s_add_u32 s{S_T}, s{S_T}, s{S_WR}
    s_lshl_b32 s{S_T}, s{S_T}, 4
    v_and_b32 v{VT}, 15, v0
    v_add_u32 v{VT}, s{S_T}, v{VT}
    v_lshlrev_b32 v{VT}, 11, v{VT}
    v_lshrrev_b32 v{VT+1}, 4, v0
    v_lshl_add_u32 v{VT}, v{VT+1}, 7, v{VT}
    s_cmp_eq_u32 s{S_WH}, 0
    s_cselect_b64 vcc, -1, 0
    s_cselect_b32 s{S_PFO}, {128 * OPT("PFX0", 4)}, s{S_PFO}
    v_cndmask_b32 v{PFV}, v{PFV}, v{VT}, vcc
    v_and_b32 v{VT}, 15, v0
    s_lshl_b32 s{S_T}, s{S_WR}, 6
    v_add_u32 v{VT}, s{S_T}, v{VT}
    v_lshlrev_b32 v{VT}, 7, v{VT}
    v_lshrrev_b32 v{VT+1}, 4, v0
    v_bfe_u32 v{VT+2}, v0, 1, 3
    v_xor_b32 v{VT+2}, v{VT+1}, v{VT+2}
    v_lshl_add_u32 v{XA[0]}, v{VT+2}, 4, v{VT}
    v_xor_b32 v{XA[1]}, 64, v{XA[0]}
    v_mov_b32 v{XB[0]}, v{XA[0]}
    v_mov_b32 v{XB[1]}, v{XA[1]}
    v_mul_u32_u24 v{VT}, 3072, v{VT+1}
    v_bfe_u32 v{VT+2}, v0, 2, 2
    v_lshl_add_u32 v{VT}, v{VT+2}, 7, v{VT}
    v_bfe_u32 v{VT+3}, v0, 1, 1
    s_lshl_b32 s{S_T}, s{S_WH}, 2
    v_add_u32 v{VT+3}, s{S_T}, v{VT+3}
    v_bfe_u32 v{VT+4}, v0, 3, 1
    v_lshlrev_b32 v{VT+4}, 2, v{VT+4}
    v_xor_b32 v{VT+3}, v{VT+3}, v{VT+4}
    v_bfe_u32 v{VT+4}, v0, 4, 1
    v_lshlrev_b32 v{VT+4}, 1, v{VT+4}
    v_xor_b32 v{VT+3}, v{VT+3}, v{VT+4}
    v_lshl_add_u32 v{VT}, v{VT+3}, 4, v{VT}
    v_and_b32 v{VT+4}, 1, v0
    v_lshl_add_u32 v{VT}, v{VT+4}, 3, v{VT}
    v_add_u32 v{WA[0]}, {W0}, v{VT}
    v_xor_b32 v{WA[1]}, 32, v{WA[0]}
    v_mov_b32 v{IDX}, {"0x44444444" if DENSE else "0xdddddddd"}
    {f"v_and_b32 v{VT}, 1, v0" if DENSE else ""}
    {f"v_mul_u32_u24 v{VT}, 0xaaaa, v{VT}" if DENSE else ""}
    {f"v_add_u32 v{IDX}, v{IDX}, v{VT}" if DENSE else ""}
    v_and_b32 v{VT}, {[4, 7, 15][RSZ]}, v0
    v_mov_b32 v{VT+1}, 0x3f803f80
    v_cmp_eq_u32 vcc, 0, v{VT}
    v_lshlrev_b32 v{VDE}, 4, v0
    v_lshlrev_b32 v{VDO}, 4, v0
    v_cndmask_b32 v{ONES}, v{ZERO}, v{VT+1}, vcc
    v_cndmask_b32 v{ONES+1}, v{ZERO}, v{VT+1}, vcc
    v_cmp_eq_u32 vcc, 4, v{VT}
    s_nop 1
    v_cndmask_b32 v{ONES+2}, v{ZERO}, v{VT+1}, vcc
    v_cndmask_b32 v{ONES+3}, v{ZERO}, v{VT+1}, vcc
    v_and_b32 v{FOFF}, 15, v0
    v_lshlrev_b32 v{FOFF}, 3, v{FOFF}
    s_lshl_b32 s{S_T}, s{S_B}, 3
    v_mov_b32 v{FOFF+1}, s{S_T}
    s_mov_b32 s{S_IT}, 0
    s_mov_b32 s{S_XN}, 32768
    """)
    for i in range(96, 232, 2): a(f"v_mov_b64 v[{i}:{i+1}], 0")
    if OPT("IPF", 0):
        a(f"""
        s_cmp_lg_u32 s{S_W}, 7
        s_cbranch_scc1 L_noipf
        s_getpc_b64 s[60:61]
        v_lshlrev_b32 v{VT}, 7, v0
        global_load_dword v{PFD}, v{VT}, s[60:61]
        v_add_u32 v{VT}, 8192, v{VT}
        global_load_dword v{PFD}, v{VT}, s[60:61]
        v_add_u32 v{VT}, 8192, v{VT}
        v_min_u32 v{VT}, {OPT("IPFMAX", 21000)}, v{VT}
        global_load_dword v{PFD}, v{VT}, s[60:61]
        """)
        a.label("L_noipf")
    BULK = OPT("BULK", 0)
    if BULK:
        a(f"""
        s_lshl_b32 s{S_T}, s{S_A}, 7
        s_sub_u32 s52, s12, s{S_T}
        s_subb_u32 s53, s13, 0
        s_mov_b32 s54, 0x600000
        s_lshl_b32 s{S_T}, s{S_A}, 3
        s_add_u32 s{S_T}, s{S_T}, s{S_B}
        s_lshl_b32 s{S_T}, s{S_T}, 3
        s_add_u32 s{S_T}, s{S_T}, s{S_W}
        s_mul_i32 s{S_T}, s{S_T}, 6144
        v_min_u32 v{VT}, 47, v0
        v_lshlrev_b32 v{VT}, 7, v{VT}
        {"s_sleep " + str(OPT("BSLEEP", 0)) if OPT("BSLEEP", 0) else ""}
        buffer_load_dword v{PFD}, v{VT}, s[52:55], s{S_T} offen
        s_cmp_lg_u32 s{S_WH}, 0
        s_cbranch_scc1 L_nobx
        s_lshl_b32 s{S_T}, s{S_A}, 2
        s_add_u32 s{S_T}, s{S_T}, s{S_WR}
        s_lshl_b32 s{S_T}, s{S_T}, 13
        v_lshlrev_b32 v{VT+1}, 7, v0
        buffer_load_dword v{PFD}, v{VT+1}, s[8:11], s{S_T} offen
        """)
        a.label("L_nobx")
    def reads1(stage, t, buf):
        X = [f"ds_read_b128 {vr(FX[buf][rb],4)}, v{XA[t]} offset:{rb*2048}" for rb in range(4)]
        W = []
        for cb in range(6):
            for u in range(2):
                W.append(f"ds_read_b64_tr_b16 {vr(FW[buf][cb]+2*u,2)}, v{WA[cb%2]} offset:{stage*(W1-W0) + t*12288 + (cb//2)*1024 + u*512}")
        return W[0:2] + X + W[2:]
    def mfmas1(buf, natural=False):
        L = [mf16(ACC[cb][rb], FW[buf][cb], FX[buf][rb]) if cb < 4 else mf16(ACC[cb][rb], FX[buf][rb], FW[buf][cb])
             for cb in range(6) for rb in range(4)]
        o = "cb" if natural else os.environ.get("ORD1", "A")
        if o == "rb": L = [L[4*cb + rb] for rb in range(4) for cb in range(6)]
        if o == "snake": L = [L[4*cb + (rb if cb % 2 == 0 else 3 - rb)] for cb in range(6) for rb in range(4)]
        if o == "A": L = [L[4*cb + (rb if cb % 2 == 0 else 3 - rb)] for cb in range(4) for rb in range(4)] + [L[4*(4 + (c ^ (rb & 1))) + rb] for rb in range(4) for c in range(2)]
        if o == "B": L = [L[4*(cb if rb % 2 == 0 else 3 - cb) + rb] for rb in range(4) for cb in range(4)] + [L[4*cb + (rb if cb % 2 else 3 - rb)] for cb in (4, 5) for rb in range(4)]
        return L
    def spread(r, key):
        sp, off = float(os.environ.get(key, "1.4" if key in ("SA1", "SB1") else "1")), int(os.environ.get(key + "O", "0"))
        f = {}
        for k_, x in enumerate(r): f.setdefault(min(23, off + int(k_ * sp)), []).append(x)
        return f
    def rot_x():
        return [f"v_add_u32 v{XA[1]}, s{S_XN}, v{XB[1]}", f"s_mov_b32 s{S_XF}, s{S_XN}", f"s_add_u32 s{S_XN}, s{S_XN}, 32768",
                f"s_cmp_eq_u32 s{S_XN}, 98304", f"s_cselect_b32 s{S_XN}, 0, s{S_XN}"]
    BSPR = OPT("BSPR", 0)
    def place(f, burst, pre):
        if BSPR == 0:
            pre += burst; return
        groups, cur = [], []
        for x in burst:
            cur.append(x)
            if " lds" in x or "buffer_load_dword " in x: groups.append(cur); cur = []
        if cur: groups[-1] += cur
        pre += groups[0]
        for k_, g in enumerate(groups[1:]): f[(k_ + 1) * BSPR - 1] = f.get((k_ + 1) * BSPR - 1, []) + g
    a(f"""
    s_cmp_lg_u32 s{S_WH}, 0
    s_cbranch_scc1 L_g1B_pre
    s_mov_b32 s{S_XF}, 0
    {"s_setprio 1" if OPT("G1PRIO", "") == "A" else ""}
    {f"buffer_load_dword v{PFD}, v{PFV}, s[8:11], s{S_PFO} offen {os.environ.get('NTXP', '')}" if OPT("XPFE", 0) else ""}
    s_waitcnt vmcnt({8 + 2*BULK + OPT("XPFE", 0)})
    s_barrier
    """)
    stamp(a, 1)
    a(reads1(0, 0, 0))
    if OPT("XPF1", 0): a(f"buffer_load_dword v{PFD}, v{PFV}, s[8:11], s{S_PFO} offen")
    a.raw(".p2align 6")
    a.label("L_g1A")
    stamp_stage(a, f"s{S_IT}", True)
    a(f"s_cmp_eq_u32 s{S_IT}, 7\ns_cselect_b32 s14, 0, s14")
    for stage in range(2):
        a("s_waitcnt lgkmcnt(0)")
        r = reads1(stage, 1, 1)
        a(weave(mfmas1(0), spread(r, "SA0")))
        if stage == 1: a(f"s_cmp_ge_u32 s{S_IT}, 6\ns_cselect_b32 s10, 0, s10")
        a(f"v_add_u32 v{XA[0]}, s{S_XN}, v{XB[0]}")
        PFX = OPT("PFX", 0)
        a(f"s_waitcnt vmcnt({2 if PFX and stage == 1 else 1}) lgkmcnt(0)\ns_barrier")
        r = reads1(1 - stage, 0, 0)
        RA1 = OPT("RA1", 1)
        f = spread(r, "SA1")
        pre = []
        if stage == 1 :
            a(f"s_cmp_eq_u32 s{S_IT}, 7\ns_cbranch_scc1 L_g1A_last")
        if OPT("ARD", 0): pre += [x for i in sorted(f) for x in f[i]]; f = {}
        pfx = [f"s_cmp_lt_u32 s{S_PFO}, {min(2048, 128*OPT('PFX0', 4) + 512*OPT('PFXN', 9))}", f"s_cselect_b32 s{T0}, s{S_PFO}, 0x7fff0000", f"buffer_load_dword v{PFD}, v{PFV}, s[8:11], s{T0} offen", f"s_add_u32 s{S_PFO}, s{S_PFO}, 512"]
        place(f, burstW(stage) + burstXA(f"s{S_XF}") + (pfx if PFX and stage == 0 else []), pre)
        f[20] = f.get(20, []) + rot_x()
        a(pre); a(weave(mfmas1(1), f))
    a(f"""
    s_add_u32 s{S_IT}, s{S_IT}, 1
    s_branch L_g1A
    """)
    a.label("L_g1B_pre")
    NPFE = OPT("NPFE", 0)
    PFE_W = f"buffer_load_dword v{PFD}, v{PFV}, s[12:15], s{S_PFO} offen {NTP}\ns_add_u32 s{S_PFO}, s{S_PFO}, {393216 * 4}\n" * NPFE
    if OPT("G1PRIO", "") == "B": a("s_setprio 1")
    a(f"s_mov_b32 s{S_XF}, 65536\n{PFE_W}s_waitcnt vmcnt({7 + BULK + NPFE})\ns_barrier")
    stamp(a, 1)
    a(reads1(0, 0, 0))
    a.raw(".p2align 6")
    a.label("L_g1B")
    stamp_stage(a, f"s{S_IT}", True)
    a(f"s_cmp_eq_u32 s{S_IT}, 7\ns_cselect_b32 s10, 0, s10")
    if OPT("TOUCH", 0):
        a(f"""
        s_cmp_eq_u32 s{S_IT}, 4
        s_cbranch_scc0 L_t1
        s_mov_b32 s12, s32
        s_mov_b32 s13, s33
        s_mov_b32 s14, {WS_BYTES}
        s_lshl_b32 s{S_T}, s{S_P}, 4
        s_add_u32 s{S_T}, s{S_T}, s{S_A}
        s_lshl_b32 s{T0}, s{S_T}, 10
        s_add_u32 s{T0}, s{T0}, {FKV}
        s_lshl_b32 s{S_T}, s{S_T}, 4
        s_add_u32 s{S_T}, s{S_T}, s{S_B}
        s_lshl_b32 s{S_T}, s{S_T}, 2
        s_add_u32 s{S_T}, s{S_T}, s{S_WR}
        s_lshl_b32 s{S_T}, s{S_T}, 13
        v_and_b32 v{VT}, 1, v0
        v_lshlrev_b32 v{VT+1}, 18, v{VT}
        v_add_u32 v{PFV}, s{S_T}, v{VT+1}
        s_lshl_b32 s{S_T}, s{S_P}, 3
        s_add_u32 s{S_T}, s{S_T}, s{S_B}
        s_lshl_b32 s{S_T}, s{S_T}, 2
        s_add_u32 s{S_T}, s{S_T}, s{S_WR}
        s_lshl_b32 s{S_T}, s{S_T}, 5
        s_add_u32 s{S_T}, s{S_T}, s{S_A}
        s_lshl_b32 s{S_T}, s{S_T}, 12
        s_add_u32 s{S_T}, s{S_T}, {OWS}
        v_lshlrev_b32 v{VT+1}, 16, v{VT}
        v_add_u32 v{VT+1}, s{S_T}, v{VT+1}
        v_cmp_lt_u32 vcc, 1, v0
        v_mov_b32 v{VT+2}, s{T0}
        s_mov_b32 s{S_PFO}, 0
        v_cndmask_b32 v{PFV}, v{PFV}, v{VT+1}, vcc
        v_cmp_lt_u32 vcc, 3, v0
        s_nop 1
        v_cndmask_b32 v{PFV}, v{PFV}, v{VT+2}, vcc
        """)
        a.label("L_t1")
        a(f"""
        s_cmp_eq_u32 s{S_IT}, 5
        s_cbranch_scc0 L_t2
        s_mov_b32 s12, s28
        s_mov_b32 s13, s29
        s_mov_b32 s14, 0x800000
        s_lshl_b32 s{S_T}, s{S_A}, 2
        s_add_u32 s{S_T}, s{S_T}, s{S_WR}
        s_lshl_b32 s{S_T}, s{S_T}, 17
        s_lshl_b32 s{T0}, s{S_P}, 11
        s_add_u32 s{S_T}, s{S_T}, s{T0}
        s_lshl_b32 s{T0}, s{S_B}, 8
        s_add_u32 s{S_PFO}, s{S_T}, s{T0}
        v_and_b32 v{VT}, 1, v0
        v_lshlrev_b32 v{PFV}, 16, v{VT}
        """)
        a.label("L_t2")
        a(f"s_cmp_ge_u32 s{S_IT}, 6\ns_cselect_b32 s14, 0, s14")
    pf = [f"buffer_load_dword v{PFD}, v{PFV}, s[12:15], s{S_PFO} offen {NTP}", f"s_add_u32 s{S_PFO}, s{S_PFO}, {393216 * PFSTEP}"]
    for stage in range(2):
        r = reads1(stage, 1, 1)
        RB, BPOS = OPT("RB", 1), OPT("BPOS", -1)
        f = spread(r, "SB0")
        bx = burstXB(f"s{S_XF}") + (pf if stage == 0 else [])
        if BPOS < 0: a(bx)
        else: f[BPOS] = f.get(BPOS, []) + bx
        a("s_waitcnt lgkmcnt(0)")
        a(weave(mfmas1(0), f))
        a(f"v_add_u32 v{XA[0]}, s{S_XN}, v{XB[0]}")
        a(f"s_waitcnt vmcnt({8 if stage == 0 else 7}) lgkmcnt(0)\ns_barrier")
        if stage == 1:
            a(f"s_cmp_eq_u32 s{S_IT}, 7\ns_cbranch_scc1 L_g1A_last")
        r = reads1(1 - stage, 0, 0)
        RB1 = OPT("RB1", 1)
        f = spread(r, "SB1")
        f[20] = f.get(20, []) + [f"v_add_u32 v{XA[1]}, s{S_XN}, v{XB[1]}", f"s_add_u32 s{S_XF}, s{S_XF}, 32768", f"s_cmp_eq_u32 s{S_XF}, 98304",
                 f"s_cselect_b32 s{S_XF}, 0, s{S_XF}", f"s_add_u32 s{S_XN}, s{S_XN}, 32768",
                 f"s_cmp_eq_u32 s{S_XN}, 98304", f"s_cselect_b32 s{S_XN}, 0, s{S_XN}"]
        a(weave(mfmas1(1), f))
    a(f"""
    s_add_u32 s{S_IT}, s{S_IT}, 1
    s_branch L_g1B
    """)
    VKV, VD = 2, 3
    VT = 4
    S_SO, S_ST1, S_ST2, S_M0, S_KV, S_FL, S_HB, S_GRP, MSK = 43, 44, 45, 46, 47, 49, 50, 51, 56
    a.label("L_g1A_last")
    setup = f"""
    s_mov_b32 s36, s32
    s_mov_b32 s37, s33
    s_mov_b32 s38, {WS_BYTES}
    s_mov_b32 s52, s30
    s_mov_b32 s53, s31
    s_mov_b32 s54, 256
    buffer_load_dwordx2 v[{FDAT}:{FDAT+1}], v{ZERO}, s[52:55], 0 offen sc1
    s_lshl_b32 s{S_T}, s{S_P}, 4
    s_add_u32 s{S_T}, s{S_T}, s{S_A}
    s_lshl_b32 s{S_FL}, s{S_T}, 3
    s_lshl_b32 s{S_T}, s{S_T}, 1
    s_add_u32 s{S_T}, s{S_T}, s{S_WH}
    s_lshl_b32 s{S_HB}, s{S_T}, 18
    s_add_u32 s{S_FL}, s{S_FL}, s{S_W}
    s_lshl_b32 s{S_FL}, s{S_FL}, 7
    s_add_u32 s{S_FL}, s{S_FL}, {FKV}
    s_lshl_b32 s{S_T}, s{S_WR}, 13
    s_add_u32 s{S_T}, s{S_T}, s{S_HB}
    s_add_u32 s8, s32, s{S_T}
    s_addc_u32 s9, s33, 0
    s_mov_b32 s10, 0x40000
    s_lshl_b32 s{S_KV}, s{S_B}, 15
    s_add_u32 s{S_KV}, s{S_KV}, s{S_T}
    s_add_u32 s{S_KV+1}, s{S_KV}, 4096
    s_lshl_b32 s{S_M0}, s{S_W}, 13
    v_lshlrev_b32 v{VD}, 4, v0
    v_add_u32 v{VKV}, s{S_M0}, v{VD}
    s_cmp_eq_u32 s{S_P}, 0
    s_cselect_b32 s12, s20, s26
    s_cselect_b32 s13, s21, s27
    s_lshl_b32 s{S_T}, s{S_B}, 8
    s_add_u32 s12, s12, s{S_T}
    s_addc_u32 s13, s13, 0
    s_sub_u32 s14, 0x200000, s{S_T}
    s_mov_b32 s{S_ST1}, 0
    s_mov_b32 s{MSK}, 0xfff8fff8
    s_mov_b32 s{MSK+1}, s{MSK}
    s_mov_b32 s58, {f2u(CSCALE):#x}
    s_mov_b32 s59, s58
    """.strip().split("\n")
    m = mfmas1(1, True)
    EARLY = OPT("EARLY", 1)
    if EARLY: m = [m[4*cb + rb] for rb2 in (0, 2) for cb in range(2, 6) for rb in (rb2, rb2 + 1)] + m[:8]
    else: m = m[8:] + m[:8]
    LASTM = m
    def pack2(dst, t0, t1):
        return [f"v_cvt_pk_bf16_f32 v{dst}, v{t0}, v{t0+1}", f"v_cvt_pk_bf16_f32 v{dst+1}, v{t0+2}, v{t0+3}",
                f"v_cvt_pk_bf16_f32 v{dst+2}, v{t1}, v{t1+1}", f"v_cvt_pk_bf16_f32 v{dst+3}, v{t1+2}, v{t1+3}"]
    def swap2(dst):
        return [f"v_permlane16_swap_b32 v{dst}, v{dst+2}", f"v_permlane16_swap_b32 v{dst+1}, v{dst+3}"]
    def swap32(dst):
        return [f"v_permlane32_swap_b32 v{dst}, v{dst+2}", f"v_permlane32_swap_b32 v{dst+1}, v{dst+3}"]
    frs = []
    for b in range(2):
        for t in range(2): frs.append((PKB[b] + 4*t, ACC[2+t][2*b], ACC[2+t][2*b+1], b, t*1024))
        for t in range(2): frs.append((PKB[b] + 8 + 4*t, ACC[4][2*b+t], ACC[5][2*b+t], b, 2048 + t*1024))
    kvstores = [f"buffer_store_dwordx4 {vr(fr[0],4)}, v{VD}, s[36:39], s{S_KV+fr[3]} offen offset:{fr[4]} {os.environ.get('KVPOL', 'sc1')}" for fr in frs]
    NE0 = OPT("NE0", 4)
    packs = []
    prev = None
    for k_, fr in enumerate(frs):
        L = pack2(fr[0], fr[1], fr[2])
        if prev:
            L += swap2(prev[0])
            if DENSE and prev[4] >= 2048: L += ["s_nop 1"] + swap32(prev[0])
            if k_ - 1 < NE0: L.append(kvstores[k_ - 1])
            L.append(f"ds_write_b128 v{VKV}, {vr(prev[0],4)} offset:{prev[3]*4096+prev[4]}")
        packs.append(L)
        prev = fr
    if EARLY:
        f = {i: setup[3*i:3*i+3] for i in range(14)}
        for i in range(4): f[16 + 2*i] = packs[i]
        a(weave(LASTM, f)); stamp(a, 2)
        for L in packs[4:]: a(L)
    else:
        a(weave(LASTM, {i: setup[2*i:2*i+2] for i in range(24)})); stamp(a, 2)
        for L in packs: a(L)
    for i in range(0, 8, 2): a(f"v_pk_mul_f32 v[{96+i}:{97+i}], v[{96+i}:{97+i}], s[58:59]")
    a(swap2(prev[0]))
    if DENSE: a(["s_nop 1"] + swap32(prev[0]))
    a(f"ds_write_b128 v{VKV}, {vr(prev[0],4)} offset:{prev[3]*4096+prev[4]}")
    for i in range(8, 32, 2): a(f"v_pk_mul_f32 v[{96+i}:{97+i}], v[{96+i}:{97+i}], s[58:59]")
    for b in range(2):
        for t in range(2): a(pack2(Q[b] + 4*t, ACC[t][2*b], ACC[t][2*b+1]))
    a(f"""
    s_lshl_b32 s{S_T}, s{S_WH}, 15
    v_add_u32 v{VKV}, s{S_T}, v{VD}
    s_add_u32 s{S_M0}, s{S_M0}, 65536
    """)
    for k_ in range(1, 4):
        a(f"s_add_u32 s{S_T}, s{S_WR}, {k_}\ns_and_b32 s{S_T}, s{S_T}, 3\ns_lshl_b32 s{S_T}, s{S_T}, 13\nv_add_u32 v{VT+1+k_}, s{S_T}, v{VKV}")
    for b in range(2):
        for t in range(2): a(swap2(Q[b] + 4*t))
    def rdK(kt, buf): return [f"ds_read_b128 {vr(KF[buf]+4*t,4)}, v{VKV} offset:{kt*4096+t*1024}" for t in range(2)]
    def rdV(kt, buf): return [f"ds_read_b128 {vr(VF[buf]+4*t,4)}, v{VKV} offset:{kt*4096+2048+t*1024}" for t in range(2)]
    def qk(sbuf, kbuf, qt, c=None):
        return [mf32(S[sbuf], KF[kbuf], Q[qt], NM[qt] if c is None else c), mf32(S[sbuf], KF[kbuf]+4, Q[qt]+4)]
    def pv(sbuf, vbuf, qt, t):
        if DENSE: return mf32(O[qt], VF[vbuf] + 4*t, S[sbuf] + 4*t)
        return f"v_smfmac_f32_32x32x32_bf16 {vr(O[qt],16)}, {vr(VF[vbuf]+4*t,4)}, {vr(S[sbuf]+8*t,8)}, v{IDX}"
    def rs(sbuf, qt, t):
        if DENSE: return None if t == 0 else f"v_smfmac_f32_16x16x64_bf16 {vr(LA[qt],4)}, {vr(ONES,4)}, {vr(S[sbuf],8)}, v{IDX}"
        return f"v_smfmac_f32_16x16x64_bf16 {vr(LA[qt],4)}, {vr(ONES,4)}, {vr(S[sbuf]+8*t,8)}, v{IDX}"
    def max_to_nm(m, qt):
        a(f"v_mov_b32 v{m+1}, v{m}")
        a("s_nop 1")
        a(f"v_permlane32_swap_b32 v{m}, v{m+1}")
        a("s_nop 1")
        a(f"v_max_f32 v{m}, v{m}, v{m+1}")
        a(f"v_sub_f32 v{m}, 0, v{m}")
        a(f"v_mov_b32 v{m+1}, v{m}")
        for i in range(0, 16, 2): a(f"v_mov_b64 v[{NM[qt]+i}:{NM[qt]+i+1}], v[{m}:{m+1}]")
    assert NE0 == 4
    a("s_nop 0")
    a([mf32(S[qt], PKB[0] + 4*t, Q[qt] + 4*t, "0" if t == 0 else None) for qt in range(2) for t in range(2)])
    a(f"s_waitcnt vmcnt(4)\ns_mov_b32 s{S_T}, {SPIN_MAX}")
    a.label("L_nonce")
    a(f"""
    v_readfirstlane_b32 s{NON}, v{FDAT}
    v_readfirstlane_b32 s{NON+1}, v{FDAT+1}
    s_sub_u32 s{S_T}, s{S_T}, 1
    s_cbranch_scc1 L_nonce_done
    s_cmp_eq_u32 s{NON}, 0
    s_cbranch_scc1 L_nonce_retry
    """)
    a.label("L_nonce_done")
    RARE.append(("L_nonce_retry", [f"buffer_load_dwordx2 v[{FDAT}:{FDAT+1}], v{ZERO}, s[52:55], 0 offen sc1", "s_waitcnt vmcnt(0)"], "L_nonce"))
    a("s_nop 3")
    for qt in range(2):
        m_, src = VT + 6*qt, S[qt]
        a(f"v_max3_f32 v{m_}, v{src}, v{src+1}, v{src+2}")
        for i in range(3, 15, 2): a(f"v_max3_f32 v{m_}, v{m_}, v{src+i}, v{src+i+1}")
        a(f"v_max_f32 v{m_}, v{m_}, v{src+15}")
        max_to_nm(m_, qt)
        a("s_nop 1")
        if qt == 0: a([mf32(S[0], PKB[0], Q[0], NM[0]), mf32(S[0], PKB[0] + 4, Q[0] + 4)])
    if OPT("G1PRIO", "") == "A": a("s_setprio 0")
    if os.environ.get("PRIO", "1"): a(f"s_cmp_eq_u32 s{S_WH}, {os.environ.get('PRIO', '1')[0]}\ns_cbranch_scc0 L_noprio\ns_setprio 1"); a.label("L_noprio")
    stamp(a, 3)
    S_SO2 = S_ST2
    def dma2():
        G = []
        for j in range(8):
            g = []
            if j == 0: g.append(f"s_mov_b32 m0, s{S_M0}"); g.append("s_nop 0")
            g.append(f"buffer_load_dwordx4 v{VDE if j%2==0 else VDO}, s[8:11], s{S_SO} offen offset:{(j%4)*1024} sc1 lds")
            if j == 3: g += [f"s_add_u32 m0, s{S_M0}, 4096", f"s_mov_b32 s{S_SO}, s{S_SO2}"]
            elif j < 7: g.append(f"s_add_u32 s{S_SO}, s{S_SO}, s{S_ST1}")
            else: g.append(f"s_xor_b32 s{S_M0}, s{S_M0}, 65536")
            G.append(g)
        return G
    def blk():
        L = []
        for g, dst in ((0, S_SO), (1, S_SO2)):
            L += [f"s_lshl_b32 s{dst}, s{S_IT}, 1"]
            if g: L += [f"s_add_u32 s{dst}, s{dst}, 1"]
            L += [f"s_cmp_ge_u32 s{dst}, 7", f"s_cselect_b32 s{S_T}, 7, 0", f"s_cselect_b32 s{S_GRP}, 4096, 0", f"s_sub_u32 s{dst}, s{dst}, s{S_T}",
                  f"s_cmp_ge_u32 s{dst}, s{S_B}", f"s_addc_u32 s{dst}, s{dst}, 0", f"s_lshl_b32 s{dst}, s{dst}, 15", f"s_add_u32 s{dst}, s{dst}, s{S_GRP}"]
        return L
    def flagst(voff, soff, imm=0):
        return ["s_mov_b64 exec, 1", f"buffer_store_dwordx2 v[{FDAT}:{FDAT+1}], v{voff}, s[36:39], s{soff} offen offset:{imm} sc1", "s_mov_b64 exec, -1"]
    ATX = os.environ.get("ATX", "")
    PAT = [int(c) for c in os.environ.get('PAT', '333232')]
    def qk_r(sbuf, kreg, qt, c=None):
        return [mf32(S[sbuf], kreg, Q[qt], NM[qt] if c is None else c), mf32(S[sbuf], kreg+4, Q[qt]+4)]
    def pv_r(sbuf, vreg, qt, t):
        if DENSE: return mf32(O[qt], vreg + 4*t, S[sbuf] + 4*t)
        return f"v_smfmac_f32_32x32x32_bf16 {vr(O[qt],16)}, {vr(vreg+4*t,4)}, {vr(S[sbuf]+8*t,8)}, v{IDX}"
    FILL = []
    def slot(sb, qa, nxt, prv, vreg, pre, extra=()):
        e = [f"v_exp_f32 v{S[sb]+i}, v{S[sb]+i}" for i in range(16)]
        m = (qk_r((sb+1) % 4, nxt[0], nxt[1]) if nxt else [None, None]) + \
            ([pv_r((sb-1) % 4, prv[0], prv[1], 1), rs((sb-1) % 4, prv[1], 1)] if prv else [None, None]) + [pv_r(sb, vreg, qa, 0), rs(sb, qa, 0)]
        extra = list(extra)
        if DENSE:
            c = [f"v_cvt_pk_bf16_f32 v{S[sb]+i}, v{S[sb]+2*i}, v{S[sb]+2*i+1}" for i in range(8)]
            grp, ie, ic, last = [], 0, 0, ""
            for g_ in os.environ.get("DG", "eee|eceec|eecec|eec|eece|eecc").split("|"):
                cur = []
                for ch in g_:
                    if ch == "e": cur.append(e[ie]); ie += 1
                    else:
                        assert ie >= 2*ic + 2 and not (last == "e" and ie == 2*ic + 2), "cvt too early"
                        cur.append(c[ic]); ic += 1
                    last = ch
                if len(grp) < 4: last = "m"
                grp.append(cur)
                if len(grp) == 4: assert ic >= 4 and (ic > 4 or cur[-1].startswith("v_exp") and cur[-2].startswith("v_exp"))
            assert ie == 16 and ic == 8 and len(grp) == 6
        else:
            grp, k = [], 0
            for i in range(6): grp.append(e[k:k+PAT[i]]); k += PAT[i]
        for i in range(6):
            if pre.get(i): a(pre[i])
            elif m[i]:
                if FILL: a(FILL.pop(0))
                elif "n" not in ATX: a("s_nop 0")
            if m[i]: a(m[i])
            a(grp[i])
            ne = (len(extra) + 5 - i) // (6 - i)
            a(extra[:ne]); extra = extra[ne:]
    def stage(hooks, pres, first, barwait):
        KA = [None, VT+2, VT+3, VT+4]
        for kt in range(8):
            for qa in range(2):
                n = 2*kt + qa
                pre = {i: [] for i in range(6)}
                if n in hooks: hooks[n]()
                kr = lambda t: PKB[t] if first and t < 2 else KF[t % 2]
                vr_ = lambda t: PKB[t] + 8 if first and 0 <= t < 2 else VF[t % 2]
                if qa == 0:
                    if kt == 7:
                        barwait()
                        pre[0] += [f"v_xor_b32 v{VKV}, 0x10000, v{VKV}", "s_nop 0"]
                    elif not (first and kt < 2):
                        pre[0] += ["s_waitcnt lgkmcnt(0)"]
                    if first and kt < 7:
                        if kt >= 1:
                            t_ = kt + 1
                            pre[1] += [x.replace(f"v{VKV} ", f"v{KA[t_//2]} ") for x in rdK(t_ % 2, t_ % 2)]
                            pre[4] += [x.replace(f"v{VKV} ", f"v{KA[t_//2]} ") for x in rdV(t_ % 2, t_ % 2)]
                    else:
                        pre[1] += rdK((kt+1) % 8, (kt+1) % 2)
                        pre[4] += rdV((kt+1) % 8, (kt+1) % 2)
                elif not (first and kt == 0):
                    pre[0] += ["s_waitcnt lgkmcnt(2)"]
                for i, L in pres.get(n, {}).items(): pre[i] += L
                slot(n % 4, qa, (kr(kt + qa) if kt + qa < 8 else KF[0], 1 - qa), None if first and n == 0 else (vr_(kt - 1 + qa), 1 - qa), vr_(kt), pre)
        assert not FILL
    NPUB, NPOLL = OPT("NPUB", 4), OPT("NPOLL", 8)
    ST0 = os.environ.get("ST0", "") == "1"
    def h_pub():
        a("s_waitcnt vmcnt(0)"); a(flagst(FOFF+1, S_FL))
        if ST0: stamp(a, 4)
    def h_poll0():
        poll("L_poll0", S_FL, f"s[{MSK}:{MSK+1}]")
        a(f"s_mov_b32 s{S_IT}, 0\ns_mov_b32 s{MSK}, 0xff00ff00\ns_mov_b32 s{MSK+1}, s{MSK}"); a(blk())
        if ST0: stamp(a, 5)
    def bw0():
        a("s_waitcnt vmcnt(3) lgkmcnt(0)\ns_barrier")
        stamp_stage(a, "0")
        if ST0: stamp(a, 6)
    G = dma2()
    pres = {NPOLL + i: {2: G[3*i], 3: G[3*i+1], 5: G[3*i+2] if 3*i+2 < 8 else []} for i in range(3)}
    for i, n_ in enumerate((11, 12, 13, 15)): pres.setdefault(n_, {})[3] = [kvstores[4 + i]]
    stage({2: lambda: a("s_waitcnt lgkmcnt(0)\ns_barrier"), NPUB: h_pub, NPOLL: h_poll0}, pres, True, bw0)
    a(f"s_mov_b32 s{S_IT}, 1")
    a.raw(".p2align 6")
    a.label("L_at")
    def rare(lab, cond, body):
        if OPT("OOL", 0):
            a(cond); a(f"s_cbranch_scc1 {lab}"); a.label(lab + "_ret"); RARE.append((lab, body, lab + "_ret"))
        else:
            a(cond); a(f"s_cbranch_scc0 {lab}_skip")
            body() if callable(body) else a(body)
            a.label(lab + "_skip")
    it13 = [f"s_andn2_b32 s{S_T}, s{S_IT}, 2", f"s_cmp_eq_u32 s{S_T}, 1"]
    def h_ld():
        rare("L_r_ld", it13, [f"buffer_load_dwordx2 v[{PDAT}:{PDAT+1}], v{FOFF}, s[36:39], s{S_FL} offen sc1"])
        b = blk()
        FILL.extend([b[i:i+2] for i in range(0, len(b), 2)])
    def h_dma():
        def body():
            poll("L_poll2", S_FL, f"s[{MSK}:{MSK+1}]", True)
            a(f"s_mov_b64 s[{MSK}:{MSK+1}], 0")
        rare("L_r_poll", it13, body)
    def h_pfwo():
        rare("L_r_pfwo", [f"s_cmp_eq_u32 s{S_IT}, {OPT('PFWIT', 4)}"], f"""
        s_and_b32 s{S_T}, s{S_A}, 3
        s_lshl_b32 s{S_T}, s{S_T}, 3
        s_add_u32 s{S_T}, s{S_T}, s{S_W}
        s_lshl_b32 s{S_T}, s{S_T}, 16
        v_lshrrev_b32 v{VT}, 1, v0
        v_lshlrev_b32 v{VT}, 11, v{VT}
        v_and_b32 v{VT+1}, 1, v0
        v_lshl_add_u32 v{VT}, v{VT+1}, 7, v{VT}
        buffer_load_dword v{VT+1}, v{VT}, s[12:15], s{S_T} offen {os.environ.get('NTO', '')}
        """ + (f"""
        s_getpc_b64 s[60:61]
        v_and_b32 v{VT}, 15, v0
        s_lshl_b32 s{S_T}, s{S_W}, 4
        v_add_u32 v{VT}, s{S_T}, v{VT}
        v_lshlrev_b32 v{VT}, 7, v{VT}
        v_min_u32 v{VT}, {OPT("IPF2MAX", 10000)}, v{VT}
        global_load_dword v{VT+1}, v{VT}, s[60:61]
        """ if OPT("IPF2", 0) else ""))
    def bw1():
        a("s_waitcnt vmcnt(0) lgkmcnt(0)\ns_barrier" if not OPT("NOBAR", 0) else "s_waitcnt vmcnt(0) lgkmcnt(0)")
        rare("L_r_pub1", [f"s_cmp_eq_u32 s{S_IT}, 1"], flagst(FOFF+1, S_FL, 64))
        stamp_stage(a, f"s{S_IT}")
    G = dma2()
    pres = {3 + i: {2: G[2*i], 5: G[2*i+1]} for i in range(4)}
    hk = {0: h_ld, 15: h_pfwo, 3: h_dma}
    PA = os.environ.get("PRIOALT", "4,9")
    if PA:
        def flip(lab, wh):
            def f(): a(f"s_setprio 0\ns_cmp_eq_u32 s{S_WH}, {wh}\ns_cbranch_scc0 {lab}\ns_setprio 1"); a.label(lab)
            return f
        for k_, x in enumerate(PA.split(",")):
            assert 4 <= int(x) <= 14
            hk[int(x)] = flip(f"L_pa{k_}", k_ % 2)
    stage(hk, pres, False, bw1)
    a(f"""
    s_add_u32 s{S_IT}, s{S_IT}, 1
    s_cmp_lt_u32 s{S_IT}, 7
    s_cbranch_scc1 L_at
    """)
    S_OO, S_FO, S_BAD = 47, 49, 60
    VOA = VT + 6
    setup7 = f"""
    s_mov_b32 s8, s12
    s_mov_b32 s9, s13
    s_mov_b32 s10, s14
    s_lshl_b32 s{S_SO}, s{S_W}, 16
    s_add_u32 s{S_SO2}, s{S_SO}, 32768
    s_mov_b32 s{S_ST1}, 7168
    v_lshrrev_b32 v{VDE}, 4, v0
    v_lshlrev_b32 v{VDO}, 1, v{VDE}
    v_and_b32 v{VT}, 15, v0
    v_xor_b32 v{VDO}, v{VDO}, v{VT}
    v_lshlrev_b32 v{VDE}, 11, v{VDE}
    v_lshl_add_u32 v{VDE}, v{VDO}, 4, v{VDE}
    v_xor_b32 v{VDO}, 128, v{VDE}
    s_lshl_b32 s{S_T}, s{S_P}, 3
    s_add_u32 s{S_T}, s{S_T}, s{S_B}
    s_lshl_b32 s{S_T}, s{S_T}, 2
    s_add_u32 s{S_T}, s{S_T}, s{S_WR}
    s_lshl_b32 s{S_FO}, s{S_T}, 8
    s_lshl_b32 s{S_OO}, s{S_T}, 17
    s_bfe_u32 s{S_T}, s{S_HB}, 0x50012
    s_lshl_b32 s{S_GRP}, s{S_T}, 3
    s_add_u32 s{S_FO}, s{S_FO}, s{S_GRP}
    s_add_u32 s{S_FO}, s{S_FO}, {FO}
    s_lshl_b32 s{S_T}, s{S_T}, 11
    s_add_u32 s{S_OO}, s{S_OO}, s{S_T}
    s_add_u32 s{S_OO}, s{S_OO}, {OWS}
    s_add_u32 s{S_OO+1}, s{S_OO}, 65536
    v_and_b32 v{VOA}, 15, v0
    v_lshlrev_b32 v{VOA}, 4, v{VOA}
    v_lshrrev_b32 v{VOA+1}, 5, v0
    v_lshl_add_u32 v{VOA}, v{VOA+1}, 8, v{VOA}
    v_bfe_u32 v{VOA+1}, v0, 4, 1
    v_lshl_add_u32 v{VOA}, v{VOA+1}, 10, v{VOA}
    """.strip().split("\n")
    OPK = [PK, PK + 8]
    def lbcast(qt):
        if RSZ < 2: return []
        return [f"v_mov_b32 v{LA[qt]+1}, v{LA[qt]}", "s_nop 1", f"v_permlane32_swap_b32 v{LA[qt]}, v{LA[qt]+1}"]
    def check(qt):
        t = VT + 2*qt
        o = O[qt]
        return (lbcast(qt) + [f"v_pk_mul_f32 v[{t}:{t+1}], v[{o}:{o+1}], 0"] +
                [f"v_pk_fma_f32 v[{t}:{t+1}], v[{o+i}:{o+i+1}], 0, v[{t}:{t+1}]" for i in range(2, 16, 2)] +
                [f"v_add_f32 v{t}, v{t}, v{t+1}", f"v_add_f32 v{t}, v{t}, v{LA[qt]}", f"v_cmp_gt_f32 s[{S_BAD+2*qt}:{S_BAD+2*qt+1}], s58, v{t}"])
    def finish(qt):
        t = VT + 2*qt
        o = O[qt]
        return ([f"v_rcp_f32 v{t}, v{LA[qt]}", "s_nop 0"] +
                [f"v_pk_mul_f32 v[{o+i}:{o+i+1}], v[{o+i}:{o+i+1}], v[{t}:{t+1}] op_sel_hi:[1,0]" for i in range(0, 16, 2)] +
                [f"v_cvt_pk_bf16_f32 v{OPK[qt]+i}, v{o+2*i}, v{o+2*i+1}" for i in range(8)] +
                [f"buffer_store_dwordx4 {vr(OPK[qt]+4*t_,4)}, v{VOA}, s[36:39], s{S_OO+qt} offen offset:{t_*512} {os.environ.get('KVPOL', 'sc1')}" for t_ in range(2)])
    OA, OB = 244, 245
    WA3 = [[248, 249, 250, 251], [252, 253, 254, 255]]
    FO_ = [[16 + 16*buf + 4*i for i in range(4)] for buf in range(2)]
    FW3 = [[48 + 16*buf + 4*nb for nb in range(4)] for buf in range(2)]
    AC3 = [[80 + 16*i + 4*nb for nb in range(4)] for i in range(4)]
    RX = 144
    T3 = 176
    S_INC, S_M3, S_ME, S_MS, S_R3, S_C3, S_F3, S_O3 = 52, 53, 54, 55, 56, 57, 100, 59
    setup3 = f"""
    s_bfe_u32 s{S_R3}, s{S_W}, 0x10001
    s_and_b32 s{S_C3}, s{S_W}, 1
    s_lshl_b32 s{S_T}, s{S_P}, 4
    s_add_u32 s{S_T}, s{S_T}, s{S_A}
    s_lshl_b32 s{S_T}, s{S_T}, 2
    s_add_u32 s{S_T}, s{S_T}, s{S_WR}
    s_lshr_b32 s{S_F3}, s{S_T}, 1
    s_lshl_b32 s{S_F3}, s{S_F3}, 8
    s_add_u32 s{S_F3}, s{S_F3}, {FO}
    s_lshl_b32 s{S_T}, s{S_T}, 16
    s_add_u32 s{S_T}, s{S_T}, {OWS}
    s_add_u32 s60, s32, s{S_T}
    s_addc_u32 s61, s33, 0
    s_lshl_b32 s{S_M3}, s{S_WR}, 12
    s_lshl_b32 s{S_O3}, s{S_WR}, 15
    s_add_u32 s{S_O3}, s{S_O3}, {6*131072}
    s_cmp_eq_u32 s{S_WH}, 0
    s_cselect_b64 vcc, -1, 0
    s_cselect_b32 s8, s60, s12
    s_cselect_b32 s9, s61, s13
    s_cselect_b32 s10, 0x10000, s14
    s_cselect_b32 s{S_O3}, 0, s{S_O3}
    s_cselect_b32 s{S_ST1}, 0, 7168
    s_cselect_b32 s{S_INC}, 12, 17
    s_lshl_b32 s{S_INC}, 1, s{S_INC}
    v_lshlrev_b32 v{T3+1}, 4, v0
    v_cndmask_b32 v{VDE}, v{VDE}, v{T3+1}, vcc
    v_cndmask_b32 v{VDO}, v{VDO}, v{T3+1}, vcc
    s_lshl_b32 s{S_T}, s{S_R3}, 1
    s_add_u32 s{S_T}, s{S_T}, s{S_WH}
    s_lshl_b32 s{S_T}, s{S_T}, 1
    s_add_u32 s{S_T}, s{S_T}, s{S_WH}
    s_lshl_b32 s{S_T}, s{S_T}, 11
    s_add_u32 s{S_T}, s{S_T}, 65536
    v_add_u32 v{OA}, s{S_T}, v{T3+1}
    v_xor_b32 v{OB}, 4096, v{OA}
    v_bfe_u32 v{T3}, v0, 2, 3
    v_lshrrev_b32 v{T3+1}, 5, v0
    v_lshl_add_u32 v{T3+1}, v{T3+1}, 4, v{T3}
    s_lshl_b32 s{S_T}, s{S_WH}, 5
    v_add_u32 v{T3+1}, s{S_T}, v{T3+1}
    v_lshlrev_b32 v{T3+1}, 8, v{T3+1}
    v_bfe_u32 v{T3+2}, v0, 1, 1
    s_lshl_b32 s{S_T}, s{S_C3}, 3
    v_add_u32 v{T3+2}, s{S_T}, v{T3+2}
    v_lshlrev_b32 v{T3}, 1, v{T3}
    v_xor_b32 v{T3+2}, v{T3+2}, v{T3}
    v_lshl_add_u32 v{T3+1}, v{T3+2}, 4, v{T3+1}
    v_and_b32 v{T3+2}, 1, v0
    v_lshl_add_u32 v{WA3[0][0]}, v{T3+2}, 3, v{T3+1}
    v_and_b32 v{FOFF}, 31, v0
    v_lshlrev_b32 v{FOFF}, 3, v{FOFF}
    """.replace(f"v{T3+2}", f"v{VT+5}").replace(f"v{T3+1}", f"v{VT+4}").replace(f"v{T3}", f"v{VT+3}").strip().split("\n")
    setup3 += [f"v_xor_b32 v{WA3[0][nb]}, {32*nb}, v{WA3[0][0]}" for nb in range(1, 4)]
    setup3 += [f"v_add_u32 v{WA3[1][nb]}, 0x20000, v{WA3[0][nb]}" for nb in range(4)]
    NS3 = next(i for i, x in enumerate(setup3) if 'v_bfe_u32' in x)
    seq = [(0, 0), (0, 1)] + [(k_, 0) for k_ in range(1, 8)] + [(k_, 1) for k_ in range(1, 8)]
    KB, VB = [0], [0]
    for m_ in range(1, 16):
        flip = seq[m_][0] != seq[m_-1][0]
        KB.append(KB[-1] ^ flip); VB.append(VB[-1] ^ flip)
    G = dma2()
    for m_ in range(16):
        stamp_stage(a, "7") if m_ == 14 else None
        pre = {i: [] for i in range(6)}
        pre[0] += ["s_waitcnt lgkmcnt(0)"]
        if m_ + 2 < 16 and seq[m_+2][0] != seq[m_+1][0]: pre[1] += rdK(seq[m_+2][0], KB[m_+2])
        if m_ + 1 < 16 and seq[m_+1][0] != seq[m_][0]: pre[4] += rdV(seq[m_+1][0], VB[m_+1])
        extra = []
        if m_ == 0: extra = setup7[:13] + ["s_mov_b32 s58, 0x5f800000"]
        if m_ == 1: extra = setup7[13:]
        if 2 <= m_ <= 5: pre[2] += G[2*(m_-2)]; pre[5] += G[2*(m_-2)+1]
        if m_ == 6:
            pre[2] += [f"s_lshl_b32 s{S_T}, s{S_W}, 12", f"s_add_u32 m0, s{S_T}, 131072", f"s_lshl_b32 s{S_SO}, s{S_W}, 15", f"s_add_u32 s{S_SO}, s{S_SO}, {4*131072}"]
        if m_ in (6, 7):
            for i_, j_ in ((3, 2*(m_-6)), (5, 2*(m_-6)+1)):
                pre[i_] += [f"buffer_load_dwordx4 v{VDE if j_%2==0 else VDO}, s[8:11], s{S_SO} offen offset:{j_*1024} lds", f"s_add_u32 s{S_SO}, s{S_SO}, s{S_ST1}"]
        if m_ == 8: extra = setup3[:NS3 // 2]
        if m_ == 9: extra = setup3[NS3 // 2:NS3]
        if m_ == 12: extra = setup3[NS3:]
        if m_ == 15: pre[3] += [f"buffer_load_dwordx2 v[{PDAT}:{PDAT+1}], v{FOFF}, s[36:39], s{S_F3} offen sc1"]
        if m_ == 10: extra = check(0)
        if m_ == 11: extra = finish(0)
        slot(m_ % 4, seq[m_][1], (KF[KB[m_+1]], seq[m_+1][1]) if m_ < 15 else None,
             (VF[VB[m_-1]], seq[m_-1][1]) if m_ else (VF[1], 1), VF[VB[m_]], pre, extra)
    a("s_nop 1")
    a(pv(3, VB[15], 1, 1)); a(rs(3, 1, 1))
    if not ST0: stamp(a, 4)
    if ST3: stamp(a, 1, True)
    a("s_nop 7\ns_nop 3")
    a(check(1))
    a(f"""
    s_and_b64 vcc, s[{S_BAD}:{S_BAD+1}], s[{S_BAD+2}:{S_BAD+3}]
    s_cmp_eq_u64 vcc, exec
    s_cbranch_scc0 L_fallback
    """)
    a.label("L_fin")
    a(finish(1))
    def wslot(i): return i*16384 if i < 4 else 131072 + (i-4)*16384
    def dma3(mo, mw):
        G = []
        for j in range(4):
            g = []
            if j == 0:
                if mw is None: g += [f"s_add_u32 m0, s{S_M3}, {mo}"]
                else: g += [f"s_cmp_eq_u32 s{S_WH}, 0", f"s_mov_b32 s{S_T}, {mw}", f"s_cmov_b32 s{S_T}, {mo}", f"s_add_u32 m0, s{S_M3}, s{S_T}"]
                g += [f"s_mov_b32 s{S_SO}, s{S_O3}"]
            g.append(f"buffer_load_dwordx4 v{VDE if j%2==0 else VDO}, s[8:11], s{S_SO} offen offset:{j*1024} sc1 lds")
            g.append(f"s_add_u32 s{S_SO}, s{S_SO}, s{S_ST1}" if j < 3 else f"s_add_u32 s{S_O3}, s{S_O3}, s{S_INC}")
            G.append(g)
        return G
    GM = 62
    def gmask(k): return [f"s_mov_b32 s{GM}, {~(0xff << 8*k) & 0xffffffff:#x}", f"s_mov_b32 s{GM+1}, s{GM}"]
    fld = f"buffer_load_dwordx2 v[{PDAT}:{PDAT+1}], v{FOFF}, s[36:39], s{S_F3} offen sc1"
    a("s_barrier")
    if ST3: stamp(a, 2, True)
    a(f"s_cmp_lg_u32 s{S_WH}, 0\ns_cbranch_scc1 L_p3W")
    a(gmask(0))
    a(f"""
    s_waitcnt vmcnt(2)
    v_cmp_eq_u64 vcc, s[{NON}:{NON+1}], v[{PDAT}:{PDAT+1}]
    s_mov_b32 s60, 1
    s_or_b64 vcc, vcc, s[{GM}:{GM+1}]
    s_cmp_eq_u64 vcc, exec
    s_cbranch_scc1 L_known
    s_mov_b32 s60, 0
    s_waitcnt vmcnt(0)
    """)
    a(flagst(ZERO, S_FO))
    poll("L_pollo", S_F3, f"s[{GM}:{GM+1}]")
    a.label("L_known")
    if ST3: stamp(a, 3, True)
    for st in range(4):
        if st == 2: a(fld)
        for g in dma3(65536 + st*16384, None): a(g)
    a("s_waitcnt vmcnt(13)\ns_cmp_eq_u32 s60, 0\ns_cbranch_scc1 L_p3go")
    a(flagst(ZERO, S_FO))
    a("s_branch L_p3go")
    a.label("L_p3W")
    if ST3: stamp(a, 3, True)
    a("s_waitcnt vmcnt(0)")
    a(flagst(ZERO, S_FO))
    a.label("L_p3go")
    if ST3: stamp(a, 4, True)
    a("s_barrier")
    if OPT("G3PRIO", "") == "0": a("s_setprio 0")
    if not ST0: stamp(a, 5)
    def reads3(s, buf):
        ws_, os_ = s % 6, s % 4
        O_ = [f"ds_read_b128 {vr(FO_[buf][i],4)}, v{OA if i < 2 else OB} offset:{os_*16384 + (i%2)*1024}" for i in range(4)]
        W_ = [f"ds_read_b64_tr_b16 {vr(FW3[buf][nb]+2*u,2)}, v{WA3[ws_//4][nb]} offset:{(ws_%4)*16384 + u*2048}" for nb in range(4) for u in range(2)]
        return W_[0:2] + O_ + W_[2:]
    def mfmas3(buf, first=False, last=False):
        L = [mf16(AC3[i][nb], FW3[buf][nb], FO_[buf][i]) for nb in range(4) for i in range(4)]
        o = os.environ.get("ORD3", "i") if not last else ""
        if o == "i": L = [L[4*(nb if i % 2 == 0 else 3 - nb) + i] for i in range(4) for nb in range(4)]
        if o == "snake": L = [L[4*nb + (i if nb % 2 == 0 else 3 - i)] for nb in range(4) for i in range(4)]
        return [x[:x.rindex(",")] + ", 0" for x in L] if first else L
    a(reads3(0, 0))
    fin_setup = f"""
    s_lshl_b32 s{S_T}, s{S_WH}, 3
    s_add_u32 s{S_T}, s{S_T}, s{S_WR}
    s_lshl_b32 s{S_T}, s{S_T}, 13
    v_lshlrev_b32 v{T3}, 4, v0
    v_add_u32 v{T3}, s{S_T}, v{T3}
    v_xor_b32 v{T3+1}, 0x10000, v{T3}
    s_mov_b32 s12, s28
    s_mov_b32 s13, s29
    s_mov_b32 s14, 0x800000
    s_lshl_b32 s{S_T}, s{S_A}, 2
    s_lshl_b32 s{S_SO}, s{S_R3}, 1
    s_add_u32 s{S_T}, s{S_T}, s{S_SO}
    s_add_u32 s{S_T}, s{S_T}, s{S_WH}
    s_lshl_b32 s{S_T}, s{S_T}, 17
    s_lshl_b32 s{S_SO}, s{S_P}, 11
    s_add_u32 s{S_T}, s{S_T}, s{S_SO}
    s_lshl_b32 s{S_SO}, s{S_B}, 8
    s_add_u32 s{S_T}, s{S_T}, s{S_SO}
    s_lshl_b32 s{S_SO}, s{S_C3}, 7
    s_add_u32 s{S_SO}, s{S_T}, s{S_SO}
    s_add_u32 s{S_SO+1}, s{S_SO}, 65536
    v_and_b32 v{T3+2}, 15, v0
    v_lshlrev_b32 v{T3+2}, 12, v{T3+2}
    v_bfe_u32 v{T3+3}, v0, 4, 1
    v_lshl_add_u32 v{T3+2}, v{T3+3}, 5, v{T3+2}
    v_lshrrev_b32 v{T3+3}, 5, v0
    v_lshl_add_u32 v{T3+2}, v{T3+3}, 4, v{T3+2}
    """.strip().split("\n")
    for s in range(16):
        if s < 15:
            a(f"s_waitcnt vmcnt({8 if s <= 12 else 4 if s == 13 else 0}) lgkmcnt(0)\ns_barrier")
            if s % 2 == 0: stamp_stage(a, str(s // 2), 3)
            if s in (0, 4, 8):
                a(gmask(s // 4 + 1))
                a(f"""
                v_cmp_eq_u64 vcc, s[{NON}:{NON+1}], v[{PDAT}:{PDAT+1}]
                s_or_b64 vcc, vcc, s[{GM}:{GM+1}]
                s_cmp_eq_u64 vcc, exec
                s_cbranch_scc1 L_grp{s}_done
                s_cmp_lg_u32 s{S_WH}, 0
                s_cbranch_scc1 L_grp{s}_done
                """)
                poll(f"L_grp{s}", S_F3, f"s[{GM}:{GM+1}]")
            r = reads3(s + 1, 1 - s % 2)
            f = {}
            for k_, x in enumerate(r): f.setdefault(min(15, int(k_ * OPT("S3", 1.0))), []).append(x)
            if s <= 11:
                d = dma3(65536 + (s % 4)*16384, wslot(s % 6))
                if s in (2, 6): d[0] = [fld] + d[0]
                for k_, i in enumerate([int(x) for x in os.environ.get("D3POS", "0,4,8,12").split(",")]): f[i] = f.get(i, []) + d[k_]
            if s == 14:
                for i in range(14): f[i] = f.get(i, []) + fin_setup[2*i:2*i+2]
            a(weave(mfmas3(s % 2, s == 0), f))
        else:
            a("s_waitcnt lgkmcnt(0)")
            m = mfmas3(1, False, True)
            order = [k_ for k_ in range(16) if k_ % 4 >= 2] + [k_ for k_ in range(16) if k_ % 4 < 2]
            mm = [m[k_] for k_ in order]
            a(mm[:8])
            wr_ = {2*(j % 4) + j//4: f"ds_write_b128 v{T3}, {vr(AC3[2][0]+4*j,4)} offset:{j*1024}" for j in range(8)}
            for k_ in range(8): a(mm[8 + k_]); a(wr_[k_])
    if not ST0: stamp(a, 6)
    a("s_waitcnt lgkmcnt(0)\ns_barrier")
    for j in range(8): a(f"ds_read_b128 {vr(RX+4*j,4)}, v{T3+1} offset:{j*1024}")
    prev = None
    for j in range(5):
        if j < 4:
            qb, np_ = j // 2, j % 2
            t0 = AC3[qb][2*np_]
            a(f"s_waitcnt lgkmcnt({6 - 2*j})")
            for i in range(0, 8, 2): a(f"v_pk_add_f32 v[{t0+i}:{t0+i+1}], v[{t0+i}:{t0+i+1}], v[{RX+8*j+i}:{RX+8*j+i+1}]")
            cur = (16 + 4*j, qb, np_)
            a(pack2(cur[0], t0, t0 + 4))
        else:
            cur = None; a("s_nop 1")
        if prev:
            a(swap2(prev[0]))
            a(f"buffer_store_dwordx4 {vr(prev[0],4)}, v{T3+2}, s[12:15], s{S_SO+prev[1]} offen offset:{prev[2]*64} {os.environ.get('OUTPOL', 'sc0 sc1')}")
        prev = cur
    stamp_flush(a, 7, 1)
    a.label("L_end")
    a("s_endpgm")
    for lab, body, ret in RARE:
        a.label(lab)
        body() if callable(body) else a(body)
        a(f"s_branch {ret}")
    MX = [VT, VT+2]
    a.label("L_fallback")
    a(f"""
    v_mov_b32 v{MX[0]}, 0xff800000
    v_mov_b32 v{MX[1]}, 0xff800000
    s_mov_b32 s{S_IT}, 0
    s_waitcnt vmcnt(0) lgkmcnt(0)
    """)
    a.label("L_fb_max")
    a(f"s_add_u32 s{S_T}, s{S_IT}, s{S_HB}")
    for t in range(2): a(f"buffer_load_dwordx4 {vr(KF[0]+4*t,4)}, v{VD}, s[36:39], s{S_T} offen offset:{t*1024} sc1")
    a("s_waitcnt vmcnt(0)")
    a(qk(0, 0, 0, "0")); a(qk(1, 0, 1, "0"))
    a("s_nop 15")
    for qt in range(2):
        for i in range(0, 16, 2): a(f"v_max3_f32 v{MX[qt]}, v{MX[qt]}, v{S[qt]+i}, v{S[qt]+i+1}")
    a(f"""
    s_add_u32 s{S_IT}, s{S_IT}, 4096
    s_cmp_lt_u32 s{S_IT}, 0x40000
    s_cbranch_scc1 L_fb_max
    """)
    max_to_nm(MX[0], 0); max_to_nm(MX[1], 1)
    for i in range(O[0], LA[1] + 4, 2): a(f"v_mov_b64 v[{i}:{i+1}], 0")
    a(f"s_mov_b32 s{S_IT}, 0")
    a.label("L_fb_main")
    a(f"s_add_u32 s{S_T}, s{S_IT}, s{S_HB}")
    for t in range(2): a(f"buffer_load_dwordx4 {vr(KF[0]+4*t,4)}, v{VD}, s[36:39], s{S_T} offen offset:{t*1024} sc1")
    for t in range(2): a(f"buffer_load_dwordx4 {vr(VF[0]+4*t,4)}, v{VD}, s[36:39], s{S_T} offen offset:{2048+t*1024} sc1")
    a("s_waitcnt vmcnt(0)")
    a(qk(0, 0, 0)); a(qk(1, 0, 1))
    a("s_nop 15")
    for qt in range(2):
        for i in range(16): a(f"v_exp_f32 v{S[qt]+i}, v{S[qt]+i}")
    a("s_nop 1")
    if DENSE:
        for qt in range(2):
            for i in range(8): a(f"v_cvt_pk_bf16_f32 v{S[qt]+i}, v{S[qt]+2*i}, v{S[qt]+2*i+1}")
        a("s_nop 1")
    for qt in range(2):
        for t in range(2):
            a(pv(qt, 0, qt, t))
            if rs(qt, qt, t): a(rs(qt, qt, t))
    a(f"""
    s_add_u32 s{S_IT}, s{S_IT}, 4096
    s_cmp_lt_u32 s{S_IT}, 0x40000
    s_cbranch_scc1 L_fb_main
    s_nop 15
    """)
    a(lbcast(0) + lbcast(1))
    a(finish(0))
    a("s_branch L_fin")
    return f""".p2align 6
.amdhsa_kernel {name}
  .amdhsa_next_free_vgpr {NV}
  .amdhsa_next_free_sgpr 102
  .amdhsa_accum_offset {NV}
  .amdhsa_group_segment_fixed_size 0
  .amdhsa_kernarg_size 72
  .amdhsa_user_sgpr_count 2
  .amdhsa_user_sgpr_kernarg_segment_ptr 1
  .amdhsa_system_sgpr_workgroup_id_x 1
.end_amdhsa_kernel"""

DOC = """
;
"""

def main():
    out = sys.argv[1] if len(sys.argv) > 1 else f"cdna_kernels/{NAME}.s"
    a = Asm()
    k = gen(a)
    hdr = open(f"cdna_kernels/{NAME}.s.ref").read().split("\n")
    hdr = [l for l in hdr if l.startswith(";") and "@launch" not in l]
    hdr.append(f"; @launch grid=(256,1,1) block=(512,1,1) lds={LDS_BYTES}")
    hdr += DOC.strip("\n").split("\n")
    txt = "\n".join(hdr) + '\n.amdgcn_target "amdgcn-amd-amdhsa--gfx950"\n.text\n' + a.text() + '\n.section .rodata,"a"\n' + k + "\n"
    open(out, "w").write(txt)

if __name__ == "__main__":
    main()
```

```python
import sys, math, os, struct
from gen2 import Asm, vr, f2u, mf32, mf16, weave, NAME

STAMP = os.environ.get("STAMP", "0") == "1"
def OPT(k, d): return type(d)(os.environ.get(k, d))

KVWS = 0
OWS = 16 << 20
FKV = 24 << 20
FO = FKV + 65536
WS_BYTES = 25 << 20
STAMP_BASE = 64 << 20
CSCALE = math.log2(math.e) / math.sqrt(32.0)
LDS_BYTES = 163840
SPIN_MAX = 1 << 16

S_W, S_P, S_A, S_B, S_T = 3, 4, 5, 6, 7
S_WR, S_WH, S_IT = 40, 41, 42
NON = 34

ST3 = os.environ.get("ST3", "") == "1"
STG = os.environ.get("STG", "") == "1"
STG1 = {"1": True, "3": 3}.get(os.environ.get("STG1", ""), False)
def stamp_stage(a, lane, g1=False):
    if STG and g1 == STG1:
        a(f"s_memtime s[92:93]\ns_memrealtime s[94:95]\ns_lshl_b64 exec, 1, {lane}\ns_waitcnt lgkmcnt(0)\nv_mov_b32 v14, s92\nv_mov_b32 v15, s94\ns_mov_b64 exec, -1")
def stamp(a, i, alt=False):
    if ST3 and i in (1, 2, 3, 4) and not alt: return
    if STAMP and not STG:
        a(f"s_memtime s[{64+4*i}:{65+4*i}]")
        a(f"s_memrealtime s[{66+4*i}:{67+4*i}]")
        a("s_waitcnt lgkmcnt(0)")
def stamp_flush(a, n, vt):
    if not STAMP: return
    a("s_waitcnt vmcnt(0) lgkmcnt(0)")
    stamp(a, n)
    a(f"""
    s_add_u32 s56, s32, {STAMP_BASE}
    s_addc_u32 s57, s33, 0
    s_mov_b32 s58, 0x100000
    s_mov_b32 s59, 0x20000
    s_lshl_b32 s60, s2, 3
    s_add_u32 s60, s60, s{S_W}
    s_lshl_b32 s60, s60, 6
    v_mov_b32 v{vt}, 0
    """)
    if STG:
        a(f"v_lshlrev_b32 v{vt}, 3, v0\ns_mov_b64 exec, 0xff\nbuffer_store_dwordx2 v[14:15], v{vt}, s[56:59], s60 offen")
        return
    for i in range(n + 1):
        a(f"v_mov_b32 v{vt+1}, s{64+4*i}")
        a(f"v_mov_b32 v{vt+2}, s{66+4*i}")
        a(f"buffer_store_dwordx2 v[{vt+1}:{vt+2}], v{vt}, s[56:59], s60 offen offset:{8*i}")
        a("s_nop 1")

DENSE = "d" in os.environ.get("ATX", "")
def gen(a):
    name = NAME + "_kernel"
    a.raw(f".globl {name}\n.p2align 8\n.type {name},@function\n{name}:")
    stamp(a, 0)
    RARE = []
    def emit(L):
        for x in L:
            a(x)
            if " m0," in x: a("s_nop 0")
    PKB = [48, 32]; Q = [16, 24]; PK = 32; KF = [64, 72]; VF = [80, 88]; NM = [96, 112]; S = [128, 144, 160, 176]
    O = [192, 208]; LA = [224, 228]; ONES = 232; IDX = 236; ZERO = 237
    FDAT, FOFF, PDAT = 238, 240, 242
    XB = [244, 245]; VDE, VDO = 246, 247
    NV = 256
    def poll(lab, soff, mask=None, first_loaded=False):
        ld = f"buffer_load_dwordx2 v[{PDAT}:{PDAT+1}], v{FOFF}, s[36:39], s{soff} offen sc1"
        a(f"s_mov_b32 s{S_T}, {SPIN_MAX}")
        if not first_loaded: a(ld)
        a.label(lab)
        a(f"""
        s_waitcnt vmcnt(0)
        v_cmp_eq_u64 vcc, s[{NON}:{NON+1}], v[{PDAT}:{PDAT+1}]
        """)
        if mask: a(f"s_or_b64 vcc, vcc, {mask}")
        a(f"""
        s_cmp_eq_u64 vcc, exec
        s_cbranch_scc1 {lab}_done
        s_sub_u32 s{S_T}, s{S_T}, 1
        s_cbranch_scc1 {lab}_done
        s_sleep {OPT("PSLEEP", 8)}
        {ld}
        s_branch {lab}
        """)
        a.label(lab + "_done")
    XA = [2, 3]; WA = [4, 5]; D0, D1, D2, PFV, PFD = 6, 7, 8, 9, 10
    VT = 11
    FX = [[16 + 16*buf + 4*rb for rb in range(4)] for buf in range(2)]
    FW = [[48 + 24*buf + 4*cb for cb in range(6)] for buf in range(2)]
    ACC = [[96 + 16*cb + 4*rb for rb in range(4)] for cb in range(6)]
    S_KX, S_KW, T0, S_M0X, S_M0W, S_XF, S_XN, S_PFO, S_PFI = 43, 44, 45, 47, 48, 49, 50, 56, 57
    W0, W1 = 98304, 122880
    RSZ = OPT("RSZ", 2)
    NTW, NTX, NTP = os.environ.get("NTW", ""), os.environ.get("NTX", ""), os.environ.get("NTP", "")
    PF0, PFSTEP = OPT("PF0", 3), OPT("PFSTEP", 4)
    a(f"""
    s_cmp_ge_u32 s2, 256
    s_cbranch_scc1 L_end
    s_load_dwordx16 s[16:31], s[0:1], 0
    s_load_dwordx2 s[32:33], s[0:1], 64
    s_memrealtime s[{NON}:{NON+1}]
    v_lshrrev_b32 v1, 6, v0
    v_and_b32 v0, 63, v0
    v_readfirstlane_b32 s{S_W}, v1
    s_and_b32 s{S_T}, s2, 7
    s_lshr_b32 s{S_B}, s2, 3
    s_lshr_b32 s{S_P}, s{S_T}, 2
    s_and_b32 s{S_A}, s{S_T}, 3
    s_lshl_b32 s{S_A}, s{S_A}, 2
    s_and_b32 s{S_T}, s{S_B}, 3
    s_or_b32 s{S_A}, s{S_A}, s{S_T}
    s_lshr_b32 s{S_B}, s{S_B}, 2
    s_and_b32 s{S_WR}, s{S_W}, 3
    s_lshr_b32 s{S_WH}, s{S_W}, 2
    s_mul_i32 s{S_M0X}, s{S_WR}, 7
    s_add_u32 s{S_T}, s{S_WR}, 28
    s_cmp_eq_u32 s{S_WH}, 0
    s_cselect_b32 s{S_M0X}, s{S_T}, s{S_M0X}
    v_lshrrev_b32 v{VT}, 3, v0
    s_lshl_b32 s{S_T}, s{S_M0X}, 3
    v_add_u32 v{VT+4}, s{S_T}, v{VT}
    v_lshlrev_b32 v{VT+4}, 11, v{VT+4}
    v_and_b32 v{VT+1}, 7, v0
    v_lshrrev_b32 v{VT+2}, 4, v0
    v_xor_b32 v{VT+3}, v{VT+1}, v{VT+2}
    s_and_b32 s{S_T}, s{S_WR}, 1
    s_lshl_b32 s{S_T}, s{S_T}, 2
    v_xor_b32 v{VT+3}, s{S_T}, v{VT+3}
    v_lshl_add_u32 v{D2}, v{VT+3}, 4, v{VT+4}
    s_lshl_b32 s{S_M0X}, s{S_M0X}, 10
    s_lshl_b32 s{S_T}, s{S_WR}, 4
    v_add_u32 v{VT}, s{S_T}, v{VT}
    v_mul_u32_u24 v{VT}, 6144, v{VT}
    v_and_b32 v{VT+2}, 1, v{VT+2}
    v_lshlrev_b32 v{VT+2}, 2, v{VT+2}
    v_xor_b32 v{VT+3}, v{VT+1}, v{VT+2}
    v_lshl_add_u32 v{D0}, v{VT+3}, 4, v{VT}
    v_xor_b32 v{D1}, 32, v{D0}
    v_add_u32 v{D1}, 49152, v{D1}
    s_mul_i32 s{S_M0W}, s{S_WR}, 6144
    s_add_u32 s{S_M0W}, s{S_M0W}, {W0}
    s_mov_b32 s{S_KX}, 0
    s_mov_b32 s{S_KW}, 0
    s_mov_b32 s11, 0x20000
    s_mov_b32 s15, 0x20000
    s_mov_b32 s39, 0x20000
    s_mov_b32 s55, 0x20000
    v_mov_b32 v{ZERO}, 0
    s_waitcnt lgkmcnt(0)
    s_cmp_eq_u32 s{S_P}, 0
    s_cselect_b32 s8, s16, s22
    s_cselect_b32 s9, s17, s23
    s_cselect_b32 s12, s18, s24
    s_cselect_b32 s13, s19, s25
    s_lshl_b32 s{S_T}, s{S_B}, 19
    s_add_u32 s8, s8, s{S_T}
    s_addc_u32 s9, s9, 0
    s_sub_u32 s10, 0x400000, s{S_T}
    s_lshl_b32 s{S_T}, s{S_A}, 7
    s_add_u32 s12, s12, s{S_T}
    s_addc_u32 s13, s13, 0
    s_sub_u32 s14, 0x600000, s{S_T}
    s_cmp_lg_u32 s{S_WH}, 0
    s_cbranch_scc1 L_proB
    """)
    def burstW(stage):
        L = []
        for g in range(2):
            L.append(f"s_add_u32 m0, s{S_M0W}, {stage*(W1-W0) + g*3072}")
            for s_ in range(3):
                if s_: L.append(f"s_add_u32 s{T0+s_%2}, s{S_KW}, {s_*1024}")
                else: L.append("s_nop 0")
                L.append(f"buffer_load_dwordx4 v{D0+g}, s[12:15], s{T0+s_%2 if s_ else S_KW} offen offset:{s_*1024} {NTW} lds")
        L.append(f"s_add_u32 s{S_KW}, s{S_KW}, 393216")
        return L
    def burstXA(slot):
        return [f"s_add_u32 m0, s{S_M0X}, {slot}", "s_nop 0", f"buffer_load_dwordx4 v{D2}, s[8:11], s{S_KX} offen {NTX} lds", f"s_add_u32 s{S_KX}, s{S_KX}, 128"]
    def burstXB(slot):
        L = [f"s_add_u32 m0, s{S_M0X}, {slot}"]
        for j in range(7):
            if j == 4: L.append("s_add_u32 m0, m0, 4096")
            L.append(f"s_add_u32 s{T0+j%2}, s{S_KX}, {j*16384 - (j%4)*1024}")
            L.append(f"buffer_load_dwordx4 v{D2 if j%2==0 else D1}, s[8:11], s{T0+j%2} offen offset:{(j%4)*1024} {NTX} lds")
        L.append(f"s_add_u32 s{S_KX}, s{S_KX}, 128")
        return L
    a(burstW(0) + burstXA(0) + burstW(1) + burstXA(32768) + burstXA(65536))
    a(f"""
    s_or_b32 s{S_T}, s2, s{S_W}
    s_cmp_lg_u32 s{S_T}, 0
    s_cbranch_scc1 L_pro2
    s_mov_b32 s52, s30
    s_mov_b32 s53, s31
    s_mov_b32 s54, 256
    s_or_b32 s{NON}, s{NON}, 1
    v_mov_b32 v{FDAT}, s{NON}
    v_mov_b32 v{FDAT+1}, s{NON+1}
    s_mov_b64 exec, 1
    buffer_store_dwordx2 v[{FDAT}:{FDAT+1}], v{ZERO}, s[52:55], 0 offen sc1
    s_mov_b64 exec, -1
    s_branch L_pro2
    """)
    a.label("L_proB")
    a(f"v_xor_b32 v{D1}, 64, v{D2}")
    a(burstXB(0) + burstXB(32768))
    a.label("L_pro2")
    a(f"""
    s_lshl_b32 s{S_T}, s{S_B}, 2
    s_add_u32 s{S_T}, s{S_T}, s{S_WR}
    s_lshl_b32 s{S_T}, s{S_T}, 2
    v_and_b32 v{VT+1}, 3, v0
    v_add_u32 v{VT+1}, s{S_T}, v{VT+1}
    v_bfe_u32 v{VT+2}, v0, 4, {0 if OPT("PFHALF", 0) else 1}
    v_lshl_add_u32 v{VT+1}, v{VT+2}, 7, v{VT+1}
    v_mul_u32_u24 v{VT+1}, 6144, v{VT+1}
    v_bfe_u32 v{VT+2}, v0, 2, 2
    v_min_u32 v{VT+2}, 2, v{VT+2}
    v_lshl_add_u32 v{PFV}, v{VT+2}, 11, v{VT+1}
    s_mov_b32 s{S_PFO}, {393216 * PF0}
    s_and_b32 s{S_T}, s{S_A}, 3
    s_lshl_b32 s{S_T}, s{S_T}, 2
    s_add_u32 s{S_T}, s{S_T}, s{S_WR}
    s_lshl_b32 s{S_T}, s{S_T}, 4
    v_and_b32 v{VT}, 15, v0
    v_add_u32 v{VT}, s{S_T}, v{VT}
    v_lshlrev_b32 v{VT}, 11, v{VT}
    v_lshrrev_b32 v{VT+1}, 4, v0
    v_lshl_add_u32 v{VT}, v{VT+1}, 7, v{VT}
    s_cmp_eq_u32 s{S_WH}, 0
    s_cselect_b64 vcc, -1, 0
    s_cselect_b32 s{S_PFO}, {128 * OPT("PFX0", 4)}, s{S_PFO}
    v_cndmask_b32 v{PFV}, v{PFV}, v{VT}, vcc
    v_and_b32 v{VT}, 15, v0
    s_lshl_b32 s{S_T}, s{S_WR}, 6
    v_add_u32 v{VT}, s{S_T}, v{VT}
    v_lshlrev_b32 v{VT}, 7, v{VT}
    v_lshrrev_b32 v{VT+1}, 4, v0
    v_bfe_u32 v{VT+2}, v0, 1, 3
    v_xor_b32 v{VT+2}, v{VT+1}, v{VT+2}
    v_lshl_add_u32 v{XA[0]}, v{VT+2}, 4, v{VT}
    v_xor_b32 v{XA[1]}, 64, v{XA[0]}
    v_mov_b32 v{XB[0]}, v{XA[0]}
    v_mov_b32 v{XB[1]}, v{XA[1]}
    v_mul_u32_u24 v{VT}, 3072, v{VT+1}
    v_bfe_u32 v{VT+2}, v0, 2, 2
    v_lshl_add_u32 v{VT}, v{VT+2}, 7, v{VT}
    v_bfe_u32 v{VT+3}, v0, 1, 1
    s_lshl_b32 s{S_T}, s{S_WH}, 2
    v_add_u32 v{VT+3}, s{S_T}, v{VT+3}
    v_bfe_u32 v{VT+4}, v0, 3, 1
    v_lshlrev_b32 v{VT+4}, 2, v{VT+4}
    v_xor_b32 v{VT+3}, v{VT+3}, v{VT+4}
    v_bfe_u32 v{VT+4}, v0, 4, 1
    v_lshlrev_b32 v{VT+4}, 1, v{VT+4}
    v_xor_b32 v{VT+3}, v{VT+3}, v{VT+4}
    v_lshl_add_u32 v{VT}, v{VT+3}, 4, v{VT}
    v_and_b32 v{VT+4}, 1, v0
    v_lshl_add_u32 v{VT}, v{VT+4}, 3, v{VT}
    v_add_u32 v{WA[0]}, {W0}, v{VT}
    v_xor_b32 v{WA[1]}, 32, v{WA[0]}
    v_mov_b32 v{IDX}, {"0x44444444" if DENSE else "0xdddddddd"}
    {f"v_and_b32 v{VT}, 1, v0" if DENSE else ""}
    {f"v_mul_u32_u24 v{VT}, 0xaaaa, v{VT}" if DENSE else ""}
    {f"v_add_u32 v{IDX}, v{IDX}, v{VT}" if DENSE else ""}
    v_and_b32 v{VT}, {[4, 7, 15][RSZ]}, v0
    v_mov_b32 v{VT+1}, 0x3f803f80
    v_cmp_eq_u32 vcc, 0, v{VT}
    v_lshlrev_b32 v{VDE}, 4, v0
    v_lshlrev_b32 v{VDO}, 4, v0
    v_cndmask_b32 v{ONES}, v{ZERO}, v{VT+1}, vcc
    v_cndmask_b32 v{ONES+1}, v{ZERO}, v{VT+1}, vcc
    v_cmp_eq_u32 vcc, 4, v{VT}
    s_nop 1
    v_cndmask_b32 v{ONES+2}, v{ZERO}, v{VT+1}, vcc
    v_cndmask_b32 v{ONES+3}, v{ZERO}, v{VT+1}, vcc
    v_and_b32 v{FOFF}, 15, v0
    v_lshlrev_b32 v{FOFF}, 3, v{FOFF}
    s_lshl_b32 s{S_T}, s{S_B}, 3
    v_mov_b32 v{FOFF+1}, s{S_T}
    s_mov_b32 s{S_IT}, 0
    s_mov_b32 s{S_XN}, 32768
    """)
    for i in range(96, 232, 2): a(f"v_mov_b64 v[{i}:{i+1}], 0")
    if OPT("IPF", 0):
        a(f"""
        s_cmp_lg_u32 s{S_W}, 7
        s_cbranch_scc1 L_noipf
        s_getpc_b64 s[60:61]
        v_lshlrev_b32 v{VT}, 7, v0
        global_load_dword v{PFD}, v{VT}, s[60:61]
        v_add_u32 v{VT}, 8192, v{VT}
        global_load_dword v{PFD}, v{VT}, s[60:61]
        v_add_u32 v{VT}, 8192, v{VT}
        v_min_u32 v{VT}, {OPT("IPFMAX", 21000)}, v{VT}
        global_load_dword v{PFD}, v{VT}, s[60:61]
        """)
        a.label("L_noipf")
    BULK = OPT("BULK", 0)
    if BULK:
        a(f"""
        s_lshl_b32 s{S_T}, s{S_A}, 7
        s_sub_u32 s52, s12, s{S_T}
        s_subb_u32 s53, s13, 0
        s_mov_b32 s54, 0x600000
        s_lshl_b32 s{S_T}, s{S_A}, 3
        s_add_u32 s{S_T}, s{S_T}, s{S_B}
        s_lshl_b32 s{S_T}, s{S_T}, 3
        s_add_u32 s{S_T}, s{S_T}, s{S_W}
        s_mul_i32 s{S_T}, s{S_T}, 6144
        v_min_u32 v{VT}, 47, v0
        v_lshlrev_b32 v{VT}, 7, v{VT}
        {"s_sleep " + str(OPT("BSLEEP", 0)) if OPT("BSLEEP", 0) else ""}
        buffer_load_dword v{PFD}, v{VT}, s[52:55], s{S_T} offen
        s_cmp_lg_u32 s{S_WH}, 0
        s_cbranch_scc1 L_nobx
        s_lshl_b32 s{S_T}, s{S_A}, 2
        s_add_u32 s{S_T}, s{S_T}, s{S_WR}
        s_lshl_b32 s{S_T}, s{S_T}, 13
        v_lshlrev_b32 v{VT+1}, 7, v0
        buffer_load_dword v{PFD}, v{VT+1}, s[8:11], s{S_T} offen
        """)
        a.label("L_nobx")
    def reads1(stage, t, buf):
        X = [f"ds_read_b128 {vr(FX[buf][rb],4)}, v{XA[t]} offset:{rb*2048}" for rb in range(4)]
        W = []
        for cb in range(6):
            for u in range(2):
                W.append(f"ds_read_b64_tr_b16 {vr(FW[buf][cb]+2*u,2)}, v{WA[cb%2]} offset:{stage*(W1-W0) + t*12288 + (cb//2)*1024 + u*512}")
        return W[0:2] + X + W[2:]
    def mfmas1(buf, natural=False):
        L = [mf16(ACC[cb][rb], FW[buf][cb], FX[buf][rb]) if cb < 4 else mf16(ACC[cb][rb], FX[buf][rb], FW[buf][cb])
             for cb in range(6) for rb in range(4)]
        o = "cb" if natural else os.environ.get("ORD1", "A")
        if o == "rb": L = [L[4*cb + rb] for rb in range(4) for cb in range(6)]
        if o == "snake": L = [L[4*cb + (rb if cb % 2 == 0 else 3 - rb)] for cb in range(6) for rb in range(4)]
        if o == "A": L = [L[4*cb + (rb if cb % 2 == 0 else 3 - rb)] for cb in range(4) for rb in range(4)] + [L[4*(4 + (c ^ (rb & 1))) + rb] for rb in range(4) for c in range(2)]
        if o == "B": L = [L[4*(cb if rb % 2 == 0 else 3 - cb) + rb] for rb in range(4) for cb in range(4)] + [L[4*cb + (rb if cb % 2 else 3 - rb)] for cb in (4, 5) for rb in range(4)]
        return L
    def spread(r, key):
        sp, off = float(os.environ.get(key, "1.4" if key in ("SA1", "SB1") else "1")), int(os.environ.get(key + "O", "0"))
        f = {}
        for k_, x in enumerate(r): f.setdefault(min(23, off + int(k_ * sp)), []).append(x)
        return f
    def rot_x():
        return [f"v_add_u32 v{XA[1]}, s{S_XN}, v{XB[1]}", f"s_mov_b32 s{S_XF}, s{S_XN}", f"s_add_u32 s{S_XN}, s{S_XN}, 32768",
                f"s_cmp_eq_u32 s{S_XN}, 98304", f"s_cselect_b32 s{S_XN}, 0, s{S_XN}"]
    BSPR = OPT("BSPR", 0)
    def place(f, burst, pre):
        if BSPR == 0:
            pre += burst; return
        groups, cur = [], []
        for x in burst:
            cur.append(x)
            if " lds" in x or "buffer_load_dword " in x: groups.append(cur); cur = []
        if cur: groups[-1] += cur
        pre += groups[0]
        for k_, g in enumerate(groups[1:]): f[(k_ + 1) * BSPR - 1] = f.get((k_ + 1) * BSPR - 1, []) + g
    a(f"""
    s_cmp_lg_u32 s{S_WH}, 0
    s_cbranch_scc1 L_g1B_pre
    s_mov_b32 s{S_XF}, 0
    {"s_setprio 1" if OPT("G1PRIO", "") == "A" else ""}
    {f"buffer_load_dword v{PFD}, v{PFV}, s[8:11], s{S_PFO} offen {os.environ.get('NTXP', '')}" if OPT("XPFE", 0) else ""}
    s_waitcnt vmcnt({8 + 2*BULK + OPT("XPFE", 0)})
    s_barrier
    """)
    stamp(a, 1)
    a(reads1(0, 0, 0))
    if OPT("XPF1", 0): a(f"buffer_load_dword v{PFD}, v{PFV}, s[8:11], s{S_PFO} offen")
    a.raw(".p2align 6")
    a.label("L_g1A")
    stamp_stage(a, f"s{S_IT}", True)
    a(f"s_cmp_eq_u32 s{S_IT}, 7\ns_cselect_b32 s14, 0, s14")
    for stage in range(2):
        a("s_waitcnt lgkmcnt(0)")
        r = reads1(stage, 1, 1)
        a(weave(mfmas1(0), spread(r, "SA0")))
        if stage == 1: a(f"s_cmp_ge_u32 s{S_IT}, 6\ns_cselect_b32 s10, 0, s10")
        a(f"v_add_u32 v{XA[0]}, s{S_XN}, v{XB[0]}")
        PFX = OPT("PFX", 0)
        a(f"s_waitcnt vmcnt({2 if PFX and stage == 1 else 1}) lgkmcnt(0)\ns_barrier")
        r = reads1(1 - stage, 0, 0)
        RA1 = OPT("RA1", 1)
        f = spread(r, "SA1")
        pre = []
        if stage == 1 :
            a(f"s_cmp_eq_u32 s{S_IT}, 7\ns_cbranch_scc1 L_g1A_last")
        if OPT("ARD", 0): pre += [x for i in sorted(f) for x in f[i]]; f = {}
        pfx = [f"s_cmp_lt_u32 s{S_PFO}, {min(2048, 128*OPT('PFX0', 4) + 512*OPT('PFXN', 9))}", f"s_cselect_b32 s{T0}, s{S_PFO}, 0x7fff0000", f"buffer_load_dword v{PFD}, v{PFV}, s[8:11], s{T0} offen", f"s_add_u32 s{S_PFO}, s{S_PFO}, 512"]
        place(f, burstW(stage) + burstXA(f"s{S_XF}") + (pfx if PFX and stage == 0 else []), pre)
        f[20] = f.get(20, []) + rot_x()
        a(pre); a(weave(mfmas1(1), f))
    a(f"""
    s_add_u32 s{S_IT}, s{S_IT}, 1
    s_branch L_g1A
    """)
    a.label("L_g1B_pre")
    NPFE = OPT("NPFE", 0)
    PFE_W = f"buffer_load_dword v{PFD}, v{PFV}, s[12:15], s{S_PFO} offen {NTP}\ns_add_u32 s{S_PFO}, s{S_PFO}, {393216 * 4}\n" * NPFE
    if OPT("G1PRIO", "") == "B": a("s_setprio 1")
    a(f"s_mov_b32 s{S_XF}, 65536\n{PFE_W}s_waitcnt vmcnt({7 + BULK + NPFE})\ns_barrier")
    stamp(a, 1)
    a(reads1(0, 0, 0))
    a.raw(".p2align 6")
    a.label("L_g1B")
    stamp_stage(a, f"s{S_IT}", True)
    a(f"s_cmp_eq_u32 s{S_IT}, 7\ns_cselect_b32 s10, 0, s10")
    if OPT("PREKV", 0):
        a(f"""
        s_cmp_eq_u32 s{S_IT}, {OPT("PREKV", 0)}
        s_cbranch_scc0 L_t0
        s_mov_b32 s12, s32
        s_mov_b32 s13, s33
        s_mov_b32 s14, {WS_BYTES}
        s_lshl_b32 s{S_T}, s{S_P}, 4
        s_add_u32 s{S_T}, s{S_T}, s{S_A}
        s_lshl_b32 s{S_T}, s{S_T}, 4
        s_add_u32 s{S_T}, s{S_T}, s{S_B}
        s_lshl_b32 s{S_T}, s{S_T}, 2
        s_add_u32 s{S_T}, s{S_T}, s{S_WR}
        s_lshl_b32 s{S_PFO}, s{S_T}, 13
        v_and_b32 v{VT}, 31, v0
        v_lshlrev_b32 v{VT}, 7, v{VT}
        v_lshrrev_b32 v{VT+1}, 5, v0
        v_lshl_add_u32 v{PFV}, v{VT+1}, 18, v{VT}
        """)
        a.label("L_t0")
        a(f"s_cmp_gt_u32 s{S_IT}, {OPT('PREKV', 0)}\ns_cselect_b32 s14, 0, s14")
    if OPT("TOUCH", 0):
        a(f"""
        s_cmp_eq_u32 s{S_IT}, 4
        s_cbranch_scc0 L_t1
        s_mov_b32 s12, s32
        s_mov_b32 s13, s33
        s_mov_b32 s14, {WS_BYTES}
        s_lshl_b32 s{S_T}, s{S_P}, 4
        s_add_u32 s{S_T}, s{S_T}, s{S_A}
        s_lshl_b32 s{T0}, s{S_T}, 10
        s_add_u32 s{T0}, s{T0}, {FKV}
        s_lshl_b32 s{S_T}, s{S_T}, 4
        s_add_u32 s{S_T}, s{S_T}, s{S_B}
        s_lshl_b32 s{S_T}, s{S_T}, 2
        s_add_u32 s{S_T}, s{S_T}, s{S_WR}
        s_lshl_b32 s{S_T}, s{S_T}, 13
        v_and_b32 v{VT}, 1, v0
        v_lshlrev_b32 v{VT+1}, 18, v{VT}
        v_add_u32 v{PFV}, s{S_T}, v{VT+1}
        s_lshl_b32 s{S_T}, s{S_P}, 3
        s_add_u32 s{S_T}, s{S_T}, s{S_B}
        s_lshl_b32 s{S_T}, s{S_T}, 2
        s_add_u32 s{S_T}, s{S_T}, s{S_WR}
        s_lshl_b32 s{S_T}, s{S_T}, 5
        s_add_u32 s{S_T}, s{S_T}, s{S_A}
        s_lshl_b32 s{S_T}, s{S_T}, 12
        s_add_u32 s{S_T}, s{S_T}, {OWS}
        v_lshlrev_b32 v{VT+1}, 16, v{VT}
        v_add_u32 v{VT+1}, s{S_T}, v{VT+1}
        v_cmp_lt_u32 vcc, 1, v0
        v_mov_b32 v{VT+2}, s{T0}
        s_mov_b32 s{S_PFO}, 0
        v_cndmask_b32 v{PFV}, v{PFV}, v{VT+1}, vcc
        v_cmp_lt_u32 vcc, 3, v0
        s_nop 1
        v_cndmask_b32 v{PFV}, v{PFV}, v{VT+2}, vcc
        """)
        a.label("L_t1")
        a(f"""
        s_cmp_eq_u32 s{S_IT}, 5
        s_cbranch_scc0 L_t2
        s_mov_b32 s12, s28
        s_mov_b32 s13, s29
        s_mov_b32 s14, 0x800000
        s_lshl_b32 s{S_T}, s{S_A}, 2
        s_add_u32 s{S_T}, s{S_T}, s{S_WR}
        s_lshl_b32 s{S_T}, s{S_T}, 17
        s_lshl_b32 s{T0}, s{S_P}, 11
        s_add_u32 s{S_T}, s{S_T}, s{T0}
        s_lshl_b32 s{T0}, s{S_B}, 8
        s_add_u32 s{S_PFO}, s{S_T}, s{T0}
        v_and_b32 v{VT}, 1, v0
        v_lshlrev_b32 v{PFV}, 16, v{VT}
        """)
        a.label("L_t2")
        a(f"s_cmp_ge_u32 s{S_IT}, 6\ns_cselect_b32 s14, 0, s14")
    pf = [f"buffer_load_dword v{PFD}, v{PFV}, s[12:15], s{S_PFO} offen {NTP}", f"s_add_u32 s{S_PFO}, s{S_PFO}, {393216 * PFSTEP}"]
    for stage in range(2):
        r = reads1(stage, 1, 1)
        RB, BPOS = OPT("RB", 1), OPT("BPOS", -1)
        f = spread(r, "SB0")
        PFB = OPT("PFBOTH", 0)
        bx = burstXB(f"s{S_XF}") + (pf if stage == 0 or PFB else [])
        if OPT("PFFIRST", 0) and (stage == 0 or PFB): bx = pf + burstXB(f"s{S_XF}")
        if BPOS < 0: a(bx)
        else: f[BPOS] = f.get(BPOS, []) + bx
        a("s_waitcnt lgkmcnt(0)")
        a(weave(mfmas1(0), f))
        a(f"v_add_u32 v{XA[0]}, s{S_XN}, v{XB[0]}")
        a(f"s_waitcnt vmcnt({8 if stage == 0 or PFB else 7}) lgkmcnt(0)\ns_barrier")
        if stage == 1:
            a(f"s_cmp_eq_u32 s{S_IT}, 7\ns_cbranch_scc1 L_g1A_last")
        r = reads1(1 - stage, 0, 0)
        RB1 = OPT("RB1", 1)
        f = spread(r, "SB1")
        f[20] = f.get(20, []) + [f"v_add_u32 v{XA[1]}, s{S_XN}, v{XB[1]}", f"s_add_u32 s{S_XF}, s{S_XF}, 32768", f"s_cmp_eq_u32 s{S_XF}, 98304",
                 f"s_cselect_b32 s{S_XF}, 0, s{S_XF}", f"s_add_u32 s{S_XN}, s{S_XN}, 32768",
                 f"s_cmp_eq_u32 s{S_XN}, 98304", f"s_cselect_b32 s{S_XN}, 0, s{S_XN}"]
        a(weave(mfmas1(1), f))
    a(f"""
    s_add_u32 s{S_IT}, s{S_IT}, 1
    s_branch L_g1B
    """)
    VKV, VD = 2, 3
    VT = 4
    S_SO, S_ST1, S_ST2, S_M0, S_KV, S_FL, S_HB, S_GRP, MSK = 43, 44, 45, 46, 47, 49, 50, 51, 56
    a.label("L_g1A_last")
    setup = f"""
    s_mov_b32 s36, s32
    s_mov_b32 s37, s33
    s_mov_b32 s38, {WS_BYTES}
    s_mov_b32 s52, s30
    s_mov_b32 s53, s31
    s_mov_b32 s54, 256
    buffer_load_dwordx2 v[{FDAT}:{FDAT+1}], v{ZERO}, s[52:55], 0 offen sc1
    s_lshl_b32 s{S_T}, s{S_P}, 4
    s_add_u32 s{S_T}, s{S_T}, s{S_A}
    s_lshl_b32 s{S_FL}, s{S_T}, 3
    s_lshl_b32 s{S_T}, s{S_T}, 1
    s_add_u32 s{S_T}, s{S_T}, s{S_WH}
    s_lshl_b32 s{S_HB}, s{S_T}, 18
    s_add_u32 s{S_FL}, s{S_FL}, s{S_W}
    s_lshl_b32 s{S_FL}, s{S_FL}, 7
    s_add_u32 s{S_FL}, s{S_FL}, {FKV}
    s_lshl_b32 s{S_T}, s{S_WR}, 13
    s_add_u32 s{S_T}, s{S_T}, s{S_HB}
    s_add_u32 s8, s32, s{S_T}
    s_addc_u32 s9, s33, 0
    s_mov_b32 s10, 0x40000
    s_lshl_b32 s{S_KV}, s{S_B}, 15
    s_add_u32 s{S_KV}, s{S_KV}, s{S_T}
    s_add_u32 s{S_KV+1}, s{S_KV}, 4096
    s_lshl_b32 s{S_M0}, s{S_W}, 13
    v_lshlrev_b32 v{VD}, 4, v0
    v_add_u32 v{VKV}, s{S_M0}, v{VD}
    s_cmp_eq_u32 s{S_P}, 0
    s_cselect_b32 s12, s20, s26
    s_cselect_b32 s13, s21, s27
    s_lshl_b32 s{S_T}, s{S_B}, 8
    s_add_u32 s12, s12, s{S_T}
    s_addc_u32 s13, s13, 0
    s_sub_u32 s14, 0x200000, s{S_T}
    s_mov_b32 s{S_ST1}, 0
    s_mov_b32 s{MSK}, 0xfff8fff8
    s_mov_b32 s{MSK+1}, s{MSK}
    s_mov_b32 s58, {f2u(CSCALE):#x}
    s_mov_b32 s59, s58
    """.strip().split("\n")
    m = mfmas1(1, True)
    EARLY = OPT("EARLY", 1)
    if EARLY: m = [m[4*cb + rb] for rb2 in (0, 2) for cb in range(2, 6) for rb in (rb2, rb2 + 1)] + m[:8]
    else: m = m[8:] + m[:8]
    LASTM = m
    def pack2(dst, t0, t1):
        return [f"v_cvt_pk_bf16_f32 v{dst}, v{t0}, v{t0+1}", f"v_cvt_pk_bf16_f32 v{dst+1}, v{t0+2}, v{t0+3}",
                f"v_cvt_pk_bf16_f32 v{dst+2}, v{t1}, v{t1+1}", f"v_cvt_pk_bf16_f32 v{dst+3}, v{t1+2}, v{t1+3}"]
    def swap2(dst):
        return [f"v_permlane16_swap_b32 v{dst}, v{dst+2}", f"v_permlane16_swap_b32 v{dst+1}, v{dst+3}"]
    def swap32(dst):
        return [f"v_permlane32_swap_b32 v{dst}, v{dst+2}", f"v_permlane32_swap_b32 v{dst+1}, v{dst+3}"]
    frs = []
    for b in range(2):
        for t in range(2): frs.append((PKB[b] + 4*t, ACC[2+t][2*b], ACC[2+t][2*b+1], b, t*1024))
        for t in range(2): frs.append((PKB[b] + 8 + 4*t, ACC[4][2*b+t], ACC[5][2*b+t], b, 2048 + t*1024))
    kvstores = [f"buffer_store_dwordx4 {vr(fr[0],4)}, v{VD}, s[36:39], s{S_KV+fr[3]} offen offset:{fr[4]} {os.environ.get('KVPOL', 'sc1')}" for fr in frs]
    NE0 = OPT("NE0", 4)
    packs = []
    prev = None
    for k_, fr in enumerate(frs):
        L = pack2(fr[0], fr[1], fr[2])
        if prev:
            L += swap2(prev[0])
            if DENSE and prev[4] >= 2048: L += ["s_nop 1"] + swap32(prev[0])
            if k_ - 1 < NE0: L.append(kvstores[k_ - 1])
            L.append(f"ds_write_b128 v{VKV}, {vr(prev[0],4)} offset:{prev[3]*4096+prev[4]}")
        packs.append(L)
        prev = fr
    if EARLY:
        f = {i: setup[3*i:3*i+3] for i in range(14)}
        for i in range(4): f[16 + 2*i] = packs[i]
        a(weave(LASTM, f)); stamp(a, 2)
        for L in packs[4:]: a(L)
    else:
        a(weave(LASTM, {i: setup[2*i:2*i+2] for i in range(24)})); stamp(a, 2)
        for L in packs: a(L)
    for i in range(0, 8, 2): a(f"v_pk_mul_f32 v[{96+i}:{97+i}], v[{96+i}:{97+i}], s[58:59]")
    a(swap2(prev[0]))
    if DENSE: a(["s_nop 1"] + swap32(prev[0]))
    a(f"ds_write_b128 v{VKV}, {vr(prev[0],4)} offset:{prev[3]*4096+prev[4]}")
    for i in range(8, 32, 2): a(f"v_pk_mul_f32 v[{96+i}:{97+i}], v[{96+i}:{97+i}], s[58:59]")
    for b in range(2):
        for t in range(2): a(pack2(Q[b] + 4*t, ACC[t][2*b], ACC[t][2*b+1]))
    a(f"""
    s_lshl_b32 s{S_T}, s{S_WH}, 15
    v_add_u32 v{VKV}, s{S_T}, v{VD}
    s_add_u32 s{S_M0}, s{S_M0}, 65536
    """)
    for k_ in range(1, 4):
        a(f"s_add_u32 s{S_T}, s{S_WR}, {k_}\ns_and_b32 s{S_T}, s{S_T}, 3\ns_lshl_b32 s{S_T}, s{S_T}, 13\nv_add_u32 v{VT+1+k_}, s{S_T}, v{VKV}")
    for b in range(2):
        for t in range(2): a(swap2(Q[b] + 4*t))
    def rdK(kt, buf): return [f"ds_read_b128 {vr(KF[buf]+4*t,4)}, v{VKV} offset:{kt*4096+t*1024}" for t in range(2)]
    def rdV(kt, buf): return [f"ds_read_b128 {vr(VF[buf]+4*t,4)}, v{VKV} offset:{kt*4096+2048+t*1024}" for t in range(2)]
    def qk(sbuf, kbuf, qt, c=None):
        return [mf32(S[sbuf], KF[kbuf], Q[qt], NM[qt] if c is None else c), mf32(S[sbuf], KF[kbuf]+4, Q[qt]+4)]
    def pv(sbuf, vbuf, qt, t):
        if DENSE: return mf32(O[qt], VF[vbuf] + 4*t, S[sbuf] + 4*t)
        return f"v_smfmac_f32_32x32x32_bf16 {vr(O[qt],16)}, {vr(VF[vbuf]+4*t,4)}, {vr(S[sbuf]+8*t,8)}, v{IDX}"
    def rs(sbuf, qt, t):
        if DENSE: return None if t == 0 else f"v_smfmac_f32_16x16x64_bf16 {vr(LA[qt],4)}, {vr(ONES,4)}, {vr(S[sbuf],8)}, v{IDX}"
        return f"v_smfmac_f32_16x16x64_bf16 {vr(LA[qt],4)}, {vr(ONES,4)}, {vr(S[sbuf]+8*t,8)}, v{IDX}"
    def max_to_nm(m, qt):
        a(f"v_mov_b32 v{m+1}, v{m}")
        a("s_nop 1")
        a(f"v_permlane32_swap_b32 v{m}, v{m+1}")
        a("s_nop 1")
        a(f"v_max_f32 v{m}, v{m}, v{m+1}")
        a(f"v_sub_f32 v{m}, 0, v{m}")
        a(f"v_mov_b32 v{m+1}, v{m}")
        for i in range(0, 16, 2): a(f"v_mov_b64 v[{NM[qt]+i}:{NM[qt]+i+1}], v[{m}:{m+1}]")
    assert NE0 == 4
    a("s_nop 0")
    a([mf32(S[qt], PKB[0] + 4*t, Q[qt] + 4*t, "0" if t == 0 else None) for qt in range(2) for t in range(2)])
    a(f"s_waitcnt vmcnt(4)\ns_mov_b32 s{S_T}, {SPIN_MAX}")
    a.label("L_nonce")
    a(f"""
    v_readfirstlane_b32 s{NON}, v{FDAT}
    v_readfirstlane_b32 s{NON+1}, v{FDAT+1}
    s_sub_u32 s{S_T}, s{S_T}, 1
    s_cbranch_scc1 L_nonce_done
    s_cmp_eq_u32 s{NON}, 0
    s_cbranch_scc1 L_nonce_retry
    """)
    a.label("L_nonce_done")
    RARE.append(("L_nonce_retry", [f"buffer_load_dwordx2 v[{FDAT}:{FDAT+1}], v{ZERO}, s[52:55], 0 offen sc1", "s_waitcnt vmcnt(0)"], "L_nonce"))
    a("s_nop 3")
    for qt in range(2):
        m_, src = VT + 6*qt, S[qt]
        a(f"v_max3_f32 v{m_}, v{src}, v{src+1}, v{src+2}")
        for i in range(3, 15, 2): a(f"v_max3_f32 v{m_}, v{m_}, v{src+i}, v{src+i+1}")
        a(f"v_max_f32 v{m_}, v{m_}, v{src+15}")
        max_to_nm(m_, qt)
        a("s_nop 1")
        if qt == 0: a([mf32(S[0], PKB[0], Q[0], NM[0]), mf32(S[0], PKB[0] + 4, Q[0] + 4)])
    if OPT("G1PRIO", "") == "A": a("s_setprio 0")
    if os.environ.get("PRIO", "1"): a(f"s_cmp_eq_u32 s{S_WH}, {os.environ.get('PRIO', '1')[0]}\ns_cbranch_scc0 L_noprio\ns_setprio 1"); a.label("L_noprio")
    stamp(a, 3)
    S_SO2 = S_ST2
    def dma2():
        G = []
        for j in range(8):
            g = []
            if j == 0: g.append(f"s_mov_b32 m0, s{S_M0}"); g.append("s_nop 0")
            g.append(f"buffer_load_dwordx4 v{VDE if j%2==0 else VDO}, s[8:11], s{S_SO} offen offset:{(j%4)*1024} sc1 lds")
            if j == 3: g += [f"s_add_u32 m0, s{S_M0}, 4096", f"s_mov_b32 s{S_SO}, s{S_SO2}"]
            elif j < 7: g.append(f"s_add_u32 s{S_SO}, s{S_SO}, s{S_ST1}")
            else: g.append(f"s_xor_b32 s{S_M0}, s{S_M0}, 65536")
            G.append(g)
        return G
    def blk():
        L = []
        for g, dst in ((0, S_SO), (1, S_SO2)):
            L += [f"s_lshl_b32 s{dst}, s{S_IT}, 1"]
            if g: L += [f"s_add_u32 s{dst}, s{dst}, 1"]
            L += [f"s_cmp_ge_u32 s{dst}, 7", f"s_cselect_b32 s{S_T}, 7, 0", f"s_cselect_b32 s{S_GRP}, 4096, 0", f"s_sub_u32 s{dst}, s{dst}, s{S_T}",
                  f"s_cmp_ge_u32 s{dst}, s{S_B}", f"s_addc_u32 s{dst}, s{dst}, 0", f"s_lshl_b32 s{dst}, s{dst}, 15", f"s_add_u32 s{dst}, s{dst}, s{S_GRP}"]
        return L
    def flagst(voff, soff, imm=0):
        return ["s_mov_b64 exec, 1", f"buffer_store_dwordx2 v[{FDAT}:{FDAT+1}], v{voff}, s[36:39], s{soff} offen offset:{imm} sc1", "s_mov_b64 exec, -1"]
    ATX = os.environ.get("ATX", "")
    PAT = [int(c) for c in os.environ.get('PAT', '333232')]
    def qk_r(sbuf, kreg, qt, c=None):
        return [mf32(S[sbuf], kreg, Q[qt], NM[qt] if c is None else c), mf32(S[sbuf], kreg+4, Q[qt]+4)]
    def pv_r(sbuf, vreg, qt, t):
        if DENSE: return mf32(O[qt], vreg + 4*t, S[sbuf] + 4*t)
        return f"v_smfmac_f32_32x32x32_bf16 {vr(O[qt],16)}, {vr(vreg+4*t,4)}, {vr(S[sbuf]+8*t,8)}, v{IDX}"
    FILL = []
    def slot(sb, qa, nxt, prv, vreg, pre, extra=()):
        e = [f"v_exp_f32 v{S[sb]+i}, v{S[sb]+i}" for i in range(16)]
        m = (qk_r((sb+1) % 4, nxt[0], nxt[1]) if nxt else [None, None]) + \
            ([pv_r((sb-1) % 4, prv[0], prv[1], 1), rs((sb-1) % 4, prv[1], 1)] if prv else [None, None]) + [pv_r(sb, vreg, qa, 0), rs(sb, qa, 0)]
        extra = list(extra)
        if DENSE:
            c = [f"v_cvt_pk_bf16_f32 v{S[sb]+i}, v{S[sb]+2*i}, v{S[sb]+2*i+1}" for i in range(8)]
            grp, ie, ic, last = [], 0, 0, ""
            for g_ in os.environ.get("DG", "eee|eceec|eecec|eec|eece|eecc").split("|"):
                cur = []
                for ch in g_:
                    if ch == "e": cur.append(e[ie]); ie += 1
                    else:
                        assert ie >= 2*ic + 2 and not (last == "e" and ie == 2*ic + 2), "cvt too early"
                        cur.append(c[ic]); ic += 1
                    last = ch
                if len(grp) < 4: last = "m"
                grp.append(cur)
                if len(grp) == 4: assert ic >= 4 and (ic > 4 or cur[-1].startswith("v_exp") and cur[-2].startswith("v_exp"))
            assert ie == 16 and ic == 8 and len(grp) == 6
        else:
            grp, k = [], 0
            for i in range(6): grp.append(e[k:k+PAT[i]]); k += PAT[i]
        for i in range(6):
            if pre.get(i): a(pre[i])
            elif m[i]:
                if FILL: a(FILL.pop(0))
                elif "n" not in ATX: a("s_nop 0")
            if m[i]: a(m[i])
            a(grp[i])
            ne = (len(extra) + 5 - i) // (6 - i)
            a(extra[:ne]); extra = extra[ne:]
    def stage(hooks, pres, first, barwait):
        KA = [None, VT+2, VT+3, VT+4]
        for kt in range(8):
            for qa in range(2):
                n = 2*kt + qa
                pre = {i: [] for i in range(6)}
                if n in hooks: hooks[n]()
                kr = lambda t: PKB[t] if first and t < 2 else KF[t % 2]
                vr_ = lambda t: PKB[t] + 8 if first and 0 <= t < 2 else VF[t % 2]
                if qa == 0:
                    if kt == 7:
                        barwait()
                        pre[0] += [f"v_xor_b32 v{VKV}, 0x10000, v{VKV}", "s_nop 0"]
                    elif not (first and kt < 2):
                        pre[0] += ["s_waitcnt lgkmcnt(0)"]
                    if first and kt < 7:
                        if kt >= 1:
                            t_ = kt + 1
                            pre[1] += [x.replace(f"v{VKV} ", f"v{KA[t_//2]} ") for x in rdK(t_ % 2, t_ % 2)]
                            pre[4] += [x.replace(f"v{VKV} ", f"v{KA[t_//2]} ") for x in rdV(t_ % 2, t_ % 2)]
                    else:
                        pre[1] += rdK((kt+1) % 8, (kt+1) % 2)
                        pre[4] += rdV((kt+1) % 8, (kt+1) % 2)
                elif not (first and kt == 0):
                    pre[0] += ["s_waitcnt lgkmcnt(2)"]
                for i, L in pres.get(n, {}).items(): pre[i] += L
                slot(n % 4, qa, (kr(kt + qa) if kt + qa < 8 else KF[0], 1 - qa), None if first and n == 0 else (vr_(kt - 1 + qa), 1 - qa), vr_(kt), pre)
        assert not FILL
    NPUB, NPOLL = OPT("NPUB", 4), OPT("NPOLL", 8)
    ST0 = os.environ.get("ST0", "") == "1"
    def h_pub():
        a("s_waitcnt vmcnt(0)"); a(flagst(FOFF+1, S_FL))
        if ST0: stamp(a, 4)
    def h_poll0():
        poll("L_poll0", S_FL, f"s[{MSK}:{MSK+1}]")
        a(f"s_mov_b32 s{S_IT}, 0\ns_mov_b32 s{MSK}, 0xff00ff00\ns_mov_b32 s{MSK+1}, s{MSK}"); a(blk())
        if ST0: stamp(a, 5)
    def bw0():
        a("s_waitcnt vmcnt(3) lgkmcnt(0)\ns_barrier")
        stamp_stage(a, "0")
        if ST0: stamp(a, 6)
    G = dma2()
    pres = {NPOLL + i: {2: G[3*i], 3: G[3*i+1], 5: G[3*i+2] if 3*i+2 < 8 else []} for i in range(3)}
    for i, n_ in enumerate((11, 12, 13, 15)): pres.setdefault(n_, {})[3] = [kvstores[4 + i]]
    stage({2: lambda: a("s_waitcnt lgkmcnt(0)\ns_barrier"), NPUB: h_pub, NPOLL: h_poll0}, pres, True, bw0)
    a(f"s_mov_b32 s{S_IT}, 1")
    S_PW = 97
    if OPT("PFWS", 0):
        a(f"""
        s_and_b32 s{S_PW}, s{S_A}, 3
        s_lshl_b32 s{S_PW}, s{S_PW}, 3
        s_add_u32 s{S_PW}, s{S_PW}, s{S_W}
        s_lshl_b32 s{S_PW}, s{S_PW}, 16
        v_bfe_u32 v12, v0, 1, 3
        v_lshlrev_b32 v12, 11, v12
        v_and_b32 v13, 1, v0
        v_lshl_add_u32 v12, v13, 7, v12
        """)
    a.raw(".p2align 6")
    a.label("L_at")
    def rare(lab, cond, body):
        if OPT("OOL", 0):
            a(cond); a(f"s_cbranch_scc1 {lab}"); a.label(lab + "_ret"); RARE.append((lab, body, lab + "_ret"))
        else:
            a(cond); a(f"s_cbranch_scc0 {lab}_skip")
            body() if callable(body) else a(body)
            a.label(lab + "_skip")
    it13 = [f"s_andn2_b32 s{S_T}, s{S_IT}, 2", f"s_cmp_eq_u32 s{S_T}, 1"]
    def h_ld():
        rare("L_r_ld", it13, [f"buffer_load_dwordx2 v[{PDAT}:{PDAT+1}], v{FOFF}, s[36:39], s{S_FL} offen sc1"])
        b = blk()
        FILL.extend([b[i:i+2] for i in range(0, len(b), 2)])
    def h_dma():
        def body():
            poll("L_poll2", S_FL, f"s[{MSK}:{MSK+1}]", True)
            a(f"s_mov_b64 s[{MSK}:{MSK+1}], 0")
        rare("L_r_poll", it13, body)
    def h_pfwo():
        rare("L_r_pfwo", [f"s_cmp_eq_u32 s{S_IT}, {OPT('PFWIT', 4)}"], f"""
        s_and_b32 s{S_T}, s{S_A}, 3
        s_lshl_b32 s{S_T}, s{S_T}, 3
        s_add_u32 s{S_T}, s{S_T}, s{S_W}
        s_lshl_b32 s{S_T}, s{S_T}, 16
        v_lshrrev_b32 v{VT}, 1, v0
        v_lshlrev_b32 v{VT}, 11, v{VT}
        v_and_b32 v{VT+1}, 1, v0
        v_lshl_add_u32 v{VT}, v{VT+1}, 7, v{VT}
        buffer_load_dword v13, v{VT}, s[12:15], s{S_T} offen {os.environ.get('NTO', '')}
        """ + (f"""
        s_lshl_b32 s{S_T}, s{S_P}, 3
        s_add_u32 s{S_T}, s{S_T}, s{S_B}
        s_lshl_b32 s{S_T}, s{S_T}, 2
        s_add_u32 s{S_T}, s{S_T}, s{S_WR}
        s_lshl_b32 s{S_T}, s{S_T}, 6
        s_bfe_u32 s60, s{S_HB}, 0x50012
        s_add_u32 s{S_T}, s{S_T}, s60
        s_lshl_b32 s{S_T}, s{S_T}, 11
        s_add_u32 s{S_T}, s{S_T}, {OWS}
        v_and_b32 v{VT+2}, 15, v0
        v_lshlrev_b32 v{VT+2}, 7, v{VT+2}
        v_bfe_u32 v{VT+3}, v0, 4, 1
        v_lshl_add_u32 v{VT+2}, v{VT+3}, 16, v{VT+2}
        buffer_load_dword v{VT+3}, v{VT+2}, s[36:39], s{S_T} offen sc1
        """ if OPT("PREO", 0) else "") + (f"""
        s_mov_b32 s60, s28
        s_mov_b32 s61, s29
        s_mov_b32 s62, 0x800000
        s_mov_b32 s63, 0x20000
        s_lshl_b32 s{S_T}, s{S_A}, 3
        s_add_u32 s{S_T}, s{S_T}, s{S_W}
        s_lshl_b32 s{S_T}, s{S_T}, 5
        s_add_u32 s{S_T}, s{S_T}, s{S_P}
        s_lshl_b32 s{S_T}, s{S_T}, 3
        s_add_u32 s{S_T}, s{S_T}, s{S_B}
        s_lshl_b32 s{S_T}, s{S_T}, 8
        v_bfe_u32 v{VT+4}, v0, 1, 4
        v_lshlrev_b32 v{VT+4}, 12, v{VT+4}
        v_and_b32 v{VT+5}, 1, v0
        v_lshl_add_u32 v{VT+4}, v{VT+5}, 7, v{VT+4}
        buffer_load_dword v{VT+5}, v{VT+4}, s[60:63], s{S_T} offen sc1
        """ if OPT("PREOUT", 0) else "") + (f"""
        s_getpc_b64 s[60:61]
        v_and_b32 v{VT}, 15, v0
        s_lshl_b32 s{S_T}, s{S_W}, 4
        v_add_u32 v{VT}, s{S_T}, v{VT}
        v_lshlrev_b32 v{VT}, 7, v{VT}
        v_min_u32 v{VT}, {OPT("IPF2MAX", 10000)}, v{VT}
        global_load_dword v{VT+1}, v{VT}, s[60:61]
        """ if OPT("IPF2", 0) else ""))
    def bw1():
        a("s_waitcnt vmcnt(0) lgkmcnt(0)\ns_barrier" if not OPT("NOBAR", 0) else "s_waitcnt vmcnt(0) lgkmcnt(0)")
        rare("L_r_pub1", [f"s_cmp_eq_u32 s{S_IT}, 1"], flagst(FOFF+1, S_FL, 64))
        stamp_stage(a, f"s{S_IT}")
    G = dma2()
    pres = {3 + i: {2: G[2*i], 5: G[2*i+1]} for i in range(4)}
    hk = {0: h_ld, 15: h_pfwo, 3: h_dma}
    if OPT("PFWS", 0):
        del hk[15]
        pres.setdefault(OPT("PFWN", 15), {})[3] = [f"buffer_load_dword v13, v12, s[12:15], s{S_PW} offen", f"s_add_u32 s{S_PW}, s{S_PW}, 16384"]
    PW_ = os.environ.get("PREW", "")
    if PW_:
        body = []
        if "o" in PW_:
            body += f"""
            s_lshl_b32 s{S_T}, s{S_P}, 3
            s_add_u32 s{S_T}, s{S_T}, s{S_B}
            s_lshl_b32 s{S_T}, s{S_T}, 2
            s_add_u32 s{S_T}, s{S_T}, s{S_WR}
            s_lshl_b32 s{S_T}, s{S_T}, 6
            s_bfe_u32 s60, s{S_HB}, 0x50012
            s_add_u32 s{S_T}, s{S_T}, s60
            s_lshl_b32 s{S_T}, s{S_T}, 11
            s_add_u32 s{S_T}, s{S_T}, {OWS + 65536}
            buffer_store_dwordx4 v[32:35], v{VD}, s[36:39], s{S_T} offen sc1
            buffer_store_dwordx4 v[32:35], v{VD}, s[36:39], s{S_T} offen offset:1024 sc1
            """.strip().split("\n")
        if "u" in PW_:
            body += f"""
            s_mov_b32 s60, s28
            s_mov_b32 s61, s29
            s_mov_b32 s62, 0x800000
            s_mov_b32 s63, 0x20000
            s_lshl_b32 s{S_T}, s{S_A}, 3
            s_add_u32 s{S_T}, s{S_T}, s{S_W}
            s_lshl_b32 s{S_T}, s{S_T}, 5
            s_add_u32 s{S_T}, s{S_T}, s{S_P}
            s_lshl_b32 s{S_T}, s{S_T}, 3
            s_add_u32 s{S_T}, s{S_T}, s{S_B}
            s_lshl_b32 s{S_T}, s{S_T}, 8
            v_lshrrev_b32 v{VT}, 4, v0
            v_lshlrev_b32 v{VT}, 12, v{VT}
            v_and_b32 v{VT+1}, 15, v0
            v_lshl_add_u32 v{VT}, v{VT+1}, 4, v{VT}
            """.strip().split("\n")
            for j in range(4):
                body += [f"buffer_store_dwordx4 v[32:35], v{VT}, s[60:63], s{S_T} offen sc0 sc1", f"s_add_u32 s{S_T}, s{S_T}, 16384"]
        hk[8] = lambda: rare("L_r_prew", [f"s_cmp_eq_u32 s{S_IT}, {OPT('PREWIT', 5)}"], body)
    PA = os.environ.get("PRIOALT", "4,9")
    if PA:
        def flip(lab, wh):
            def f(): a(f"s_setprio 0\ns_cmp_eq_u32 s{S_WH}, {wh}\ns_cbranch_scc0 {lab}\ns_setprio 1"); a.label(lab)
            return f
        for k_, x in enumerate(PA.split(",")):
            assert 4 <= int(x) <= 14
            hk[int(x)] = flip(f"L_pa{k_}", k_ % 2)
    stage(hk, pres, False, bw1)
    a(f"""
    s_add_u32 s{S_IT}, s{S_IT}, 1
    s_cmp_lt_u32 s{S_IT}, 7
    s_cbranch_scc1 L_at
    """)
    S_OO, S_FO, S_BAD = 47, 49, 60
    VOA = VT + 6
    setup7 = f"""
    s_mov_b32 s8, s12
    s_mov_b32 s9, s13
    s_mov_b32 s10, s14
    s_lshl_b32 s{S_SO}, s{S_W}, 16
    s_add_u32 s{S_SO2}, s{S_SO}, 32768
    s_mov_b32 s{S_ST1}, 7168
    v_lshrrev_b32 v{VDE}, 4, v0
    v_lshlrev_b32 v{VDO}, 1, v{VDE}
    v_and_b32 v{VT}, 15, v0
    v_xor_b32 v{VDO}, v{VDO}, v{VT}
    v_lshlrev_b32 v{VDE}, 11, v{VDE}
    v_lshl_add_u32 v{VDE}, v{VDO}, 4, v{VDE}
    v_xor_b32 v{VDO}, 128, v{VDE}
    s_lshl_b32 s{S_T}, s{S_P}, 3
    s_add_u32 s{S_T}, s{S_T}, s{S_B}
    s_lshl_b32 s{S_T}, s{S_T}, 2
    s_add_u32 s{S_T}, s{S_T}, s{S_WR}
    s_lshl_b32 s{S_FO}, s{S_T}, 8
    s_lshl_b32 s{S_OO}, s{S_T}, 17
    s_bfe_u32 s{S_T}, s{S_HB}, 0x50012
    s_lshl_b32 s{S_GRP}, s{S_T}, 3
    s_add_u32 s{S_FO}, s{S_FO}, s{S_GRP}
    s_add_u32 s{S_FO}, s{S_FO}, {FO}
    s_lshl_b32 s{S_T}, s{S_T}, 11
    s_add_u32 s{S_OO}, s{S_OO}, s{S_T}
    s_add_u32 s{S_OO}, s{S_OO}, {OWS}
    s_add_u32 s{S_OO+1}, s{S_OO}, 65536
    v_and_b32 v{VOA}, 15, v0
    v_lshlrev_b32 v{VOA}, 4, v{VOA}
    v_lshrrev_b32 v{VOA+1}, 5, v0
    v_lshl_add_u32 v{VOA}, v{VOA+1}, 8, v{VOA}
    v_bfe_u32 v{VOA+1}, v0, 4, 1
    v_lshl_add_u32 v{VOA}, v{VOA+1}, 10, v{VOA}
    """.strip().split("\n")
    OPK = [PK, PK + 8]
    def lbcast(qt):
        if RSZ < 2: return []
        return [f"v_mov_b32 v{LA[qt]+1}, v{LA[qt]}", "s_nop 1", f"v_permlane32_swap_b32 v{LA[qt]}, v{LA[qt]+1}"]
    def check(qt):
        t = VT + 2*qt
        o = O[qt]
        return (lbcast(qt) + [f"v_pk_mul_f32 v[{t}:{t+1}], v[{o}:{o+1}], 0"] +
                [f"v_pk_fma_f32 v[{t}:{t+1}], v[{o+i}:{o+i+1}], 0, v[{t}:{t+1}]" for i in range(2, 16, 2)] +
                [f"v_add_f32 v{t}, v{t}, v{t+1}", f"v_add_f32 v{t}, v{t}, v{LA[qt]}", f"v_cmp_gt_f32 s[{S_BAD+2*qt}:{S_BAD+2*qt+1}], s58, v{t}"])
    def finish(qt):
        t = VT + 2*qt
        o = O[qt]
        return ([f"v_rcp_f32 v{t}, v{LA[qt]}", "s_nop 0"] +
                [f"v_pk_mul_f32 v[{o+i}:{o+i+1}], v[{o+i}:{o+i+1}], v[{t}:{t+1}] op_sel_hi:[1,0]" for i in range(0, 16, 2)] +
                [f"v_cvt_pk_bf16_f32 v{OPK[qt]+i}, v{o+2*i}, v{o+2*i+1}" for i in range(8)] +
                [f"buffer_store_dwordx4 {vr(OPK[qt]+4*t_,4)}, v{VOA}, s[36:39], s{S_OO+qt} offen offset:{t_*512} {os.environ.get('KVPOL', 'sc1')}" for t_ in range(2)])
    OA, OB = 244, 245
    WA3 = [[248, 249, 250, 251], [252, 253, 254, 255]]
    FO_ = [[16 + 16*buf + 4*i for i in range(4)] for buf in range(2)]
    FW3 = [[48 + 16*buf + 4*nb for nb in range(4)] for buf in range(2)]
    AC3 = [[80 + 16*i + 4*nb for nb in range(4)] for i in range(4)]
    RX = 144
    T3 = 176
    S_INC, S_M3, S_ME, S_MS, S_R3, S_C3, S_F3, S_O3 = 52, 53, 54, 55, 56, 57, 100, 59
    setup3 = f"""
    s_bfe_u32 s{S_R3}, s{S_W}, 0x10001
    s_and_b32 s{S_C3}, s{S_W}, 1
    s_lshl_b32 s{S_T}, s{S_P}, 4
    s_add_u32 s{S_T}, s{S_T}, s{S_A}
    s_lshl_b32 s{S_T}, s{S_T}, 2
    s_add_u32 s{S_T}, s{S_T}, s{S_WR}
    s_lshr_b32 s{S_F3}, s{S_T}, 1
    s_lshl_b32 s{S_F3}, s{S_F3}, 8
    s_add_u32 s{S_F3}, s{S_F3}, {FO}
    s_lshl_b32 s{S_T}, s{S_T}, 16
    s_add_u32 s{S_T}, s{S_T}, {OWS}
    s_add_u32 s60, s32, s{S_T}
    s_addc_u32 s61, s33, 0
    s_lshl_b32 s{S_M3}, s{S_WR}, 12
    s_lshl_b32 s{S_O3}, s{S_WR}, 15
    s_add_u32 s{S_O3}, s{S_O3}, {6*131072}
    s_cmp_eq_u32 s{S_WH}, 0
    s_cselect_b64 vcc, -1, 0
    s_cselect_b32 s8, s60, s12
    s_cselect_b32 s9, s61, s13
    s_cselect_b32 s10, 0x10000, s14
    s_cselect_b32 s{S_O3}, 0, s{S_O3}
    s_cselect_b32 s{S_ST1}, 0, 7168
    s_cselect_b32 s{S_INC}, 12, 17
    s_lshl_b32 s{S_INC}, 1, s{S_INC}
    v_lshlrev_b32 v{T3+1}, 4, v0
    v_cndmask_b32 v{VDE}, v{VDE}, v{T3+1}, vcc
    v_cndmask_b32 v{VDO}, v{VDO}, v{T3+1}, vcc
    s_lshl_b32 s{S_T}, s{S_R3}, 1
    s_add_u32 s{S_T}, s{S_T}, s{S_WH}
    s_lshl_b32 s{S_T}, s{S_T}, 1
    s_add_u32 s{S_T}, s{S_T}, s{S_WH}
    s_lshl_b32 s{S_T}, s{S_T}, 11
    s_add_u32 s{S_T}, s{S_T}, 65536
    v_add_u32 v{OA}, s{S_T}, v{T3+1}
    v_xor_b32 v{OB}, 4096, v{OA}
    v_bfe_u32 v{T3}, v0, 2, 3
    v_lshrrev_b32 v{T3+1}, 5, v0
    v_lshl_add_u32 v{T3+1}, v{T3+1}, 4, v{T3}
    s_lshl_b32 s{S_T}, s{S_WH}, 5
    v_add_u32 v{T3+1}, s{S_T}, v{T3+1}
    v_lshlrev_b32 v{T3+1}, 8, v{T3+1}
    v_bfe_u32 v{T3+2}, v0, 1, 1
    s_lshl_b32 s{S_T}, s{S_C3}, 3
    v_add_u32 v{T3+2}, s{S_T}, v{T3+2}
    v_lshlrev_b32 v{T3}, 1, v{T3}
    v_xor_b32 v{T3+2}, v{T3+2}, v{T3}
    v_lshl_add_u32 v{T3+1}, v{T3+2}, 4, v{T3+1}
    v_and_b32 v{T3+2}, 1, v0
    v_lshl_add_u32 v{WA3[0][0]}, v{T3+2}, 3, v{T3+1}
    v_and_b32 v{FOFF}, 31, v0
    v_lshlrev_b32 v{FOFF}, 3, v{FOFF}
    """.replace(f"v{T3+2}", f"v{VT+5}").replace(f"v{T3+1}", f"v{VT+4}").replace(f"v{T3}", f"v{VT+3}").strip().split("\n")
    setup3 += [f"v_xor_b32 v{WA3[0][nb]}, {32*nb}, v{WA3[0][0]}" for nb in range(1, 4)]
    setup3 += [f"v_add_u32 v{WA3[1][nb]}, 0x20000, v{WA3[0][nb]}" for nb in range(4)]
    NS3 = next(i for i, x in enumerate(setup3) if 'v_bfe_u32' in x)
    seq = [(0, 0), (0, 1)] + [(k_, 0) for k_ in range(1, 8)] + [(k_, 1) for k_ in range(1, 8)]
    KB, VB = [0], [0]
    for m_ in range(1, 16):
        flip = seq[m_][0] != seq[m_-1][0]
        KB.append(KB[-1] ^ flip); VB.append(VB[-1] ^ flip)
    G = dma2()
    for m_ in range(16):
        stamp_stage(a, "7") if m_ == 14 else None
        pre = {i: [] for i in range(6)}
        pre[0] += ["s_waitcnt lgkmcnt(0)"]
        if m_ + 2 < 16 and seq[m_+2][0] != seq[m_+1][0]: pre[1] += rdK(seq[m_+2][0], KB[m_+2])
        if m_ + 1 < 16 and seq[m_+1][0] != seq[m_][0]: pre[4] += rdV(seq[m_+1][0], VB[m_+1])
        extra = []
        if m_ == 0: extra = setup7[:13] + ["s_mov_b32 s58, 0x5f800000"]
        if m_ == 1: extra = setup7[13:]
        if OPT("EARLYW", 0):
            G45 = [[f"s_lshl_b32 s{S_T}, s{S_W}, 12", f"s_add_u32 m0, s{S_T}, 131072", f"s_lshl_b32 s{S_SO}, s{S_W}, 15", f"s_add_u32 s{S_SO}, s{S_SO}, {4*131072}"]]
            for j_ in range(4):
                x_ = [f"buffer_load_dwordx4 v{VDE if j_%2==0 else VDO}, s[8:11], s{S_SO} offen offset:{j_*1024} lds", f"s_add_u32 s{S_SO}, s{S_SO}, s{S_ST1}"]
                if j_ == 0: G45[0] += x_
                else: G45.append(x_)
            GA = G + G45
            if 1 <= m_ <= 3:
                for k_, i_ in enumerate((0, 2, 3, 5)): pre[i_] += GA[4*(m_-1) + k_]
            if m_ == 1: extra = []
            if m_ == 4: extra = setup7[13:]
        else:
            if 2 <= m_ <= 5: pre[2] += G[2*(m_-2)]; pre[5] += G[2*(m_-2)+1]
            if m_ == 6:
                pre[2] += [f"s_lshl_b32 s{S_T}, s{S_W}, 12", f"s_add_u32 m0, s{S_T}, 131072", f"s_lshl_b32 s{S_SO}, s{S_W}, 15", f"s_add_u32 s{S_SO}, s{S_SO}, {4*131072}"]
            if m_ in (6, 7):
                for i_, j_ in ((3, 2*(m_-6)), (5, 2*(m_-6)+1)):
                    pre[i_] += [f"buffer_load_dwordx4 v{VDE if j_%2==0 else VDO}, s[8:11], s{S_SO} offen offset:{j_*1024} lds", f"s_add_u32 s{S_SO}, s{S_SO}, s{S_ST1}"]
        if m_ == 8: extra = setup3[:NS3 // 2]
        if m_ == 9: extra = setup3[NS3 // 2:NS3]
        if m_ == 12: extra = setup3[NS3:]
        if m_ == 10: extra = check(0)
        if m_ == 11: extra = finish(0)
        slot(m_ % 4, seq[m_][1], (KF[KB[m_+1]], seq[m_+1][1]) if m_ < 15 else None,
             (VF[VB[m_-1]], seq[m_-1][1]) if m_ else (VF[1], 1), VF[VB[m_]], pre, extra)
    a("s_nop 1")
    a(pv(3, VB[15], 1, 1)); a(rs(3, 1, 1))
    if not ST0: stamp(a, 4)
    if ST3: stamp(a, 1, True)
    a("s_nop 7\ns_nop 3")
    a(check(1))
    a(f"""
    s_and_b64 vcc, s[{S_BAD}:{S_BAD+1}], s[{S_BAD+2}:{S_BAD+3}]
    s_cmp_eq_u64 vcc, exec
    s_cbranch_scc0 L_fallback
    """)
    a.label("L_fin")
    a(finish(1))
    def wslot(i): return i*16384 if i < 4 else 131072 + (i-4)*16384
    def dma3(mo, mw):
        G = []
        for j in range(4):
            g = []
            if j == 0:
                if mw is None: g += [f"s_add_u32 m0, s{S_M3}, {mo}"]
                else: g += [f"s_cmp_eq_u32 s{S_WH}, 0", f"s_mov_b32 s{S_T}, {mw}", f"s_cmov_b32 s{S_T}, {mo}", f"s_add_u32 m0, s{S_M3}, s{S_T}"]
                g += [f"s_mov_b32 s{S_SO}, s{S_O3}"]
            g.append(f"buffer_load_dwordx4 v{VDE if j%2==0 else VDO}, s[8:11], s{S_SO} offen offset:{j*1024} sc1 lds")
            g.append(f"s_add_u32 s{S_SO}, s{S_SO}, s{S_ST1}" if j < 3 else f"s_add_u32 s{S_O3}, s{S_O3}, s{S_INC}")
            G.append(g)
        return G
    a("s_barrier")
    if ST3: stamp(a, 2, True)
    a("s_waitcnt vmcnt(0)")
    if ST3: stamp(a, 3, True)
    a(flagst(ZERO, S_FO))
    a(f"s_cmp_lg_u32 s{S_WH}, 0\ns_cbranch_scc1 L_p3go")
    if OPT("POLL2", 0):
        P2 = T3 + 4
        ld = lambda r: f"buffer_load_dwordx2 v[{r}:{r+1}], v{FOFF}, s[36:39], s{S_F3} offen sc1"
        a(f"s_mov_b32 s{S_T}, {SPIN_MAX}")
        a(ld(PDAT)); a(f"s_sleep {OPT('PSL2', 3)}")
        a.label("L_pollo")
        for r0, r1 in ((PDAT, P2), (P2, PDAT)):
            a(ld(r1))
            a(f"""
            s_waitcnt vmcnt(1)
            v_cmp_eq_u64 vcc, s[{NON}:{NON+1}], v[{r0}:{r0+1}]
            s_cmp_eq_u64 vcc, exec
            s_cbranch_scc1 L_pollo_done
            """)
        a(f"s_sub_u32 s{S_T}, s{S_T}, 1\ns_cbranch_scc0 L_pollo")
        a.label("L_pollo_done")
    else:
        poll("L_pollo", S_F3)
    if ST3: stamp(a, 4, True)
    PFO_ = OPT("PFO", 0)
    for st in range(4):
        if PFO_ and st == PFO_ - 1:
            a(f"s_lshl_b32 s{S_T}, s{S_B}, 13\nv_lshlrev_b32 v{PDAT}, 7, v0\nbuffer_load_dword v{PDAT+1}, v{PDAT}, s[8:11], s{S_T} offen sc1")
        for g in dma3(65536 + st*16384, None): a(g)
    a(f"s_waitcnt vmcnt({13 if PFO_ > 1 else 12})")
    a.label("L_p3go")
    if ST3: a(f"s_cmp_eq_u32 s{S_WH}, 0\ns_cbranch_scc1 L_st3x"); stamp(a, 4, True); a.label("L_st3x")
    a("s_barrier")
    if OPT("G3PRIO", "") == "0": a("s_setprio 0")
    if not ST0: stamp(a, 5)
    def reads3(s, buf):
        ws_, os_ = s % 6, s % 4
        O_ = [f"ds_read_b128 {vr(FO_[buf][i],4)}, v{OA if i < 2 else OB} offset:{os_*16384 + (i%2)*1024}" for i in range(4)]
        W_ = [f"ds_read_b64_tr_b16 {vr(FW3[buf][nb]+2*u,2)}, v{WA3[ws_//4][nb]} offset:{(ws_%4)*16384 + u*2048}" for nb in range(4) for u in range(2)]
        return W_[0:2] + O_ + W_[2:]
    def mfmas3(buf, first=False, last=False):
        L = [mf16(AC3[i][nb], FW3[buf][nb], FO_[buf][i]) for nb in range(4) for i in range(4)]
        o = os.environ.get("ORD3", "i") if not last else ""
        if o == "i": L = [L[4*(nb if i % 2 == 0 else 3 - nb) + i] for i in range(4) for nb in range(4)]
        if o == "snake": L = [L[4*nb + (i if nb % 2 == 0 else 3 - i)] for nb in range(4) for i in range(4)]
        return [x[:x.rindex(",")] + ", 0" for x in L] if first else L
    a(reads3(0, 0))
    fin_setup = f"""
    s_lshl_b32 s{S_T}, s{S_WH}, 3
    s_add_u32 s{S_T}, s{S_T}, s{S_WR}
    s_lshl_b32 s{S_T}, s{S_T}, 13
    v_lshlrev_b32 v{T3}, 4, v0
    v_add_u32 v{T3}, s{S_T}, v{T3}
    v_xor_b32 v{T3+1}, 0x10000, v{T3}
    s_mov_b32 s12, s28
    s_mov_b32 s13, s29
    s_mov_b32 s14, 0x800000
    s_lshl_b32 s{S_T}, s{S_A}, 2
    s_lshl_b32 s{S_SO}, s{S_R3}, 1
    s_add_u32 s{S_T}, s{S_T}, s{S_SO}
    s_add_u32 s{S_T}, s{S_T}, s{S_WH}
    s_lshl_b32 s{S_T}, s{S_T}, 17
    s_lshl_b32 s{S_SO}, s{S_P}, 11
    s_add_u32 s{S_T}, s{S_T}, s{S_SO}
    s_lshl_b32 s{S_SO}, s{S_B}, 8
    s_add_u32 s{S_T}, s{S_T}, s{S_SO}
    s_lshl_b32 s{S_SO}, s{S_C3}, 7
    s_add_u32 s{S_SO}, s{S_T}, s{S_SO}
    s_add_u32 s{S_SO+1}, s{S_SO}, 65536
    v_and_b32 v{T3+2}, 15, v0
    v_lshlrev_b32 v{T3+2}, 12, v{T3+2}
    v_bfe_u32 v{T3+3}, v0, 4, 1
    v_lshl_add_u32 v{T3+2}, v{T3+3}, 5, v{T3+2}
    v_lshrrev_b32 v{T3+3}, 5, v0
    v_lshl_add_u32 v{T3+2}, v{T3+3}, 4, v{T3+2}
    """.strip().split("\n")
    for s in range(16):
        if s < 15:
            a(f"s_waitcnt vmcnt({8 if s <= 12 else 4 if s == 13 else 0}) lgkmcnt(0)\ns_barrier")
            if s % 2 == 0: stamp_stage(a, str(s // 2), 3)
            r = reads3(s + 1, 1 - s % 2)
            f = {}
            for k_, x in enumerate(r): f.setdefault(min(15, int(k_ * OPT("S3", 1.0))), []).append(x)
            if s <= 11:
                d = dma3(65536 + (s % 4)*16384, wslot(s % 6))
                for k_, i in enumerate([int(x) for x in os.environ.get("D3POS", "0,4,8,12").split(",")]): f[i] = f.get(i, []) + d[k_]
            if s == 14:
                for i in range(14): f[i] = f.get(i, []) + fin_setup[2*i:2*i+2]
            a(weave(mfmas3(s % 2, s == 0), f))
        else:
            a("s_waitcnt lgkmcnt(0)")
            m = mfmas3(1, False, True)
            order = [k_ for k_ in range(16) if k_ % 4 >= 2] + [k_ for k_ in range(16) if k_ % 4 < 2]
            mm = [m[k_] for k_ in order]
            a(mm[:8])
            wr_ = {2*(j % 4) + j//4: f"ds_write_b128 v{T3}, {vr(AC3[2][0]+4*j,4)} offset:{j*1024}" for j in range(8)}
            for k_ in range(8): a(mm[8 + k_]); a(wr_[k_])
    if not ST0: stamp(a, 6)
    a("s_waitcnt lgkmcnt(0)\ns_barrier")
    for j in range(8): a(f"ds_read_b128 {vr(RX+4*j,4)}, v{T3+1} offset:{j*1024}")
    prev = None
    for j in range(5):
        if j < 4:
            qb, np_ = j // 2, j % 2
            t0 = AC3[qb][2*np_]
            a(f"s_waitcnt lgkmcnt({6 - 2*j})")
            for i in range(0, 8, 2): a(f"v_pk_add_f32 v[{t0+i}:{t0+i+1}], v[{t0+i}:{t0+i+1}], v[{RX+8*j+i}:{RX+8*j+i+1}]")
            cur = (16 + 4*j, qb, np_)
            a(pack2(cur[0], t0, t0 + 4))
        else:
            cur = None; a("s_nop 1")
        if prev:
            a(swap2(prev[0]))
            a(f"buffer_store_dwordx4 {vr(prev[0],4)}, v{T3+2}, s[12:15], s{S_SO+prev[1]} offen offset:{prev[2]*64} {os.environ.get('OUTPOL', 'sc0 sc1')}")
        prev = cur
    stamp_flush(a, 7, 1)
    a.label("L_end")
    a("s_endpgm")
    for lab, body, ret in RARE:
        a.label(lab)
        body() if callable(body) else a(body)
        a(f"s_branch {ret}")
    MX = [VT, VT+2]
    a.label("L_fallback")
    a(f"""
    v_mov_b32 v{MX[0]}, 0xff800000
    v_mov_b32 v{MX[1]}, 0xff800000
    s_mov_b32 s{S_IT}, 0
    s_waitcnt vmcnt(0) lgkmcnt(0)
    """)
    a.label("L_fb_max")
    a(f"s_add_u32 s{S_T}, s{S_IT}, s{S_HB}")
    for t in range(2): a(f"buffer_load_dwordx4 {vr(KF[0]+4*t,4)}, v{VD}, s[36:39], s{S_T} offen offset:{t*1024} sc1")
    a("s_waitcnt vmcnt(0)")
    a(qk(0, 0, 0, "0")); a(qk(1, 0, 1, "0"))
    a("s_nop 15")
    for qt in range(2):
        for i in range(0, 16, 2): a(f"v_max3_f32 v{MX[qt]}, v{MX[qt]}, v{S[qt]+i}, v{S[qt]+i+1}")
    a(f"""
    s_add_u32 s{S_IT}, s{S_IT}, 4096
    s_cmp_lt_u32 s{S_IT}, 0x40000
    s_cbranch_scc1 L_fb_max
    """)
    max_to_nm(MX[0], 0); max_to_nm(MX[1], 1)
    for i in range(O[0], LA[1] + 4, 2): a(f"v_mov_b64 v[{i}:{i+1}], 0")
    a(f"s_mov_b32 s{S_IT}, 0")
    a.label("L_fb_main")
    a(f"s_add_u32 s{S_T}, s{S_IT}, s{S_HB}")
    for t in range(2): a(f"buffer_load_dwordx4 {vr(KF[0]+4*t,4)}, v{VD}, s[36:39], s{S_T} offen offset:{t*1024} sc1")
    for t in range(2): a(f"buffer_load_dwordx4 {vr(VF[0]+4*t,4)}, v{VD}, s[36:39], s{S_T} offen offset:{2048+t*1024} sc1")
    a("s_waitcnt vmcnt(0)")
    a(qk(0, 0, 0)); a(qk(1, 0, 1))
    a("s_nop 15")
    for qt in range(2):
        for i in range(16): a(f"v_exp_f32 v{S[qt]+i}, v{S[qt]+i}")
    a("s_nop 1")
    if DENSE:
        for qt in range(2):
            for i in range(8): a(f"v_cvt_pk_bf16_f32 v{S[qt]+i}, v{S[qt]+2*i}, v{S[qt]+2*i+1}")
        a("s_nop 1")
    for qt in range(2):
        for t in range(2):
            a(pv(qt, 0, qt, t))
            if rs(qt, qt, t): a(rs(qt, qt, t))
    a(f"""
    s_add_u32 s{S_IT}, s{S_IT}, 4096
    s_cmp_lt_u32 s{S_IT}, 0x40000
    s_cbranch_scc1 L_fb_main
    s_nop 15
    """)
    a(lbcast(0) + lbcast(1))
    a(finish(0))
    a("s_branch L_fin")
    return f""".p2align 6
.amdhsa_kernel {name}
  .amdhsa_next_free_vgpr {NV}
  .amdhsa_next_free_sgpr 102
  .amdhsa_accum_offset {NV}
  .amdhsa_group_segment_fixed_size 0
  .amdhsa_kernarg_size 72
  .amdhsa_user_sgpr_count 2
  .amdhsa_user_sgpr_kernarg_segment_ptr 1
  .amdhsa_system_sgpr_workgroup_id_x 1
.end_amdhsa_kernel"""

DOC = """
;
"""

def main():
    out = sys.argv[1] if len(sys.argv) > 1 else f"cdna_kernels/{NAME}.s"
    a = Asm()
    k = gen(a)
    hdr = open(f"cdna_kernels/{NAME}.s.ref").read().split("\n")
    hdr = [l for l in hdr if l.startswith(";") and "@launch" not in l]
    hdr.append(f"; @launch grid=(256,1,1) block=(512,1,1) lds={LDS_BYTES}")
    hdr += DOC.strip("\n").split("\n")
    txt = "\n".join(hdr) + '\n.amdgcn_target "amdgcn-amd-amdhsa--gfx950"\n.text\n' + a.text() + '\n.section .rodata,"a"\n' + k + "\n"
    open(out, "w").write(txt)

if __name__ == "__main__":
    main()
```

```python
import sys, math, os, struct
from gen2 import Asm, vr, f2u, mf32, mf16, weave, NAME

STAMP = os.environ.get("STAMP", "0") == "1"
def OPT(k, d): return type(d)(os.environ.get(k, d))

KVWS = 0
OWS = 16 << 20
FKV = 24 << 20
FO = FKV + 65536
WS_BYTES = 25 << 20
STAMP_BASE = 64 << 20
CSCALE = math.log2(math.e) / math.sqrt(32.0)
LDS_BYTES = 163840
SPIN_MAX = 1 << 16

S_W, S_P, S_A, S_B, S_T = 3, 4, 5, 6, 7
S_WR, S_WH, S_IT = 40, 41, 42
NON = 34

ST3 = os.environ.get("ST3", "") == "1"
STG = os.environ.get("STG", "") == "1"
STG1 = {"1": True, "3": 3}.get(os.environ.get("STG1", ""), False)
def stamp_stage(a, lane, g1=False):
    if STG and g1 == STG1:
        a(f"s_memtime s[92:93]\ns_memrealtime s[94:95]\ns_lshl_b64 exec, 1, {lane}\ns_waitcnt lgkmcnt(0)\nv_mov_b32 v14, s92\nv_mov_b32 v15, s94\ns_mov_b64 exec, -1")
def stamp(a, i, alt=False):
    if ST3 and i in (1, 2, 3, 4) and not alt: return
    if STAMP and not STG:
        a(f"s_memtime s[{64+4*i}:{65+4*i}]")
        a(f"s_memrealtime s[{66+4*i}:{67+4*i}]")
        a("s_waitcnt lgkmcnt(0)")
def stamp_flush(a, n, vt):
    if not STAMP: return
    a("s_waitcnt vmcnt(0) lgkmcnt(0)")
    stamp(a, n)
    a(f"""
    s_add_u32 s56, s32, {STAMP_BASE}
    s_addc_u32 s57, s33, 0
    s_mov_b32 s58, 0x100000
    s_mov_b32 s59, 0x20000
    s_lshl_b32 s60, s2, 3
    s_add_u32 s60, s60, s{S_W}
    s_lshl_b32 s60, s60, 6
    v_mov_b32 v{vt}, 0
    """)
    if STG:
        a(f"v_lshlrev_b32 v{vt}, 3, v0\ns_mov_b64 exec, 0xff\nbuffer_store_dwordx2 v[14:15], v{vt}, s[56:59], s60 offen")
        return
    for i in range(n + 1):
        a(f"v_mov_b32 v{vt+1}, s{64+4*i}")
        a(f"v_mov_b32 v{vt+2}, s{66+4*i}")
        a(f"buffer_store_dwordx2 v[{vt+1}:{vt+2}], v{vt}, s[56:59], s60 offen offset:{8*i}")
        a("s_nop 1")

DENSE = "d" in os.environ.get("ATX", "")
def gen(a):
    name = NAME + "_kernel"
    a.raw(f".globl {name}\n.p2align 8\n.type {name},@function\n{name}:")
    stamp(a, 0)
    RARE = []
    def emit(L):
        for x in L:
            a(x)
            if " m0," in x: a("s_nop 0")
    PKB = [48, 32]; Q = [16, 24]; PK = 32; KF = [64, 72]; VF = [80, 88]; NM = [96, 112]; S = [128, 144, 160, 176]
    O = [192, 208]; LA = [224, 228]; ONES = 232; IDX = 236; ZERO = 237
    FDAT, FOFF, PDAT = 238, 240, 242
    XB = [244, 245]; VDE, VDO = 246, 247
    NV = 256
    def poll(lab, soff, mask=None, first_loaded=False):
        ld = f"buffer_load_dwordx2 v[{PDAT}:{PDAT+1}], v{FOFF}, s[36:39], s{soff} offen sc1"
        a(f"s_mov_b32 s{S_T}, {SPIN_MAX}")
        if not first_loaded: a(ld)
        a.label(lab)
        a(f"""
        s_waitcnt vmcnt(0)
        v_cmp_eq_u64 vcc, s[{NON}:{NON+1}], v[{PDAT}:{PDAT+1}]
        """)
        if mask: a(f"s_or_b64 vcc, vcc, {mask}")
        a(f"""
        s_cmp_eq_u64 vcc, exec
        s_cbranch_scc1 {lab}_done
        s_sub_u32 s{S_T}, s{S_T}, 1
        s_cbranch_scc1 {lab}_done
        s_sleep {OPT("PSLEEP", 8)}
        {ld}
        s_branch {lab}
        """)
        a.label(lab + "_done")
    XA = [2, 3]; WA = [4, 5]; D0, D1, D2, PFV, PFD = 6, 7, 8, 9, 10
    VT = 11
    FX = [[16 + 16*buf + 4*rb for rb in range(4)] for buf in range(2)]
    FW = [[48 + 24*buf + 4*cb for cb in range(6)] for buf in range(2)]
    ACC = [[96 + 16*cb + 4*rb for rb in range(4)] for cb in range(6)]
    S_KX, S_KW, T0, S_M0X, S_M0W, S_XF, S_XN, S_PFO, S_PFI = 43, 44, 45, 47, 48, 49, 50, 56, 57
    W0, W1 = 98304, 122880
    RSZ = OPT("RSZ", 2)
    NTW, NTX, NTP = os.environ.get("NTW", ""), os.environ.get("NTX", ""), os.environ.get("NTP", "")
    PF0, PFSTEP = OPT("PF0", 3), OPT("PFSTEP", 4)
    a(f"""
    s_cmp_ge_u32 s2, 256
    s_cbranch_scc1 L_end
    s_load_dwordx16 s[16:31], s[0:1], 0
    s_load_dwordx2 s[32:33], s[0:1], 64
    s_memrealtime s[{NON}:{NON+1}]
    v_lshrrev_b32 v1, 6, v0
    v_and_b32 v0, 63, v0
    v_readfirstlane_b32 s{S_W}, v1
    s_and_b32 s{S_T}, s2, 7
    s_lshr_b32 s{S_B}, s2, 3
    s_lshr_b32 s{S_P}, s{S_T}, 2
    s_and_b32 s{S_A}, s{S_T}, 3
    s_lshl_b32 s{S_A}, s{S_A}, 2
    s_and_b32 s{S_T}, s{S_B}, 3
    s_or_b32 s{S_A}, s{S_A}, s{S_T}
    s_lshr_b32 s{S_B}, s{S_B}, 2
    s_and_b32 s{S_WR}, s{S_W}, 3
    s_lshr_b32 s{S_WH}, s{S_W}, 2
    s_mul_i32 s{S_M0X}, s{S_WR}, 7
    s_add_u32 s{S_T}, s{S_WR}, 28
    s_cmp_eq_u32 s{S_WH}, 0
    s_cselect_b32 s{S_M0X}, s{S_T}, s{S_M0X}
    v_lshrrev_b32 v{VT}, 3, v0
    s_lshl_b32 s{S_T}, s{S_M0X}, 3
    v_add_u32 v{VT+4}, s{S_T}, v{VT}
    v_lshlrev_b32 v{VT+4}, 11, v{VT+4}
    v_and_b32 v{VT+1}, 7, v0
    v_lshrrev_b32 v{VT+2}, 4, v0
    v_xor_b32 v{VT+3}, v{VT+1}, v{VT+2}
    s_and_b32 s{S_T}, s{S_WR}, 1
    s_lshl_b32 s{S_T}, s{S_T}, 2
    v_xor_b32 v{VT+3}, s{S_T}, v{VT+3}
    v_lshl_add_u32 v{D2}, v{VT+3}, 4, v{VT+4}
    s_lshl_b32 s{S_M0X}, s{S_M0X}, 10
    s_lshl_b32 s{S_T}, s{S_WR}, 4
    v_add_u32 v{VT}, s{S_T}, v{VT}
    v_mul_u32_u24 v{VT}, 6144, v{VT}
    v_and_b32 v{VT+2}, 1, v{VT+2}
    v_lshlrev_b32 v{VT+2}, 2, v{VT+2}
    v_xor_b32 v{VT+3}, v{VT+1}, v{VT+2}
    v_lshl_add_u32 v{D0}, v{VT+3}, 4, v{VT}
    v_xor_b32 v{D1}, 32, v{D0}
    v_add_u32 v{D1}, 49152, v{D1}
    s_mul_i32 s{S_M0W}, s{S_WR}, 6144
    s_add_u32 s{S_M0W}, s{S_M0W}, {W0}
    s_mov_b32 s{S_KX}, 0
    s_mov_b32 s{S_KW}, 0
    s_mov_b32 s11, 0x20000
    s_mov_b32 s15, 0x20000
    s_mov_b32 s39, 0x20000
    s_mov_b32 s55, 0x20000
    v_mov_b32 v{ZERO}, 0
    s_waitcnt lgkmcnt(0)
    s_cmp_eq_u32 s{S_P}, 0
    s_cselect_b32 s8, s16, s22
    s_cselect_b32 s9, s17, s23
    s_cselect_b32 s12, s18, s24
    s_cselect_b32 s13, s19, s25
    s_lshl_b32 s{S_T}, s{S_B}, 19
    s_add_u32 s8, s8, s{S_T}
    s_addc_u32 s9, s9, 0
    s_sub_u32 s10, 0x400000, s{S_T}
    s_lshl_b32 s{S_T}, s{S_A}, 7
    s_add_u32 s12, s12, s{S_T}
    s_addc_u32 s13, s13, 0
    s_sub_u32 s14, 0x600000, s{S_T}
    s_cmp_lg_u32 s{S_WH}, 0
    s_cbranch_scc1 L_proB
    """)
    def burstW(stage):
        L = []
        for g in range(2):
            L.append(f"s_add_u32 m0, s{S_M0W}, {stage*(W1-W0) + g*3072}")
            for s_ in range(3):
                if s_: L.append(f"s_add_u32 s{T0+s_%2}, s{S_KW}, {s_*1024}")
                else: L.append("s_nop 0")
                L.append(f"buffer_load_dwordx4 v{D0+g}, s[12:15], s{T0+s_%2 if s_ else S_KW} offen offset:{s_*1024} {NTW} lds")
        L.append(f"s_add_u32 s{S_KW}, s{S_KW}, 393216")
        return L
    def burstXA(slot):
        return [f"s_add_u32 m0, s{S_M0X}, {slot}", "s_nop 0", f"buffer_load_dwordx4 v{D2}, s[8:11], s{S_KX} offen {NTX} lds", f"s_add_u32 s{S_KX}, s{S_KX}, 128"]
    def burstXB(slot):
        L = [f"s_add_u32 m0, s{S_M0X}, {slot}"]
        for j in range(7):
            if j == 4: L.append("s_add_u32 m0, m0, 4096")
            L.append(f"s_add_u32 s{T0+j%2}, s{S_KX}, {j*16384 - (j%4)*1024}")
            L.append(f"buffer_load_dwordx4 v{D2 if j%2==0 else D1}, s[8:11], s{T0+j%2} offen offset:{(j%4)*1024} {NTX} lds")
        L.append(f"s_add_u32 s{S_KX}, s{S_KX}, 128")
        return L
    a(burstW(0) + burstXA(0) + burstW(1) + burstXA(32768) + burstXA(65536))
    a(f"""
    s_or_b32 s{S_T}, s2, s{S_W}
    s_cmp_lg_u32 s{S_T}, 0
    s_cbranch_scc1 L_pro2
    s_mov_b32 s52, s30
    s_mov_b32 s53, s31
    s_mov_b32 s54, 256
    s_or_b32 s{NON}, s{NON}, 1
    v_mov_b32 v{FDAT}, s{NON}
    v_mov_b32 v{FDAT+1}, s{NON+1}
    s_mov_b64 exec, 1
    buffer_store_dwordx2 v[{FDAT}:{FDAT+1}], v{ZERO}, s[52:55], 0 offen sc1
    s_mov_b64 exec, -1
    s_branch L_pro2
    """)
    a.label("L_proB")
    a(f"v_xor_b32 v{D1}, 64, v{D2}")
    a(burstXB(0) + burstXB(32768))
    a.label("L_pro2")
    a(f"""
    s_lshl_b32 s{S_T}, s{S_B}, 2
    s_add_u32 s{S_T}, s{S_T}, s{S_WR}
    s_lshl_b32 s{S_T}, s{S_T}, 2
    v_and_b32 v{VT+1}, 3, v0
    v_add_u32 v{VT+1}, s{S_T}, v{VT+1}
    v_bfe_u32 v{VT+2}, v0, 4, {0 if OPT("PFHALF", 0) else 1}
    v_lshl_add_u32 v{VT+1}, v{VT+2}, 7, v{VT+1}
    v_mul_u32_u24 v{VT+1}, 6144, v{VT+1}
    v_bfe_u32 v{VT+2}, v0, 2, 2
    v_min_u32 v{VT+2}, 2, v{VT+2}
    v_lshl_add_u32 v{PFV}, v{VT+2}, 11, v{VT+1}
    s_mov_b32 s{S_PFO}, {393216 * PF0}
    s_and_b32 s{S_T}, s{S_A}, 3
    s_lshl_b32 s{S_T}, s{S_T}, 2
    s_add_u32 s{S_T}, s{S_T}, s{S_WR}
    s_lshl_b32 s{S_T}, s{S_T}, 4
    v_and_b32 v{VT}, 15, v0
    v_add_u32 v{VT}, s{S_T}, v{VT}
    v_lshlrev_b32 v{VT}, 11, v{VT}
    v_lshrrev_b32 v{VT+1}, 4, v0
    v_lshl_add_u32 v{VT}, v{VT+1}, 7, v{VT}
    s_cmp_eq_u32 s{S_WH}, 0
    s_cselect_b64 vcc, -1, 0
    s_cselect_b32 s{S_PFO}, {128 * OPT("PFX0", 4)}, s{S_PFO}
    v_cndmask_b32 v{PFV}, v{PFV}, v{VT}, vcc
    v_and_b32 v{VT}, 15, v0
    s_lshl_b32 s{S_T}, s{S_WR}, 6
    v_add_u32 v{VT}, s{S_T}, v{VT}
    v_lshlrev_b32 v{VT}, 7, v{VT}
    v_lshrrev_b32 v{VT+1}, 4, v0
    v_bfe_u32 v{VT+2}, v0, 1, 3
    v_xor_b32 v{VT+2}, v{VT+1}, v{VT+2}
    v_lshl_add_u32 v{XA[0]}, v{VT+2}, 4, v{VT}
    v_xor_b32 v{XA[1]}, 64, v{XA[0]}
    v_mov_b32 v{XB[0]}, v{XA[0]}
    v_mov_b32 v{XB[1]}, v{XA[1]}
    v_mul_u32_u24 v{VT}, 3072, v{VT+1}
    v_bfe_u32 v{VT+2}, v0, 2, 2
    v_lshl_add_u32 v{VT}, v{VT+2}, 7, v{VT}
    v_bfe_u32 v{VT+3}, v0, 1, 1
    s_lshl_b32 s{S_T}, s{S_WH}, 2
    v_add_u32 v{VT+3}, s{S_T}, v{VT+3}
    v_bfe_u32 v{VT+4}, v0, 3, 1
    v_lshlrev_b32 v{VT+4}, 2, v{VT+4}
    v_xor_b32 v{VT+3}, v{VT+3}, v{VT+4}
    v_bfe_u32 v{VT+4}, v0, 4, 1
    v_lshlrev_b32 v{VT+4}, 1, v{VT+4}
    v_xor_b32 v{VT+3}, v{VT+3}, v{VT+4}
    v_lshl_add_u32 v{VT}, v{VT+3}, 4, v{VT}
    v_and_b32 v{VT+4}, 1, v0
    v_lshl_add_u32 v{VT}, v{VT+4}, 3, v{VT}
    v_add_u32 v{WA[0]}, {W0}, v{VT}
    v_xor_b32 v{WA[1]}, 32, v{WA[0]}
    v_mov_b32 v{IDX}, {"0x44444444" if DENSE else "0xdddddddd"}
    {f"v_and_b32 v{VT}, 1, v0" if DENSE else ""}
    {f"v_mul_u32_u24 v{VT}, 0xaaaa, v{VT}" if DENSE else ""}
    {f"v_add_u32 v{IDX}, v{IDX}, v{VT}" if DENSE else ""}
    v_and_b32 v{VT}, {[4, 7, 15][RSZ]}, v0
    v_mov_b32 v{VT+1}, 0x3f803f80
    v_cmp_eq_u32 vcc, 0, v{VT}
    v_lshlrev_b32 v{VDE}, 4, v0
    v_lshlrev_b32 v{VDO}, 4, v0
    v_cndmask_b32 v{ONES}, v{ZERO}, v{VT+1}, vcc
    v_cndmask_b32 v{ONES+1}, v{ZERO}, v{VT+1}, vcc
    v_cmp_eq_u32 vcc, 4, v{VT}
    s_nop 1
    v_cndmask_b32 v{ONES+2}, v{ZERO}, v{VT+1}, vcc
    v_cndmask_b32 v{ONES+3}, v{ZERO}, v{VT+1}, vcc
    v_and_b32 v{FOFF}, 15, v0
    v_lshlrev_b32 v{FOFF}, 3, v{FOFF}
    s_lshl_b32 s{S_T}, s{S_B}, 3
    v_mov_b32 v{FOFF+1}, s{S_T}
    s_mov_b32 s{S_IT}, 0
    s_mov_b32 s{S_XN}, 32768
    """)
    for i in range(96, 232, 2): a(f"v_mov_b64 v[{i}:{i+1}], 0")
    if OPT("IPF", 0):
        a(f"""
        s_cmp_lg_u32 s{S_W}, 7
        s_cbranch_scc1 L_noipf
        s_getpc_b64 s[60:61]
        v_lshlrev_b32 v{VT}, 7, v0
        global_load_dword v{PFD}, v{VT}, s[60:61]
        v_add_u32 v{VT}, 8192, v{VT}
        global_load_dword v{PFD}, v{VT}, s[60:61]
        v_add_u32 v{VT}, 8192, v{VT}
        v_min_u32 v{VT}, {OPT("IPFMAX", 21000)}, v{VT}
        global_load_dword v{PFD}, v{VT}, s[60:61]
        """)
        a.label("L_noipf")
    BULK = OPT("BULK", 0)
    if BULK:
        a(f"""
        s_lshl_b32 s{S_T}, s{S_A}, 7
        s_sub_u32 s52, s12, s{S_T}
        s_subb_u32 s53, s13, 0
        s_mov_b32 s54, 0x600000
        s_lshl_b32 s{S_T}, s{S_A}, 3
        s_add_u32 s{S_T}, s{S_T}, s{S_B}
        s_lshl_b32 s{S_T}, s{S_T}, 3
        s_add_u32 s{S_T}, s{S_T}, s{S_W}
        s_mul_i32 s{S_T}, s{S_T}, 6144
        v_min_u32 v{VT}, 47, v0
        v_lshlrev_b32 v{VT}, 7, v{VT}
        {"s_sleep " + str(OPT("BSLEEP", 0)) if OPT("BSLEEP", 0) else ""}
        buffer_load_dword v{PFD}, v{VT}, s[52:55], s{S_T} offen
        s_cmp_lg_u32 s{S_WH}, 0
        s_cbranch_scc1 L_nobx
        s_lshl_b32 s{S_T}, s{S_A}, 2
        s_add_u32 s{S_T}, s{S_T}, s{S_WR}
        s_lshl_b32 s{S_T}, s{S_T}, 13
        v_lshlrev_b32 v{VT+1}, 7, v0
        buffer_load_dword v{PFD}, v{VT+1}, s[8:11], s{S_T} offen
        """)
        a.label("L_nobx")
    def reads1(stage, t, buf):
        X = [f"ds_read_b128 {vr(FX[buf][rb],4)}, v{XA[t]} offset:{rb*2048}" for rb in range(4)]
        W = []
        for cb in range(6):
            for u in range(2):
                W.append(f"ds_read_b64_tr_b16 {vr(FW[buf][cb]+2*u,2)}, v{WA[cb%2]} offset:{stage*(W1-W0) + t*12288 + (cb//2)*1024 + u*512}")
        return W[0:2] + X + W[2:]
    def mfmas1(buf, natural=False):
        L = [mf16(ACC[cb][rb], FW[buf][cb], FX[buf][rb]) if cb < 4 else mf16(ACC[cb][rb], FX[buf][rb], FW[buf][cb])
             for cb in range(6) for rb in range(4)]
        o = "cb" if natural else os.environ.get("ORD1", "A")
        if o == "rb": L = [L[4*cb + rb] for rb in range(4) for cb in range(6)]
        if o == "snake": L = [L[4*cb + (rb if cb % 2 == 0 else 3 - rb)] for cb in range(6) for rb in range(4)]
        if o == "A": L = [L[4*cb + (rb if cb % 2 == 0 else 3 - rb)] for cb in range(4) for rb in range(4)] + [L[4*(4 + (c ^ (rb & 1))) + rb] for rb in range(4) for c in range(2)]
        if o == "B": L = [L[4*(cb if rb % 2 == 0 else 3 - cb) + rb] for rb in range(4) for cb in range(4)] + [L[4*cb + (rb if cb % 2 else 3 - rb)] for cb in (4, 5) for rb in range(4)]
        return L
    def spread(r, key):
        sp, off = float(os.environ.get(key, "1.4" if key in ("SA1", "SB1") else "1")), int(os.environ.get(key + "O", "0"))
        f = {}
        for k_, x in enumerate(r): f.setdefault(min(23, off + int(k_ * sp)), []).append(x)
        return f
    def rot_x():
        return [f"v_add_u32 v{XA[1]}, s{S_XN}, v{XB[1]}", f"s_mov_b32 s{S_XF}, s{S_XN}", f"s_add_u32 s{S_XN}, s{S_XN}, 32768",
                f"s_cmp_eq_u32 s{S_XN}, 98304", f"s_cselect_b32 s{S_XN}, 0, s{S_XN}"]
    BSPR = OPT("BSPR", 0)
    def place(f, burst, pre):
        if BSPR == 0:
            pre += burst; return
        groups, cur = [], []
        for x in burst:
            cur.append(x)
            if " lds" in x or "buffer_load_dword " in x: groups.append(cur); cur = []
        if cur: groups[-1] += cur
        pre += groups[0]
        for k_, g in enumerate(groups[1:]): f[(k_ + 1) * BSPR - 1] = f.get((k_ + 1) * BSPR - 1, []) + g
    a(f"""
    s_cmp_lg_u32 s{S_WH}, 0
    s_cbranch_scc1 L_g1B_pre
    s_mov_b32 s{S_XF}, 0
    {"s_setprio 1" if OPT("G1PRIO", "") == "A" else ""}
    {f"buffer_load_dword v{PFD}, v{PFV}, s[8:11], s{S_PFO} offen {os.environ.get('NTXP', '')}" if OPT("XPFE", 0) else ""}
    s_waitcnt vmcnt({8 + 2*BULK + OPT("XPFE", 0)})
    s_barrier
    """)
    stamp(a, 1)
    a(reads1(0, 0, 0))
    if OPT("XPF1", 0): a(f"buffer_load_dword v{PFD}, v{PFV}, s[8:11], s{S_PFO} offen")
    a.raw(".p2align 6")
    a.label("L_g1A")
    stamp_stage(a, f"s{S_IT}", True)
    a(f"s_cmp_eq_u32 s{S_IT}, 7\ns_cselect_b32 s14, 0, s14")
    for stage in range(2):
        a("s_waitcnt lgkmcnt(0)")
        r = reads1(stage, 1, 1)
        a(weave(mfmas1(0), spread(r, "SA0")))
        if stage == 1: a(f"s_cmp_ge_u32 s{S_IT}, 6\ns_cselect_b32 s10, 0, s10")
        a(f"v_add_u32 v{XA[0]}, s{S_XN}, v{XB[0]}")
        PFX = OPT("PFX", 0)
        a(f"s_waitcnt vmcnt({2 if PFX and stage == 1 else 1}) lgkmcnt(0)\ns_barrier")
        r = reads1(1 - stage, 0, 0)
        RA1 = OPT("RA1", 1)
        f = spread(r, "SA1")
        pre = []
        if stage == 1 :
            a(f"s_cmp_eq_u32 s{S_IT}, 7\ns_cbranch_scc1 L_g1A_last")
        if OPT("ARD", 0): pre += [x for i in sorted(f) for x in f[i]]; f = {}
        pfx = [f"s_cmp_lt_u32 s{S_PFO}, {min(2048, 128*OPT('PFX0', 4) + 512*OPT('PFXN', 9))}", f"s_cselect_b32 s{T0}, s{S_PFO}, 0x7fff0000", f"buffer_load_dword v{PFD}, v{PFV}, s[8:11], s{T0} offen", f"s_add_u32 s{S_PFO}, s{S_PFO}, 512"]
        place(f, burstW(stage) + burstXA(f"s{S_XF}") + (pfx if PFX and stage == 0 else []), pre)
        f[20] = f.get(20, []) + rot_x()
        a(pre); a(weave(mfmas1(1), f))
    a(f"""
    s_add_u32 s{S_IT}, s{S_IT}, 1
    s_branch L_g1A
    """)
    a.label("L_g1B_pre")
    NPFE = OPT("NPFE", 0)
    PFE_W = f"buffer_load_dword v{PFD}, v{PFV}, s[12:15], s{S_PFO} offen {NTP}\ns_add_u32 s{S_PFO}, s{S_PFO}, {393216 * 4}\n" * NPFE
    if OPT("G1PRIO", "") == "B": a("s_setprio 1")
    a(f"s_mov_b32 s{S_XF}, 65536\n{PFE_W}s_waitcnt vmcnt({7 + BULK + NPFE})\ns_barrier")
    stamp(a, 1)
    a(reads1(0, 0, 0))
    a.raw(".p2align 6")
    a.label("L_g1B")
    stamp_stage(a, f"s{S_IT}", True)
    a(f"s_cmp_eq_u32 s{S_IT}, 7\ns_cselect_b32 s10, 0, s10")
    if OPT("PREKV", 0):
        a(f"""
        s_cmp_eq_u32 s{S_IT}, {OPT("PREKV", 0)}
        s_cbranch_scc0 L_t0
        s_mov_b32 s12, s32
        s_mov_b32 s13, s33
        s_mov_b32 s14, {WS_BYTES}
        s_lshl_b32 s{S_T}, s{S_P}, 4
        s_add_u32 s{S_T}, s{S_T}, s{S_A}
        s_lshl_b32 s{S_T}, s{S_T}, 4
        s_add_u32 s{S_T}, s{S_T}, s{S_B}
        s_lshl_b32 s{S_T}, s{S_T}, 2
        s_add_u32 s{S_T}, s{S_T}, s{S_WR}
        s_lshl_b32 s{S_PFO}, s{S_T}, 13
        v_and_b32 v{VT}, 31, v0
        v_lshlrev_b32 v{VT}, 7, v{VT}
        v_lshrrev_b32 v{VT+1}, 5, v0
        v_lshl_add_u32 v{PFV}, v{VT+1}, 18, v{VT}
        """)
        a.label("L_t0")
        a(f"s_cmp_gt_u32 s{S_IT}, {OPT('PREKV', 0)}\ns_cselect_b32 s14, 0, s14")
    if OPT("TOUCH", 0):
        a(f"""
        s_cmp_eq_u32 s{S_IT}, 4
        s_cbranch_scc0 L_t1
        s_mov_b32 s12, s32
        s_mov_b32 s13, s33
        s_mov_b32 s14, {WS_BYTES}
        s_lshl_b32 s{S_T}, s{S_P}, 4
        s_add_u32 s{S_T}, s{S_T}, s{S_A}
        s_lshl_b32 s{T0}, s{S_T}, 10
        s_add_u32 s{T0}, s{T0}, {FKV}
        s_lshl_b32 s{S_T}, s{S_T}, 4
        s_add_u32 s{S_T}, s{S_T}, s{S_B}
        s_lshl_b32 s{S_T}, s{S_T}, 2
        s_add_u32 s{S_T}, s{S_T}, s{S_WR}
        s_lshl_b32 s{S_T}, s{S_T}, 13
        v_and_b32 v{VT}, 1, v0
        v_lshlrev_b32 v{VT+1}, 18, v{VT}
        v_add_u32 v{PFV}, s{S_T}, v{VT+1}
        s_lshl_b32 s{S_T}, s{S_P}, 3
        s_add_u32 s{S_T}, s{S_T}, s{S_B}
        s_lshl_b32 s{S_T}, s{S_T}, 2
        s_add_u32 s{S_T}, s{S_T}, s{S_WR}
        s_lshl_b32 s{S_T}, s{S_T}, 5
        s_add_u32 s{S_T}, s{S_T}, s{S_A}
        s_lshl_b32 s{S_T}, s{S_T}, 12
        s_add_u32 s{S_T}, s{S_T}, {OWS}
        v_lshlrev_b32 v{VT+1}, 16, v{VT}
        v_add_u32 v{VT+1}, s{S_T}, v{VT+1}
        v_cmp_lt_u32 vcc, 1, v0
        v_mov_b32 v{VT+2}, s{T0}
        s_mov_b32 s{S_PFO}, 0
        v_cndmask_b32 v{PFV}, v{PFV}, v{VT+1}, vcc
        v_cmp_lt_u32 vcc, 3, v0
        s_nop 1
        v_cndmask_b32 v{PFV}, v{PFV}, v{VT+2}, vcc
        """)
        a.label("L_t1")
        a(f"""
        s_cmp_eq_u32 s{S_IT}, 5
        s_cbranch_scc0 L_t2
        s_mov_b32 s12, s28
        s_mov_b32 s13, s29
        s_mov_b32 s14, 0x800000
        s_lshl_b32 s{S_T}, s{S_A}, 2
        s_add_u32 s{S_T}, s{S_T}, s{S_WR}
        s_lshl_b32 s{S_T}, s{S_T}, 17
        s_lshl_b32 s{T0}, s{S_P}, 11
        s_add_u32 s{S_T}, s{S_T}, s{T0}
        s_lshl_b32 s{T0}, s{S_B}, 8
        s_add_u32 s{S_PFO}, s{S_T}, s{T0}
        v_and_b32 v{VT}, 1, v0
        v_lshlrev_b32 v{PFV}, 16, v{VT}
        """)
        a.label("L_t2")
        a(f"s_cmp_ge_u32 s{S_IT}, 6\ns_cselect_b32 s14, 0, s14")
    pf = [f"buffer_load_dword v{PFD}, v{PFV}, s[12:15], s{S_PFO} offen {NTP}", f"s_add_u32 s{S_PFO}, s{S_PFO}, {393216 * PFSTEP}"]
    for stage in range(2):
        r = reads1(stage, 1, 1)
        RB, BPOS = OPT("RB", 1), OPT("BPOS", -1)
        f = spread(r, "SB0")
        PFB = OPT("PFBOTH", 0)
        bx = burstXB(f"s{S_XF}") + (pf if stage == 0 or PFB else [])
        if OPT("PFFIRST", 0) and (stage == 0 or PFB): bx = pf + burstXB(f"s{S_XF}")
        if BPOS < 0: a(bx)
        else: f[BPOS] = f.get(BPOS, []) + bx
        a("s_waitcnt lgkmcnt(0)")
        a(weave(mfmas1(0), f))
        a(f"v_add_u32 v{XA[0]}, s{S_XN}, v{XB[0]}")
        a(f"s_waitcnt vmcnt({8 if stage == 0 or PFB else 7}) lgkmcnt(0)\ns_barrier")
        if stage == 1:
            a(f"s_cmp_eq_u32 s{S_IT}, 7\ns_cbranch_scc1 L_g1A_last")
        r = reads1(1 - stage, 0, 0)
        RB1 = OPT("RB1", 1)
        f = spread(r, "SB1")
        f[20] = f.get(20, []) + [f"v_add_u32 v{XA[1]}, s{S_XN}, v{XB[1]}", f"s_add_u32 s{S_XF}, s{S_XF}, 32768", f"s_cmp_eq_u32 s{S_XF}, 98304",
                 f"s_cselect_b32 s{S_XF}, 0, s{S_XF}", f"s_add_u32 s{S_XN}, s{S_XN}, 32768",
                 f"s_cmp_eq_u32 s{S_XN}, 98304", f"s_cselect_b32 s{S_XN}, 0, s{S_XN}"]
        a(weave(mfmas1(1), f))
    a(f"""
    s_add_u32 s{S_IT}, s{S_IT}, 1
    s_branch L_g1B
    """)
    VKV, VD = 2, 3
    VT = 4
    S_SO, S_ST1, S_ST2, S_M0, S_KV, S_FL, S_HB, S_GRP, MSK = 43, 44, 45, 46, 47, 49, 50, 51, 56
    a.label("L_g1A_last")
    setup = f"""
    s_mov_b32 s36, s32
    s_mov_b32 s37, s33
    s_mov_b32 s38, {WS_BYTES}
    s_mov_b32 s52, s30
    s_mov_b32 s53, s31
    s_mov_b32 s54, 256
    buffer_load_dwordx2 v[{FDAT}:{FDAT+1}], v{ZERO}, s[52:55], 0 offen sc1
    s_lshl_b32 s{S_T}, s{S_P}, 4
    s_add_u32 s{S_T}, s{S_T}, s{S_A}
    s_lshl_b32 s{S_FL}, s{S_T}, 3
    s_lshl_b32 s{S_T}, s{S_T}, 1
    s_add_u32 s{S_T}, s{S_T}, s{S_WH}
    s_lshl_b32 s{S_HB}, s{S_T}, 18
    s_add_u32 s{S_FL}, s{S_FL}, s{S_W}
    s_lshl_b32 s{S_FL}, s{S_FL}, 7
    s_add_u32 s{S_FL}, s{S_FL}, {FKV}
    s_lshl_b32 s{S_T}, s{S_WR}, 13
    s_add_u32 s{S_T}, s{S_T}, s{S_HB}
    s_add_u32 s8, s32, s{S_T}
    s_addc_u32 s9, s33, 0
    s_mov_b32 s10, 0x40000
    s_lshl_b32 s{S_KV}, s{S_B}, 15
    s_add_u32 s{S_KV}, s{S_KV}, s{S_T}
    s_add_u32 s{S_KV+1}, s{S_KV}, 4096
    s_lshl_b32 s{S_M0}, s{S_W}, 13
    v_lshlrev_b32 v{VD}, 4, v0
    v_add_u32 v{VKV}, s{S_M0}, v{VD}
    s_cmp_eq_u32 s{S_P}, 0
    s_cselect_b32 s12, s20, s26
    s_cselect_b32 s13, s21, s27
    s_lshl_b32 s{S_T}, s{S_B}, 8
    s_add_u32 s12, s12, s{S_T}
    s_addc_u32 s13, s13, 0
    s_sub_u32 s14, 0x200000, s{S_T}
    s_mov_b32 s{S_ST1}, 0
    s_mov_b32 s{MSK}, 0xfff8fff8
    s_mov_b32 s{MSK+1}, s{MSK}
    s_mov_b32 s58, {f2u(CSCALE):#x}
    s_mov_b32 s59, s58
    """.strip().split("\n")
    m = mfmas1(1, True)
    EARLY = OPT("EARLY", 1)
    if EARLY: m = [m[4*cb + rb] for rb2 in (0, 2) for cb in range(2, 6) for rb in (rb2, rb2 + 1)] + m[:8]
    else: m = m[8:] + m[:8]
    LASTM = m
    def pack2(dst, t0, t1):
        return [f"v_cvt_pk_bf16_f32 v{dst}, v{t0}, v{t0+1}", f"v_cvt_pk_bf16_f32 v{dst+1}, v{t0+2}, v{t0+3}",
                f"v_cvt_pk_bf16_f32 v{dst+2}, v{t1}, v{t1+1}", f"v_cvt_pk_bf16_f32 v{dst+3}, v{t1+2}, v{t1+3}"]
    def swap2(dst):
        return [f"v_permlane16_swap_b32 v{dst}, v{dst+2}", f"v_permlane16_swap_b32 v{dst+1}, v{dst+3}"]
    def swap32(dst):
        return [f"v_permlane32_swap_b32 v{dst}, v{dst+2}", f"v_permlane32_swap_b32 v{dst+1}, v{dst+3}"]
    frs = []
    for b in range(2):
        for t in range(2): frs.append((PKB[b] + 4*t, ACC[2+t][2*b], ACC[2+t][2*b+1], b, t*1024))
        for t in range(2): frs.append((PKB[b] + 8 + 4*t, ACC[4][2*b+t], ACC[5][2*b+t], b, 2048 + t*1024))
    kvstores = [f"buffer_store_dwordx4 {vr(fr[0],4)}, v{VD}, s[36:39], s{S_KV+fr[3]} offen offset:{fr[4]} {os.environ.get('KVPOL', 'sc1')}" for fr in frs]
    NE0 = OPT("NE0", 4)
    packs = []
    prev = None
    for k_, fr in enumerate(frs):
        L = pack2(fr[0], fr[1], fr[2])
        if prev:
            L += swap2(prev[0])
            if DENSE and prev[4] >= 2048: L += ["s_nop 1"] + swap32(prev[0])
            if k_ - 1 < NE0: L.append(kvstores[k_ - 1])
            L.append(f"ds_write_b128 v{VKV}, {vr(prev[0],4)} offset:{prev[3]*4096+prev[4]}")
        packs.append(L)
        prev = fr
    if EARLY:
        f = {i: setup[3*i:3*i+3] for i in range(14)}
        for i in range(4): f[16 + 2*i] = packs[i]
        a(weave(LASTM, f)); stamp(a, 2)
        for L in packs[4:]: a(L)
    else:
        a(weave(LASTM, {i: setup[2*i:2*i+2] for i in range(24)})); stamp(a, 2)
        for L in packs: a(L)
    for i in range(0, 8, 2): a(f"v_pk_mul_f32 v[{96+i}:{97+i}], v[{96+i}:{97+i}], s[58:59]")
    a(swap2(prev[0]))
    if DENSE: a(["s_nop 1"] + swap32(prev[0]))
    a(f"ds_write_b128 v{VKV}, {vr(prev[0],4)} offset:{prev[3]*4096+prev[4]}")
    for i in range(8, 32, 2): a(f"v_pk_mul_f32 v[{96+i}:{97+i}], v[{96+i}:{97+i}], s[58:59]")
    for b in range(2):
        for t in range(2): a(pack2(Q[b] + 4*t, ACC[t][2*b], ACC[t][2*b+1]))
    a(f"""
    s_lshl_b32 s{S_T}, s{S_WH}, 15
    v_add_u32 v{VKV}, s{S_T}, v{VD}
    s_add_u32 s{S_M0}, s{S_M0}, 65536
    """)
    for k_ in range(1, 4):
        a(f"s_add_u32 s{S_T}, s{S_WR}, {k_}\ns_and_b32 s{S_T}, s{S_T}, 3\ns_lshl_b32 s{S_T}, s{S_T}, 13\nv_add_u32 v{VT+1+k_}, s{S_T}, v{VKV}")
    for b in range(2):
        for t in range(2): a(swap2(Q[b] + 4*t))
    def rdK(kt, buf): return [f"ds_read_b128 {vr(KF[buf]+4*t,4)}, v{VKV} offset:{kt*4096+t*1024}" for t in range(2)]
    def rdV(kt, buf): return [f"ds_read_b128 {vr(VF[buf]+4*t,4)}, v{VKV} offset:{kt*4096+2048+t*1024}" for t in range(2)]
    def qk(sbuf, kbuf, qt, c=None):
        return [mf32(S[sbuf], KF[kbuf], Q[qt], NM[qt] if c is None else c), mf32(S[sbuf], KF[kbuf]+4, Q[qt]+4)]
    def pv(sbuf, vbuf, qt, t):
        if DENSE: return mf32(O[qt], VF[vbuf] + 4*t, S[sbuf] + 4*t)
        return f"v_smfmac_f32_32x32x32_bf16 {vr(O[qt],16)}, {vr(VF[vbuf]+4*t,4)}, {vr(S[sbuf]+8*t,8)}, v{IDX}"
    def rs(sbuf, qt, t):
        if DENSE: return None if t == 0 else f"v_smfmac_f32_16x16x64_bf16 {vr(LA[qt],4)}, {vr(ONES,4)}, {vr(S[sbuf],8)}, v{IDX}"
        return f"v_smfmac_f32_16x16x64_bf16 {vr(LA[qt],4)}, {vr(ONES,4)}, {vr(S[sbuf]+8*t,8)}, v{IDX}"
    def max_to_nm(m, qt):
        a(f"v_mov_b32 v{m+1}, v{m}")
        a("s_nop 1")
        a(f"v_permlane32_swap_b32 v{m}, v{m+1}")
        a("s_nop 1")
        a(f"v_max_f32 v{m}, v{m}, v{m+1}")
        a(f"v_sub_f32 v{m}, 0, v{m}")
        a(f"v_mov_b32 v{m+1}, v{m}")
        for i in range(0, 16, 2): a(f"v_mov_b64 v[{NM[qt]+i}:{NM[qt]+i+1}], v[{m}:{m+1}]")
    assert NE0 == 4
    a("s_nop 0")
    a([mf32(S[qt], PKB[0] + 4*t, Q[qt] + 4*t, "0" if t == 0 else None) for qt in range(2) for t in range(2)])
    a(f"s_waitcnt vmcnt(4)\ns_mov_b32 s{S_T}, {SPIN_MAX}")
    a.label("L_nonce")
    a(f"""
    v_readfirstlane_b32 s{NON}, v{FDAT}
    v_readfirstlane_b32 s{NON+1}, v{FDAT+1}
    s_sub_u32 s{S_T}, s{S_T}, 1
    s_cbranch_scc1 L_nonce_done
    s_cmp_eq_u32 s{NON}, 0
    s_cbranch_scc1 L_nonce_retry
    """)
    a.label("L_nonce_done")
    RARE.append(("L_nonce_retry", [f"buffer_load_dwordx2 v[{FDAT}:{FDAT+1}], v{ZERO}, s[52:55], 0 offen sc1", "s_waitcnt vmcnt(0)"], "L_nonce"))
    a("s_nop 3")
    for qt in range(2):
        m_, src = VT + 6*qt, S[qt]
        a(f"v_max3_f32 v{m_}, v{src}, v{src+1}, v{src+2}")
        for i in range(3, 15, 2): a(f"v_max3_f32 v{m_}, v{m_}, v{src+i}, v{src+i+1}")
        a(f"v_max_f32 v{m_}, v{m_}, v{src+15}")
        max_to_nm(m_, qt)
        a("s_nop 1")
        if qt == 0: a([mf32(S[0], PKB[0], Q[0], NM[0]), mf32(S[0], PKB[0] + 4, Q[0] + 4)])
    if OPT("G1PRIO", "") == "A": a("s_setprio 0")
    if os.environ.get("PRIO", "1"): a(f"s_cmp_eq_u32 s{S_WH}, {os.environ.get('PRIO', '1')[0]}\ns_cbranch_scc0 L_noprio\ns_setprio 1"); a.label("L_noprio")
    stamp(a, 3)
    S_SO2 = S_ST2
    def dma2():
        G = []
        for j in range(8):
            g = []
            if j == 0: g.append(f"s_mov_b32 m0, s{S_M0}"); g.append("s_nop 0")
            g.append(f"buffer_load_dwordx4 v{VDE if j%2==0 else VDO}, s[8:11], s{S_SO} offen offset:{(j%4)*1024} sc1 lds")
            if j == 3: g += [f"s_add_u32 m0, s{S_M0}, 4096", f"s_mov_b32 s{S_SO}, s{S_SO2}"]
            elif j < 7: g.append(f"s_add_u32 s{S_SO}, s{S_SO}, s{S_ST1}")
            else: g.append(f"s_xor_b32 s{S_M0}, s{S_M0}, 65536")
            G.append(g)
        return G
    def blk():
        L = []
        for g, dst in ((0, S_SO), (1, S_SO2)):
            L += [f"s_lshl_b32 s{dst}, s{S_IT}, 1"]
            if g: L += [f"s_add_u32 s{dst}, s{dst}, 1"]
            L += [f"s_cmp_ge_u32 s{dst}, 7", f"s_cselect_b32 s{S_T}, 7, 0", f"s_cselect_b32 s{S_GRP}, 4096, 0", f"s_sub_u32 s{dst}, s{dst}, s{S_T}",
                  f"s_cmp_ge_u32 s{dst}, s{S_B}", f"s_addc_u32 s{dst}, s{dst}, 0", f"s_lshl_b32 s{dst}, s{dst}, 15", f"s_add_u32 s{dst}, s{dst}, s{S_GRP}"]
        return L
    def flagst(voff, soff, imm=0):
        return ["s_mov_b64 exec, 1", f"buffer_store_dwordx2 v[{FDAT}:{FDAT+1}], v{voff}, s[36:39], s{soff} offen offset:{imm} sc1", "s_mov_b64 exec, -1"]
    ATX = os.environ.get("ATX", "")
    PAT = [int(c) for c in os.environ.get('PAT', '333232')]
    def qk_r(sbuf, kreg, qt, c=None):
        return [mf32(S[sbuf], kreg, Q[qt], NM[qt] if c is None else c), mf32(S[sbuf], kreg+4, Q[qt]+4)]
    def pv_r(sbuf, vreg, qt, t):
        if DENSE: return mf32(O[qt], vreg + 4*t, S[sbuf] + 4*t)
        return f"v_smfmac_f32_32x32x32_bf16 {vr(O[qt],16)}, {vr(vreg+4*t,4)}, {vr(S[sbuf]+8*t,8)}, v{IDX}"
    FILL = []
    def slot(sb, qa, nxt, prv, vreg, pre, extra=()):
        e = [f"v_exp_f32 v{S[sb]+i}, v{S[sb]+i}" for i in range(16)]
        m = (qk_r((sb+1) % 4, nxt[0], nxt[1]) if nxt else [None, None]) + \
            ([pv_r((sb-1) % 4, prv[0], prv[1], 1), rs((sb-1) % 4, prv[1], 1)] if prv else [None, None]) + [pv_r(sb, vreg, qa, 0), rs(sb, qa, 0)]
        extra = list(extra)
        if DENSE:
            c = [f"v_cvt_pk_bf16_f32 v{S[sb]+i}, v{S[sb]+2*i}, v{S[sb]+2*i+1}" for i in range(8)]
            grp, ie, ic, last = [], 0, 0, ""
            for g_ in os.environ.get("DG", "eee|eceec|eecec|eec|eece|eecc").split("|"):
                cur = []
                for ch in g_:
                    if ch == "e": cur.append(e[ie]); ie += 1
                    else:
                        assert ie >= 2*ic + 2 and not (last == "e" and ie == 2*ic + 2), "cvt too early"
                        cur.append(c[ic]); ic += 1
                    last = ch
                if len(grp) < 4: last = "m"
                grp.append(cur)
                if len(grp) == 4: assert ic >= 4 and (ic > 4 or cur[-1].startswith("v_exp") and cur[-2].startswith("v_exp"))
            assert ie == 16 and ic == 8 and len(grp) == 6
        else:
            grp, k = [], 0
            for i in range(6): grp.append(e[k:k+PAT[i]]); k += PAT[i]
        for i in range(6):
            if pre.get(i): a(pre[i])
            elif m[i]:
                if FILL: a(FILL.pop(0))
                elif "n" not in ATX: a("s_nop 0")
            if m[i]: a(m[i])
            a(grp[i])
            ne = (len(extra) + 5 - i) // (6 - i)
            a(extra[:ne]); extra = extra[ne:]
    def stage(hooks, pres, first, barwait):
        KA = [None, VT+2, VT+3, VT+4]
        for kt in range(8):
            for qa in range(2):
                n = 2*kt + qa
                pre = {i: [] for i in range(6)}
                if n in hooks: hooks[n]()
                kr = lambda t: PKB[t] if first and t < 2 else KF[t % 2]
                vr_ = lambda t: PKB[t] + 8 if first and 0 <= t < 2 else VF[t % 2]
                if qa == 0:
                    if kt == 7:
                        barwait()
                        pre[0] += [f"v_xor_b32 v{VKV}, 0x10000, v{VKV}", "s_nop 0"]
                    elif not (first and kt < 2):
                        pre[0] += ["s_waitcnt lgkmcnt(0)"]
                    if first and kt < 7:
                        if kt >= 1:
                            t_ = kt + 1
                            pre[1] += [x.replace(f"v{VKV} ", f"v{KA[t_//2]} ") for x in rdK(t_ % 2, t_ % 2)]
                            pre[4] += [x.replace(f"v{VKV} ", f"v{KA[t_//2]} ") for x in rdV(t_ % 2, t_ % 2)]
                    else:
                        pre[1] += rdK((kt+1) % 8, (kt+1) % 2)
                        pre[4] += rdV((kt+1) % 8, (kt+1) % 2)
                elif not (first and kt == 0):
                    pre[0] += ["s_waitcnt lgkmcnt(2)"]
                for i, L in pres.get(n, {}).items(): pre[i] += L
                slot(n % 4, qa, (kr(kt + qa) if kt + qa < 8 else KF[0], 1 - qa), None if first and n == 0 else (vr_(kt - 1 + qa), 1 - qa), vr_(kt), pre)
        assert not FILL
    NPUB, NPOLL = OPT("NPUB", 4), OPT("NPOLL", 8)
    ST0 = os.environ.get("ST0", "") == "1"
    def h_pub():
        a("s_waitcnt vmcnt(0)"); a(flagst(FOFF+1, S_FL))
        if ST0: stamp(a, 4)
    def h_poll0():
        poll("L_poll0", S_FL, f"s[{MSK}:{MSK+1}]")
        a(f"s_mov_b32 s{S_IT}, 0\ns_mov_b32 s{MSK}, 0xff00ff00\ns_mov_b32 s{MSK+1}, s{MSK}"); a(blk())
        if ST0: stamp(a, 5)
    def bw0():
        a("s_waitcnt vmcnt(3) lgkmcnt(0)\ns_barrier")
        stamp_stage(a, "0")
        if ST0: stamp(a, 6)
    G = dma2()
    pres = {NPOLL + i: {2: G[3*i], 3: G[3*i+1], 5: G[3*i+2] if 3*i+2 < 8 else []} for i in range(3)}
    for i, n_ in enumerate((11, 12, 13, 15)): pres.setdefault(n_, {})[3] = [kvstores[4 + i]]
    stage({2: lambda: a("s_waitcnt lgkmcnt(0)\ns_barrier"), NPUB: h_pub, NPOLL: h_poll0}, pres, True, bw0)
    a(f"s_mov_b32 s{S_IT}, 1")
    S_PW = 97
    if OPT("PFWS", 0):
        a(f"""
        s_and_b32 s{S_PW}, s{S_A}, 3
        s_lshl_b32 s{S_PW}, s{S_PW}, 3
        s_add_u32 s{S_PW}, s{S_PW}, s{S_W}
        s_lshl_b32 s{S_PW}, s{S_PW}, 16
        v_bfe_u32 v12, v0, 1, 3
        v_lshlrev_b32 v12, 11, v12
        v_and_b32 v13, 1, v0
        v_lshl_add_u32 v12, v13, 7, v12
        """)
    a.raw(".p2align 6")
    a.label("L_at")
    def rare(lab, cond, body):
        if OPT("OOL", 0):
            a(cond); a(f"s_cbranch_scc1 {lab}"); a.label(lab + "_ret"); RARE.append((lab, body, lab + "_ret"))
        else:
            a(cond); a(f"s_cbranch_scc0 {lab}_skip")
            body() if callable(body) else a(body)
            a.label(lab + "_skip")
    it13 = [f"s_andn2_b32 s{S_T}, s{S_IT}, 2", f"s_cmp_eq_u32 s{S_T}, 1"]
    def h_ld():
        rare("L_r_ld", it13, [f"buffer_load_dwordx2 v[{PDAT}:{PDAT+1}], v{FOFF}, s[36:39], s{S_FL} offen sc1"])
        b = blk()
        FILL.extend([b[i:i+2] for i in range(0, len(b), 2)])
    def h_dma():
        def body():
            poll("L_poll2", S_FL, f"s[{MSK}:{MSK+1}]", True)
            a(f"s_mov_b64 s[{MSK}:{MSK+1}], 0")
        rare("L_r_poll", it13, body)
    def h_pfwo():
        rare("L_r_pfwo", [f"s_cmp_eq_u32 s{S_IT}, {OPT('PFWIT', 4)}"], f"""
        s_and_b32 s{S_T}, s{S_A}, 3
        s_lshl_b32 s{S_T}, s{S_T}, 3
        s_add_u32 s{S_T}, s{S_T}, s{S_W}
        s_lshl_b32 s{S_T}, s{S_T}, 16
        v_lshrrev_b32 v{VT}, 1, v0
        v_lshlrev_b32 v{VT}, 11, v{VT}
        v_and_b32 v{VT+1}, 1, v0
        v_lshl_add_u32 v{VT}, v{VT+1}, 7, v{VT}
        buffer_load_dword v13, v{VT}, s[12:15], s{S_T} offen {os.environ.get('NTO', '')}
        """ + (f"""
        s_lshl_b32 s{S_T}, s{S_P}, 3
        s_add_u32 s{S_T}, s{S_T}, s{S_B}
        s_lshl_b32 s{S_T}, s{S_T}, 2
        s_add_u32 s{S_T}, s{S_T}, s{S_WR}
        s_lshl_b32 s{S_T}, s{S_T}, 6
        s_bfe_u32 s60, s{S_HB}, 0x50012
        s_add_u32 s{S_T}, s{S_T}, s60
        s_lshl_b32 s{S_T}, s{S_T}, 11
        s_add_u32 s{S_T}, s{S_T}, {OWS}
        v_and_b32 v{VT+2}, 15, v0
        v_lshlrev_b32 v{VT+2}, 7, v{VT+2}
        v_bfe_u32 v{VT+3}, v0, 4, 1
        v_lshl_add_u32 v{VT+2}, v{VT+3}, 16, v{VT+2}
        buffer_load_dword v{VT+3}, v{VT+2}, s[36:39], s{S_T} offen sc1
        """ if OPT("PREO", 0) else "") + (f"""
        s_mov_b32 s60, s28
        s_mov_b32 s61, s29
        s_mov_b32 s62, 0x800000
        s_mov_b32 s63, 0x20000
        s_lshl_b32 s{S_T}, s{S_A}, 3
        s_add_u32 s{S_T}, s{S_T}, s{S_W}
        s_lshl_b32 s{S_T}, s{S_T}, 5
        s_add_u32 s{S_T}, s{S_T}, s{S_P}
        s_lshl_b32 s{S_T}, s{S_T}, 3
        s_add_u32 s{S_T}, s{S_T}, s{S_B}
        s_lshl_b32 s{S_T}, s{S_T}, 8
        v_bfe_u32 v{VT+4}, v0, 1, 4
        v_lshlrev_b32 v{VT+4}, 12, v{VT+4}
        v_and_b32 v{VT+5}, 1, v0
        v_lshl_add_u32 v{VT+4}, v{VT+5}, 7, v{VT+4}
        buffer_load_dword v{VT+5}, v{VT+4}, s[60:63], s{S_T} offen sc1
        """ if OPT("PREOUT", 0) else "") + (f"""
        s_getpc_b64 s[60:61]
        v_and_b32 v{VT}, 15, v0
        s_lshl_b32 s{S_T}, s{S_W}, 4
        v_add_u32 v{VT}, s{S_T}, v{VT}
        v_lshlrev_b32 v{VT}, 7, v{VT}
        v_min_u32 v{VT}, {OPT("IPF2MAX", 10000)}, v{VT}
        global_load_dword v{VT+1}, v{VT}, s[60:61]
        """ if OPT("IPF2", 0) else ""))
    def bw1():
        a("s_waitcnt vmcnt(0) lgkmcnt(0)\ns_barrier" if not OPT("NOBAR", 0) else "s_waitcnt vmcnt(0) lgkmcnt(0)")
        rare("L_r_pub1", [f"s_cmp_eq_u32 s{S_IT}, 1"], flagst(FOFF+1, S_FL, 64))
        stamp_stage(a, f"s{S_IT}")
    G = dma2()
    pres = {3 + i: {2: G[2*i], 5: G[2*i+1]} for i in range(4)}
    hk = {0: h_ld, 15: h_pfwo, 3: h_dma}
    if OPT("PFWS", 0):
        del hk[15]
        pres.setdefault(OPT("PFWN", 15), {})[3] = [f"buffer_load_dword v13, v12, s[12:15], s{S_PW} offen", f"s_add_u32 s{S_PW}, s{S_PW}, 16384"]
    PW_ = os.environ.get("PREW", "")
    if PW_:
        body = []
        if "o" in PW_:
            body += f"""
            s_lshl_b32 s{S_T}, s{S_P}, 3
            s_add_u32 s{S_T}, s{S_T}, s{S_B}
            s_lshl_b32 s{S_T}, s{S_T}, 2
            s_add_u32 s{S_T}, s{S_T}, s{S_WR}
            s_lshl_b32 s{S_T}, s{S_T}, 6
            s_bfe_u32 s60, s{S_HB}, 0x50012
            s_add_u32 s{S_T}, s{S_T}, s60
            s_lshl_b32 s{S_T}, s{S_T}, 11
            s_add_u32 s{S_T}, s{S_T}, {OWS + 65536}
            buffer_store_dwordx4 v[32:35], v{VD}, s[36:39], s{S_T} offen sc1
            buffer_store_dwordx4 v[32:35], v{VD}, s[36:39], s{S_T} offen offset:1024 sc1
            """.strip().split("\n")
        if "u" in PW_:
            body += f"""
            s_mov_b32 s60, s28
            s_mov_b32 s61, s29
            s_mov_b32 s62, 0x800000
            s_mov_b32 s63, 0x20000
            s_lshl_b32 s{S_T}, s{S_A}, 3
            s_add_u32 s{S_T}, s{S_T}, s{S_W}
            s_lshl_b32 s{S_T}, s{S_T}, 5
            s_add_u32 s{S_T}, s{S_T}, s{S_P}
            s_lshl_b32 s{S_T}, s{S_T}, 3
            s_add_u32 s{S_T}, s{S_T}, s{S_B}
            s_lshl_b32 s{S_T}, s{S_T}, 8
            v_lshrrev_b32 v{VT}, 4, v0
            v_lshlrev_b32 v{VT}, 12, v{VT}
            v_and_b32 v{VT+1}, 15, v0
            v_lshl_add_u32 v{VT}, v{VT+1}, 4, v{VT}
            """.strip().split("\n")
            for j in range(4):
                body += [f"buffer_store_dwordx4 v[32:35], v{VT}, s[60:63], s{S_T} offen sc0 sc1", f"s_add_u32 s{S_T}, s{S_T}, 16384"]
        hk[8] = lambda: rare("L_r_prew", [f"s_cmp_eq_u32 s{S_IT}, {OPT('PREWIT', 5)}"], body)
    PA = os.environ.get("PRIOALT", "4,9")
    if PA:
        def flip(lab, wh):
            def f(): a(f"s_setprio 0\ns_cmp_eq_u32 s{S_WH}, {wh}\ns_cbranch_scc0 {lab}\ns_setprio 1"); a.label(lab)
            return f
        for k_, x in enumerate(PA.split(",")):
            assert 4 <= int(x) <= 14
            hk[int(x)] = flip(f"L_pa{k_}", k_ % 2)
    stage(hk, pres, False, bw1)
    a(f"""
    s_add_u32 s{S_IT}, s{S_IT}, 1
    s_cmp_lt_u32 s{S_IT}, 7
    s_cbranch_scc1 L_at
    """)
    S_OO, S_FO, S_BAD = 47, 49, 60
    VOA = VT + 6
    setup7 = f"""
    s_mov_b32 s8, s12
    s_mov_b32 s9, s13
    s_mov_b32 s10, s14
    s_lshl_b32 s{S_SO}, s{S_W}, 16
    s_add_u32 s{S_SO2}, s{S_SO}, 32768
    s_mov_b32 s{S_ST1}, 7168
    v_lshrrev_b32 v{VDE}, 4, v0
    v_lshlrev_b32 v{VDO}, 1, v{VDE}
    v_and_b32 v{VT}, 15, v0
    v_xor_b32 v{VDO}, v{VDO}, v{VT}
    v_lshlrev_b32 v{VDE}, 11, v{VDE}
    v_lshl_add_u32 v{VDE}, v{VDO}, 4, v{VDE}
    v_xor_b32 v{VDO}, 128, v{VDE}
    s_lshl_b32 s{S_T}, s{S_P}, 3
    s_add_u32 s{S_T}, s{S_T}, s{S_B}
    s_lshl_b32 s{S_T}, s{S_T}, 2
    s_add_u32 s{S_T}, s{S_T}, s{S_WR}
    s_lshl_b32 s{S_FO}, s{S_T}, 8
    s_lshl_b32 s{S_OO}, s{S_T}, 17
    s_bfe_u32 s{S_T}, s{S_HB}, 0x50012
    s_lshl_b32 s{S_GRP}, s{S_T}, 3
    s_add_u32 s{S_FO}, s{S_FO}, s{S_GRP}
    s_add_u32 s{S_FO}, s{S_FO}, {FO}
    s_lshl_b32 s{S_T}, s{S_T}, 11
    s_add_u32 s{S_OO}, s{S_OO}, s{S_T}
    s_add_u32 s{S_OO}, s{S_OO}, {OWS}
    s_add_u32 s{S_OO+1}, s{S_OO}, 65536
    v_and_b32 v{VOA}, 15, v0
    v_lshlrev_b32 v{VOA}, 4, v{VOA}
    v_lshrrev_b32 v{VOA+1}, 5, v0
    v_lshl_add_u32 v{VOA}, v{VOA+1}, 8, v{VOA}
    v_bfe_u32 v{VOA+1}, v0, 4, 1
    v_lshl_add_u32 v{VOA}, v{VOA+1}, 10, v{VOA}
    """.strip().split("\n")
    OPK = [PK, PK + 8]
    def lbcast(qt):
        if RSZ < 2: return []
        return [f"v_mov_b32 v{LA[qt]+1}, v{LA[qt]}", "s_nop 1", f"v_permlane32_swap_b32 v{LA[qt]}, v{LA[qt]+1}"]
    def check(qt):
        t = VT + 2*qt
        o = O[qt]
        return (lbcast(qt) + [f"v_pk_mul_f32 v[{t}:{t+1}], v[{o}:{o+1}], 0"] +
                [f"v_pk_fma_f32 v[{t}:{t+1}], v[{o+i}:{o+i+1}], 0, v[{t}:{t+1}]" for i in range(2, 16, 2)] +
                [f"v_add_f32 v{t}, v{t}, v{t+1}", f"v_add_f32 v{t}, v{t}, v{LA[qt]}", f"v_cmp_gt_f32 s[{S_BAD+2*qt}:{S_BAD+2*qt+1}], s58, v{t}"])
    def finish(qt):
        t = VT + 2*qt
        o = O[qt]
        return ([f"v_rcp_f32 v{t}, v{LA[qt]}", "s_nop 0"] +
                [f"v_pk_mul_f32 v[{o+i}:{o+i+1}], v[{o+i}:{o+i+1}], v[{t}:{t+1}] op_sel_hi:[1,0]" for i in range(0, 16, 2)] +
                [f"v_cvt_pk_bf16_f32 v{OPK[qt]+i}, v{o+2*i}, v{o+2*i+1}" for i in range(8)] +
                [f"buffer_store_dwordx4 {vr(OPK[qt]+4*t_,4)}, v{VOA}, s[36:39], s{S_OO+qt} offen offset:{t_*512} {os.environ.get('KVPOL', 'sc1')}" for t_ in range(2)])
    OA, OB = 244, 245
    WA3 = [[248, 249, 250, 251], [252, 253, 254, 255]]
    FO_ = [[16 + 16*buf + 4*i for i in range(4)] for buf in range(2)]
    FW3 = [[48 + 16*buf + 4*nb for nb in range(4)] for buf in range(2)]
    AC3 = [[80 + 16*i + 4*nb for nb in range(4)] for i in range(4)]
    RX = 144
    T3 = 176
    S_INC, S_M3, S_ME, S_MS, S_R3, S_C3, S_F3, S_O3 = 52, 53, 54, 55, 56, 57, 100, 59
    setup3 = f"""
    s_bfe_u32 s{S_R3}, s{S_W}, 0x10001
    s_and_b32 s{S_C3}, s{S_W}, 1
    s_lshl_b32 s{S_T}, s{S_P}, 4
    s_add_u32 s{S_T}, s{S_T}, s{S_A}
    s_lshl_b32 s{S_T}, s{S_T}, 2
    s_add_u32 s{S_T}, s{S_T}, s{S_WR}
    s_lshr_b32 s{S_F3}, s{S_T}, 1
    s_lshl_b32 s{S_F3}, s{S_F3}, 8
    s_add_u32 s{S_F3}, s{S_F3}, {FO}
    s_lshl_b32 s{S_T}, s{S_T}, 16
    s_add_u32 s{S_T}, s{S_T}, {OWS}
    s_add_u32 s60, s32, s{S_T}
    s_addc_u32 s61, s33, 0
    s_lshl_b32 s{S_M3}, s{S_WR}, 12
    s_lshl_b32 s{S_O3}, s{S_WR}, 15
    s_add_u32 s{S_O3}, s{S_O3}, {6*131072}
    s_cmp_eq_u32 s{S_WH}, 0
    s_cselect_b64 vcc, -1, 0
    s_cselect_b32 s8, s60, s12
    s_cselect_b32 s9, s61, s13
    s_cselect_b32 s10, 0x10000, s14
    s_cselect_b32 s{S_O3}, 0, s{S_O3}
    s_cselect_b32 s{S_ST1}, 0, 7168
    s_cselect_b32 s{S_INC}, 12, 17
    s_lshl_b32 s{S_INC}, 1, s{S_INC}
    v_lshlrev_b32 v{T3+1}, 4, v0
    v_cndmask_b32 v{VDE}, v{VDE}, v{T3+1}, vcc
    v_cndmask_b32 v{VDO}, v{VDO}, v{T3+1}, vcc
    s_lshl_b32 s{S_T}, s{S_R3}, 1
    s_add_u32 s{S_T}, s{S_T}, s{S_WH}
    s_lshl_b32 s{S_T}, s{S_T}, 1
    s_add_u32 s{S_T}, s{S_T}, s{S_WH}
    s_lshl_b32 s{S_T}, s{S_T}, 11
    s_add_u32 s{S_T}, s{S_T}, 65536
    v_add_u32 v{OA}, s{S_T}, v{T3+1}
    v_xor_b32 v{OB}, 4096, v{OA}
    v_bfe_u32 v{T3}, v0, 2, 3
    v_lshrrev_b32 v{T3+1}, 5, v0
    v_lshl_add_u32 v{T3+1}, v{T3+1}, 4, v{T3}
    s_lshl_b32 s{S_T}, s{S_WH}, 5
    v_add_u32 v{T3+1}, s{S_T}, v{T3+1}
    v_lshlrev_b32 v{T3+1}, 8, v{T3+1}
    v_bfe_u32 v{T3+2}, v0, 1, 1
    s_lshl_b32 s{S_T}, s{S_C3}, 3
    v_add_u32 v{T3+2}, s{S_T}, v{T3+2}
    v_lshlrev_b32 v{T3}, 1, v{T3}
    v_xor_b32 v{T3+2}, v{T3+2}, v{T3}
    v_lshl_add_u32 v{T3+1}, v{T3+2}, 4, v{T3+1}
    v_and_b32 v{T3+2}, 1, v0
    v_lshl_add_u32 v{WA3[0][0]}, v{T3+2}, 3, v{T3+1}
    v_and_b32 v{FOFF}, 31, v0
    v_lshlrev_b32 v{FOFF}, 3, v{FOFF}
    """.replace(f"v{T3+2}", f"v{VT+5}").replace(f"v{T3+1}", f"v{VT+4}").replace(f"v{T3}", f"v{VT+3}").strip().split("\n")
    setup3 += [f"v_xor_b32 v{WA3[0][nb]}, {32*nb}, v{WA3[0][0]}" for nb in range(1, 4)]
    setup3 += [f"v_add_u32 v{WA3[1][nb]}, 0x20000, v{WA3[0][nb]}" for nb in range(4)]
    NS3 = next(i for i, x in enumerate(setup3) if 'v_bfe_u32' in x)
    seq = [(0, 0), (0, 1)] + [(k_, 0) for k_ in range(1, 8)] + [(k_, 1) for k_ in range(1, 8)]
    KB, VB = [0], [0]
    for m_ in range(1, 16):
        flip = seq[m_][0] != seq[m_-1][0]
        KB.append(KB[-1] ^ flip); VB.append(VB[-1] ^ flip)
    G = dma2()
    LQ = [("V", 0)]
    for m_ in range(16):
        stamp_stage(a, "7") if m_ == 14 else None
        pre = {i: [] for i in range(6)}
        def need(tag):
            if tag in LQ:
                k_ = LQ.index(tag); n_ = 2*(len(LQ) - 1 - k_); del LQ[:k_ + 1]
                return [f"s_waitcnt lgkmcnt({n_})"]
            return []
        pre[0] += need(("K", m_ + 1))
        if m_ + 2 < 16 and seq[m_+2][0] != seq[m_+1][0]: pre[1] += rdK(seq[m_+2][0], KB[m_+2]); LQ.append(("K", m_ + 2))
        pre[4] += need(("V", m_))
        if m_ + 1 < 16 and seq[m_+1][0] != seq[m_][0]: pre[4] += rdV(seq[m_+1][0], VB[m_+1]); LQ.append(("V", m_ + 1))
        extra = []
        if m_ == 0: extra = setup7[:13] + ["s_mov_b32 s58, 0x5f800000"]
        if m_ == 1: extra = setup7[13:]
        if OPT("EARLYW", 1):
            G45 = [[f"s_lshl_b32 s{S_T}, s{S_W}, 12", f"s_add_u32 m0, s{S_T}, 131072", f"s_lshl_b32 s{S_SO}, s{S_W}, 15", f"s_add_u32 s{S_SO}, s{S_SO}, {4*131072}"]]
            for j_ in range(4):
                x_ = [f"buffer_load_dwordx4 v{VDE if j_%2==0 else VDO}, s[8:11], s{S_SO} offen offset:{j_*1024} lds", f"s_add_u32 s{S_SO}, s{S_SO}, s{S_ST1}"]
                if j_ == 0: G45[0] += x_
                else: G45.append(x_)
            GA = G + G45
            if 1 <= m_ <= 3:
                for k_, i_ in enumerate((0, 2, 3, 5)): pre[i_] += GA[4*(m_-1) + k_]
            if m_ == 1: extra = []
            if m_ == 4: extra = setup7[13:]
        else:
            if 2 <= m_ <= 5: pre[2] += G[2*(m_-2)]; pre[5] += G[2*(m_-2)+1]
            if m_ == 6:
                pre[2] += [f"s_lshl_b32 s{S_T}, s{S_W}, 12", f"s_add_u32 m0, s{S_T}, 131072", f"s_lshl_b32 s{S_SO}, s{S_W}, 15", f"s_add_u32 s{S_SO}, s{S_SO}, {4*131072}"]
            if m_ in (6, 7):
                for i_, j_ in ((3, 2*(m_-6)), (5, 2*(m_-6)+1)):
                    pre[i_] += [f"buffer_load_dwordx4 v{VDE if j_%2==0 else VDO}, s[8:11], s{S_SO} offen offset:{j_*1024} lds", f"s_add_u32 s{S_SO}, s{S_SO}, s{S_ST1}"]
        if m_ == 8: extra = setup3[:NS3 // 2]
        if m_ == 9: extra = setup3[NS3 // 2:NS3]
        if m_ == 12: extra = setup3[NS3:]
        if m_ == 10: extra = check(0)
        if m_ == 11: extra = finish(0)
        slot(m_ % 4, seq[m_][1], (KF[KB[m_+1]], seq[m_+1][1]) if m_ < 15 else None,
             (VF[VB[m_-1]], seq[m_-1][1]) if m_ else (VF[1], 1), VF[VB[m_]], pre, extra)
    a("s_nop 1")
    a(pv(3, VB[15], 1, 1)); a(rs(3, 1, 1))
    if not ST0: stamp(a, 4)
    if ST3: stamp(a, 1, True)
    a("s_nop 7\ns_nop 3")
    a(check(1))
    a(f"""
    s_and_b64 vcc, s[{S_BAD}:{S_BAD+1}], s[{S_BAD+2}:{S_BAD+3}]
    s_cmp_eq_u64 vcc, exec
    s_cbranch_scc0 L_fallback
    """)
    a.label("L_fin")
    a(finish(1))
    def wslot(i): return i*16384 if i < 4 else 131072 + (i-4)*16384
    def dma3(mo, mw):
        G = []
        for j in range(4):
            g = []
            if j == 0:
                if mw is None: g += [f"s_add_u32 m0, s{S_M3}, {mo}"]
                else: g += [f"s_cmp_eq_u32 s{S_WH}, 0", f"s_mov_b32 s{S_T}, {mw}", f"s_cmov_b32 s{S_T}, {mo}", f"s_add_u32 m0, s{S_M3}, s{S_T}"]
                g += [f"s_mov_b32 s{S_SO}, s{S_O3}"]
            g.append(f"buffer_load_dwordx4 v{VDE if j%2==0 else VDO}, s[8:11], s{S_SO} offen offset:{j*1024} sc1 lds")
            g.append(f"s_add_u32 s{S_SO}, s{S_SO}, s{S_ST1}" if j < 3 else f"s_add_u32 s{S_O3}, s{S_O3}, s{S_INC}")
            G.append(g)
        return G
    a("s_barrier")
    if ST3: stamp(a, 2, True)
    a("s_waitcnt vmcnt(0)")
    if ST3: stamp(a, 3, True)
    a(flagst(ZERO, S_FO))
    a(f"s_cmp_lg_u32 s{S_WH}, 0\ns_cbranch_scc1 L_p3go")
    if OPT("POLL2", 0):
        P2 = T3 + 4
        ld = lambda r: f"buffer_load_dwordx2 v[{r}:{r+1}], v{FOFF}, s[36:39], s{S_F3} offen sc1"
        a(f"s_mov_b32 s{S_T}, {SPIN_MAX}")
        a(ld(PDAT)); a(f"s_sleep {OPT('PSL2', 3)}")
        a.label("L_pollo")
        for r0, r1 in ((PDAT, P2), (P2, PDAT)):
            a(ld(r1))
            a(f"""
            s_waitcnt vmcnt(1)
            v_cmp_eq_u64 vcc, s[{NON}:{NON+1}], v[{r0}:{r0+1}]
            s_cmp_eq_u64 vcc, exec
            s_cbranch_scc1 L_pollo_done
            """)
        a(f"s_sub_u32 s{S_T}, s{S_T}, 1\ns_cbranch_scc0 L_pollo")
        a.label("L_pollo_done")
    else:
        poll("L_pollo", S_F3)
    if ST3: stamp(a, 4, True)
    PFO_ = OPT("PFO", 0)
    for st in range(4):
        if PFO_ and st == PFO_ - 1:
            a(f"s_lshl_b32 s{S_T}, s{S_B}, 13\nv_lshlrev_b32 v{PDAT}, 7, v0\nbuffer_load_dword v{PDAT+1}, v{PDAT}, s[8:11], s{S_T} offen sc1")
        for g in dma3(65536 + st*16384, None): a(g)
    a(f"s_waitcnt vmcnt({13 if PFO_ > 1 else 12})")
    a.label("L_p3go")
    if ST3: a(f"s_cmp_eq_u32 s{S_WH}, 0\ns_cbranch_scc1 L_st3x"); stamp(a, 4, True); a.label("L_st3x")
    a("s_barrier")
    if OPT("G3PRIO", "") == "0": a("s_setprio 0")
    if not ST0: stamp(a, 5)
    def reads3(s, buf):
        ws_, os_ = s % 6, s % 4
        O_ = [f"ds_read_b128 {vr(FO_[buf][i],4)}, v{OA if i < 2 else OB} offset:{os_*16384 + (i%2)*1024}" for i in range(4)]
        W_ = [f"ds_read_b64_tr_b16 {vr(FW3[buf][nb]+2*u,2)}, v{WA3[ws_//4][nb]} offset:{(ws_%4)*16384 + u*2048}" for nb in range(4) for u in range(2)]
        return W_[0:2] + O_ + W_[2:]
    def mfmas3(buf, first=False, last=False):
        L = [mf16(AC3[i][nb], FW3[buf][nb], FO_[buf][i]) for nb in range(4) for i in range(4)]
        o = os.environ.get("ORD3", "i") if not last else ""
        if o == "i": L = [L[4*(nb if i % 2 == 0 else 3 - nb) + i] for i in range(4) for nb in range(4)]
        if o == "snake": L = [L[4*nb + (i if nb % 2 == 0 else 3 - i)] for nb in range(4) for i in range(4)]
        return [x[:x.rindex(",")] + ", 0" for x in L] if first else L
    a(reads3(0, 0))
    fin_setup = f"""
    s_lshl_b32 s{S_T}, s{S_WH}, 3
    s_add_u32 s{S_T}, s{S_T}, s{S_WR}
    s_lshl_b32 s{S_T}, s{S_T}, 13
    v_lshlrev_b32 v{T3}, 4, v0
    v_add_u32 v{T3}, s{S_T}, v{T3}
    v_xor_b32 v{T3+1}, 0x10000, v{T3}
    s_mov_b32 s12, s28
    s_mov_b32 s13, s29
    s_mov_b32 s14, 0x800000
    s_lshl_b32 s{S_T}, s{S_A}, 2
    s_lshl_b32 s{S_SO}, s{S_R3}, 1
    s_add_u32 s{S_T}, s{S_T}, s{S_SO}
    s_add_u32 s{S_T}, s{S_T}, s{S_WH}
    s_lshl_b32 s{S_T}, s{S_T}, 17
    s_lshl_b32 s{S_SO}, s{S_P}, 11
    s_add_u32 s{S_T}, s{S_T}, s{S_SO}
    s_lshl_b32 s{S_SO}, s{S_B}, 8
    s_add_u32 s{S_T}, s{S_T}, s{S_SO}
    s_lshl_b32 s{S_SO}, s{S_C3}, 7
    s_add_u32 s{S_SO}, s{S_T}, s{S_SO}
    s_add_u32 s{S_SO+1}, s{S_SO}, 65536
    v_and_b32 v{T3+2}, 15, v0
    v_lshlrev_b32 v{T3+2}, 12, v{T3+2}
    v_bfe_u32 v{T3+3}, v0, 4, 1
    v_lshl_add_u32 v{T3+2}, v{T3+3}, 5, v{T3+2}
    v_lshrrev_b32 v{T3+3}, 5, v0
    v_lshl_add_u32 v{T3+2}, v{T3+3}, 4, v{T3+2}
    """.strip().split("\n")
    for s in range(16):
        if s < 15:
            a(f"s_waitcnt vmcnt({8 if s <= 12 else 4 if s == 13 else 0}) lgkmcnt(0)\ns_barrier")
            if s % 2 == 0: stamp_stage(a, str(s // 2), 3)
            r = reads3(s + 1, 1 - s % 2)
            f = {}
            for k_, x in enumerate(r): f.setdefault(min(15, int(k_ * OPT("S3", 1.0))), []).append(x)
            if s <= 11:
                d = dma3(65536 + (s % 4)*16384, wslot(s % 6))
                for k_, i in enumerate([int(x) for x in os.environ.get("D3POS", "0,4,8,12").split(",")]): f[i] = f.get(i, []) + d[k_]
            if s == 14:
                for i in range(14): f[i] = f.get(i, []) + fin_setup[2*i:2*i+2]
            a(weave(mfmas3(s % 2, s == 0), f))
        else:
            a("s_waitcnt lgkmcnt(0)")
            m = mfmas3(1, False, True)
            order = [k_ for k_ in range(16) if k_ % 4 >= 2] + [k_ for k_ in range(16) if k_ % 4 < 2]
            mm = [m[k_] for k_ in order]
            a(mm[:8])
            wr_ = {2*(j % 4) + j//4: f"ds_write_b128 v{T3}, {vr(AC3[2][0]+4*j,4)} offset:{j*1024}" for j in range(8)}
            for k_ in range(8): a(mm[8 + k_]); a(wr_[k_])
    if not ST0: stamp(a, 6)
    a("s_waitcnt lgkmcnt(0)\ns_barrier")
    for j in range(8): a(f"ds_read_b128 {vr(RX+4*j,4)}, v{T3+1} offset:{j*1024}")
    prev = None
    for j in range(5):
        if j < 4:
            qb, np_ = j // 2, j % 2
            t0 = AC3[qb][2*np_]
            a(f"s_waitcnt lgkmcnt({6 - 2*j})")
            for i in range(0, 8, 2): a(f"v_pk_add_f32 v[{t0+i}:{t0+i+1}], v[{t0+i}:{t0+i+1}], v[{RX+8*j+i}:{RX+8*j+i+1}]")
            cur = (16 + 4*j, qb, np_)
            a(pack2(cur[0], t0, t0 + 4))
        else:
            cur = None; a("s_nop 1")
        if prev:
            a(swap2(prev[0]))
            a(f"buffer_store_dwordx4 {vr(prev[0],4)}, v{T3+2}, s[12:15], s{S_SO+prev[1]} offen offset:{prev[2]*64} {os.environ.get('OUTPOL', 'sc0 sc1')}")
        prev = cur
    stamp_flush(a, 7, 1)
    a.label("L_end")
    a("s_endpgm")
    for lab, body, ret in RARE:
        a.label(lab)
        body() if callable(body) else a(body)
        a(f"s_branch {ret}")
    MX = [VT, VT+2]
    a.label("L_fallback")
    a(f"""
    v_mov_b32 v{MX[0]}, 0xff800000
    v_mov_b32 v{MX[1]}, 0xff800000
    s_mov_b32 s{S_IT}, 0
    s_waitcnt vmcnt(0) lgkmcnt(0)
    """)
    a.label("L_fb_max")
    a(f"s_add_u32 s{S_T}, s{S_IT}, s{S_HB}")
    for t in range(2): a(f"buffer_load_dwordx4 {vr(KF[0]+4*t,4)}, v{VD}, s[36:39], s{S_T} offen offset:{t*1024} sc1")
    a("s_waitcnt vmcnt(0)")
    a(qk(0, 0, 0, "0")); a(qk(1, 0, 1, "0"))
    a("s_nop 15")
    for qt in range(2):
        for i in range(0, 16, 2): a(f"v_max3_f32 v{MX[qt]}, v{MX[qt]}, v{S[qt]+i}, v{S[qt]+i+1}")
    a(f"""
    s_add_u32 s{S_IT}, s{S_IT}, 4096
    s_cmp_lt_u32 s{S_IT}, 0x40000
    s_cbranch_scc1 L_fb_max
    """)
    max_to_nm(MX[0], 0); max_to_nm(MX[1], 1)
    for i in range(O[0], LA[1] + 4, 2): a(f"v_mov_b64 v[{i}:{i+1}], 0")
    a(f"s_mov_b32 s{S_IT}, 0")
    a.label("L_fb_main")
    a(f"s_add_u32 s{S_T}, s{S_IT}, s{S_HB}")
    for t in range(2): a(f"buffer_load_dwordx4 {vr(KF[0]+4*t,4)}, v{VD}, s[36:39], s{S_T} offen offset:{t*1024} sc1")
    for t in range(2): a(f"buffer_load_dwordx4 {vr(VF[0]+4*t,4)}, v{VD}, s[36:39], s{S_T} offen offset:{2048+t*1024} sc1")
    a("s_waitcnt vmcnt(0)")
    a(qk(0, 0, 0)); a(qk(1, 0, 1))
    a("s_nop 15")
    for qt in range(2):
        for i in range(16): a(f"v_exp_f32 v{S[qt]+i}, v{S[qt]+i}")
    a("s_nop 1")
    if DENSE:
        for qt in range(2):
            for i in range(8): a(f"v_cvt_pk_bf16_f32 v{S[qt]+i}, v{S[qt]+2*i}, v{S[qt]+2*i+1}")
        a("s_nop 1")
    for qt in range(2):
        for t in range(2):
            a(pv(qt, 0, qt, t))
            if rs(qt, qt, t): a(rs(qt, qt, t))
    a(f"""
    s_add_u32 s{S_IT}, s{S_IT}, 4096
    s_cmp_lt_u32 s{S_IT}, 0x40000
    s_cbranch_scc1 L_fb_main
    s_nop 15
    """)
    a(lbcast(0) + lbcast(1))
    a(finish(0))
    a("s_branch L_fin")
    return f""".p2align 6
.amdhsa_kernel {name}
  .amdhsa_next_free_vgpr {NV}
  .amdhsa_next_free_sgpr 102
  .amdhsa_accum_offset {NV}
  .amdhsa_group_segment_fixed_size 0
  .amdhsa_kernarg_size 72
  .amdhsa_user_sgpr_count 2
  .amdhsa_user_sgpr_kernarg_segment_ptr 1
  .amdhsa_system_sgpr_workgroup_id_x 1
.end_amdhsa_kernel"""

DOC = """
;
"""

def main():
    out = sys.argv[1] if len(sys.argv) > 1 else f"cdna_kernels/{NAME}.s"
    a = Asm()
    k = gen(a)
    hdr = open(f"cdna_kernels/{NAME}.s.ref").read().split("\n")
    hdr = [l for l in hdr if l.startswith(";") and "@launch" not in l]
    hdr.append(f"; @launch grid=(256,1,1) block=(512,1,1) lds={LDS_BYTES}")
    hdr += DOC.strip("\n").split("\n")
    txt = "\n".join(hdr) + '\n.amdgcn_target "amdgcn-amd-amdhsa--gfx950"\n.text\n' + a.text() + '\n.section .rodata,"a"\n' + k + "\n"
    open(out, "w").write(txt)

if __name__ == "__main__":
    main()
```
